```python
import torch

def _softmax(x, axis=-1):
    return torch.softmax(x, dim=axis)
def _gelu(x):
    return torch.nn.functional.gelu(x, approximate="tanh")
def _silu(x):
    return torch.nn.functional.silu(x)
def _sigmoid(x):
    return torch.sigmoid(x)
def _layernorm(x, axis=-1, eps=1e-5):
    m = x.mean(dim=axis, keepdim=True)
    v = x.var(dim=axis, keepdim=True, unbiased=False)
    return (x - m) / torch.sqrt(v + eps)
def _scatter_add(tgt, idx, src, axis=0):
    return tgt.clone().index_add_(axis, idx, src)
def _segment_sum(src, seg, n):
    out = torch.zeros((n,) + src.shape[1:], dtype=src.dtype)
    return out.index_add_(0, seg, src)
def _pad(x, pw):
    flat = tuple(v for pair in reversed(pw) for v in pair)
    return torch.nn.functional.pad(x, flat)

kernel_name = 'gated_mix__ssm_conv_h3__geglu_ffn__prompt'

def setup_inputs():

    _w = (lambda a: (lambda t: t.to(torch.bfloat16) if t.is_floating_point() else t)(torch.as_tensor(a)))
    def _A_setup():
        B, S, D = 1, 2048, 1024
        ks = 4
        return {
            "q": _w((lambda *s: torch.randn(*s, dtype=torch.bfloat16) * 0.05)(B, S, D)),
            "k": _w((lambda *s: torch.randn(*s, dtype=torch.bfloat16) * 0.4)(B, S, D)),
            "v": _w((lambda *s: torch.randn(*s, dtype=torch.bfloat16) * 0.4)(B, S, D)),
            "shift_k": _w((lambda *s: torch.randn(*s, dtype=torch.bfloat16) * 0.4)(D, ks) * 0.5),
            "ssm_k": _w((lambda *s: torch.randn(*s, dtype=torch.bfloat16) * 0.4)(D, S) * (1.0 / S ** 0.5)),
            "ssm_D": _w((lambda *s: torch.randn(*s, dtype=torch.bfloat16) * 0.4)(D)),
        }
    _A_in = _A_setup()

    def _B_setup():
        B, S, D, F = 1, 2048, 1024, 3584
        return {
            "x": _w((lambda *s: torch.randn(*s, dtype=torch.bfloat16) * 0.05)(B, S, D)),
            "w_gate": _w((lambda *s: torch.randn(*s, dtype=torch.bfloat16) * 0.05)(D, F)),
            "w_up": _w((lambda *s: torch.randn(*s, dtype=torch.bfloat16) * 0.05)(D, F)),
            "w_down": _w((lambda *s: torch.randn(*s, dtype=torch.bfloat16) * 0.05)(F, D)),
        }
    _B_in = _B_setup()

    return {
        "A_q": _A_in["q"],
        "A_k": _A_in["k"],
        "A_v": _A_in["v"],
        "A_shift_k": _A_in["shift_k"],
        "A_ssm_k": _A_in["ssm_k"],
        "A_ssm_D": _A_in["ssm_D"],
        "B_x": _B_in["x"],
        "B_w_gate": _B_in["w_gate"],
        "B_w_up": _B_in["w_up"],
        "B_w_down": _B_in["w_down"],
        "gate_w": _w((lambda *s: torch.randn(*s, dtype=torch.bfloat16) * 0.05)(1024) * 16.0),
    }

def reference(A_q, A_k, A_v, A_shift_k, A_ssm_k, A_ssm_D, B_x, B_w_gate, B_w_up, B_w_down, gate_w):
    def _A_ref(q, k, v, shift_k, ssm_k, ssm_D):
        B, S, D = q.shape
        ks = shift_k.shape[-1]
        k_pad = _pad(k, ((0, 0), (ks - 1, 0), (0, 0)))
        k_shift = torch.zeros_like(k)
        for t in range(ks):
            k_shift = k_shift + k_pad[:, t:t + S, :] * shift_k[:, ks - 1 - t][None, None, :]
        kv = k_shift * v
        L = 2 * S
        kv_pad = _pad(kv, ((0, 0), (0, S), (0, 0)))
        kf_pad = _pad(ssm_k, ((0, 0), (0, S)))
        kv_f = (lambda x, axes=(-2,-1): torch.fft.rfft2(x.float(), dim=axes))(kv_pad[:, None, :, :], axes=(1, 2))
        kf_f = (lambda x, axes=(-2,-1): torch.fft.rfft2(x.float(), dim=axes))(kf_pad[:, None, :], axes=(1, 2))
        kf_f = (lambda x, *d: x.permute(*d))(kf_f, 1, 2, 0)
        y_f = kv_f * kf_f[None, :, :, :]
        y = (lambda x, s, axes=(-2,-1): torch.fft.irfft2(x, s=s, dim=axes).to(torch.bfloat16))(y_f, (1, L), axes=(1, 2))[:, 0, :S, :]
        y = y + kv * ssm_D[None, None, :]
        return q * y

    def _B_ref(x, w_gate, w_up, w_down):
        return (_gelu(x @ w_gate) * (x @ w_up)) @ w_down

    x = A_q
    g = _sigmoid((x * gate_w).sum(-1, keepdims=True))
    a = _A_ref(x, A_k, A_v, A_shift_k, A_ssm_k, A_ssm_D)
    b = _B_ref(x, B_w_gate, B_w_up, B_w_down)
    return g * a + (1 - g) * b
```

```python
class A:
    def __init__(self):
        self.lines = []
    def __call__(self, s):
        self.lines.append("    " + s)
    def label(self, s):
        self.lines.append(s + ":")
    def raw(self, s):
        self.lines.append(s)
    def comment(self, s):
        self.lines.append("    ; " + s)
    def text(self):
        return "\n".join(self.lines) + "\n"

def vr(b, n=1):
    return "v%d" % b if n == 1 else "v[%d:%d]" % (b, b + n - 1)
def ar(b, n=1):
    return "a%d" % b if n == 1 else "a[%d:%d]" % (b, b + n - 1)
def sr(b, n=1):
    return "s%d" % b if n == 1 else "s[%d:%d]" % (b, b + n - 1)

def interleave(main, extra, start=0, every=1):
    out = []
    e = 0
    for idx, m in enumerate(main):
        out.append(m)
        if idx >= start and (idx - start) % every == 0 and e < len(extra):
            out.extend(extra[e]); e += 1
    while e < len(extra):
        out.extend(extra[e]); e += 1
    return out

def kernel_header(a, name):
    a.raw(".globl %s" % name)
    a.raw(".p2align 8")
    a.raw(".type %s,@function" % name)
    a.label(name)

def kernel_desc(name, vgpr, sgpr, accum):
    return """.p2align 6
.amdhsa_kernel %s
  .amdhsa_next_free_vgpr %d
  .amdhsa_next_free_sgpr %d
  .amdhsa_accum_offset %d
  .amdhsa_group_segment_fixed_size 0
  .amdhsa_kernarg_size 112
  .amdhsa_user_sgpr_count 2
  .amdhsa_user_sgpr_kernarg_segment_ptr 1
  .amdhsa_system_sgpr_workgroup_id_x 1
.end_amdhsa_kernel
""" % (name, vgpr, sgpr, accum)

def srd(a, d, base, nbytes):
    a("s_mov_b32 s%d, s%d" % (d, base))
    a("s_mov_b32 s%d, s%d" % (d + 1, base + 1))
    a("s_mov_b32 s%d, 0x%x" % (d + 2, nbytes))
    a("s_mov_b32 s%d, 0x00020000" % (d + 3))

def place(main, placed):
    by = {}
    for pos, ins in placed:
        by.setdefault(min(pos, len(main) - 1) if main else 0, []).extend(ins)
    out = []
    if not main:
        for pos in sorted(by): out.extend(by[pos])
        return out
    for idx, m in enumerate(main):
        out.append(m)
        out.extend(by.get(idx, []))
    return out
```

```python
from asmlib import *
from layout import *
from prep import ws_srd

UC = 5184
HC = 4480
WAVE_LDS = 4 * UC + 2 * HC
CONV_LDS = 4 * WAVE_LDS

def gen_conv(a, wg_sreg=2):
    S_G, S_H, S_Z = 4, 8, 12
    sW, sD, sLB = 30, 31, 32
    a("s_load_dwordx2 s[20:21], s[0:1], 32")
    a("s_load_dwordx2 s[22:23], s[0:1], 40")
    a("s_load_dwordx2 s[26:27], s[0:1], 104")
    a("v_lshrrev_b32 v1, 6, v0")
    a("v_and_b32 v0, 63, v0")
    a("s_nop 0")
    a("v_readfirstlane_b32 s%d, v1" % sW)
    a("s_lshl_b32 s%d, s%d, 2" % (sD, wg_sreg))
    a("s_add_u32 s%d, s%d, s%d" % (sD, sD, sW))
    a("s_mul_i32 s%d, s%d, %d" % (sLB, sW, WAVE_LDS))
    a("v_mov_b32 v4, 0"); a("v_mov_b32 v5, 0"); a("v_mov_b32 v6, 0"); a("v_mov_b32 v7, 0")
    a("v_lshlrev_b32 v2, 4, v0")
    a("v_add_u32 v3, s%d, v2" % sLB)
    a("v_cmp_gt_u32 vcc, 16, v0")
    a("s_and_saveexec_b64 s[34:35], vcc")
    for ph in range(2):
        a("ds_write_b128 v3, v[4:7] offset:%d" % (4 * UC + ph * HC))
        a("ds_write_b128 v3, v[4:7] offset:%d" % (4 * UC + ph * HC + HC - 256))
    a("s_mov_b64 exec, s[34:35]")
    a("s_waitcnt lgkmcnt(0)")
    ws_srd(a, S_G, 26, G_OFF, G_BYTES)
    srd(a, S_H, 20, 1024 * 2048 * 2)
    ws_srd(a, S_Z, 26, Z_OFF, Z_BYTES)
    a("s_lshr_b32 s34, s%d, 1" % sD)
    a("s_lshl_b32 s34, s34, 2")
    a("s_load_dword s36, s[22:23], s34")
    a("s_lshl_b32 s34, s%d, 12" % sD)
    for ph in range(2):
        a("s_add_u32 s35, s%d, %d" % (sLB, 4 * UC + ph * HC + (128 - 4 * ph) * 2))
        a("s_mov_b32 m0, s35")
        a("s_nop 0")
        for I in range(4):
            a("buffer_load_dwordx4 v2, s[%d:%d], s34 offen offset:%d lds" % (S_H, S_H + 3, I * 1024))
    a("v_lshrrev_b32 v3, 4, v0")
    a("v_and_b32 v3, 1, v3")
    a("v_lshlrev_b32 v3, 1, v3")
    a("v_xor_b32 v3, v3, v0")
    a("v_lshlrev_b32 v3, 4, v3")
    a("s_mul_i32 s34, s%d, %d" % (sD, G_PITCH))
    for r in range(4):
        a("s_add_u32 s35, s34, %d" % ((3 - r) * 2))
        a("s_add_u32 s37, s%d, %d" % (sLB, r * UC))
        a("s_mov_b32 m0, s37")
        a("s_nop 0")
        for I in range(4):
            a("buffer_load_dwordx4 v3, s[%d:%d], s35 offen offset:%d lds" % (S_G, S_G + 3, I * 1024))
        a("s_add_u32 s37, s37, 4096")
        a("s_add_u32 s35, s35, 4096")
        a("s_mov_b32 m0, s37")
        a("s_nop 0")
        a("buffer_load_dwordx4 v3, s[%d:%d], s35 offen lds" % (S_G, S_G + 3))
    KV = 16
    a("v_and_b32 v8, 15, v0")
    a("v_lshrrev_b32 v9, 4, v0")
    a("v_lshlrev_b32 v10, 7, v9")
    a("v_lshlrev_b32 v11, 3, v8")
    a("v_add_u32 v10, v10, v11")
    a("v_sub_u32 v11, 508, v10")
    a("v_lshlrev_b32 v11, 1, v11")
    for T in range(4):
        a("buffer_load_dwordx4 v[%d:%d], v11, s[%d:%d], s34 offen offset:%d" % (KV + 4 * T, KV + 4 * T + 3, S_G, S_G + 3, (3 - T) * 1024))
    a("v_lshlrev_b32 v12, 1, v10")
    a("v_add_u32 v13, v8, v9")
    a("v_lshlrev_b32 v13, 4, v13")
    a("s_add_u32 s35, s%d, %d" % (sLB, 4 * UC))
    a("v_add_u32 v13, s35, v13")
    a("v_lshrrev_b32 v4, 2, v8")
    a("v_and_b32 v5, 3, v8")
    a("s_movk_i32 s35, %d" % UC)
    a("v_mul_lo_u32 v5, v5, s35")
    a("v_sub_u32 v6, 3, v4")
    a("v_lshlrev_b32 v6, 8, v6")
    a("v_add_u32 v5, v5, v6")
    a("v_add_u32 v5, s%d, v5" % sLB)
    a("v_and_b32 v6, 1, v4")
    a("v_lshlrev_b32 v6, 1, v6")
    a("v_xor_b32 v7, v9, v6")
    a("v_xor_b32 v6, 2, v7")
    a("v_lshlrev_b32 v6, 4, v6")
    a("v_lshlrev_b32 v7, 4, v7")
    a("v_add_u32 v14, v5, v6")
    a("v_add_u32 v15, v5, v7")
    ACC = 32
    for i in range(32): a("v_mov_b32 v%d, 0" % (ACC + i))
    FB = 64
    def reads(n):
        b = FB + (n % 3) * 24
        r = []
        for ph in range(2):
            r.append("ds_read_b128 v[%d:%d], v13 offset:%d" % (b + 4 * ph, b + 4 * ph + 3, ph * HC + 64 * n))
        m = n >> 2
        for T in range(4):
            if n <= 16 * T + 16:
                r.append("ds_read_b128 v[%d:%d], v%d offset:%d" % (b + 8 + 4 * T, b + 11 + 4 * T, 14 + (m & 1), 3072 - 1024 * T + 256 * m + 64 * (n & 3)))
        return r
    def mf(n):
        b = FB + (n % 3) * 24
        r = []
        for T in range(4):
            if n <= 16 * T + 16:
                for ph in range(2):
                    c = ACC + (T * 2 + ph) * 4
                    r.append("v_mfma_f32_16x16x32_bf16 v[%d:%d], v[%d:%d], v[%d:%d], v[%d:%d]" % (c, c + 3, b + 8 + 4 * T, b + 11 + 4 * T, b + 4 * ph, b + 4 * ph + 3, c, c + 3))
        return r
    NS = 65
    a("s_waitcnt vmcnt(4)")
    for i in reads(0): a(i)
    for i in reads(1): a(i)
    for n in range(NS):
        nxt = reads(n + 2) if n + 2 < NS else []
        n1 = len(reads(n + 1)) if n + 1 < NS else 0
        a("s_waitcnt lgkmcnt(%d)" % n1)
        m = mf(n)
        for i in place(m, [(k, [x]) for k, x in enumerate(nxt)]): a(i)
    a("s_waitcnt vmcnt(0) lgkmcnt(0)")
    a("s_and_b32 s34, s%d, 1" % sD)
    a("s_lshl_b32 s35, s36, 16")
    a("s_and_b32 s36, s36, 0xffff0000")
    a("s_cmp_eq_u32 s34, 0")
    a("s_cselect_b32 s36, s35, s36")
    a("s_mov_b32 s35, 0xffff0000")
    a("s_lshl_b32 s34, s%d, 12" % sD)
    a("s_nop 7")
    for T in range(4):
        Y = 64; Kf = 72; O = 80 + 4 * T
        c = ACC + T * 8
        for p in range(4):
            a("v_cvt_pk_bf16_f32 v%d, v%d, v%d" % (88, c + 2 * p, c + 2 * p + 1))
            a("v_lshlrev_b32 v%d, 16, v88" % (Y + 2 * p))
            a("v_and_b32 v%d, s35, v88" % (Y + 2 * p + 1))
        for p in range(4):
            src = KV + 4 * T + (3 - p)
            a("v_and_b32 v%d, s35, v%d" % (Kf + 2 * p, src))
            a("v_lshlrev_b32 v%d, 16, v%d" % (Kf + 2 * p + 1, src))
        for e in range(8):
            a("v_mul_f32 v%d, s36, v%d" % (Kf + e, Kf + e))
        for p in range(4):
            a("v_cvt_pk_bf16_f32 v88, v%d, v%d" % (Kf + 2 * p, Kf + 2 * p + 1))
            a("v_lshlrev_b32 v%d, 16, v88" % (Kf + 2 * p))
            a("v_and_b32 v%d, s35, v88" % (Kf + 2 * p + 1))
        for e in range(8):
            a("v_add_f32 v%d, v%d, v%d" % (Y + e, Y + e, Kf + e))
        for p in range(4):
            a("v_cvt_pk_bf16_f32 v%d, v%d, v%d" % (O + p, Y + 2 * p, Y + 2 * p + 1))
        a("buffer_store_dwordx4 v[%d:%d], v12, s[%d:%d], s34 offen offset:%d" % (O, O + 3, S_Z, S_Z + 3, T * 1024))
```

```python
from asmlib import *

import os
ROT = int(os.environ.get('ROT', '5'))
PD = int(os.environ.get('PD', '6'))
DS0 = int(os.environ.get('DS0', '1'))
DSP = int(os.environ.get('DSP', '4'))
H1_OFF = 0
H1_BYTES = 2048 * 3584 * 2

def gen_gemm1(a, name="g1_kernel", end_label="G1_END", stamps=False, dbg=""):
    def stamp(i):
        if stamps:
            a("s_memtime s[%d:%d]" % (60 + 2 * i, 61 + 2 * i))
    stamp(0)
    S_X, S_WG, S_WU, S_H = 4, 8, 12, 16
    sKX, sKW, sCNT = 20, 21, 22
    sM0 = 32
    sW = 40
    sT = 41
    vXoff = 2
    vWoff = 10
    vXa = 14
    vWa = 18
    vT = 26
    F = [64, 128]

    a("s_load_dwordx2 s[24:25], s[0:1], 0")
    a("s_load_dwordx2 s[26:27], s[0:1], 56")
    a("s_load_dwordx2 s[28:29], s[0:1], 64")
    a("s_load_dwordx2 s[30:31], s[0:1], 104")
    a("s_and_b32 s41, s2, 7")
    a("s_lshr_b32 s42, s2, 3")
    a("s_and_b32 s43, s41, 1")
    a("s_lshl_b32 s43, s43, 2")
    a("s_and_b32 s44, s42, 3")
    a("s_add_u32 s43, s43, s44")
    a("s_lshr_b32 s44, s41, 1")
    a("s_mul_i32 s44, s44, 7")
    a("s_lshr_b32 s45, s42, 2")
    a("s_add_u32 s44, s44, s45")
    if "Z" in dbg:
        a("s_mov_b32 s43, 0")
        a("s_mov_b32 s44, 0")
    if "Y" in dbg:
        a("s_and_b32 s43, s43, 1")
        a("s_and_b32 s44, s44, 1")
    a("s_lshl_b32 s43, s43, 8")
    a("s_lshl_b32 s44, s44, 7")
    a("v_lshrrev_b32 v1, 6, v0")
    a("v_and_b32 v0, 63, v0")
    a("s_nop 0")
    a("v_readfirstlane_b32 s%d, v1" % sW)
    a("s_waitcnt lgkmcnt(0)")
    srd(a, S_X, 24, 2048 * 1024 * 2)
    srd(a, S_WG, 26, 1024 * 3584 * 2)
    srd(a, S_WU, 28, 1024 * 3584 * 2)
    srd(a, S_H, 30, H1_BYTES)
    a("s_lshl_b32 s45, s%d, 13" % sW)
    a("s_lshl_b32 s46, s%d, 12" % sW)
    for b in range(2):
        a("s_add_u32 s%d, s45, 0x%x" % (sM0 + 4 * b + 0, b * 65536))
        a("s_add_u32 s%d, s45, 0x%x" % (sM0 + 4 * b + 1, b * 65536 + 4096))
        a("s_add_u32 s%d, s46, 0x%x" % (sM0 + 4 * b + 2, b * 65536 + 32768))
        a("s_add_u32 s%d, s46, 0x%x" % (sM0 + 4 * b + 3, b * 65536 + 49152))
    t0, t1, t2, t3 = vT, vT + 1, vT + 2, vT + 3
    a("v_lshrrev_b32 v%d, 3, v0" % t0)
    a("s_lshl_b32 s45, s%d, 6" % sW)
    a("s_add_u32 s45, s45, s43")
    a("v_add_u32 v%d, s45, v%d" % (t0, t0))
    a("v_lshlrev_b32 v%d, 11, v%d" % (t0, t0))
    a("v_and_b32 v%d, 7, v0" % t1)
    a("v_lshrrev_b32 v%d, 4, v0" % t2)
    a("v_xor_b32 v%d, v%d, v%d" % (t1, t1, t2))
    a("v_lshlrev_b32 v%d, 4, v%d" % (t1, t1))
    a("v_add_u32 v%d, v%d, v%d" % (t0, t0, t1))
    a("v_xor_b32 v%d, 64, v%d" % (t1, t0))
    for j in range(8):
        a("v_add_u32 v%d, 0x%x, v%d" % (vXoff + j, j * 16384 - (j & 3) * 1024, t0 if j % 2 == 0 else t1))
    a("s_lshl_b32 s45, s%d, 4" % sW)
    a("v_add_u32 v%d, s45, v%d" % (t0, t2))
    a("s_movk_i32 s46, 7168")
    a("v_mul_lo_u32 v%d, v%d, s46" % (t0, t0))
    a("s_lshl_b32 s45, s44, 1")
    a("v_add_u32 v%d, s45, v%d" % (t0, t0))
    a("v_and_b32 v%d, 15, v0" % t1)
    a("v_lshlrev_b32 v%d, 1, v%d" % (t3, t2))
    a("v_xor_b32 v%d, v%d, v%d" % (t1, t1, t3))
    a("v_lshlrev_b32 v%d, 4, v%d" % (t1, t1))
    a("v_add_u32 v%d, v%d, v%d" % (t0, t0, t1))
    a("v_xor_b32 v%d, 0x80, v%d" % (t1, t0))
    for j in range(4):
        a("v_add_u32 v%d, 0x%x, v%d" % (vWoff + j, j * 4 * 7168 - j * 1024, t0 if j < 2 else t1))
    if "P" in dbg:
        a("s_lshr_b32 s45, s42, 2")
        a("s_mul_i32 s45, s45, 40")
        a("v_add_u32 v%d, s45, v0" % t0)
        a("v_min_u32 v%d, 255, v%d" % (t0, t0))
        a("v_add_u32 v%d, s43, v%d" % (t0, t0))
        a("v_lshlrev_b32 v%d, 11, v%d" % (t0, t0))
        a("v_lshrrev_b32 v%d, 1, v0" % t1)
        a("v_and_b32 v%d, 15, v%d" % (t1, t1))
        a("v_lshlrev_b32 v%d, 2, v%d" % (t1, t1))
        a("s_and_b32 s45, s42, 3")
        a("v_add_u32 v%d, s45, v%d" % (t1, t1))
        a("v_mul_lo_u32 v%d, v%d, s46" % (t1, t1))
        a("v_and_b32 v%d, 1, v0" % t3)
        a("v_lshlrev_b32 v%d, 7, v%d" % (t3, t3))
        a("v_add_u32 v%d, v%d, v%d" % (t1, t1, t3))
        a("s_lshl_b32 s45, s44, 1")
        a("v_add_u32 v%d, s45, v%d" % (t1, t1))
        a("s_cmp_eq_u32 s%d, 1" % sW)
        a("s_cselect_b32 s52, s26, s24")
        a("s_cselect_b32 s53, s27, s25")
        a("s_cmp_eq_u32 s%d, 2" % sW)
        a("s_cselect_b32 s52, s28, s52")
        a("s_cselect_b32 s53, s29, s53")
        a("s_add_u32 s45, s%d, -1" % sW)
        a("s_mov_b32 s54, 0x%x" % (2048 * 1024 * 2))
        a("s_movk_i32 s57, 128")
        a("s_cmp_lt_u32 s45, 2")
        a("s_cselect_b32 s54, 0x%x, s54" % (1024 * 3584 * 2))
        a("s_mov_b32 s55, 0x00020000")
        a("s_cselect_b32 s57, 0x%x, s57" % (64 * 7168))
        a("s_cselect_b64 vcc, -1, 0")
        a("s_nop 1")
        a("v_cndmask_b32 v41, v%d, v%d, vcc" % (t0, t1))
        a("s_lshl_b32 s56, s57, 1")
    if "K" in dbg:
        a("s_mul_i32 s23, s42, %d" % ROT)
        a("s_and_b32 s23, s23, 15")
        a("s_lshl_b32 s%d, s23, 7" % sKX)
        a("s_mul_i32 s%d, s23, 0x%x" % (sKW, 64 * 7168))
    else:
        a("s_mov_b32 s%d, 0" % sKX)
        a("s_mov_b32 s%d, 0" % sKW)

    def dma(b):
        g = []
        for half in range(2):
            if "W" in dbg: break
            for jj in range(4):
                j = half * 4 + jj
                ins = []
                if jj == 0:
                    ins.append("s_mov_b32 m0, s%d" % (sM0 + 4 * b + half))
                    ins.append("s_nop 0")
                ins.append("buffer_load_dwordx4 v%d, s[%d:%d], s%d offen offset:%d lds" % (vXoff + j, S_X, S_X + 3, sKX, jj * 1024))
                g.append(ins)
        for gu in range(2):
            if "X" in dbg: break
            S = S_WG if gu == 0 else S_WU
            for j in range(4):
                ins = []
                if j == 0:
                    ins.append("s_mov_b32 m0, s%d" % (sM0 + 4 * b + 2 + gu))
                    ins.append("s_nop 0")
                ins.append("buffer_load_dwordx4 v%d, s[%d:%d], s%d offen offset:%d lds" % (vWoff + j, S, S + 3, sKW, j * 1024))
                g.append(ins)
        if "K" in dbg:
            g[-1].append("s_add_u32 s23, s23, 1")
            g[-1].append("s_and_b32 s23, s23, 15")
            g[-1].append("s_lshl_b32 s%d, s23, 7" % sKX)
            g[-1].append("s_mul_i32 s%d, s23, 0x%x" % (sKW, 64 * 7168))
        else:
            g[-1].append("s_add_u32 s%d, s%d, 128" % (sKX, sKX))
            g[-1].append("s_add_u32 s%d, s%d, 0x%x" % (sKW, sKW, 64 * 7168))
        return g

    for g in dma(0):
        for i in g: a(i)
    for g in dma(1):
        for i in g: a(i)
    def touch():
        return ["buffer_load_dword v42, v41, s[52:55], s56 offen", "s_add_u32 s56, s56, s57"]
    if "P" in dbg:
        for _ in range(PD - 2):
            for i in touch(): a(i)

    a("s_lshr_b32 s45, s%d, 1" % sW)
    a("s_and_b32 s46, s%d, 1" % sW)
    a("v_and_b32 v%d, 15, v0" % t0)
    a("s_lshl_b32 s47, s45, 7")
    a("v_add_u32 v%d, s47, v%d" % (t0, t0))
    a("v_lshlrev_b32 v%d, 7, v%d" % (t0, t0))
    a("v_lshrrev_b32 v%d, 1, v0" % t1)
    a("v_and_b32 v%d, 7, v%d" % (t1, t1))
    a("v_xor_b32 v%d, v%d, v%d" % (t1, t1, t2))
    a("v_lshlrev_b32 v%d, 4, v%d" % (t1, t1))
    a("v_add_u32 v%d, v%d, v%d" % (vXa + 0, t0, t1))
    a("v_xor_b32 v%d, 64, v%d" % (vXa + 1, vXa + 0))
    a("v_add_u32 v%d, 0x10000, v%d" % (vXa + 2, vXa + 0))
    a("v_add_u32 v%d, 0x10000, v%d" % (vXa + 3, vXa + 1))
    a("v_lshrrev_b32 v%d, 2, v0" % t0)
    a("v_and_b32 v%d, 3, v%d" % (t0, t0))
    a("v_lshlrev_b32 v%d, 3, v%d" % (t1, t2))
    a("v_add_u32 v%d, v%d, v%d" % (t1, t1, t0))
    a("v_lshlrev_b32 v%d, 8, v%d" % (t1, t1))
    a("v_and_b32 v%d, 3, v0" % t3)
    a("v_lshlrev_b32 v%d, 3, v%d" % (t3, t3))
    a("v_add_u32 v%d, v%d, v%d" % (t1, t1, t3))
    a("v_add_u32 v%d, 0x8000, v%d" % (t1, t1))
    a("v_and_b32 v%d, 1, v%d" % (t3, t2))
    a("v_lshlrev_b32 v%d, 2, v%d" % (t3, t3))
    a("v_or_b32 v%d, v%d, v%d" % (t0, t0, t3))
    a("s_lshl_b32 s47, s46, 2")
    for t in range(4):
        a("s_add_u32 s48, s47, %d" % t)
        a("v_xor_b32 v%d, s48, v%d" % (t3, t0))
        a("v_lshlrev_b32 v%d, 5, v%d" % (t3, t3))
        a("v_add_u32 v%d, v%d, v%d" % (vWa + t, t1, t3))
        a("v_add_u32 v%d, 0x10000, v%d" % (vWa + 4 + t, vWa + t))
    for i in range(256):
        a("v_accvgpr_write_b32 a%d, 0" % i)

    def reads(fs, b, s):
        fb = F[fs]
        r = []
        for i in range(8):
            r.append(["ds_read_b128 v[%d:%d], v%d offset:%d" % (fb + 4 * i, fb + 4 * i + 3, vXa + 2 * b + s, i * 2048)])
        w = []
        for gu in range(2):
            for t in range(4):
                for h in range(2):
                    d = fb + 32 + 4 * (gu * 4 + t) + 2 * h
                    w.append(["ds_read_b64_tr_b16 v[%d:%d], v%d offset:%d" % (d, d + 1, vWa + 4 * b + t, gu * 16384 + s * 8192 + h * 1024)])
        out = []
        for i in range(8):
            out.append(r[i]); out.append(w[2 * i]); out.append(w[2 * i + 1])
        return out

    def mfmas(fs):
        fb = F[fs]
        m = []
        if "M" in dbg: return m
        for i in range(8):
            for wt in range(8):
                c = (wt * 8 + i) * 4
                m.append("v_mfma_f32_16x16x32_bf16 a[%d:%d], v[%d:%d], v[%d:%d], a[%d:%d]" % (
                    c, c + 3, fb + 32 + 4 * wt, fb + 32 + 4 * wt + 3, fb + 4 * i, fb + 4 * i + 3, c, c + 3))
        return m

    stamp(1)
    a("s_waitcnt vmcnt(%d)" % ((8 if ("X" in dbg or "W" in dbg) else 16) + (PD - 2 if "P" in dbg else 0)))
    a("s_barrier")
    stamp(2)
    for g in reads(0, 0, 0):
        for i in g: a(i)

    def stage(b, do_dma, do_next, first=False):
        a("s_waitcnt lgkmcnt(0)")
        for i in interleave(mfmas(0), reads(1, b, 1) if "R" not in dbg else [], start=0, every=2): a(i)
        a("s_waitcnt lgkmcnt(0)")
        if do_next:
            if "V" in dbg:
                pass
            elif "P" in dbg:
                a("s_waitcnt vmcnt(%d)" % (1 if "2" not in dbg else 18))
            else:
                a("s_waitcnt vmcnt(%d)" % (0 if "2" not in dbg else (8 if ("X" in dbg or "W" in dbg) else 16)))
            if "B" not in dbg: a("s_barrier")
        pl = []
        if do_next and "R" not in dbg:
            for n, g in enumerate(reads(0, b ^ 1, 0)): pl.append((2 * n, g))
        if do_dma and "D" not in dbg:
            dl = dma(b)
            if "P" in dbg: dl[-1] = dl[-1] + touch()
            for n, g in enumerate(dl): pl.append((DS0 + DSP * n, g))
        for i in place(mfmas(1), pl): a(i)

    a("s_mov_b32 s%d, 0" % sCNT)
    a.label("G1_LOOP")
    stage(0, True, True)
    stage(1, True, True)
    a("s_add_u32 s%d, s%d, 1" % (sCNT, sCNT))
    a("s_cmp_lt_u32 s%d, 7" % sCNT)
    a("s_cbranch_scc1 G1_LOOP")
    stage(0, False, True)
    stage(1, False, False)

    stamp(3)
    a("s_nop 7")
    a("s_nop 7")
    vS = 2
    a("s_lshr_b32 s47, s43, 7")
    a("s_add_u32 s47, s47, s45")
    a("s_mul_i32 s47, s47, 112")
    a("s_lshr_b32 s48, s44, 5")
    a("s_add_u32 s47, s47, s48")
    a("s_lshl_b32 s48, s46, 1")
    a("s_add_u32 s47, s47, s48")
    a("s_lshl_b32 s47, s47, 13")
    a("v_and_b32 v%d, 15, v0" % t0)
    a("v_lshlrev_b32 v%d, 6, v%d" % (t0, t0))
    a("v_lshrrev_b32 v%d, 3, v0" % t1)
    a("v_and_b32 v%d, 1, v%d" % (t1, t1))
    a("v_mul_u32_u24 v%d, 3, v%d" % (t1, t1))
    a("v_lshrrev_b32 v%d, 1, v%d" % (t3, t2))
    a("v_xor_b32 v%d, v%d, v%d" % (t1, t1, t3))
    a("v_lshlrev_b32 v%d, 4, v%d" % (t1, t1))
    a("v_add_u32 v%d, v%d, v%d" % (t0, t0, t1))
    a("v_and_b32 v%d, 1, v%d" % (t1, t2))
    a("v_lshlrev_b32 v%d, 3, v%d" % (t1, t1))
    a("v_add_u32 v%d, v%d, v%d" % (t0, t0, t1))
    a("v_add_u32 v%d, s47, v%d" % (vS, t0))
    a("v_xor_b32 v%d, 32, v%d" % (vS + 2, vS))
    a("s_mov_b32 s56, 0")
    a("s_movk_i32 s57, 4096")
    a("s_movk_i32 s58, 8192")
    a("s_movk_i32 s59, 12288")
    import math
    C0 = -2.0 * math.sqrt(2.0 / math.pi) * math.log2(math.e)
    C1 = C0 * 0.044715
    import struct
    def f2u(x): return struct.unpack("<I", struct.pack("<f", x))[0]
    a("s_mov_b32 s50, 0x%x" % f2u(C0))
    a("s_mov_b32 s51, 0x%x" % f2u(C1))
    a("v_mov_b32 v3, s50")
    a("s_mov_b32 s52, 0")
    cnt = 0
    for i in range(8):
        for t in range(4):
            base = 64 + (cnt % 4) * 24
            cnt += 1
            G = base; U = base + 4; T = base + 8; E = base + 12; P = base + 16
            cg = (t * 8 + i) * 4
            cu = ((4 + t) * 8 + i) * 4
            for r in range(4): a("v_accvgpr_read_b32 v%d, a%d" % (G + r, cg + r))
            for r in range(4): a("v_accvgpr_read_b32 v%d, a%d" % (U + r, cu + r))
            for r in range(4): a("v_mul_f32 v%d, v%d, v%d" % (T + r, G + r, G + r))
            for r in range(4): a("v_fma_f32 v%d, v%d, s51, v3" % (T + r, T + r))
            for r in range(4): a("v_mul_f32 v%d, v%d, v%d" % (T + r, T + r, G + r))
            for r in range(4): a("v_exp_f32 v%d, v%d" % (E + r, T + r))
            for r in range(4): a("v_mul_f32 v%d, v%d, v%d" % (U + r, U + r, G + r))
            for r in range(4): a("v_add_f32 v%d, 1.0, v%d" % (E + r, E + r))
            for r in range(4): a("v_rcp_f32 v%d, v%d" % (E + r, E + r))
            a("s_nop 0")
            for r in range(4): a("v_mul_f32 v%d, v%d, v%d" % (U + r, U + r, E + r))
            a("v_cvt_pk_bf16_f32 v%d, v%d, v%d" % (P, U, U + 1))
            a("v_cvt_pk_bf16_f32 v%d, v%d, v%d" % (P + 1, U + 2, U + 3))
            a("buffer_store_dwordx2 v[%d:%d], v%d, s[%d:%d], s%d offen offset:%d" % (P, P + 1, vS + 2 * (t & 1), S_H, S_H + 3, 56 + (i >> 2) + 2 * (t >> 1), (i & 3) * 1024))

    if stamps:
        stamp(4)
        a("s_waitcnt vmcnt(0)")
        stamp(5)
        a("s_waitcnt lgkmcnt(0)")
        a("s_add_u32 s30, s30, 0x4000000")
        a("s_addc_u32 s31, s31, 0")
        srd(a, S_H, 30, 1 << 20)
        a("s_lshl_b32 s47, s2, 2")
        a("s_add_u32 s47, s47, s%d" % sW)
        a("s_lshl_b32 s47, s47, 5")
        for i in range(6):
            a("v_mov_b32 v%d, s%d" % (64 + i, 60 + 2 * i))
        a("v_mov_b32 v70, s47")
        a("v_cmp_eq_u32 vcc, 0, v0")
        a("s_and_saveexec_b64 s[48:49], vcc")
        a("buffer_store_dwordx4 v[64:67], v70, s[%d:%d], 0 offen" % (S_H, S_H + 3))
        a("buffer_store_dwordx2 v[68:69], v70, s[%d:%d], 0 offen offset:16" % (S_H, S_H + 3))
        a("s_mov_b64 exec, s[48:49]")
```

```python
from asmlib import *
from layout import *
from prep import ws_srd
import os

G2_BUF = 12288
G2_WAVE = 3 * G2_BUF
G2_ZB = 4 * G2_WAVE
G2_LDS = G2_ZB + 16384
NST = 28

def gen_gemm2(a, dbg=""):
    S_H, S_W, S_Z, S_Q, S_O, S_GT = 4, 8, 12, 16, 20, 24
    sW, sLB, sX, sWK = 40, 41, 42, 43
    sM0, sN0 = 44, 45
    a("s_load_dwordx2 s[28:29], s[0:1], 0")
    a("s_load_dwordx2 s[30:31], s[0:1], 72")
    a("s_load_dwordx2 s[32:33], s[0:1], 88")
    a("s_load_dwordx2 s[34:35], s[0:1], 104")
    a("s_and_b32 s46, s2, 7")
    a("s_lshr_b32 s47, s2, 3")
    a("s_and_b32 s48, s46, 3")
    a("s_lshl_b32 s48, s48, 2")
    a("s_and_b32 s49, s47, 3")
    a("s_add_u32 s48, s48, s49")
    a("s_lshr_b32 s49, s46, 2")
    a("s_lshl_b32 s49, s49, 3")
    a("s_lshr_b32 s50, s47, 2")
    a("s_add_u32 s49, s49, s50")
    a("s_lshl_b32 s%d, s48, 7" % sM0)
    a("s_lshl_b32 s%d, s49, 6" % sN0)
    a("v_lshrrev_b32 v1, 6, v0")
    a("v_and_b32 v0, 63, v0")
    a("s_nop 0")
    a("v_readfirstlane_b32 s%d, v1" % sW)
    a("v_lshlrev_b32 v2, 4, v0")
    a("v_lshrrev_b32 v3, 4, v0")
    a("s_mul_i32 s%d, s%d, %d" % (sLB, sW, G2_WAVE))
    a("s_mul_i32 s50, s48, 112")
    a("s_mul_i32 s51, s%d, 28" % sW)
    a("s_add_u32 s50, s50, s51")
    a("s_lshl_b32 s%d, s50, 13" % sX)
    a("s_lshl_b32 s%d, s51, 16" % sWK)
    a("v_lshrrev_b32 v8, 3, v0")
    a("v_lshlrev_b32 v8, 11, v8")
    a("s_lshl_b32 s50, s%d, 1" % sN0)
    a("v_add_u32 v8, s50, v8")
    a("v_and_b32 v9, 7, v0")
    a("v_and_b32 v10, 1, v3")
    a("v_lshlrev_b32 v10, 1, v10")
    a("v_xor_b32 v9, v9, v10")
    a("v_lshlrev_b32 v9, 4, v9")
    a("v_add_u32 v8, v8, v9")
    a("v_xor_b32 v9, 64, v8")
    for I in range(4):
        a("v_add_u32 v%d, 0x%x, v%d" % (4 + I, I * 8 * 2048 - I * 1024, 8 if I % 2 == 0 else 9))
    a("s_waitcnt lgkmcnt(0)")
    ws_srd(a, S_H, 34, H1_OFF, H1_BYTES)
    srd(a, S_W, 30, 3584 * 1024 * 2)
    ws_srd(a, S_Z, 34, Z_OFF, Z_BYTES)
    srd(a, S_Q, 28, 2048 * 1024 * 2)
    srd(a, S_O, 32, 2048 * 1024 * 2)
    ws_srd(a, S_GT, 34, GT_OFF, GT_BYTES)

    def dma(t):
        b = t % 3
        g = []
        for half in range(2):
            for jj in range(4):
                ins = []
                if jj == 0:
                    ins.append("s_add_u32 m0, s%d, %d" % (sLB, b * G2_BUF + half * 4096))
                    if half == 1:
                        ins.append("s_add_u32 s52, s%d, 4096" % sX)
                    else:
                        ins.append("s_nop 0")
                ins.append("buffer_load_dwordx4 v2, s[%d:%d], s%d offen offset:%d lds" % (S_H, S_H + 3, sX if half == 0 else 52, jj * 1024))
                g.append(ins)
        for I in range(4):
            ins = []
            if I == 0:
                ins.append("s_add_u32 m0, s%d, %d" % (sLB, b * G2_BUF + 8192))
                ins.append("s_nop 0")
            ins.append("buffer_load_dwordx4 v%d, s[%d:%d], s%d offen offset:%d lds" % (4 + I, S_W, S_W + 3, sWK, I * 1024))
            g.append(ins)
        g[-1].append("s_add_u32 s%d, s%d, 8192" % (sX, sX))
        g[-1].append("s_add_u32 s%d, s%d, 0x10000" % (sWK, sWK))
        return g

    for t in range(3):
        for g in dma(t):
            for i in g: a(i)
    a("s_lshl_b32 s50, s%d, 4" % sW)
    a("s_add_u32 s50, s50, s%d" % sN0)
    a("v_add_u32 v8, s50, v3")
    a("v_lshlrev_b32 v8, 12, v8")
    a("v_and_b32 v9, 15, v0")
    a("v_lshlrev_b32 v9, 4, v9")
    a("v_add_u32 v8, v8, v9")
    a("s_lshl_b32 s50, s%d, 1" % sM0)
    a("s_lshl_b32 s51, s%d, 12" % sW)
    a("s_add_u32 m0, s51, %d" % G2_ZB)
    for I in range(4):
        a("v_add_u32 v9, 0x%x, v8" % (I * 4 * 4096 - I * 1024))
        a("buffer_load_dwordx4 v9, s[%d:%d], s50 offen offset:%d lds" % (S_Z, S_Z + 3, I * 1024))
    a("v_and_b32 v9, 15, v0")
    a("s_lshl_b32 s50, s%d, 5" % sW)
    a("s_add_u32 s50, s50, s%d" % sM0)
    a("v_add_u32 v9, s50, v9")
    a("v_lshlrev_b32 v13, 2, v9")
    a("v_lshlrev_b32 v12, 11, v9")
    a("v_lshlrev_b32 v10, 3, v3")
    a("v_add_u32 v12, v12, v10")
    a("s_lshl_b32 s50, s%d, 1" % sN0)
    a("v_add_u32 v12, s50, v12")
    a("s_mov_b32 s53, 0x8000")
    for sl in range(2):
        for nt in range(4):
            a("buffer_load_dwordx2 a[%d:%d], v12, s[%d:%d], %s offen offset:%d" % ((sl * 4 + nt) * 2, (sl * 4 + nt) * 2 + 1, S_Q, S_Q + 3, "0" if sl == 0 else "s53", nt * 32))
    a("buffer_load_dword a16, v13, s[%d:%d], 0 offen" % (S_GT, S_GT + 3))
    a("buffer_load_dword a17, v13, s[%d:%d], 0 offen offset:64" % (S_GT, S_GT + 3))
    NEX = 14
    a("v_and_b32 v8, 15, v0")
    a("v_lshlrev_b32 v8, 6, v8")
    a("v_lshrrev_b32 v9, 3, v0")
    a("v_and_b32 v9, 1, v9")
    a("v_mul_u32_u24 v9, 3, v9")
    a("v_xor_b32 v9, v9, v3")
    a("v_lshlrev_b32 v9, 4, v9")
    a("v_add_u32 v8, v8, v9")
    a("v_add_u32 v8, s%d, v8" % sLB)
    for aa in range(4):
        a("s_xor_b32 s50, s%d, %d" % (sW, aa))
        a("s_lshl_b32 s50, s50, 11")
        a("v_add_u32 v%d, s50, v8" % (16 + aa))
    a("v_lshrrev_b32 v8, 2, v0")
    a("v_and_b32 v8, 3, v8")
    a("v_lshlrev_b32 v9, 3, v3")
    a("v_add_u32 v9, v9, v8")
    a("v_lshlrev_b32 v9, 7, v9")
    a("v_and_b32 v10, 3, v0")
    a("v_lshlrev_b32 v10, 3, v10")
    a("v_add_u32 v9, v9, v10")
    a("v_add_u32 v9, s%d, v9" % sLB)
    a("v_add_u32 v9, 0x2000, v9")
    a("v_lshrrev_b32 v10, 1, v8")
    a("v_and_b32 v11, 1, v3")
    a("v_lshlrev_b32 v11, 1, v11")
    a("v_or_b32 v10, v10, v11")
    for nt in range(4):
        a("v_xor_b32 v11, %d, v10" % nt)
        a("v_lshlrev_b32 v11, 5, v11")
        a("v_add_u32 v%d, v9, v11" % (20 + nt))
    a("v_lshlrev_b32 v9, 2, v3")
    a("v_add_u32 v9, v9, v8")
    a("v_lshlrev_b32 v9, 8, v9")
    a("v_and_b32 v10, 3, v0")
    a("v_lshlrev_b32 v10, 3, v10")
    a("v_add_u32 v9, v9, v10")
    a("s_lshl_b32 s50, s%d, 6" % sW)
    a("s_add_u32 s50, s50, %d" % G2_ZB)
    a("v_add_u32 v24, s50, v9")
    a("v_add_u32 v25, s%d, v2" % sLB)
    a("s_xor_b32 s50, s%d, 2" % sW)
    a("s_mul_i32 s50, s50, %d" % G2_WAVE)
    a("v_add_u32 v26, s50, v2")
    a("s_xor_b32 s50, s%d, 1" % sW)
    a("s_mul_i32 s50, s50, %d" % G2_WAVE)
    a("v_add_u32 v27, s50, v2")
    ACC = 128
    for i in range(128): a("v_mov_b32 v%d, 0" % (ACC + i))
    F = [32, 80]

    def reads(t):
        fb = F[t & 1]; b = t % 3
        x = []
        for i in range(8):
            x.append("ds_read_b128 v[%d:%d], v%d offset:%d" % (fb + 4 * i, fb + 4 * i + 3, 16 + (i >> 1), b * G2_BUF + (i & 1) * 1024))
        w = []
        for nt in range(4):
            for h in range(2):
                d = fb + 32 + 4 * nt + 2 * h
                w.append("ds_read_b64_tr_b16 v[%d:%d], v%d offset:%d" % (d, d + 1, 20 + nt, b * G2_BUF + h * 512))
        out = []
        for i in range(8):
            out.append(w[i]); out.append(x[i])
        return out

    def mfmas(t):
        fb = F[t & 1]
        m = []
        for i in range(8):
            for nt in range(4):
                c = ACC + (i * 4 + nt) * 4
                m.append("v_mfma_f32_16x16x32_bf16 v[%d:%d], v[%d:%d], v[%d:%d], v[%d:%d]" % (
                    c, c + 3, fb + 32 + 4 * nt, fb + 32 + 4 * nt + 3, fb + 4 * i, fb + 4 * i + 3, c, c + 3))
        return m

    a("s_waitcnt vmcnt(%d)" % (24 + NEX))
    for i in reads(0): a(i)
    for t in range(NST):
        if t + 1 < NST:
            younger = 0
            if t + 2 < NST: younger += 12
            if t < 2: younger += NEX
            a("s_waitcnt vmcnt(%d) lgkmcnt(0)" % younger)
        else:
            a("s_waitcnt lgkmcnt(0)")
        pl = []
        if t + 1 < NST:
            for n, g in enumerate(reads(t + 1)): pl.append((2 * n, [g]))
        if t + 3 < NST:
            for n, g in enumerate(dma(t + 3)): pl.append(((n * 8) // 3 + 1, g))
        for i in place(mfmas(t), pl): a(i)

    a("s_nop 7")
    a("s_nop 3")
    for k in range(16):
        c = ACC + (16 + k) * 4
        a("ds_write_b128 v25, v[%d:%d] offset:%d" % (c, c + 3, k * 1024))
    a("s_waitcnt vmcnt(0) lgkmcnt(0)")
    a("s_barrier")
    for k in range(16):
        a("ds_read_b128 v[%d:%d], v26 offset:%d" % (32 + 4 * k, 35 + 4 * k, k * 1024))
    for k in range(16):
        a("s_waitcnt lgkmcnt(%d)" % (15 - k))
        for r in range(4):
            a("v_add_f32 v%d, v%d, v%d" % (ACC + 4 * k + r, ACC + 4 * k + r, 32 + 4 * k + r))
        if k >= 8:
            c = ACC + 4 * k
            a("ds_write_b128 v25, v[%d:%d] offset:%d" % (c, c + 3, 16384 + (k - 8) * 1024))
    a("s_waitcnt lgkmcnt(0)")
    a("s_barrier")
    for k in range(8):
        a("ds_read_b128 v[%d:%d], v27 offset:%d" % (32 + 4 * k, 35 + 4 * k, 16384 + k * 1024))
    for sl in range(2):
        for nt in range(4):
            d = 64 + (sl * 4 + nt) * 2
            a("ds_read_b64_tr_b16 v[%d:%d], v24 offset:%d" % (d, d + 1, nt * 4096 + sl * 32))
    for i in range(18): a("v_accvgpr_read_b32 v%d, a%d" % (80 + i, i))
    a("s_mov_b32 s50, 0xffff0000")
    for sl in range(2):
        a("v_sub_f32 v%d, 1.0, v%d" % (98 + sl, 96 + sl))
        a("v_cvt_pk_bf16_f32 v%d, v%d, v%d" % (98 + sl, 98 + sl, 98 + sl))
        a("v_and_b32 v%d, s50, v%d" % (98 + sl, 98 + sl))
    a("s_waitcnt lgkmcnt(0)")
    def rnd4(R, T):
        a("v_cvt_pk_bf16_f32 v%d, v%d, v%d" % (T, R, R + 1))
        a("v_cvt_pk_bf16_f32 v%d, v%d, v%d" % (T + 1, R + 2, R + 3))
        a("v_lshlrev_b32 v%d, 16, v%d" % (R, T))
        a("v_and_b32 v%d, s50, v%d" % (R + 1, T))
        a("v_lshlrev_b32 v%d, 16, v%d" % (R + 2, T + 1))
        a("v_and_b32 v%d, s50, v%d" % (R + 3, T + 1))
    for sl in range(2):
        for nt in range(4):
            k = sl * 4 + nt
            B = ACC + 4 * k
            Q = 100; Z = 104; T = 108; O = 110 + 2 * (k & 3)
            for r in range(4):
                a("v_add_f32 v%d, v%d, v%d" % (B + r, B + r, 32 + 4 * k + r))
            rnd4(B, T)
            qs = 80 + 2 * k; zs = 64 + 2 * k
            a("v_lshlrev_b32 v%d, 16, v%d" % (Q, qs)); a("v_and_b32 v%d, s50, v%d" % (Q + 1, qs))
            a("v_lshlrev_b32 v%d, 16, v%d" % (Q + 2, qs + 1)); a("v_and_b32 v%d, s50, v%d" % (Q + 3, qs + 1))
            a("v_lshlrev_b32 v%d, 16, v%d" % (Z, zs)); a("v_and_b32 v%d, s50, v%d" % (Z + 1, zs))
            a("v_lshlrev_b32 v%d, 16, v%d" % (Z + 2, zs + 1)); a("v_and_b32 v%d, s50, v%d" % (Z + 3, zs + 1))
            for r in range(4): a("v_mul_f32 v%d, v%d, v%d" % (Q + r, Q + r, Z + r))
            rnd4(Q, T)
            for r in range(4): a("v_mul_f32 v%d, v%d, v%d" % (Q + r, Q + r, 96 + sl))
            rnd4(Q, T)
            for r in range(4): a("v_mul_f32 v%d, v%d, v%d" % (B + r, B + r, 98 + sl))
            rnd4(B, T)
            for r in range(4): a("v_add_f32 v%d, v%d, v%d" % (B + r, B + r, Q + r))
            a("v_cvt_pk_bf16_f32 v%d, v%d, v%d" % (O, B, B + 1))
            a("v_cvt_pk_bf16_f32 v%d, v%d, v%d" % (O + 1, B + 2, B + 3))
            a("buffer_store_dwordx2 v[%d:%d], v12, s[%d:%d], %s offen offset:%d" % (O, O + 1, S_O, S_O + 3, "0" if sl == 0 else "s53", nt * 32))
```

```python
from asmlib import *
from layout import *

def ws_srd(a, d, wsreg, off, nbytes):
    a("s_add_u32 s%d, s%d, 0x%x" % (d, wsreg, off))
    a("s_addc_u32 s%d, s%d, 0" % (d + 1, wsreg + 1))
    a("s_mov_b32 s%d, 0x%x" % (d + 2, nbytes))
    a("s_mov_b32 s%d, 0x00020000" % (d + 3))

def gen_prep_kv(a, tile_sreg):
    S_K, S_V, S_SH, S_G = 4, 8, 12, 16
    a("s_load_dwordx2 s[20:21], s[0:1], 8")
    a("s_load_dwordx2 s[22:23], s[0:1], 16")
    a("s_load_dwordx2 s[24:25], s[0:1], 24")
    a("s_load_dwordx2 s[26:27], s[0:1], 104")
    a("s_and_b32 s28, s%d, 15" % tile_sreg)
    a("s_lshr_b32 s29, s%d, 4" % tile_sreg)
    a("v_and_b32 v1, 7, v0")
    a("v_lshrrev_b32 v2, 3, v0")
    a("s_lshl_b32 s30, s28, 6")
    a("s_lshl_b32 s31, s29, 7")
    a("v_lshlrev_b32 v3, 3, v1")
    a("v_add_u32 v3, s30, v3")
    a("v_lshlrev_b32 v4, 2, v2")
    a("v_add_u32 v4, s31, v4")
    a("v_add_u32 v5, -3, v4")
    a("v_lshlrev_b32 v5, 11, v5")
    a("v_lshlrev_b32 v6, 1, v3")
    a("v_add_u32 v5, v5, v6")
    a("v_lshlrev_b32 v7, 3, v3")
    a("s_waitcnt lgkmcnt(0)")
    srd(a, S_K, 20, 2048 * 1024 * 2)
    srd(a, S_V, 22, 2048 * 1024 * 2)
    srd(a, S_SH, 24, 1024 * 4 * 2)
    ws_srd(a, S_G, 26, G_OFF, G_BYTES)
    for r in range(7):
        a("v_add_u32 v8, 0x%x, v5" % (r * 2048))
        a("buffer_load_dwordx4 v[%d:%d], v8, s[%d:%d], 0 offen" % (16 + 4 * r, 19 + 4 * r, S_K, S_K + 3))
    for r in range(4):
        a("v_add_u32 v8, 0x%x, v5" % ((r + 3) * 2048))
        a("buffer_load_dwordx4 v[%d:%d], v8, s[%d:%d], 0 offen" % (44 + 4 * r, 47 + 4 * r, S_V, S_V + 3))
    for r in range(4):
        a("buffer_load_dwordx4 v[%d:%d], v7, s[%d:%d], 0 offen offset:%d" % (60 + 4 * r, 63 + 4 * r, S_SH, S_SH + 3, 16 * r))
    a("s_movk_i32 s28, %d" % G_PITCH)
    a("v_mul_lo_u32 v9, v3, s28")
    a("v_sub_u32 v10, 0x800, v4")
    a("v_lshlrev_b32 v10, 1, v10")
    a("v_add_u32 v9, v9, v10")
    a("s_mov_b32 s28, 0xffff0000")
    a("s_waitcnt vmcnt(0)")
    W = 80; K = 84; V = 92; P = 96; ACC = 104; O = 110
    for e in range(8):
        lo = (e % 2 == 0)
        def unpack(dst, src):
            if lo: a("v_lshlrev_b32 v%d, 16, v%d" % (dst, src))
            else:  a("v_and_b32 v%d, s28, v%d" % (dst, src))
        a("v_lshlrev_b32 v%d, 16, v%d" % (W + 0, 60 + 2 * e))
        a("v_and_b32 v%d, s28, v%d" % (W + 1, 60 + 2 * e))
        a("v_lshlrev_b32 v%d, 16, v%d" % (W + 2, 61 + 2 * e))
        a("v_and_b32 v%d, s28, v%d" % (W + 3, 61 + 2 * e))
        for r in range(7): unpack(K + r, 16 + 4 * r + e // 2)
        for r in range(4): unpack(V + r, 44 + 4 * r + e // 2)
        for t in range(4):
            for j in range(4):
                a("v_mul_f32 v%d, v%d, v%d" % (P + j, K + j + t, W + 3 - t))
            a("v_cvt_pk_bf16_f32 v%d, v%d, v%d" % (P + 4, P + 0, P + 1))
            a("v_cvt_pk_bf16_f32 v%d, v%d, v%d" % (P + 5, P + 2, P + 3))
            dst = ACC if t == 0 else P
            a("v_lshlrev_b32 v%d, 16, v%d" % (dst + 0, P + 4))
            a("v_and_b32 v%d, s28, v%d" % (dst + 1, P + 4))
            a("v_lshlrev_b32 v%d, 16, v%d" % (dst + 2, P + 5))
            a("v_and_b32 v%d, s28, v%d" % (dst + 3, P + 5))
            if t > 0:
                for j in range(4):
                    a("v_add_f32 v%d, v%d, v%d" % (ACC + j, ACC + j, P + j))
                a("v_cvt_pk_bf16_f32 v%d, v%d, v%d" % (P + 4, ACC + 0, ACC + 1))
                a("v_cvt_pk_bf16_f32 v%d, v%d, v%d" % (P + 5, ACC + 2, ACC + 3))
                a("v_lshlrev_b32 v%d, 16, v%d" % (ACC + 0, P + 4))
                a("v_and_b32 v%d, s28, v%d" % (ACC + 1, P + 4))
                a("v_lshlrev_b32 v%d, 16, v%d" % (ACC + 2, P + 5))
                a("v_and_b32 v%d, s28, v%d" % (ACC + 3, P + 5))
        for j in range(4):
            a("v_mul_f32 v%d, v%d, v%d" % (ACC + j, ACC + j, V + j))
        o = O + 2 * (e % 4)
        a("v_cvt_pk_bf16_f32 v%d, v%d, v%d" % (o, ACC + 3, ACC + 2))
        a("v_cvt_pk_bf16_f32 v%d, v%d, v%d" % (o + 1, ACC + 1, ACC + 0))
        a("s_movk_i32 s29, %d" % (e * G_PITCH) if e * G_PITCH < 32768 else "s_mov_b32 s29, %d" % (e * G_PITCH))
        a("buffer_store_dwordx2 v[%d:%d], v9, s[%d:%d], s29 offen" % (o, o + 1, S_G, S_G + 3))
    a("v_mov_b32 v16, 0"); a("v_mov_b32 v17, 0"); a("v_mov_b32 v18, 0"); a("v_mov_b32 v19, 0")
    a("s_lshr_b32 s29, s%d, 4" % tile_sreg)
    a("s_cmp_lg_u32 s29, 0")
    a("s_cbranch_scc1 PREP_NOZ0")
    a("v_lshrrev_b32 v1, 2, v0")
    a("v_add_u32 v1, s30, v1")
    a("s_movk_i32 s28, %d" % G_PITCH)
    a("v_mul_lo_u32 v1, v1, s28")
    a("v_and_b32 v2, 3, v0")
    a("v_lshlrev_b32 v2, 8, v2")
    a("v_add_u32 v1, v1, v2")
    a("v_add_u32 v1, 0x1000, v1")
    for i in range(16):
        if i == 0:
            a("buffer_store_dwordx2 v[16:17], v1, s[%d:%d], 0 offen offset:8" % (S_G, S_G + 3))
            a("v_and_b32 v2, 3, v0")
            a("v_cmp_ne_u32 vcc, 0, v2")
            a("s_and_saveexec_b64 s[28:29], vcc")
            a("buffer_store_dwordx2 v[16:17], v1, s[%d:%d], 0 offen" % (S_G, S_G + 3))
            a("s_mov_b64 exec, s[28:29]")
        else:
            a("buffer_store_dwordx4 v[16:19], v1, s[%d:%d], 0 offen offset:%d" % (S_G, S_G + 3, 16 * i))
    a.label("PREP_NOZ0")
    a("s_lshr_b32 s29, s%d, 4" % tile_sreg)
    a("s_cmp_lg_u32 s29, 15")
    a("s_cbranch_scc1 PREP_NOZ1")
    a("v_add_u32 v1, s30, v0")
    a("s_movk_i32 s28, %d" % G_PITCH)
    a("v_mul_lo_u32 v1, v1, s28")
    a("v_cmp_gt_u32 vcc, 64, v0")
    a("s_and_saveexec_b64 s[28:29], vcc")
    a("buffer_store_dwordx2 v[16:17], v1, s[%d:%d], 0 offen" % (S_G, S_G + 3))
    a("s_mov_b64 exec, s[28:29]")
    a.label("PREP_NOZ1")

def gen_prep_gate(a, blk_sreg):
    S_Q, S_W, S_G = 4, 8, 12
    a("s_load_dwordx2 s[20:21], s[0:1], 0")
    a("s_load_dwordx2 s[22:23], s[0:1], 80")
    a("s_load_dwordx2 s[26:27], s[0:1], 104")
    a("v_lshrrev_b32 v1, 6, v0")
    a("v_and_b32 v0, 63, v0")
    a("s_lshl_b32 s28, s%d, 6" % blk_sreg)
    a("v_lshlrev_b32 v1, 4, v1")
    a("v_add_u32 v1, s28, v1")
    a("v_lshlrev_b32 v2, 11, v1")
    a("v_lshlrev_b32 v3, 4, v0")
    a("v_add_u32 v2, v2, v3")
    a("s_waitcnt lgkmcnt(0)")
    srd(a, S_Q, 20, 2048 * 1024 * 2)
    srd(a, S_W, 22, 1024 * 2)
    ws_srd(a, S_G, 26, GT_OFF, GT_BYTES)
    a("buffer_load_dwordx4 v[8:11], v3, s[%d:%d], 0 offen" % (S_W, S_W + 3))
    a("buffer_load_dwordx4 v[12:15], v3, s[%d:%d], 0 offen offset:1024" % (S_W, S_W + 3))
    a("s_mov_b32 s29, 0")
    for r in range(16):
        a("buffer_load_dwordx4 v[%d:%d], v2, s[%d:%d], s29 offen" % (64 + 8 * r, 67 + 8 * r, S_Q, S_Q + 3))
        a("buffer_load_dwordx4 v[%d:%d], v2, s[%d:%d], s29 offen offset:1024" % (68 + 8 * r, 71 + 8 * r, S_Q, S_Q + 3))
        a("s_add_u32 s29, s29, 2048")
    a("s_mov_b32 s28, 0xffff0000")
    a("s_waitcnt vmcnt(32)")
    for i in range(8):
        a("v_lshlrev_b32 v%d, 16, v%d" % (16 + 2 * i, 8 + i))
        a("v_and_b32 v%d, s28, v%d" % (17 + 2 * i, 8 + i))
    for r in range(16):
        a("s_waitcnt vmcnt(%d)" % (30 - 2 * r))
        for i in range(8):
            src = 64 + 8 * r + i
            a("v_lshlrev_b32 v4, 16, v%d" % src)
            a("v_and_b32 v5, s28, v%d" % src)
            a("v_mul_f32 v4, v4, v%d" % (16 + 2 * i))
            a("v_mul_f32 v5, v5, v%d" % (17 + 2 * i))
            a("v_cvt_pk_bf16_f32 v4, v4, v5")
            a("v_lshlrev_b32 v5, 16, v4")
            a("v_and_b32 v4, s28, v4")
            if i == 0:
                a("v_add_f32 v%d, v4, v5" % (32 + r))
            else:
                a("v_add_f32 v4, v4, v5")
                a("v_add_f32 v%d, v%d, v4" % (32 + r, 32 + r))
    for step in (1, 2, 4, 8, 16, 32):
        a("v_xor_b32 v4, %d, v0" % step)
        a("v_lshlrev_b32 v4, 2, v4")
        for r in range(16):
            a("ds_bpermute_b32 v%d, v4, v%d" % (48 + r, 32 + r))
        a("s_waitcnt lgkmcnt(0)")
        for r in range(16):
            a("v_add_f32 v%d, v%d, v%d" % (32 + r, 32 + r, 48 + r))
    a("v_mov_b32 v6, v32")
    for r in range(1, 16):
        a("v_cmp_eq_u32 vcc, %d, v0" % r)
        a("s_nop 1")
        a("v_cndmask_b32 v6, v6, v%d, vcc" % (32 + r))
    a("v_cvt_pk_bf16_f32 v6, v6, v6")
    a("v_lshlrev_b32 v6, 16, v6")
    a("v_mul_f32 v6, 0xbfb8aa3b, v6")
    a("v_exp_f32 v6, v6")
    a("s_nop 0")
    a("v_add_f32 v6, 1.0, v6")
    a("v_rcp_f32 v6, v6")
    a("s_nop 0")
    a("v_cvt_pk_bf16_f32 v6, v6, v6")
    a("v_lshlrev_b32 v6, 16, v6")
    a("v_add_u32 v1, v1, v0")
    a("v_lshlrev_b32 v1, 2, v1")
    a("v_cmp_gt_u32 vcc, 16, v0")
    a("s_and_saveexec_b64 s[28:29], vcc")
    a("buffer_store_dword v6, v1, s[%d:%d], 0 offen" % (S_G, S_G + 3))
    a("s_mov_b64 exec, s[28:29]")
```

```python
import sys, os
os.environ.setdefault("PD", "4")
from asmlib import *
from prep import *
from conv import *
from gemm1 import *
from gemm2 import *
a = A()
hdr = open("gated_mix__ssm_conv_h3__geglu_ffn__prompt.s.ref").read().split("\n")
for l in hdr:
    if l.startswith("; Override") : break
    a.raw(l)
a.raw("; @launch kernel=prep_kernel grid=(288,1,1) block=(256,1,1) lds=0")
a.raw("; @launch kernel=conv_kernel grid=(256,1,1) block=(256,1,1) lds=%d" % CONV_LDS)
a.raw("; @launch kernel=g1_kernel grid=(224,1,1) block=(256,1,1) lds=131072")
a.raw("; @launch kernel=g2_kernel grid=(256,1,1) block=(256,1,1) lds=%d" % G2_LDS)
a.raw('.amdgcn_target "amdgcn-amd-amdhsa--gfx950"')
a.raw(".text")
kernel_header(a, "prep_kernel")
a("s_cmp_ge_u32 s2, 288")
a("s_cbranch_scc1 PREP_END")
a("s_cmp_ge_u32 s2, 256")
a("s_cbranch_scc1 PREP_GATE")
gen_prep_kv(a, 2)
a("s_endpgm")
a.label("PREP_GATE")
a("s_sub_u32 s3, s2, 256")
gen_prep_gate(a, 3)
a.label("PREP_END")
a("s_endpgm")
kernel_header(a, "conv_kernel")
a("s_cmp_ge_u32 s2, 256")
a("s_cbranch_scc1 CONV_END")
gen_conv(a)
a.label("CONV_END")
a("s_endpgm")
kernel_header(a, "g1_kernel")
a("s_cmp_ge_u32 s2, 224")
a("s_cbranch_scc1 G1_END")
gen_gemm1(a, dbg="P")
a.label("G1_END")
a("s_endpgm")
kernel_header(a, "g2_kernel")
a("s_cmp_ge_u32 s2, 256")
a("s_cbranch_scc1 G2_END")
gen_gemm2(a)
a.label("G2_END")
a("s_endpgm")
a.raw('.section .rodata,"a"')
a.raw(kernel_desc("prep_kernel", 192, 48, 192))
a.raw(kernel_desc("conv_kernel", 144, 48, 144))
a.raw(kernel_desc("g1_kernel", 512, 80, 256))
a.raw(kernel_desc("g2_kernel", 288, 64, 256))
open(sys.argv[1], "w").write(a.text())
```

```python
from asmlib import *
from layout import *
from prep import ws_srd

UC = 5184
HC = 4480
WAVE_LDS = 4 * UC + 2 * HC
CONV_LDS = 4 * WAVE_LDS

def gen_conv(a, wg_sreg=2, stamps=False):
    def stamp(i):
        if stamps:
            a("s_memtime s[%d:%d]" % (60 + 2 * i, 61 + 2 * i))
    stamp(0)
    S_G, S_H, S_Z = 4, 8, 12
    sW, sD, sLB = 30, 31, 32
    a("s_load_dwordx2 s[20:21], s[0:1], 32")
    a("s_load_dwordx2 s[22:23], s[0:1], 40")
    a("s_load_dwordx2 s[26:27], s[0:1], 104")
    a("s_load_dwordx2 s[24:25], s[0:1], 0")
    a("s_load_dwordx2 s[28:29], s[0:1], 80")
    a("v_lshrrev_b32 v1, 6, v0")
    a("v_and_b32 v0, 63, v0")
    a("s_nop 0")
    a("v_readfirstlane_b32 s%d, v1" % sW)
    a("s_lshl_b32 s%d, s%d, 2" % (sD, wg_sreg))
    a("s_add_u32 s%d, s%d, s%d" % (sD, sD, sW))
    a("s_mul_i32 s%d, s%d, %d" % (sLB, sW, WAVE_LDS))
    a("v_mov_b32 v4, 0"); a("v_mov_b32 v5, 0"); a("v_mov_b32 v6, 0"); a("v_mov_b32 v7, 0")
    a("v_lshlrev_b32 v2, 4, v0")
    a("v_add_u32 v3, s%d, v2" % sLB)
    for r in range(4):
        a("ds_write_b128 v3, v[4:7] offset:%d" % (r * UC + 4112))
    a("v_cmp_gt_u32 vcc, 16, v0")
    a("s_and_saveexec_b64 s[34:35], vcc")
    for ph in range(2):
        a("ds_write_b128 v3, v[4:7] offset:%d" % (4 * UC + ph * HC))
        a("ds_write_b128 v3, v[4:7] offset:%d" % (4 * UC + ph * HC + HC - 256))
    a("s_mov_b64 exec, s[34:35]")
    a("s_waitcnt lgkmcnt(0)")
    ws_srd(a, S_G, 26, G_OFF, G_BYTES)
    srd(a, S_H, 20, 1024 * 2048 * 2)
    ws_srd(a, S_Z, 26, Z_OFF, Z_BYTES)
    srd(a, 16, 24, 2048 * 1024 * 2)
    srd(a, 40, 28, 1024 * 2)
    ws_srd(a, 44, 26, GT_OFF, GT_BYTES)
    a("s_lshl_b32 s34, s%d, 12" % sD)
    a("buffer_load_dwordx4 v[64:67], v2, s[40:43], 0 offen")
    a("buffer_load_dwordx4 v[68:71], v2, s[40:43], 0 offen offset:1024")
    for i in range(4):
        a("buffer_load_dwordx4 v[%d:%d], v2, s[16:19], s34 offen offset:%d" % (72 + 4 * i, 75 + 4 * i, 1024 * i))
    a("s_lshr_b32 s34, s%d, 1" % sD)
    a("s_lshl_b32 s34, s34, 2")
    a("s_load_dword s36, s[22:23], s34")
    a("s_lshl_b32 s34, s%d, 12" % sD)
    for ph in range(2):
        a("s_add_u32 s35, s%d, %d" % (sLB, 4 * UC + ph * HC + (128 - 4 * ph) * 2))
        a("s_mov_b32 m0, s35")
        a("s_nop 0")
        for I in range(4):
            a("buffer_load_dwordx4 v2, s[%d:%d], s34 offen offset:%d lds" % (S_H, S_H + 3, I * 1024))
    a("v_lshrrev_b32 v3, 4, v0")
    a("v_and_b32 v3, 1, v3")
    a("v_lshlrev_b32 v3, 1, v3")
    a("v_xor_b32 v3, v3, v0")
    a("v_lshlrev_b32 v3, 4, v3")
    a("s_mul_i32 s34, s%d, %d" % (sD, G_PITCH))
    for r in range(4):
        off = {3: 8, 1: 12, 2: G1_REL + 8, 0: G1_REL + 12}[r]
        a("s_add_u32 s35, s34, 0x%x" % off)
        a("s_add_u32 s37, s%d, %d" % (sLB, r * UC))
        a("s_mov_b32 m0, s37")
        a("s_nop 0")
        for I in range(4):
            a("buffer_load_dwordx4 v3, s[%d:%d], s35 offen offset:%d lds" % (S_G, S_G + 3, I * 1024))
    a("s_mov_b64 exec, 1")
    for r in range(4):
        off = {3: 8, 1: 12, 2: G1_REL + 8, 0: G1_REL + 12}[r]
        a("s_add_u32 s35, s34, 0x%x" % (off + 4096))
        a("s_add_u32 s37, s%d, %d" % (sLB, r * UC + 4096))
        a("s_mov_b32 m0, s37")
        a("s_nop 0")
        a("buffer_load_dwordx4 v3, s[%d:%d], s35 offen lds" % (S_G, S_G + 3))
    a("s_mov_b64 exec, -1")
    KV = 16
    a("v_and_b32 v8, 15, v0")
    a("v_lshrrev_b32 v9, 4, v0")
    a("v_lshlrev_b32 v10, 7, v9")
    a("v_lshlrev_b32 v11, 3, v8")
    a("v_add_u32 v10, v10, v11")
    a("v_sub_u32 v11, 512, v10")
    a("v_lshlrev_b32 v11, 1, v11")
    for T in range(4):
        a("buffer_load_dwordx4 v[%d:%d], v11, s[%d:%d], s34 offen offset:%d" % (KV + 4 * T, KV + 4 * T + 3, S_G, S_G + 3, (3 - T) * 1024))
    a("v_lshlrev_b32 v12, 1, v10")
    a("v_add_u32 v13, v8, v9")
    a("v_lshlrev_b32 v13, 4, v13")
    a("s_add_u32 s35, s%d, %d" % (sLB, 4 * UC))
    a("v_add_u32 v13, s35, v13")
    a("v_lshrrev_b32 v4, 2, v8")
    a("v_and_b32 v5, 3, v8")
    a("s_movk_i32 s35, %d" % UC)
    a("v_mul_lo_u32 v5, v5, s35")
    a("v_sub_u32 v6, 3, v4")
    a("v_lshlrev_b32 v6, 8, v6")
    a("v_add_u32 v5, v5, v6")
    a("v_add_u32 v5, s%d, v5" % sLB)
    a("v_and_b32 v6, 1, v4")
    a("v_lshlrev_b32 v6, 1, v6")
    a("v_xor_b32 v7, v9, v6")
    a("v_xor_b32 v6, 2, v7")
    a("v_lshlrev_b32 v6, 4, v6")
    a("v_lshlrev_b32 v7, 4, v7")
    a("v_add_u32 v14, v5, v6")
    a("v_add_u32 v15, v5, v7")
    ACC = 32
    for i in range(32): a("v_mov_b32 v%d, 0" % (ACC + i))
    FB = 64
    def reads(n):
        b = FB + (n % 3) * 24
        r = []
        for ph in range(2):
            r.append("ds_read_b128 v[%d:%d], v13 offset:%d" % (b + 4 * ph, b + 4 * ph + 3, ph * HC + 64 * n))
        m = n >> 2
        for T in range(4):
            if n <= 16 * T + 16:
                r.append("ds_read_b128 v[%d:%d], v%d offset:%d" % (b + 8 + 4 * T, b + 11 + 4 * T, 14 + (m & 1), 3072 - 1024 * T + 256 * m + 64 * (n & 3)))
        return r
    def mf(n):
        b = FB + (n % 3) * 24
        r = []
        for T in range(4):
            if n <= 16 * T + 16:
                for ph in range(2):
                    c = ACC + (T * 2 + ph) * 4
                    r.append("v_mfma_f32_16x16x32_bf16 v[%d:%d], v[%d:%d], v[%d:%d], v[%d:%d]" % (c, c + 3, b + 8 + 4 * T, b + 11 + 4 * T, b + 4 * ph, b + 4 * ph + 3, c, c + 3))
        return r
    NS = 65
    a("s_mov_b32 s35, 0xffff0000")
    a("s_waitcnt vmcnt(32)")
    for i in range(8):
        a("v_lshlrev_b32 v%d, 16, v%d" % (88 + 2 * i, 64 + i))
        a("v_and_b32 v%d, s35, v%d" % (89 + 2 * i, 64 + i))
    for r in range(2):
        for i in range(8):
            src = 72 + 8 * r + i
            t = 104 + 2 * (i & 1)
            a("v_lshlrev_b32 v%d, 16, v%d" % (t, src))
            a("v_and_b32 v%d, s35, v%d" % (t + 1, src))
            a("v_mul_f32 v%d, v%d, v%d" % (t, t, 88 + 2 * i))
            a("v_mul_f32 v%d, v%d, v%d" % (t + 1, t + 1, 89 + 2 * i))
            a("v_cvt_pk_bf16_f32 v%d, v%d, v%d" % (t, t, t + 1))
            a("v_lshlrev_b32 v%d, 16, v%d" % (t + 1, t))
            a("v_and_b32 v%d, s35, v%d" % (t, t))
            if i == 0:
                a("v_add_f32 v%d, v%d, v%d" % (108 + r, t, t + 1))
            else:
                a("v_add_f32 v%d, v%d, v%d" % (t, t, t + 1))
                a("v_add_f32 v%d, v%d, v%d" % (108 + r, 108 + r, t))
    for step in (1, 2, 4, 8, 16, 32):
        a("v_xor_b32 v104, %d, v0" % step)
        a("v_lshlrev_b32 v104, 2, v104")
        a("ds_bpermute_b32 v110, v104, v108")
        a("ds_bpermute_b32 v111, v104, v109")
        a("s_waitcnt lgkmcnt(0)")
        a("v_add_f32 v108, v108, v110")
        a("v_add_f32 v109, v109, v111")
    a("v_cmp_eq_u32 vcc, 1, v0")
    a("s_nop 1")
    a("v_cndmask_b32 v136, v108, v109, vcc")
    a("v_cvt_pk_bf16_f32 v136, v136, v136")
    a("v_lshlrev_b32 v136, 16, v136")
    a("v_mul_f32 v136, 0xbfb8aa3b, v136")
    a("v_exp_f32 v136, v136")
    a("s_nop 0")
    a("v_add_f32 v136, 1.0, v136")
    a("v_rcp_f32 v136, v136")
    a("s_nop 0")
    a("v_cvt_pk_bf16_f32 v136, v136, v136")
    a("v_lshlrev_b32 v136, 16, v136")
    a("v_lshlrev_b32 v137, 2, v0")
    stamp(1)
    a("s_waitcnt vmcnt(4)")
    stamp(2)
    for i in reads(0): a(i)
    for i in reads(1): a(i)
    for n in range(NS):
        nxt = reads(n + 2) if n + 2 < NS else []
        n1 = len(reads(n + 1)) if n + 1 < NS else 0
        a("s_waitcnt lgkmcnt(%d)" % n1)
        m = mf(n)
        for i in place(m, [(k, [x]) for k, x in enumerate(nxt)]): a(i)
    stamp(3)
    a("s_waitcnt vmcnt(0) lgkmcnt(0)")
    a("s_lshl_b32 s34, s%d, 3" % sD)
    a("s_mov_b64 exec, 3")
    a("buffer_store_dword v136, v137, s[44:47], s34 offen")
    a("s_mov_b64 exec, -1")
    a("s_and_b32 s34, s%d, 1" % sD)
    a("s_lshl_b32 s35, s36, 16")
    a("s_and_b32 s36, s36, 0xffff0000")
    a("s_cmp_eq_u32 s34, 0")
    a("s_cselect_b32 s36, s35, s36")
    a("s_mov_b32 s35, 0xffff0000")
    a("s_lshl_b32 s34, s%d, 12" % sD)
    a("s_nop 7")
    for T in range(4):
        Y = 64; Kf = 72; O = 80 + 4 * T
        c = ACC + T * 8
        for p in range(4):
            a("v_cvt_pk_bf16_f32 v%d, v%d, v%d" % (88, c + 2 * p, c + 2 * p + 1))
            a("v_lshlrev_b32 v%d, 16, v88" % (Y + 2 * p))
            a("v_and_b32 v%d, s35, v88" % (Y + 2 * p + 1))
        for p in range(4):
            src = KV + 4 * T + (3 - p)
            a("v_and_b32 v%d, s35, v%d" % (Kf + 2 * p, src))
            a("v_lshlrev_b32 v%d, 16, v%d" % (Kf + 2 * p + 1, src))
        for e in range(8):
            a("v_mul_f32 v%d, s36, v%d" % (Kf + e, Kf + e))
        for p in range(4):
            a("v_cvt_pk_bf16_f32 v88, v%d, v%d" % (Kf + 2 * p, Kf + 2 * p + 1))
            a("v_lshlrev_b32 v%d, 16, v88" % (Kf + 2 * p))
            a("v_and_b32 v%d, s35, v88" % (Kf + 2 * p + 1))
        for e in range(8):
            a("v_add_f32 v%d, v%d, v%d" % (Y + e, Y + e, Kf + e))
        for p in range(4):
            a("v_cvt_pk_bf16_f32 v%d, v%d, v%d" % (O + p, Y + 2 * p, Y + 2 * p + 1))
        a("buffer_store_dwordx4 v[%d:%d], v12, s[%d:%d], s34 offen offset:%d" % (O, O + 3, S_Z, S_Z + 3, T * 1024))

    if stamps:
        stamp(4)
        a("s_waitcnt vmcnt(0)")
        stamp(5)
        a("s_waitcnt lgkmcnt(0)")
        ws_srd(a, S_H, 26, 0x4000000, 1 << 20)
        a("s_lshl_b32 s47, s2, 2")
        a("s_add_u32 s47, s47, s%d" % sW)
        a("s_lshl_b32 s47, s47, 5")
        for i in range(6):
            a("v_mov_b32 v%d, s%d" % (64 + i, 60 + 2 * i))
        a("v_mov_b32 v70, s47")
        a("v_cmp_eq_u32 vcc, 0, v0")
        a("s_and_saveexec_b64 s[48:49], vcc")
        a("buffer_store_dwordx4 v[64:67], v70, s[%d:%d], 0 offen" % (S_H, S_H + 3))
        a("buffer_store_dwordx2 v[68:69], v70, s[%d:%d], 0 offen offset:16" % (S_H, S_H + 3))
        a("s_mov_b64 exec, s[48:49]")
```

```python
from asmlib import *
from layout import *
from prep import ws_srd
import os

G2_BUF = 12288
G2_WAVE = 3 * G2_BUF
G2_ZB = 4 * G2_WAVE
G2_LDS = G2_ZB + 16384
NST = 28

def gen_gemm2(a, dbg="", stamps=False):
    def stamp(i):
        if stamps:
            a("s_memtime s[%d:%d]" % (60 + 2 * i, 61 + 2 * i))
    stamp(0)
    S_H, S_W, S_Z, S_Q, S_O, S_GT = 4, 8, 12, 16, 20, 24
    sW, sLB, sX, sWK = 40, 41, 42, 43
    sM0, sN0 = 44, 45
    a("s_load_dwordx2 s[28:29], s[0:1], 0")
    a("s_load_dwordx2 s[30:31], s[0:1], 72")
    a("s_load_dwordx2 s[32:33], s[0:1], 88")
    a("s_load_dwordx2 s[34:35], s[0:1], 104")
    a("s_and_b32 s46, s2, 7")
    a("s_lshr_b32 s47, s2, 3")
    a("s_and_b32 s48, s46, 3")
    a("s_lshl_b32 s48, s48, 2")
    a("s_and_b32 s49, s47, 3")
    a("s_add_u32 s48, s48, s49")
    a("s_lshr_b32 s49, s46, 2")
    a("s_lshl_b32 s49, s49, 3")
    a("s_lshr_b32 s50, s47, 2")
    a("s_add_u32 s49, s49, s50")
    a("s_lshl_b32 s%d, s48, 7" % sM0)
    a("s_lshl_b32 s%d, s49, 6" % sN0)
    a("v_lshrrev_b32 v1, 6, v0")
    a("v_and_b32 v0, 63, v0")
    a("s_nop 0")
    a("v_readfirstlane_b32 s%d, v1" % sW)
    a("v_lshlrev_b32 v2, 4, v0")
    a("v_lshrrev_b32 v3, 4, v0")
    a("s_mul_i32 s%d, s%d, %d" % (sLB, sW, G2_WAVE))
    a("s_mul_i32 s50, s48, 112")
    a("s_mul_i32 s51, s%d, 28" % sW)
    a("s_add_u32 s50, s50, s51")
    a("s_lshl_b32 s%d, s50, 13" % sX)
    a("s_lshl_b32 s%d, s51, 16" % sWK)
    a("v_lshrrev_b32 v8, 3, v0")
    a("v_lshlrev_b32 v8, 11, v8")
    a("s_lshl_b32 s50, s%d, 1" % sN0)
    a("v_add_u32 v8, s50, v8")
    a("v_and_b32 v9, 7, v0")
    a("v_and_b32 v10, 1, v3")
    a("v_lshlrev_b32 v10, 1, v10")
    a("v_xor_b32 v9, v9, v10")
    a("v_lshlrev_b32 v9, 4, v9")
    a("v_add_u32 v8, v8, v9")
    a("v_xor_b32 v9, 64, v8")
    for I in range(4):
        a("v_add_u32 v%d, 0x%x, v%d" % (4 + I, I * 8 * 2048 - I * 1024, 8 if I % 2 == 0 else 9))
    a("s_waitcnt lgkmcnt(0)")
    ws_srd(a, S_H, 34, H1_OFF, H1_BYTES)
    srd(a, S_W, 30, 3584 * 1024 * 2)
    ws_srd(a, S_Z, 34, Z_OFF, Z_BYTES)
    srd(a, S_Q, 28, 2048 * 1024 * 2)
    srd(a, S_O, 32, 2048 * 1024 * 2)
    ws_srd(a, S_GT, 34, GT_OFF, GT_BYTES)

    def dma(t):
        b = t % 3
        g = []
        for half in range(2):
            for jj in range(4):
                ins = []
                if jj == 0:
                    ins.append("s_add_u32 m0, s%d, %d" % (sLB, b * G2_BUF + half * 4096))
                    if half == 1:
                        ins.append("s_add_u32 s52, s%d, 4096" % sX)
                    else:
                        ins.append("s_nop 0")
                ins.append("buffer_load_dwordx4 v2, s[%d:%d], s%d offen offset:%d lds" % (S_H, S_H + 3, sX if half == 0 else 52, jj * 1024))
                g.append(ins)
        for I in range(4):
            ins = []
            if I == 0:
                ins.append("s_add_u32 m0, s%d, %d" % (sLB, b * G2_BUF + 8192))
                ins.append("s_nop 0")
            ins.append("buffer_load_dwordx4 v%d, s[%d:%d], s%d offen offset:%d lds" % (4 + I, S_W, S_W + 3, sWK, I * 1024))
            g.append(ins)
        g[-1].append("s_add_u32 s%d, s%d, 8192" % (sX, sX))
        g[-1].append("s_add_u32 s%d, s%d, 0x10000" % (sWK, sWK))
        return g

    for t in range(3):
        for g in dma(t):
            for i in g: a(i)
    a("s_lshl_b32 s50, s%d, 4" % sW)
    a("s_add_u32 s50, s50, s%d" % sN0)
    a("v_add_u32 v8, s50, v3")
    a("v_lshlrev_b32 v8, 12, v8")
    a("v_and_b32 v9, 15, v0")
    a("v_lshlrev_b32 v9, 4, v9")
    a("v_add_u32 v8, v8, v9")
    a("s_lshl_b32 s50, s%d, 1" % sM0)
    a("s_lshl_b32 s51, s%d, 12" % sW)
    a("s_add_u32 m0, s51, %d" % G2_ZB)
    for I in range(4):
        a("v_add_u32 v9, 0x%x, v8" % (I * 4 * 4096 - I * 1024))
        a("buffer_load_dwordx4 v9, s[%d:%d], s50 offen offset:%d lds" % (S_Z, S_Z + 3, I * 1024))
    a("v_and_b32 v9, 15, v0")
    a("s_lshl_b32 s50, s%d, 5" % sW)
    a("s_add_u32 s50, s50, s%d" % sM0)
    a("v_add_u32 v9, s50, v9")
    a("v_lshlrev_b32 v13, 2, v9")
    a("v_lshlrev_b32 v12, 11, v9")
    a("v_lshlrev_b32 v10, 3, v3")
    a("v_add_u32 v12, v12, v10")
    a("s_lshl_b32 s50, s%d, 1" % sN0)
    a("v_add_u32 v12, s50, v12")
    a("s_mov_b32 s53, 0x8000")
    for sl in range(2):
        for nt in range(4):
            a("buffer_load_dwordx2 a[%d:%d], v12, s[%d:%d], %s offen offset:%d" % ((sl * 4 + nt) * 2, (sl * 4 + nt) * 2 + 1, S_Q, S_Q + 3, "0" if sl == 0 else "s53", nt * 32))
    a("buffer_load_dword a16, v13, s[%d:%d], 0 offen" % (S_GT, S_GT + 3))
    a("buffer_load_dword a17, v13, s[%d:%d], 0 offen offset:64" % (S_GT, S_GT + 3))
    NEX = 14
    a("v_and_b32 v8, 15, v0")
    a("v_lshlrev_b32 v8, 6, v8")
    a("v_lshrrev_b32 v9, 3, v0")
    a("v_and_b32 v9, 1, v9")
    a("v_mul_u32_u24 v9, 3, v9")
    a("v_xor_b32 v9, v9, v3")
    a("v_lshlrev_b32 v9, 4, v9")
    a("v_add_u32 v8, v8, v9")
    a("v_add_u32 v8, s%d, v8" % sLB)
    for aa in range(4):
        a("s_xor_b32 s50, s%d, %d" % (sW, aa))
        a("s_lshl_b32 s50, s50, 11")
        a("v_add_u32 v%d, s50, v8" % (16 + aa))
    a("v_lshrrev_b32 v8, 2, v0")
    a("v_and_b32 v8, 3, v8")
    a("v_lshlrev_b32 v9, 3, v3")
    a("v_add_u32 v9, v9, v8")
    a("v_lshlrev_b32 v9, 7, v9")
    a("v_and_b32 v10, 3, v0")
    a("v_lshlrev_b32 v10, 3, v10")
    a("v_add_u32 v9, v9, v10")
    a("v_add_u32 v9, s%d, v9" % sLB)
    a("v_add_u32 v9, 0x2000, v9")
    a("v_lshrrev_b32 v10, 1, v8")
    a("v_and_b32 v11, 1, v3")
    a("v_lshlrev_b32 v11, 1, v11")
    a("v_or_b32 v10, v10, v11")
    for nt in range(4):
        a("v_xor_b32 v11, %d, v10" % nt)
        a("v_lshlrev_b32 v11, 5, v11")
        a("v_add_u32 v%d, v9, v11" % (20 + nt))
    a("v_lshlrev_b32 v9, 2, v3")
    a("v_add_u32 v9, v9, v8")
    a("v_lshlrev_b32 v9, 8, v9")
    a("v_and_b32 v10, 3, v0")
    a("v_lshlrev_b32 v10, 3, v10")
    a("v_add_u32 v9, v9, v10")
    a("s_lshl_b32 s50, s%d, 6" % sW)
    a("s_add_u32 s50, s50, %d" % G2_ZB)
    a("v_add_u32 v24, s50, v9")
    a("v_add_u32 v25, s%d, v2" % sLB)
    a("s_xor_b32 s50, s%d, 2" % sW)
    a("s_mul_i32 s50, s50, %d" % G2_WAVE)
    a("v_add_u32 v26, s50, v2")
    a("s_xor_b32 s50, s%d, 1" % sW)
    a("s_mul_i32 s50, s50, %d" % G2_WAVE)
    a("v_add_u32 v27, s50, v2")
    ACC = 128
    for i in range(128): a("v_mov_b32 v%d, 0" % (ACC + i))
    F = [32, 80]

    def reads(t):
        fb = F[t & 1]; b = t % 3
        x = []
        for i in range(8):
            x.append("ds_read_b128 v[%d:%d], v%d offset:%d" % (fb + 4 * i, fb + 4 * i + 3, 16 + (i >> 1), b * G2_BUF + (i & 1) * 1024))
        w = []
        for nt in range(4):
            for h in range(2):
                d = fb + 32 + 4 * nt + 2 * h
                w.append("ds_read_b64_tr_b16 v[%d:%d], v%d offset:%d" % (d, d + 1, 20 + nt, b * G2_BUF + h * 512))
        out = []
        for i in range(8):
            out.append(w[i]); out.append(x[i])
        return out

    def mfmas(t):
        fb = F[t & 1]
        m = []
        if "M" in dbg: return m
        for i in range(8):
            for nt in range(4):
                c = ACC + (i * 4 + nt) * 4
                m.append("v_mfma_f32_16x16x32_bf16 v[%d:%d], v[%d:%d], v[%d:%d], v[%d:%d]" % (
                    c, c + 3, fb + 32 + 4 * nt, fb + 32 + 4 * nt + 3, fb + 4 * i, fb + 4 * i + 3, c, c + 3))
        return m

    stamp(1)
    a("s_waitcnt vmcnt(%d)" % (24 + NEX))
    stamp(2)
    for i in reads(0): a(i)
    for t in range(NST):
        if t + 1 < NST:
            younger = 0
            if t + 2 < NST: younger += 12
            if t < 2: younger += NEX
            a("s_waitcnt vmcnt(%d) lgkmcnt(0)" % younger)
        else:
            a("s_waitcnt lgkmcnt(0)")
        pl = []
        if t + 1 < NST:
            for n, g in enumerate(reads(t + 1)): pl.append((2 * n, [g]))
        if t + 3 < NST and "D" not in dbg:
            for n, g in enumerate(dma(t + 3)): pl.append(((n * 8) // 3 + 1, g))
        for i in place(mfmas(t), pl): a(i)

    stamp(3)
    a("s_nop 7")
    a("s_nop 3")
    for k in range(16):
        c = ACC + (16 + k) * 4
        a("ds_write_b128 v25, v[%d:%d] offset:%d" % (c, c + 3, k * 1024))
    a("s_waitcnt vmcnt(0) lgkmcnt(0)")
    a("s_barrier")
    for k in range(16):
        a("ds_read_b128 v[%d:%d], v26 offset:%d" % (32 + 4 * k, 35 + 4 * k, k * 1024))
    for k in range(16):
        a("s_waitcnt lgkmcnt(%d)" % (15 - k))
        for r in range(4):
            a("v_add_f32 v%d, v%d, v%d" % (ACC + 4 * k + r, ACC + 4 * k + r, 32 + 4 * k + r))
        if k >= 8:
            c = ACC + 4 * k
            a("ds_write_b128 v25, v[%d:%d] offset:%d" % (c, c + 3, 16384 + (k - 8) * 1024))
    a("s_waitcnt lgkmcnt(0)")
    a("s_barrier")
    for k in range(8):
        a("ds_read_b128 v[%d:%d], v27 offset:%d" % (32 + 4 * k, 35 + 4 * k, 16384 + k * 1024))
    for sl in range(2):
        for nt in range(4):
            d = 64 + (sl * 4 + nt) * 2
            a("ds_read_b64_tr_b16 v[%d:%d], v24 offset:%d" % (d, d + 1, nt * 4096 + sl * 32))
    for i in range(18): a("v_accvgpr_read_b32 v%d, a%d" % (80 + i, i))
    stamp(4)
    a("s_mov_b32 s50, 0xffff0000")
    for sl in range(2):
        a("v_sub_f32 v%d, 1.0, v%d" % (98 + sl, 96 + sl))
        a("v_cvt_pk_bf16_f32 v%d, v%d, v%d" % (98 + sl, 98 + sl, 98 + sl))
        a("v_and_b32 v%d, s50, v%d" % (98 + sl, 98 + sl))
    a("s_waitcnt lgkmcnt(0)")
    def rnd4(R, T):
        a("v_cvt_pk_bf16_f32 v%d, v%d, v%d" % (T, R, R + 1))
        a("v_cvt_pk_bf16_f32 v%d, v%d, v%d" % (T + 1, R + 2, R + 3))
        a("v_lshlrev_b32 v%d, 16, v%d" % (R, T))
        a("v_and_b32 v%d, s50, v%d" % (R + 1, T))
        a("v_lshlrev_b32 v%d, 16, v%d" % (R + 2, T + 1))
        a("v_and_b32 v%d, s50, v%d" % (R + 3, T + 1))
    for sl in range(2):
        for nt in range(4):
            k = sl * 4 + nt
            B = ACC + 4 * k
            Q = 100; Z = 104; T = 108; O = 110 + 2 * (k & 3)
            for r in range(4):
                a("v_add_f32 v%d, v%d, v%d" % (B + r, B + r, 32 + 4 * k + r))
            rnd4(B, T)
            qs = 80 + 2 * k; zs = 64 + 2 * k
            a("v_lshlrev_b32 v%d, 16, v%d" % (Q, qs)); a("v_and_b32 v%d, s50, v%d" % (Q + 1, qs))
            a("v_lshlrev_b32 v%d, 16, v%d" % (Q + 2, qs + 1)); a("v_and_b32 v%d, s50, v%d" % (Q + 3, qs + 1))
            a("v_lshlrev_b32 v%d, 16, v%d" % (Z, zs)); a("v_and_b32 v%d, s50, v%d" % (Z + 1, zs))
            a("v_lshlrev_b32 v%d, 16, v%d" % (Z + 2, zs + 1)); a("v_and_b32 v%d, s50, v%d" % (Z + 3, zs + 1))
            for r in range(4): a("v_mul_f32 v%d, v%d, v%d" % (Q + r, Q + r, Z + r))
            rnd4(Q, T)
            for r in range(4): a("v_mul_f32 v%d, v%d, v%d" % (Q + r, Q + r, 96 + sl))
            rnd4(Q, T)
            for r in range(4): a("v_mul_f32 v%d, v%d, v%d" % (B + r, B + r, 98 + sl))
            rnd4(B, T)
            for r in range(4): a("v_add_f32 v%d, v%d, v%d" % (B + r, B + r, Q + r))
            a("v_cvt_pk_bf16_f32 v%d, v%d, v%d" % (O, B, B + 1))
            a("v_cvt_pk_bf16_f32 v%d, v%d, v%d" % (O + 1, B + 2, B + 3))
            a("buffer_store_dwordx2 v[%d:%d], v12, s[%d:%d], %s offen offset:%d" % (O, O + 1, S_O, S_O + 3, "0" if sl == 0 else "s53", nt * 32))

    if stamps:
        a("s_waitcnt vmcnt(0)")
        stamp(5)
        a("s_waitcnt lgkmcnt(0)")
        ws_srd(a, S_H, 34, 0x4000000, 1 << 20)
        a("s_lshl_b32 s47, s2, 2")
        a("s_add_u32 s47, s47, s%d" % sW)
        a("s_lshl_b32 s47, s47, 5")
        for i in range(6):
            a("v_mov_b32 v%d, s%d" % (64 + i, 60 + 2 * i))
        a("v_mov_b32 v70, s47")
        a("v_cmp_eq_u32 vcc, 0, v0")
        a("s_and_saveexec_b64 s[48:49], vcc")
        a("buffer_store_dwordx4 v[64:67], v70, s[%d:%d], 0 offen" % (S_H, S_H + 3))
        a("buffer_store_dwordx2 v[68:69], v70, s[%d:%d], 0 offen offset:16" % (S_H, S_H + 3))
        a("s_mov_b64 exec, s[48:49]")
```

```python
H1_OFF = 0
H1_BYTES = 2048 * 3584 * 2
G_OFF = 16 << 20
G_PITCH = 4224
G1_REL = 1024 * G_PITCH
G_BYTES = 1024 * G_PITCH
Z_OFF = 28 << 20
Z_BYTES = 1024 * 2048 * 2
GT_OFF = 33 << 20
GT_BYTES = 2048 * 4
XB_OFF = 36 << 20
XB_BYTES = 256 * 4 * 8192
```

```python
import os
from asmlib import *
from layout import *
from prep import ws_srd, gen_prep_gate

def gen_prep3(a, wgp_sreg, stamps=False):
    S_K, S_V, S_SH, S_G = 4, 8, 12, 16
    def stamp(i):
        if stamps: a("s_memtime s[%d:%d]" % (60 + 2 * i, 61 + 2 * i))
    stamp(0)
    a("s_load_dwordx2 s[20:21], s[0:1], 8")
    a("s_load_dwordx2 s[22:23], s[0:1], 16")
    a("s_load_dwordx2 s[24:25], s[0:1], 24")
    a("s_load_dwordx2 s[26:27], s[0:1], 104")
    a("s_lshr_b32 s30, s%d, 1" % wgp_sreg)
    a("s_lshl_b32 s30, s30, 6")
    a("s_and_b32 s29, s%d, 1" % wgp_sreg)
    a("s_lshl_b32 s31, s29, 10")
    a("v_and_b32 v1, 7, v0")
    a("v_lshrrev_b32 v2, 3, v0")
    a("v_lshlrev_b32 v3, 3, v1")
    a("v_add_u32 v3, s30, v3")
    a("v_lshlrev_b32 v4, 3, v2")
    a("v_add_u32 v4, s31, v4")
    a("v_add_u32 v5, -4, v4")
    a("v_lshlrev_b32 v5, 11, v5")
    a("v_lshlrev_b32 v6, 1, v3")
    a("v_add_u32 v5, v5, v6")
    a("v_add_u32 v6, 0x1000, v5")
    a("v_add_u32 v7, 0x2000, v5")
    a("v_lshlrev_b32 v8, 3, v3")
    a("s_movk_i32 s28, %d" % G_PITCH)
    a("v_mul_lo_u32 v9, v3, s28")
    a("v_lshlrev_b32 v10, 1, v4")
    a("v_sub_u32 v10, 0x1000, v10")
    a("v_add_u32 v10, v9, v10")
    a("s_waitcnt lgkmcnt(0)")
    srd(a, S_K, 20, 2048 * 1024 * 2)
    srd(a, S_V, 22, 2048 * 1024 * 2)
    srd(a, S_SH, 24, 1024 * 4 * 2)
    ws_srd(a, S_G, 26, G_OFF, G_BYTES)
    a("s_mov_b32 s28, 0xffff0000")
    for i in range(4): a("s_movk_i32 s%d, %d" % (32 + i, 4096 * i))
    for e in range(8):
        a("s_mov_b32 s%d, 0x%x" % (40 + e, e * G_PITCH))
        a("s_mov_b32 s%d, 0x%x" % (48 + e, e * G_PITCH + G1_REL))
    SH = 12
    BUF = [28, 112]
    KT = 196
    R = 220
    W = 238
    VT = 246
    Z = 250
    for r in range(4):
        a("buffer_load_dwordx4 v[%d:%d], v8, s[%d:%d], 0 offen offset:%d" % (SH + 4 * r, SH + 3 + 4 * r, S_SH, S_SH + 3, 16 * r))

    def loads(base):
        def ld(dst, S, row):
            if row < 2: v, so, off = 5, "0", row * 2048
            elif row < 4: v, so, off = 6, "0", (row - 2) * 2048
            else: v, so, off = 7, "s%d" % (32 + (row - 4) // 2), ((row - 4) & 1) * 2048
            a("buffer_load_dwordx4 v[%d:%d], v%d, s[%d:%d], %s offen offset:%d" % (dst, dst + 3, v, S, S + 3, so, off))
        for r in range(12): ld(base + 4 * r, S_K, r)
        for r in range(9): ld(base + 48 + 4 * r, S_V, r + 3)
        for v in (5, 6, 7): a("v_add_u32 v%d, 0x80000, v%d" % (v, v))

    def compute(base, last):
        for p in range(4):
            for c in range(2):
                e = 2 * p + c
                a("v_lshlrev_b32 v%d, 16, v%d" % (W + 0 + c, SH + 2 * e))
                a("v_and_b32 v%d, s28, v%d" % (W + 2 + c, SH + 2 * e))
                a("v_lshlrev_b32 v%d, 16, v%d" % (W + 4 + c, SH + 2 * e + 1))
                a("v_and_b32 v%d, s28, v%d" % (W + 6 + c, SH + 2 * e + 1))
            for r in range(12):
                a("v_lshlrev_b32 v%d, 16, v%d" % (KT + 2 * r, base + 4 * r + p))
                a("v_and_b32 v%d, s28, v%d" % (KT + 2 * r + 1, base + 4 * r + p))
            for j in range(9):
                a("v_pk_mul_f32 v[%d:%d], v[%d:%d], v[%d:%d]" % (R + 2 * j, R + 2 * j + 1, KT + 2 * j, KT + 2 * j + 1, W + 6, W + 7))
            for t in range(1, 4):
                for j in range(9):
                    a("v_pk_fma_f32 v[%d:%d], v[%d:%d], v[%d:%d], v[%d:%d]" % (R + 2 * j, R + 2 * j + 1, KT + 2 * (j + t), KT + 2 * (j + t) + 1, W + 2 * (3 - t), W + 2 * (3 - t) + 1, R + 2 * j, R + 2 * j + 1))
            for j in range(9):
                t = VT + 2 * (j & 1)
                a("v_cvt_pk_bf16_f32 v%d, v%d, v%d" % (KT + j, R + 2 * j, R + 2 * j + 1))
                a("v_lshlrev_b32 v%d, 16, v%d" % (t, base + 48 + 4 * j + p))
                a("v_and_b32 v%d, s28, v%d" % (t + 1, base + 48 + 4 * j + p))
                a("v_lshlrev_b32 v%d, 16, v%d" % (R + 2 * j, KT + j))
                a("v_and_b32 v%d, s28, v%d" % (R + 2 * j + 1, KT + j))
                a("v_pk_mul_f32 v[%d:%d], v[%d:%d], v[%d:%d]" % (R + 2 * j, R + 2 * j + 1, R + 2 * j, R + 2 * j + 1, t, t + 1))
            for c in range(2):
                e = 2 * p + c
                o0 = KT + 8 * c; o1 = o0 + 4
                for i in range(4):
                    a("v_cvt_pk_bf16_f32 v%d, v%d, v%d" % (o0 + i, R + 2 * (8 - 2 * i) + c, R + 2 * (7 - 2 * i) + c))
                for i in range(4):
                    a("v_cvt_pk_bf16_f32 v%d, v%d, v%d" % (o1 + i, R + 2 * (7 - 2 * i) + c, R + 2 * (6 - 2 * i) + c))
                if os.environ.get("NOST"): a("s_mov_b64 exec, 0")
                a("buffer_store_dwordx4 v[%d:%d], v10, s[%d:%d], s%d offen" % (o0, o0 + 3, S_G, S_G + 3, 40 + e))
                a("buffer_store_dwordx4 v[%d:%d], v10, s[%d:%d], s%d offen" % (o1, o1 + 3, S_G, S_G + 3, 48 + e))
                if os.environ.get("NOST"): a("s_mov_b64 exec, -1")
                if last:
                    zz = 32 + 4 * e
                    a("v_cvt_pk_bf16_f32 v%d, 0, v%d" % (zz + 3, R + 16 + c))
                    a("s_mov_b64 exec, s[38:39]")
                    a("buffer_store_dwordx4 v[28:31], v9, s[%d:%d], s%d offen" % (S_G, S_G + 3, 40 + e))
                    a("buffer_store_dwordx4 v[%d:%d], v9, s[%d:%d], s%d offen" % (zz, zz + 3, S_G, S_G + 3, 48 + e))
                    a("s_mov_b64 exec, -1")
            a("s_nop 1")
        a("v_add_u32 v10, 0xfffffe00, v10")
    loads(BUF[0])
    loads(BUF[1])
    a("s_waitcnt vmcnt(21)")
    stamp(1)
    compute(BUF[0], False)
    stamp(2)
    loads(BUF[0])
    a("s_waitcnt vmcnt(37)")
    stamp(3)
    compute(BUF[1], False)
    loads(BUF[1])
    a("s_waitcnt vmcnt(37)")
    stamp(4)
    compute(BUF[0], False)
    a("s_lshl_b32 s36, s29, 8")
    a("v_add_u32 v1, s36, v0")
    a("v_cmp_le_u32 vcc, 504, v1")
    a("s_mov_b64 s[38:39], vcc")
    for i in range(28, 64): a("v_mov_b32 v%d, 0" % i)
    a("s_waitcnt vmcnt(16)")
    compute(BUF[1], True)
    a("s_lshl_b32 s36, s29, 8")
    a("v_add_u32 v1, s36, v0")
    a("v_cmp_gt_u32 vcc, 8, v1")
    a("s_and_saveexec_b64 s[36:37], vcc")
    a("v_mov_b32 v12, 0"); a("v_mov_b32 v13, 0"); a("v_mov_b32 v14, 0"); a("v_mov_b32 v15, 0")
    a("v_add_u32 v9, 0x1010, v9")
    for e in range(8):
        a("buffer_store_dwordx4 v[12:15], v9, s[%d:%d], s%d offen" % (S_G, S_G + 3, 40 + e))
        a("buffer_store_dwordx4 v[12:15], v9, s[%d:%d], s%d offen" % (S_G, S_G + 3, 48 + e))
    a("s_mov_b64 exec, s[36:37]")
    stamp(5)
    if stamps:
        a("s_waitcnt vmcnt(0)")
        stamp(6)
        a("s_waitcnt lgkmcnt(0)")
        ws_srd(a, 4, 26, 0x4000000, 1 << 20)
        a("s_lshl_b32 s47, s2, 5")
        for i in range(8):
            a("v_mov_b32 v%d, s%d" % (64 + i, 60 + 2 * i))
        a("v_mov_b32 v72, s47")
        a("s_mov_b64 exec, 1")
        a("buffer_store_dwordx4 v[64:67], v72, s[4:7], 0 offen")
        a("buffer_store_dwordx4 v[68:71], v72, s[4:7], 0 offen offset:16")
        a("s_mov_b64 exec, -1")
```

```python
import sys, os
os.environ.setdefault("PD", "4")
from asmlib import *
from prep import *
from prep3 import *
from conv import *
from gemm1 import *
from gemm2 import *
ST = os.environ.get("STAMPS", "") != ""
a = A()
hdr = open("gated_mix__ssm_conv_h3__geglu_ffn__prompt.s.ref").read().split("\n")
for l in hdr:
    if l.startswith("; Override") : break
    a.raw(l)
a.raw("; @launch kernel=g1_kernel grid=(256,1,1) block=(256,1,1) lds=131072")
a.raw("; @launch kernel=conv_kernel grid=(256,1,1) block=(256,1,1) lds=%d" % CONV_LDS)
a.raw("; @launch kernel=g2_kernel grid=(256,1,1) block=(256,1,1) lds=%d" % G2_LDS)
a.raw('.amdgcn_target "amdgcn-amd-amdhsa--gfx950"')
a.raw(".text")
def rt_begin():
    if ST:
        a("s_memrealtime s[90:91]")
def rt_end(kidx):
    if ST:
        a("s_waitcnt vmcnt(0) lgkmcnt(0)")
        a("s_memrealtime s[92:93]")
        a("s_load_dwordx2 s[94:95], s[0:1], 104")
        a("s_waitcnt lgkmcnt(0)")
        a("s_add_u32 s96, s94, 0x%x" % (0x5000000 + kidx * 0x10000))
        a("s_addc_u32 s97, s95, 0")
        a("s_mov_b32 s98, 0x10000")
        a("s_mov_b32 s99, 0x00020000")
        a("s_mov_b64 exec, 1")
        a("v_mov_b32 v4, s90")
        a("v_mov_b32 v5, s91")
        a("v_mov_b32 v6, s92")
        a("v_mov_b32 v7, s93")
        a("s_lshl_b32 s94, s2, 4")
        a("v_mov_b32 v8, s94")
        a("buffer_store_dwordx4 v[4:7], v8, s[96:99], 0 offen")
kernel_header(a, "g1_kernel")
a("s_cmp_ge_u32 s2, 256")
a("s_cbranch_scc1 G1_END")
rt_begin()
a("s_cmp_ge_u32 s2, 224")
a("s_cbranch_scc1 G1_PREP")
if os.environ.get("NOG1"): a("s_endpgm")
gen_gemm1(a, dbg="P")
rt_end(0)
a("s_endpgm")
a.label("G1_PREP")
a("s_sub_u32 s3, s2, 224")
gen_prep3(a, 3, ST)
rt_end(0)
a.label("G1_END")
a("s_endpgm")
kernel_header(a, "conv_kernel")
a("s_cmp_ge_u32 s2, 256")
a("s_cbranch_scc1 CONV_END")
rt_begin()
gen_conv(a)
rt_end(1)
a.label("CONV_END")
a("s_endpgm")
kernel_header(a, "g2_kernel")
a("s_cmp_ge_u32 s2, 256")
a("s_cbranch_scc1 G2_END")
rt_begin()
gen_gemm2(a)
rt_end(2)
a.label("G2_END")
a("s_endpgm")
a.raw('.section .rodata,"a"')
sg = 102 if ST else 80
a.raw(kernel_desc("conv_kernel", 144, sg, 144))
a.raw(kernel_desc("g1_kernel", 512, sg, 256))
a.raw(kernel_desc("g2_kernel", 288, sg, 256))
open(sys.argv[1], "w").write(a.text())
```

```python
from asmlib import *
from layout import *
from prep import ws_srd

UC = 5184
HC = 4480
WAVE_LDS = 4 * UC + 2 * HC
CONV_LDS = 4 * WAVE_LDS

P_HK, P_D, P_GW, P_DBG, P_WS, P_Q = 64, 66, 68, 70, 72, 74
S_G, S_H, S_Z, S_Q, S_GW, S_GT, S_F = 4, 8, 12, 32, 36, 52, 80
sW, sD, sLB, T0, T1, T2, sDV = 40, 60, 61, 62, 63, 76, 78
KV = 160
GL = 176
VL = 200
VSW = 201
VZ = 204
VT = 208
import os
TARGET = 16 if os.environ.get('DPREP') else 2

def conv_ptrs(a):
    a("s_load_dwordx2 s[%d:%d], s[0:1], 32" % (P_HK, P_HK + 1))
    a("s_load_dwordx2 s[%d:%d], s[0:1], 40" % (P_D, P_D + 1))
    a("s_load_dwordx2 s[%d:%d], s[0:1], 80" % (P_GW, P_GW + 1))
    a("s_load_dwordx2 s[%d:%d], s[0:1], 96" % (P_DBG, P_DBG + 1))
    a("s_load_dwordx2 s[%d:%d], s[0:1], 104" % (P_WS, P_WS + 1))
    a("s_load_dwordx2 s[%d:%d], s[0:1], 0" % (P_Q, P_Q + 1))

def flag_srd(a):
    srd(a, S_F, P_DBG, 256)

def poll_issue(a, vdst):
    a("s_lshr_b32 s%d, s2, 4" % T0)
    a("s_lshl_b32 s%d, s%d, 2" % (T0, T0))
    a("v_mov_b32 v%d, s%d" % (VT, T0))
    a("buffer_load_dword v%d, v%d, s[%d:%d], 0 offen sc1" % (vdst, VT, S_F, S_F + 3))

def poll_check(a, vdst, sdst):
    a("v_readfirstlane_b32 s%d, v%d" % (sdst, vdst))
    a("s_cmp_eq_u32 s%d, %d" % (sdst, TARGET))
    a("s_cselect_b32 s%d, 1, 0" % sdst)

def signal(a):
    if TARGET == 16: a("s_and_b32 s%d, s2, 15" % T0)
    else: a("s_lshr_b32 s%d, s2, 1" % T0)
    a("s_lshl_b32 s%d, s%d, 2" % (T0, T0))
    a("v_mov_b32 v%d, s%d" % (VT, T0))
    a("v_mov_b32 v%d, 1" % (VT + 1))
    a("s_mov_b64 exec, 1")
    a("buffer_atomic_add v%d, v%d, s[%d:%d], 0 offen sc1" % (VT + 1, VT, S_F, S_F + 3))
    a("s_mov_b64 exec, -1")

def conv_issue(a):
    a("s_lshl_b32 s%d, s2, 2" % sD)
    a("s_add_u32 s%d, s%d, s%d" % (sD, sD, sW))
    a("s_mul_i32 s%d, s%d, %d" % (sLB, sW, WAVE_LDS))
    for i in range(4): a("v_mov_b32 v%d, 0" % (VZ + i))
    a("v_lshlrev_b32 v%d, 4, v0" % VL)
    a("v_add_u32 v%d, s%d, v%d" % (VT, sLB, VL))
    for r in range(4):
        a("ds_write_b128 v%d, v[%d:%d] offset:%d" % (VT, VZ, VZ + 3, r * UC + 4112))
    a("s_mov_b64 exec, 0xffff")
    for ph in range(2):
        a("ds_write_b128 v%d, v[%d:%d] offset:%d" % (VT, VZ, VZ + 3, 4 * UC + ph * HC))
        a("ds_write_b128 v%d, v[%d:%d] offset:%d" % (VT, VZ, VZ + 3, 4 * UC + ph * HC + HC - 256))
    a("s_mov_b64 exec, -1")
    ws_srd(a, S_G, P_WS, G_OFF, G_BYTES)
    srd(a, S_H, P_HK, 1024 * 2048 * 2)
    ws_srd(a, S_Z, P_WS, Z_OFF, Z_BYTES)
    srd(a, S_Q, P_Q, 2048 * 1024 * 2)
    srd(a, S_GW, P_GW, 1024 * 2)
    ws_srd(a, S_GT, P_WS, GT_OFF, GT_BYTES)
    a("s_lshl_b32 s%d, s%d, 12" % (T0, sD))
    a("buffer_load_dwordx4 v[%d:%d], v%d, s[%d:%d], 0 offen" % (GL, GL + 3, VL, S_GW, S_GW + 3))
    a("buffer_load_dwordx4 v[%d:%d], v%d, s[%d:%d], 0 offen offset:1024" % (GL + 4, GL + 7, VL, S_GW, S_GW + 3))
    for i in range(4):
        a("buffer_load_dwordx4 v[%d:%d], v%d, s[%d:%d], s%d offen offset:%d" % (GL + 8 + 4 * i, GL + 11 + 4 * i, VL, S_Q, S_Q + 3, T0, 1024 * i))
    a("s_lshr_b32 s%d, s%d, 1" % (T1, sD))
    a("s_lshl_b32 s%d, s%d, 2" % (T1, T1))
    a("s_load_dword s%d, s[%d:%d], s%d" % (sDV, P_D, P_D + 1, T1))
    a("v_lshrrev_b32 v%d, 4, v0" % VSW)
    a("v_and_b32 v%d, 1, v%d" % (VSW, VSW))
    a("v_lshlrev_b32 v%d, 1, v%d" % (VSW, VSW))
    a("v_xor_b32 v%d, v%d, v0" % (VSW, VSW))
    a("v_lshlrev_b32 v%d, 4, v%d" % (VSW, VSW))
    a("s_waitcnt lgkmcnt(0)")
    for ph in range(2):
        a("s_add_u32 m0, s%d, %d" % (sLB, 4 * UC + ph * HC + (128 - 4 * ph) * 2))
        a("s_nop 0")
        for I in range(4):
            a("buffer_load_dwordx4 v%d, s[%d:%d], s%d offen offset:%d lds" % (VL, S_H, S_H + 3, T0, I * 1024))
    a("s_mul_i32 s%d, s%d, %d" % (T0, sD, G_PITCH))
    for r in range(4):
        off = {3: 120, 1: 124, 2: G1_REL + 120, 0: G1_REL + 124}[r]
        a("s_add_u32 s%d, s%d, 0x%x" % (T1, T0, off))
        a("s_add_u32 m0, s%d, %d" % (sLB, r * UC))
        a("s_nop 0")
        for I in range(4):
            a("buffer_load_dwordx4 v%d, s[%d:%d], s%d offen offset:%d lds" % (VSW, S_G, S_G + 3, T1, I * 1024))
    a("s_mov_b64 exec, 1")
    for r in range(4):
        off = {3: 120, 1: 124, 2: G1_REL + 120, 0: G1_REL + 124}[r]
        a("s_add_u32 s%d, s%d, 0x%x" % (T1, T0, off + 4096))
        a("s_add_u32 m0, s%d, %d" % (sLB, r * UC + 4096))
        a("s_nop 0")
        a("buffer_load_dwordx4 v%d, s[%d:%d], s%d offen lds" % (VSW, S_G, S_G + 3, T1))
    a("s_mov_b64 exec, -1")
    a("v_and_b32 v%d, 15, v0" % VT)
    a("v_lshrrev_b32 v%d, 4, v0" % (VT + 1))
    a("v_lshlrev_b32 v%d, 7, v%d" % (VT + 1, VT + 1))
    a("v_lshlrev_b32 v%d, 3, v%d" % (VT, VT))
    a("v_add_u32 v%d, v%d, v%d" % (VT, VT, VT + 1))
    a("v_sub_u32 v%d, 568, v%d" % (VT, VT))
    a("v_lshlrev_b32 v%d, 1, v%d" % (VT, VT))
    for T in range(4):
        a("buffer_load_dwordx4 v[%d:%d], v%d, s[%d:%d], s%d offen offset:%d" % (KV + 4 * T, KV + 4 * T + 3, VT, S_G, S_G + 3, T0, (3 - T) * 1024))

def conv_main(a, younger):
    a("v_and_b32 v8, 15, v0")
    a("v_lshrrev_b32 v9, 4, v0")
    a("v_lshlrev_b32 v10, 7, v9")
    a("v_lshlrev_b32 v11, 3, v8")
    a("v_add_u32 v10, v10, v11")
    a("v_lshlrev_b32 v12, 1, v10")
    a("v_add_u32 v13, v8, v9")
    a("v_lshlrev_b32 v13, 4, v13")
    a("s_add_u32 s%d, s%d, %d" % (T1, sLB, 4 * UC))
    a("v_add_u32 v13, s%d, v13" % T1)
    a("v_lshrrev_b32 v4, 2, v8")
    a("v_and_b32 v5, 3, v8")
    a("s_movk_i32 s%d, %d" % (T1, UC))
    a("v_mul_lo_u32 v5, v5, s%d" % T1)
    a("v_sub_u32 v6, 3, v4")
    a("v_lshlrev_b32 v6, 8, v6")
    a("v_add_u32 v5, v5, v6")
    a("v_add_u32 v5, s%d, v5" % sLB)
    a("v_and_b32 v6, 1, v4")
    a("v_lshlrev_b32 v6, 1, v6")
    a("v_xor_b32 v7, v9, v6")
    a("v_xor_b32 v6, 2, v7")
    a("v_lshlrev_b32 v6, 4, v6")
    a("v_lshlrev_b32 v7, 4, v7")
    a("v_add_u32 v14, v5, v6")
    a("v_add_u32 v15, v5, v7")
    ACC = 32
    for i in range(32): a("v_mov_b32 v%d, 0" % (ACC + i))
    FB = 64
    def reads(n):
        b = FB + (n % 3) * 24
        r = []
        for ph in range(2):
            r.append("ds_read_b128 v[%d:%d], v13 offset:%d" % (b + 4 * ph, b + 4 * ph + 3, ph * HC + 64 * n))
        m = n >> 2
        for T in range(4):
            if n <= 16 * T + 16:
                r.append("ds_read_b128 v[%d:%d], v%d offset:%d" % (b + 8 + 4 * T, b + 11 + 4 * T, 14 + (m & 1), 3072 - 1024 * T + 256 * m + 64 * (n & 3)))
        return r
    def mf(n):
        b = FB + (n % 3) * 24
        r = []
        for T in range(4):
            if n <= 16 * T + 16:
                for ph in range(2):
                    c = ACC + (T * 2 + ph) * 4
                    r.append("v_mfma_f32_16x16x32_bf16 v[%d:%d], v[%d:%d], v[%d:%d], v[%d:%d]" % (c, c + 3, b + 8 + 4 * T, b + 11 + 4 * T, b + 4 * ph, b + 4 * ph + 3, c, c + 3))
        return r
    NS = 65
    M = T2
    a("s_mov_b32 s%d, 0xffff0000" % M)
    a("s_waitcnt vmcnt(%d)" % min(63, 32 + younger))
    for i in range(8):
        a("v_lshlrev_b32 v%d, 16, v%d" % (88 + 2 * i, GL + i))
        a("v_and_b32 v%d, s%d, v%d" % (89 + 2 * i, M, GL + i))
    for r in range(2):
        for i in range(8):
            src = GL + 8 + 8 * r + i
            t = 104 + 2 * (i & 1)
            a("v_lshlrev_b32 v%d, 16, v%d" % (t, src))
            a("v_and_b32 v%d, s%d, v%d" % (t + 1, M, src))
            a("v_mul_f32 v%d, v%d, v%d" % (t, t, 88 + 2 * i))
            a("v_mul_f32 v%d, v%d, v%d" % (t + 1, t + 1, 89 + 2 * i))
            a("v_cvt_pk_bf16_f32 v%d, v%d, v%d" % (t, t, t + 1))
            a("v_lshlrev_b32 v%d, 16, v%d" % (t + 1, t))
            a("v_and_b32 v%d, s%d, v%d" % (t, M, t))
            if i == 0:
                a("v_add_f32 v%d, v%d, v%d" % (108 + r, t, t + 1))
            else:
                a("v_add_f32 v%d, v%d, v%d" % (t, t, t + 1))
                a("v_add_f32 v%d, v%d, v%d" % (108 + r, 108 + r, t))
    for step in (1, 2, 4, 8, 16, 32):
        a("v_xor_b32 v104, %d, v0" % step)
        a("v_lshlrev_b32 v104, 2, v104")
        a("ds_bpermute_b32 v110, v104, v108")
        a("ds_bpermute_b32 v111, v104, v109")
        a("s_waitcnt lgkmcnt(0)")
        a("v_add_f32 v108, v108, v110")
        a("v_add_f32 v109, v109, v111")
    a("v_cmp_eq_u32 vcc, 1, v0")
    a("s_nop 1")
    a("v_cndmask_b32 v136, v108, v109, vcc")
    a("v_cvt_pk_bf16_f32 v136, v136, v136")
    a("v_lshlrev_b32 v136, 16, v136")
    a("v_mul_f32 v136, 0xbfb8aa3b, v136")
    a("v_exp_f32 v136, v136")
    a("s_nop 0")
    a("v_add_f32 v136, 1.0, v136")
    a("v_rcp_f32 v136, v136")
    a("s_nop 0")
    a("v_cvt_pk_bf16_f32 v136, v136, v136")
    a("v_lshlrev_b32 v136, 16, v136")
    a("v_lshlrev_b32 v137, 2, v0")
    a("s_waitcnt vmcnt(%d)" % younger)
    a("s_lshl_b32 s%d, s%d, 3" % (T0, sD))
    a("s_mov_b64 exec, 3")
    a("buffer_store_dword v136, v137, s[%d:%d], s%d offen" % (S_GT, S_GT + 3, T0))
    a("s_mov_b64 exec, -1")
    for i in reads(0): a(i)
    for i in reads(1): a(i)
    for n in range(NS):
        nxt = reads(n + 2) if n + 2 < NS else []
        n1 = len(reads(n + 1)) if n + 1 < NS else 0
        a("s_waitcnt lgkmcnt(%d)" % n1)
        m = mf(n)
        for i in place(m, [(k, [x]) for k, x in enumerate(nxt)]): a(i)
    a("s_and_b32 s%d, s%d, 1" % (T0, sD))
    a("s_lshl_b32 s%d, s%d, 16" % (T1, sDV))
    a("s_and_b32 s%d, s%d, 0xffff0000" % (sDV, sDV))
    a("s_cmp_eq_u32 s%d, 0" % T0)
    a("s_cselect_b32 s%d, s%d, s%d" % (sDV, T1, sDV))
    a("s_lshl_b32 s%d, s%d, 12" % (T0, sD))
    a("s_nop 7")
    for T in range(4):
        Y = 64; Kf = 72; O = 80 + 4 * T
        c = ACC + T * 8
        for p in range(4):
            a("v_cvt_pk_bf16_f32 v%d, v%d, v%d" % (96, c + 2 * p, c + 2 * p + 1))
            a("v_lshlrev_b32 v%d, 16, v96" % (Y + 2 * p))
            a("v_and_b32 v%d, s%d, v96" % (Y + 2 * p + 1, M))
        for p in range(4):
            src = KV + 4 * T + (3 - p)
            a("v_and_b32 v%d, s%d, v%d" % (Kf + 2 * p, M, src))
            a("v_lshlrev_b32 v%d, 16, v%d" % (Kf + 2 * p + 1, src))
        for e in range(8):
            a("v_mul_f32 v%d, s%d, v%d" % (Kf + e, sDV, Kf + e))
        for p in range(4):
            a("v_cvt_pk_bf16_f32 v96, v%d, v%d" % (Kf + 2 * p, Kf + 2 * p + 1))
            a("v_lshlrev_b32 v%d, 16, v96" % (Kf + 2 * p))
            a("v_and_b32 v%d, s%d, v96" % (Kf + 2 * p + 1, M))
        for e in range(8):
            a("v_add_f32 v%d, v%d, v%d" % (Y + e, Y + e, Kf + e))
        for p in range(4):
            a("v_cvt_pk_bf16_f32 v%d, v%d, v%d" % (O + p, Y + 2 * p, Y + 2 * p + 1))
        a("buffer_store_dwordx4 v[%d:%d], v12, s[%d:%d], s%d offen offset:%d" % (O, O + 3, S_Z, S_Z + 3, T0, T * 1024))
```

```python
from asmlib import *

import os
ROT = int(os.environ.get('ROT', '5'))
PD = int(os.environ.get('PD', '6'))
DS0 = int(os.environ.get('DS0', '1'))
DSP = int(os.environ.get('DSP', '4'))
H1_OFF = 0
H1_BYTES = 2048 * 3584 * 2

def gen_gemm1(a, name="g1_kernel", end_label="G1_END", stamps=False, dbg="", fuse=False, rts=False):
    def rt(r):
        if rts: a("s_memrealtime s[%d:%d]" % (r, r + 1))
    def stamp(i):
        if stamps:
            a("s_memtime s[%d:%d]" % (60 + 2 * i, 61 + 2 * i))
    stamp(0)
    S_X, S_WG, S_WU, S_H = 4, 8, 12, 16
    sKX, sKW, sCNT = 20, 21, 22
    sM0 = 32
    sW = 40
    sT = 41
    vXoff = 2
    vWoff = 10
    vXa = 14
    vWa = 18
    vT = 26
    F = [64, 128]

    a("s_load_dwordx2 s[24:25], s[0:1], 0")
    a("s_load_dwordx2 s[26:27], s[0:1], 56")
    a("s_load_dwordx2 s[28:29], s[0:1], 64")
    a("s_load_dwordx2 s[30:31], s[0:1], 104")
    a("s_and_b32 s41, s2, 7")
    a("s_lshr_b32 s42, s2, 3")
    if fuse: a("s_sub_u32 s42, s42, 4")
    a("s_and_b32 s43, s41, 1")
    a("s_lshl_b32 s43, s43, 2")
    a("s_and_b32 s44, s42, 3")
    a("s_add_u32 s43, s43, s44")
    a("s_lshr_b32 s44, s41, 1")
    a("s_mul_i32 s44, s44, 7")
    a("s_lshr_b32 s45, s42, 2")
    a("s_add_u32 s44, s44, s45")
    if "Z" in dbg:
        a("s_mov_b32 s43, 0")
        a("s_mov_b32 s44, 0")
    if "Y" in dbg:
        a("s_and_b32 s43, s43, 1")
        a("s_and_b32 s44, s44, 1")
    a("s_lshl_b32 s43, s43, 8")
    a("s_lshl_b32 s44, s44, 7")
    a("v_lshrrev_b32 v1, 6, v0")
    a("v_and_b32 v0, 63, v0")
    a("s_nop 0")
    a("v_readfirstlane_b32 s%d, v1" % sW)
    a("s_waitcnt lgkmcnt(0)")
    srd(a, S_X, 24, 2048 * 1024 * 2)
    srd(a, S_WG, 26, 1024 * 3584 * 2)
    srd(a, S_WU, 28, 1024 * 3584 * 2)
    srd(a, S_H, 30, H1_BYTES)
    a("s_lshl_b32 s45, s%d, 13" % sW)
    a("s_lshl_b32 s46, s%d, 12" % sW)
    for b in range(2):
        a("s_add_u32 s%d, s45, 0x%x" % (sM0 + 4 * b + 0, b * 65536))
        a("s_add_u32 s%d, s45, 0x%x" % (sM0 + 4 * b + 1, b * 65536 + 4096))
        a("s_add_u32 s%d, s46, 0x%x" % (sM0 + 4 * b + 2, b * 65536 + 32768))
        a("s_add_u32 s%d, s46, 0x%x" % (sM0 + 4 * b + 3, b * 65536 + 49152))
    t0, t1, t2, t3 = vT, vT + 1, vT + 2, vT + 3
    a("v_lshrrev_b32 v%d, 3, v0" % t0)
    a("s_lshl_b32 s45, s%d, 6" % sW)
    a("s_add_u32 s45, s45, s43")
    a("v_add_u32 v%d, s45, v%d" % (t0, t0))
    a("v_lshlrev_b32 v%d, 11, v%d" % (t0, t0))
    a("v_and_b32 v%d, 7, v0" % t1)
    a("v_lshrrev_b32 v%d, 4, v0" % t2)
    a("v_xor_b32 v%d, v%d, v%d" % (t1, t1, t2))
    a("v_lshlrev_b32 v%d, 4, v%d" % (t1, t1))
    a("v_add_u32 v%d, v%d, v%d" % (t0, t0, t1))
    a("v_xor_b32 v%d, 64, v%d" % (t1, t0))
    for j in range(8):
        a("v_add_u32 v%d, 0x%x, v%d" % (vXoff + j, j * 16384 - (j & 3) * 1024, t0 if j % 2 == 0 else t1))
    a("s_lshl_b32 s45, s%d, 4" % sW)
    a("v_add_u32 v%d, s45, v%d" % (t0, t2))
    a("s_movk_i32 s46, 7168")
    a("v_mul_lo_u32 v%d, v%d, s46" % (t0, t0))
    a("s_lshl_b32 s45, s44, 1")
    a("v_add_u32 v%d, s45, v%d" % (t0, t0))
    a("v_and_b32 v%d, 15, v0" % t1)
    a("v_lshlrev_b32 v%d, 1, v%d" % (t3, t2))
    a("v_xor_b32 v%d, v%d, v%d" % (t1, t1, t3))
    a("v_lshlrev_b32 v%d, 4, v%d" % (t1, t1))
    a("v_add_u32 v%d, v%d, v%d" % (t0, t0, t1))
    a("v_xor_b32 v%d, 0x80, v%d" % (t1, t0))
    for j in range(4):
        a("v_add_u32 v%d, 0x%x, v%d" % (vWoff + j, j * 4 * 7168 - j * 1024, t0 if j < 2 else t1))
    if "P" in dbg:
        a("s_lshr_b32 s45, s42, 2")
        a("s_mul_i32 s45, s45, 40")
        a("v_add_u32 v%d, s45, v0" % t0)
        a("v_min_u32 v%d, 255, v%d" % (t0, t0))
        a("v_add_u32 v%d, s43, v%d" % (t0, t0))
        a("v_lshlrev_b32 v%d, 11, v%d" % (t0, t0))
        a("v_lshrrev_b32 v%d, 1, v0" % t1)
        a("v_and_b32 v%d, 15, v%d" % (t1, t1))
        a("v_lshlrev_b32 v%d, 2, v%d" % (t1, t1))
        a("s_and_b32 s45, s42, 3")
        a("v_add_u32 v%d, s45, v%d" % (t1, t1))
        a("v_mul_lo_u32 v%d, v%d, s46" % (t1, t1))
        a("v_and_b32 v%d, 1, v0" % t3)
        a("v_lshlrev_b32 v%d, 7, v%d" % (t3, t3))
        a("v_add_u32 v%d, v%d, v%d" % (t1, t1, t3))
        a("s_lshl_b32 s45, s44, 1")
        a("v_add_u32 v%d, s45, v%d" % (t1, t1))
        a("s_cmp_eq_u32 s%d, 1" % sW)
        a("s_cselect_b32 s52, s26, s24")
        a("s_cselect_b32 s53, s27, s25")
        a("s_cmp_eq_u32 s%d, 2" % sW)
        a("s_cselect_b32 s52, s28, s52")
        a("s_cselect_b32 s53, s29, s53")
        a("s_add_u32 s45, s%d, -1" % sW)
        a("s_mov_b32 s54, 0x%x" % (2048 * 1024 * 2))
        a("s_movk_i32 s57, 128")
        a("s_cmp_lt_u32 s45, 2")
        a("s_cselect_b32 s54, 0x%x, s54" % (1024 * 3584 * 2))
        a("s_mov_b32 s55, 0x00020000")
        a("s_cselect_b32 s57, 0x%x, s57" % (64 * 7168))
        a("s_cselect_b64 vcc, -1, 0")
        a("s_nop 1")
        a("v_cndmask_b32 v41, v%d, v%d, vcc" % (t0, t1))
        a("s_lshl_b32 s56, s57, 1")
    if "K" in dbg:
        a("s_mul_i32 s23, s42, %d" % ROT)
        a("s_and_b32 s23, s23, 15")
        a("s_lshl_b32 s%d, s23, 7" % sKX)
        a("s_mul_i32 s%d, s23, 0x%x" % (sKW, 64 * 7168))
    else:
        a("s_mov_b32 s%d, 0" % sKX)
        a("s_mov_b32 s%d, 0" % sKW)

    def dma(b):
        g = []
        for half in range(2):
            if "W" in dbg: break
            for jj in range(4):
                j = half * 4 + jj
                ins = []
                if jj == 0:
                    ins.append("s_mov_b32 m0, s%d" % (sM0 + 4 * b + half))
                    ins.append("s_nop 0")
                ins.append("buffer_load_dwordx4 v%d, s[%d:%d], s%d offen offset:%d lds" % (vXoff + j, S_X, S_X + 3, sKX, jj * 1024))
                g.append(ins)
        for gu in range(2):
            if "X" in dbg: break
            S = S_WG if gu == 0 else S_WU
            for j in range(4):
                ins = []
                if j == 0:
                    ins.append("s_mov_b32 m0, s%d" % (sM0 + 4 * b + 2 + gu))
                    ins.append("s_nop 0")
                ins.append("buffer_load_dwordx4 v%d, s[%d:%d], s%d offen offset:%d lds" % (vWoff + j, S, S + 3, sKW, j * 1024))
                g.append(ins)
        if "K" in dbg:
            g[-1].append("s_add_u32 s23, s23, 1")
            g[-1].append("s_and_b32 s23, s23, 15")
            g[-1].append("s_lshl_b32 s%d, s23, 7" % sKX)
            g[-1].append("s_mul_i32 s%d, s23, 0x%x" % (sKW, 64 * 7168))
        else:
            g[-1].append("s_add_u32 s%d, s%d, 128" % (sKX, sKX))
            g[-1].append("s_add_u32 s%d, s%d, 0x%x" % (sKW, sKW, 64 * 7168))
        return g

    import prep4, conv2
    dprep = fuse and conv2.TARGET == 16
    if dprep:
        prep4.prep4_issue(a, 60, 62, 100, 30, 64, 64, sW)
    for g in dma(0):
        for i in g: a(i)
    for g in dma(1):
        for i in g: a(i)
    def touch():
        return ["buffer_load_dword v42, v41, s[52:55], s56 offen", "s_add_u32 s56, s56, s57"]
    if "P" in dbg:
        for _ in range(PD - 2):
            for i in touch(): a(i)

    a("s_lshr_b32 s45, s%d, 1" % sW)
    a("s_and_b32 s46, s%d, 1" % sW)
    a("v_and_b32 v%d, 15, v0" % t0)
    a("s_lshl_b32 s47, s45, 7")
    a("v_add_u32 v%d, s47, v%d" % (t0, t0))
    a("v_lshlrev_b32 v%d, 7, v%d" % (t0, t0))
    a("v_lshrrev_b32 v%d, 1, v0" % t1)
    a("v_and_b32 v%d, 7, v%d" % (t1, t1))
    a("v_xor_b32 v%d, v%d, v%d" % (t1, t1, t2))
    a("v_lshlrev_b32 v%d, 4, v%d" % (t1, t1))
    a("v_add_u32 v%d, v%d, v%d" % (vXa + 0, t0, t1))
    a("v_xor_b32 v%d, 64, v%d" % (vXa + 1, vXa + 0))
    a("v_add_u32 v%d, 0x10000, v%d" % (vXa + 2, vXa + 0))
    a("v_add_u32 v%d, 0x10000, v%d" % (vXa + 3, vXa + 1))
    a("v_lshrrev_b32 v%d, 2, v0" % t0)
    a("v_and_b32 v%d, 3, v%d" % (t0, t0))
    a("v_lshlrev_b32 v%d, 3, v%d" % (t1, t2))
    a("v_add_u32 v%d, v%d, v%d" % (t1, t1, t0))
    a("v_lshlrev_b32 v%d, 8, v%d" % (t1, t1))
    a("v_and_b32 v%d, 3, v0" % t3)
    a("v_lshlrev_b32 v%d, 3, v%d" % (t3, t3))
    a("v_add_u32 v%d, v%d, v%d" % (t1, t1, t3))
    a("v_add_u32 v%d, 0x8000, v%d" % (t1, t1))
    a("v_and_b32 v%d, 1, v%d" % (t3, t2))
    a("v_lshlrev_b32 v%d, 2, v%d" % (t3, t3))
    a("v_or_b32 v%d, v%d, v%d" % (t0, t0, t3))
    a("s_lshl_b32 s47, s46, 2")
    for t in range(4):
        a("s_add_u32 s48, s47, %d" % t)
        a("v_xor_b32 v%d, s48, v%d" % (t3, t0))
        a("v_lshlrev_b32 v%d, 5, v%d" % (t3, t3))
        a("v_add_u32 v%d, v%d, v%d" % (vWa + t, t1, t3))
        a("v_add_u32 v%d, 0x10000, v%d" % (vWa + 4 + t, vWa + t))
    for i in range(256):
        a("v_accvgpr_write_b32 a%d, 0" % i)

    def reads(fs, b, s):
        fb = F[fs]
        r = []
        for i in range(8):
            r.append(["ds_read_b128 v[%d:%d], v%d offset:%d" % (fb + 4 * i, fb + 4 * i + 3, vXa + 2 * b + s, i * 2048)])
        w = []
        for gu in range(2):
            for t in range(4):
                for h in range(2):
                    d = fb + 32 + 4 * (gu * 4 + t) + 2 * h
                    w.append(["ds_read_b64_tr_b16 v[%d:%d], v%d offset:%d" % (d, d + 1, vWa + 4 * b + t, gu * 16384 + s * 8192 + h * 1024)])
        out = []
        for i in range(8):
            out.append(r[i]); out.append(w[2 * i]); out.append(w[2 * i + 1])
        return out

    def mfmas(fs):
        fb = F[fs]
        m = []
        if "M" in dbg: return m
        for i in range(8):
            for wt in range(8):
                c = (wt * 8 + i) * 4
                m.append("v_mfma_f32_16x16x32_bf16 a[%d:%d], v[%d:%d], v[%d:%d], a[%d:%d]" % (
                    c, c + 3, fb + 32 + 4 * wt, fb + 32 + 4 * wt + 3, fb + 4 * i, fb + 4 * i + 3, c, c + 3))
        return m

    stamp(1)
    if fuse and not dprep:
        conv2.conv_ptrs(a)
    if dprep:
        a("s_waitcnt vmcnt(%d)" % (32 + PD - 2))
        rt(96)
        prep4.prep4_compute(a, 64, 64, "A")
        conv2.conv_ptrs(a)
        rt(86)
    a("s_waitcnt vmcnt(%d)" % ((8 if ("X" in dbg or "W" in dbg) else 16) + (PD - 2 if "P" in dbg else 0) + (8 if dprep else 0)))
    a("s_barrier")
    stamp(2)
    for g in reads(0, 0, 0):
        for i in g: a(i)

    def stage(b, do_dma, do_next, first=False):
        a("s_waitcnt lgkmcnt(0)")
        for i in interleave(mfmas(0), reads(1, b, 1) if "R" not in dbg else [], start=0, every=2): a(i)
        a("s_waitcnt lgkmcnt(0)")
        if do_next:
            if "V" in dbg:
                pass
            elif first == 1:
                a("s_waitcnt vmcnt(%d)" % (PD - 2 + 8))
            elif "P" in dbg:
                a("s_waitcnt vmcnt(%d)" % (1 if "2" not in dbg else 18))
            else:
                a("s_waitcnt vmcnt(%d)" % (0 if "2" not in dbg else (8 if ("X" in dbg or "W" in dbg) else 16)))
            if "B" not in dbg: a("s_barrier")
            if first == 2:
                conv2.flag_srd(a)
                a("s_cmp_lg_u32 s%d, 0" % sW)
                a("s_cbranch_scc1 G1_P0")
                conv2.signal(a)
                a.label("G1_P0")
        pl = []
        if do_next and "R" not in dbg:
            for n, g in enumerate(reads(0, b ^ 1, 0)): pl.append((2 * n, g))
        if do_dma and "D" not in dbg:
            dl = dma(b)
            if "P" in dbg: dl[-1] = dl[-1] + touch()
            for n, g in enumerate(dl): pl.append((DS0 + DSP * n, g))
        for i in place(mfmas(1), pl): a(i)

    a("s_mov_b32 s%d, 0" % sCNT)
    if dprep:
        stage(0, True, True, first=1)
        stage(1, True, True, first=2)
        a("s_mov_b32 s%d, 1" % sCNT)
        rt(98)
    a.label("G1_LOOP")
    stage(0, True, True)
    stage(1, True, True)
    a("s_add_u32 s%d, s%d, 1" % (sCNT, sCNT))
    a("s_cmp_lt_u32 s%d, 7" % sCNT)
    a("s_cbranch_scc1 G1_LOOP")
    if fuse:
        if not dprep: conv2.flag_srd(a)
        a("s_mov_b32 s84, 0")
        a("s_cmp_lg_u32 s%d, 0" % sW)
        a("s_cbranch_scc1 G1_P1")
        conv2.poll_issue(a, 210)
        a.label("G1_P1")
    stage(0, False, True)
    if fuse:
        a("s_cmp_lg_u32 s%d, 0" % sW)
        a("s_cbranch_scc1 G1_P2")
        a("s_waitcnt vmcnt(0)")
        conv2.poll_check(a, 210, 84)
        a("s_cmp_eq_u32 s84, 0")
        a("s_cbranch_scc1 G1_P2")
        a("buffer_inv sc1")
        a.label("G1_P2")
    stage(1, False, False)
    rt(88)
    if fuse:
        a("s_cmp_lg_u32 s%d, 0" % sW)
        a("s_cbranch_scc1 G1_P4")
        a("s_cmp_lg_u32 s84, 0")
        a("s_cbranch_scc1 G1_P4")
        a.label("G1_P3")
        a("s_sleep 8")
        conv2.poll_issue(a, 210)
        a("s_waitcnt vmcnt(0)")
        conv2.poll_check(a, 210, 84)
        a("s_cmp_eq_u32 s84, 0")
        a("s_cbranch_scc1 G1_P3")
        a("buffer_inv sc1")
        a.label("G1_P4")
        a("s_waitcnt vmcnt(0)")
        a("s_barrier")
        rt(90)
        conv2.conv_issue(a)

    stamp(3)
    a("s_nop 7")
    a("s_nop 7")
    vS = 2
    a("s_lshr_b32 s47, s43, 7")
    a("s_add_u32 s47, s47, s45")
    a("s_mul_i32 s47, s47, 112")
    a("s_lshr_b32 s48, s44, 5")
    a("s_add_u32 s47, s47, s48")
    a("s_lshl_b32 s48, s46, 1")
    a("s_add_u32 s47, s47, s48")
    a("s_lshl_b32 s47, s47, 13")
    a("v_and_b32 v%d, 15, v0" % t0)
    a("v_lshlrev_b32 v%d, 4, v%d" % (t0, t0))
    a("v_lshrrev_b32 v%d, 1, v%d" % (t1, t2))
    a("v_lshlrev_b32 v%d, 8, v%d" % (t1, t1))
    a("v_add_u32 v%d, v%d, v%d" % (t0, t0, t1))
    a("v_and_b32 v%d, 1, v%d" % (t1, t2))
    a("v_lshlrev_b32 v%d, 3, v%d" % (t1, t1))
    a("v_add_u32 v%d, v%d, v%d" % (t0, t0, t1))
    a("v_add_u32 v%d, s47, v%d" % (vS, t0))
    a("s_mov_b32 s56, 0")
    a("s_movk_i32 s57, 4096")
    a("s_movk_i32 s58, 8192")
    a("s_movk_i32 s59, 12288")
    import math
    C0 = -2.0 * math.sqrt(2.0 / math.pi) * math.log2(math.e)
    C1 = C0 * 0.044715
    import struct
    def f2u(x): return struct.unpack("<I", struct.pack("<f", x))[0]
    a("s_mov_b32 s50, 0x%x" % f2u(C0))
    a("s_mov_b32 s51, 0x%x" % f2u(C1))
    a("v_mov_b32 v3, s50")
    cnt = 0
    for i in range(8):
        for t in range(4):
            base = 64 + (cnt % 4) * 24
            cnt += 1
            G = base; U = base + 4; T = base + 8; E = base + 12; P = base + 16
            cg = (t * 8 + i) * 4
            cu = ((4 + t) * 8 + i) * 4
            for r in range(4): a("v_accvgpr_read_b32 v%d, a%d" % (G + r, cg + r))
            for r in range(4): a("v_accvgpr_read_b32 v%d, a%d" % (U + r, cu + r))
            for r in range(4): a("v_mul_f32 v%d, v%d, v%d" % (T + r, G + r, G + r))
            for r in range(4): a("v_fma_f32 v%d, v%d, s51, v3" % (T + r, T + r))
            for r in range(4): a("v_mul_f32 v%d, v%d, v%d" % (T + r, T + r, G + r))
            for r in range(4): a("v_exp_f32 v%d, v%d" % (E + r, T + r))
            for r in range(4): a("v_mul_f32 v%d, v%d, v%d" % (U + r, U + r, G + r))
            for r in range(4): a("v_add_f32 v%d, 1.0, v%d" % (E + r, E + r))
            for r in range(4): a("v_rcp_f32 v%d, v%d" % (E + r, E + r))
            a("s_nop 0")
            for r in range(4): a("v_mul_f32 v%d, v%d, v%d" % (U + r, U + r, E + r))
            a("v_cvt_pk_bf16_f32 v%d, v%d, v%d" % (P, U, U + 1))
            a("v_cvt_pk_bf16_f32 v%d, v%d, v%d" % (P + 1, U + 2, U + 3))
            a("buffer_store_dwordx2 v[%d:%d], v%d, s[%d:%d], s%d offen offset:%d" % (P, P + 1, vS, S_H, S_H + 3, 56 + (i >> 2) + 2 * (t >> 1), (i & 3) * 1024 + (t & 1) * 512))

    if stamps:
        stamp(4)
        a("s_waitcnt vmcnt(0)")
        stamp(5)
        a("s_waitcnt lgkmcnt(0)")
        a("s_add_u32 s30, s30, 0x4000000")
        a("s_addc_u32 s31, s31, 0")
        srd(a, S_H, 30, 1 << 20)
        a("s_lshl_b32 s47, s2, 2")
        a("s_add_u32 s47, s47, s%d" % sW)
        a("s_lshl_b32 s47, s47, 5")
        for i in range(6):
            a("v_mov_b32 v%d, s%d" % (64 + i, 60 + 2 * i))
        a("v_mov_b32 v70, s47")
        a("v_cmp_eq_u32 vcc, 0, v0")
        a("s_and_saveexec_b64 s[48:49], vcc")
        a("buffer_store_dwordx4 v[64:67], v70, s[%d:%d], 0 offen" % (S_H, S_H + 3))
        a("buffer_store_dwordx2 v[68:69], v70, s[%d:%d], 0 offen offset:16" % (S_H, S_H + 3))
        a("s_mov_b64 exec, s[48:49]")
```

```python
from asmlib import *
from layout import *
from prep import ws_srd
import os

G2_WAVE = 36864
G2_ZB = 4 * G2_WAVE
G2_LDS = G2_ZB + 16384
NST = 28
RING = int(os.environ.get("G2RING", "6"))
BLK = int(os.environ.get("G2BLK", "7"))
RJW = int(os.environ.get("G2RJW", "2"))

def gen_gemm2(a, dbg="", stamps=False):
    def stamp(i):
        if stamps:
            a("s_memtime s[%d:%d]" % (60 + 2 * i, 61 + 2 * i))
    stamp(0)
    S_H, S_W, S_Z, S_Q, S_O, S_GT = 4, 8, 12, 16, 20, 24
    sW, sLB, sX, sWK = 40, 41, 42, 43
    sM0, sN0 = 44, 45
    a("s_load_dwordx2 s[34:35], s[0:1], 104")
    a("s_load_dwordx2 s[30:31], s[0:1], 72")
    a("s_load_dwordx2 s[28:29], s[0:1], 0")
    a("s_load_dwordx2 s[32:33], s[0:1], 88")
    code_touch(a, 76, 28, 0, "g2_kernel")
    a("s_and_b32 s46, s2, 7")
    a("s_lshr_b32 s47, s2, 3")
    a("s_and_b32 s48, s46, 3")
    a("s_lshl_b32 s48, s48, 2")
    a("s_and_b32 s49, s47, 3")
    a("s_add_u32 s48, s48, s49")
    a("s_lshr_b32 s49, s46, 2")
    a("s_lshl_b32 s49, s49, 3")
    a("s_lshr_b32 s50, s47, 2")
    a("s_add_u32 s49, s49, s50")
    if "Z" in dbg:
        a("s_mov_b32 s48, 0")
        a("s_mov_b32 s49, 0")
    a("s_lshl_b32 s%d, s48, 7" % sM0)
    a("s_lshl_b32 s%d, s49, 6" % sN0)
    a("v_lshrrev_b32 v1, 6, v0")
    a("v_and_b32 v0, 63, v0")
    a("s_nop 0")
    a("v_readfirstlane_b32 s%d, v1" % sW)
    a("v_lshlrev_b32 v2, 4, v0")
    a("v_lshrrev_b32 v3, 4, v0")
    a("s_mul_i32 s%d, s%d, %d" % (sLB, sW, G2_WAVE))
    a("s_mul_i32 s50, s48, 112")
    a("s_mul_i32 s51, s%d, 28" % sW)
    a("s_add_u32 s50, s50, s51")
    a("s_lshl_b32 s%d, s50, 13" % sX)
    a("s_lshl_b32 s%d, s51, 16" % sWK)
    if BLK:
        a("s_lshr_b32 s50, s47, 2")
        a("s_and_b32 s51, s47, 3")
        a("s_mul_i32 s51, s51, %d" % RJW)
        a("s_add_u32 s50, s50, s51")
        for _ in range(3):
            a("s_sub_u32 s51, s50, %d" % BLK)
            a("s_cmp_ge_u32 s50, %d" % BLK)
            a("s_cselect_b32 s50, s51, s50")
        a("s_mov_b32 s38, s50")
        a("s_mov_b32 s39, s50")
        a("s_mov_b32 s36, s%d" % sX)
        a("s_mov_b32 s37, s%d" % sWK)
        a("s_lshl_b32 s51, s50, 13")
        a("s_add_u32 s%d, s36, s51" % sX)
        a("s_lshl_b32 s51, s50, 16")
        a("s_add_u32 s%d, s37, s51" % sWK)
    def adv(t, sreg, sbase, sidx, sh):
        if not BLK:
            return [("s_add_u32 s%d, s%d, 0x%x" % (sreg, sreg, 1 << sh), None)]
        r = [("s_add_u32 s%d, s%d, 1" % (sidx, sidx), None),
             ("s_cmp_eq_u32 s%d, %d" % (sidx, BLK), None),
             ("s_cselect_b32 s%d, 0, s%d" % (sidx, sidx), None)]
        if t % BLK == BLK - 1:
            r.append(("s_add_u32 s%d, s%d, 0x%x" % (sbase, sbase, BLK << sh), None))
        r.append(("s_lshl_b32 s%d, s%d, %d" % (sreg, sidx, sh), None))
        r.append(("s_add_u32 s%d, s%d, s%d" % (sreg, sreg, sbase), None))
        return r
    for aa in range(4):
        a("s_xor_b32 s50, s%d, %d" % (sW, aa))
        a("s_lshl_b32 s50, s50, 11")
        a("v_add_u32 v%d, s50, v2" % (16 + aa))
    a("v_lshrrev_b32 v8, 3, v0")
    a("v_lshlrev_b32 v8, 11, v8")
    a("s_lshl_b32 s50, s%d, 1" % sN0)
    a("v_add_u32 v8, s50, v8")
    a("v_and_b32 v9, 7, v0")
    a("v_and_b32 v10, 1, v3")
    a("v_lshlrev_b32 v10, 1, v10")
    a("v_xor_b32 v9, v9, v10")
    a("v_lshlrev_b32 v9, 4, v9")
    a("v_add_u32 v8, v8, v9")
    a("v_xor_b32 v9, 64, v8")
    for I in range(4):
        a("v_add_u32 v%d, 0x%x, v%d" % (4 + I, I * 8 * 2048 - I * 1024, 8 if I % 2 == 0 else 9))
    a("s_waitcnt lgkmcnt(0)")
    ws_srd(a, S_H, 34, H1_OFF, H1_BYTES)
    srd(a, S_W, 30, 3584 * 1024 * 2)

    vm = []
    def emit(ins, tag=None):
        a(ins)
        if ins.startswith("buffer_"):
            vm.append(tag)
    def younger_than(tag):
        idx = max(i for i, x in enumerate(vm) if x == tag)
        return len(vm) - 1 - idx
    def ldx(t):
        g = []
        base = (t % RING) * 32
        for i in range(8):
            g.append([("buffer_load_dwordx4 a[%d:%d], v%d, s[%d:%d], s%d offen offset:%d" % (base + 4 * i, base + 4 * i + 3, 16 + (i >> 1), S_H, S_H + 3, sX, (i & 1) * 1024), ("x", t))])
        g[-1].extend(adv(t, sX, 36, 38, 13))
        return g
    def ldw(t):
        g = []
        for I in range(4):
            ins = []
            if I == 0:
                ins.append(("s_add_u32 m0, s%d, %d" % (sLB, (t % RING) * 4096), None))
                ins.append(("s_nop 0", None))
            ins.append(("buffer_load_dwordx4 v%d, s[%d:%d], s%d offen offset:%d lds" % (4 + I, S_W, S_W + 3, sWK, I * 1024), ("w", t)))
            g.append(ins)
        g[-1].extend(adv(t, sWK, 37, 39, 16))
        return g
    def mix(t):
        g = []
        if 0 <= t + RING < NST: g += ldw(t + RING)
        if 0 <= t + RING - 1 < NST: g += ldx(t + RING - 1)
        return g
    for t in range(-RING, 0):
        for g in mix(t):
            for it in g: emit(*it)
    ws_srd(a, S_Z, 34, Z_OFF, Z_BYTES)
    srd(a, S_Q, 28, 2048 * 1024 * 2)
    srd(a, S_O, 32, 2048 * 1024 * 2)
    ws_srd(a, S_GT, 34, GT_OFF, GT_BYTES)
    extras = []
    extras2 = []
    a("s_lshl_b32 s50, s%d, 4" % sW)
    a("s_add_u32 s50, s50, s%d" % sN0)
    a("v_add_u32 v8, s50, v3")
    a("v_lshlrev_b32 v8, 12, v8")
    a("v_and_b32 v9, 15, v0")
    a("v_lshlrev_b32 v9, 4, v9")
    a("v_add_u32 v14, v8, v9")
    a("s_lshl_b32 s56, s%d, 1" % sM0)
    a("s_lshl_b32 s57, s%d, 12" % sW)
    a("s_add_u32 s57, s57, %d" % G2_ZB)
    for I in range(4):
        g = []
        if I == 0: g += [("s_mov_b32 m0, s57", None), ("s_nop 0", None)]
        else: g += [("v_add_u32 v14, 0x%x, v14" % (4 * 4096 - 1024), None)]
        g.append(("buffer_load_dwordx4 v14, s[%d:%d], s56 offen offset:%d lds" % (S_Z, S_Z + 3, I * 1024), "z"))
        extras.append(g)
    a("v_and_b32 v9, 15, v0")
    a("s_lshl_b32 s50, s%d, 5" % sW)
    a("s_add_u32 s50, s50, s%d" % sM0)
    a("v_add_u32 v9, s50, v9")
    a("v_lshlrev_b32 v13, 2, v9")
    a("v_lshlrev_b32 v12, 11, v9")
    a("v_lshlrev_b32 v10, 3, v3")
    a("v_add_u32 v12, v12, v10")
    a("s_lshl_b32 s50, s%d, 1" % sN0)
    a("v_add_u32 v12, s50, v12")
    a("s_mov_b32 s53, 0x8000")
    QR = 96
    for sl in range(2):
        for nt in range(4):
            extras.append([("buffer_load_dwordx2 v[%d:%d], v12, s[%d:%d], %s offen offset:%d" % (QR + (sl * 4 + nt) * 2, QR + (sl * 4 + nt) * 2 + 1, S_Q, S_Q + 3, "0" if sl == 0 else "s53", nt * 32), "x")])
    extras.append([("buffer_load_dword v%d, v13, s[%d:%d], 0 offen" % (QR + 16, S_GT, S_GT + 3), "x")])
    extras.append([("buffer_load_dword v%d, v13, s[%d:%d], 0 offen offset:64" % (QR + 17, S_GT, S_GT + 3), "x")])
    a("v_lshrrev_b32 v8, 2, v0")
    a("v_and_b32 v8, 3, v8")
    a("v_lshlrev_b32 v9, 3, v3")
    a("v_add_u32 v9, v9, v8")
    a("v_lshlrev_b32 v9, 7, v9")
    a("v_and_b32 v10, 3, v0")
    a("v_lshlrev_b32 v10, 3, v10")
    a("v_add_u32 v9, v9, v10")
    a("v_add_u32 v9, s%d, v9" % sLB)
    a("v_lshrrev_b32 v10, 1, v8")
    a("v_and_b32 v11, 1, v3")
    a("v_lshlrev_b32 v11, 1, v11")
    a("v_or_b32 v10, v10, v11")
    for nt in range(4):
        a("v_xor_b32 v11, %d, v10" % nt)
        a("v_lshlrev_b32 v11, 5, v11")
        a("v_add_u32 v%d, v9, v11" % (20 + nt))
    a("v_lshlrev_b32 v9, 2, v3")
    a("v_add_u32 v9, v9, v8")
    a("v_lshlrev_b32 v9, 8, v9")
    a("v_and_b32 v10, 3, v0")
    a("v_lshlrev_b32 v10, 3, v10")
    a("v_add_u32 v9, v9, v10")
    a("s_lshl_b32 s50, s%d, 6" % sW)
    a("s_add_u32 s50, s50, %d" % G2_ZB)
    a("v_add_u32 v24, s50, v9")
    a("v_add_u32 v25, s%d, v2" % sLB)
    a("s_xor_b32 s50, s%d, 2" % sW)
    a("s_mul_i32 s50, s50, %d" % G2_WAVE)
    a("v_add_u32 v26, s50, v2")
    a("s_xor_b32 s50, s%d, 1" % sW)
    a("s_mul_i32 s50, s50, %d" % G2_WAVE)
    a("v_add_u32 v27, s50, v2")
    ACC = 128
    for i in range(128): a("v_mov_b32 v%d, 0" % (ACC + i))
    F = [32, 48]

    def reads(t):
        fb = F[t & 1]
        w = []
        for nt in range(4):
            for h in range(2):
                d = fb + 4 * nt + 2 * h
                w.append("ds_read_b64_tr_b16 v[%d:%d], v%d offset:%d" % (d, d + 1, 20 + nt, (t % RING) * 4096 + h * 512))
        return w

    def mfmas(t):
        fb = F[t & 1]
        xb = (t % RING) * 32
        m = []
        if "M" in dbg: return m
        for i in range(8):
            for nt in range(4):
                c = ACC + (i * 4 + nt) * 4
                m.append("v_mfma_f32_16x16x32_bf16 v[%d:%d], v[%d:%d], a[%d:%d], v[%d:%d]" % (
                    c, c + 3, fb + 4 * nt, fb + 4 * nt + 3, xb + 4 * i, xb + 4 * i + 3, c, c + 3))
        return m

    stamp(1)
    a("s_waitcnt vmcnt(%d)" % younger_than(("w", 0)))
    stamp(2)
    for i in reads(0): a(i)
    steps = []
    real_lines = a.lines
    XT = NST - RING + 1
    for t in range(NST):
        a.lines = []
        n = younger_than(("x", t))
        if t + 1 < NST: n = min(n, younger_than(("w", t + 1)))
        assert n <= 63
        a("s_waitcnt vmcnt(%d) lgkmcnt(0)" % n)
        pl = []
        if t + 1 < NST:
            for n, g in enumerate(reads(t + 1)): pl.append((2 * n, [(g, None)]))
        for n, g in enumerate(mix(t)): pl.append(((n * 8) // 3 + 1, g))
        if t == XT:
            for n, g in enumerate(extras): pl.append((2 * n + 1, g))
        for it in place([(m, None) for m in mfmas(t)], pl): emit(*it)
        steps.append(a.lines)
    a.lines = real_lines
    nit = (NST - RING) // RING
    if "U" in dbg or BLK:
        for st_ in steps: a.lines.extend(st_)
    else:
        for t in range(RING, nit * RING): assert steps[t] == steps[t - RING], t
        a("s_mov_b32 s58, 0")
        a.label("G2_LOOP")
        for t in range(RING): a.lines.extend(steps[t])
        a("s_add_u32 s58, s58, 1")
        a("s_cmp_lt_u32 s58, %d" % nit)
        a("s_cbranch_scc1 G2_LOOP")
        for t in range(nit * RING, NST): a.lines.extend(steps[t])

    stamp(3)
    a("s_nop 7")
    a("s_nop 3")
    for k in range(16):
        c = ACC + (16 + k) * 4
        a("ds_write_b128 v25, v[%d:%d] offset:%d" % (c, c + 3, k * 1024))
    a("s_waitcnt vmcnt(0) lgkmcnt(0)")
    a("s_barrier")
    RT = 32
    for k in range(16):
        a("ds_read_b128 v[%d:%d], v26 offset:%d" % (RT + 4 * k, RT + 3 + 4 * k, k * 1024))
    for k in range(16):
        a("s_waitcnt lgkmcnt(%d)" % (15 - k))
        for r in range(4):
            a("v_add_f32 v%d, v%d, v%d" % (ACC + 4 * k + r, ACC + 4 * k + r, RT + 4 * k + r))
        if k >= 8:
            c = ACC + 4 * k
            a("ds_write_b128 v25, v[%d:%d] offset:%d" % (c, c + 3, 16384 + (k - 8) * 1024))
    a("s_waitcnt lgkmcnt(0)")
    a("s_barrier")
    for k in range(8):
        a("ds_read_b128 v[%d:%d], v27 offset:%d" % (RT + 4 * k, RT + 3 + 4 * k, 16384 + k * 1024))
    ZR = 64
    for sl in range(2):
        for nt in range(4):
            d = ZR + (sl * 4 + nt) * 2
            a("ds_read_b64_tr_b16 v[%d:%d], v24 offset:%d" % (d, d + 1, nt * 4096 + sl * 32))
    stamp(4)
    a("s_mov_b32 s50, 0xffff0000")
    G_ = QR + 16; OG = QR + 18
    for sl in range(2):
        a("v_sub_f32 v%d, 1.0, v%d" % (OG + sl, G_ + sl))
        a("v_cvt_pk_bf16_f32 v%d, v%d, v%d" % (OG + sl, OG + sl, OG + sl))
        a("v_and_b32 v%d, s50, v%d" % (OG + sl, OG + sl))
    a("s_waitcnt lgkmcnt(0)")
    def rnd4(R, T):
        a("v_cvt_pk_bf16_f32 v%d, v%d, v%d" % (T, R, R + 1))
        a("v_cvt_pk_bf16_f32 v%d, v%d, v%d" % (T + 1, R + 2, R + 3))
        a("v_lshlrev_b32 v%d, 16, v%d" % (R, T))
        a("v_and_b32 v%d, s50, v%d" % (R + 1, T))
        a("v_lshlrev_b32 v%d, 16, v%d" % (R + 2, T + 1))
        a("v_and_b32 v%d, s50, v%d" % (R + 3, T + 1))
    for sl in range(2):
        for nt in range(4):
            k = sl * 4 + nt
            B = ACC + 4 * k
            Q = 80; Z = 84; T = 88; O = 116 + 2 * (k & 3)
            for r in range(4):
                a("v_add_f32 v%d, v%d, v%d" % (B + r, B + r, RT + 4 * k + r))
            rnd4(B, T)
            qs = QR + 2 * k; zs = ZR + 2 * k
            a("v_lshlrev_b32 v%d, 16, v%d" % (Q, qs)); a("v_and_b32 v%d, s50, v%d" % (Q + 1, qs))
            a("v_lshlrev_b32 v%d, 16, v%d" % (Q + 2, qs + 1)); a("v_and_b32 v%d, s50, v%d" % (Q + 3, qs + 1))
            a("v_lshlrev_b32 v%d, 16, v%d" % (Z, zs)); a("v_and_b32 v%d, s50, v%d" % (Z + 1, zs))
            a("v_lshlrev_b32 v%d, 16, v%d" % (Z + 2, zs + 1)); a("v_and_b32 v%d, s50, v%d" % (Z + 3, zs + 1))
            for r in range(4): a("v_mul_f32 v%d, v%d, v%d" % (Q + r, Q + r, Z + r))
            rnd4(Q, T)
            for r in range(4): a("v_mul_f32 v%d, v%d, v%d" % (Q + r, Q + r, G_ + sl))
            rnd4(Q, T)
            for r in range(4): a("v_mul_f32 v%d, v%d, v%d" % (B + r, B + r, OG + sl))
            rnd4(B, T)
            for r in range(4): a("v_add_f32 v%d, v%d, v%d" % (B + r, B + r, Q + r))
            a("v_cvt_pk_bf16_f32 v%d, v%d, v%d" % (O, B, B + 1))
            a("v_cvt_pk_bf16_f32 v%d, v%d, v%d" % (O + 1, B + 2, B + 3))
            a("buffer_store_dwordx2 v[%d:%d], v12, s[%d:%d], %s offen offset:%d" % (O, O + 1, S_O, S_O + 3, "0" if sl == 0 else "s53", nt * 32))

    if stamps:
        a("s_waitcnt vmcnt(0)")
        stamp(5)
        a("s_waitcnt lgkmcnt(0)")
        ws_srd(a, S_H, 34, 0x4000000, 1 << 20)
        a("s_lshl_b32 s47, s2, 2")
        a("s_add_u32 s47, s47, s%d" % sW)
        a("s_lshl_b32 s47, s47, 5")
        for i in range(6):
            a("v_mov_b32 v%d, s%d" % (64 + i, 60 + 2 * i))
        a("v_mov_b32 v70, s47")
        a("v_cmp_eq_u32 vcc, 0, v0")
        a("s_and_saveexec_b64 s[48:49], vcc")
        a("buffer_store_dwordx4 v[64:67], v70, s[%d:%d], 0 offen" % (S_H, S_H + 3))
        a("buffer_store_dwordx2 v[68:69], v70, s[%d:%d], 0 offen offset:16" % (S_H, S_H + 3))
        a("s_mov_b64 exec, s[48:49]")
```

```python
from asmlib import *
from layout import *
from prep import ws_srd

P_K, P_V, P_SH = 88, 94, 96
S_K, S_V, S_SH, S_G = 60, 64, 68, 72
VB = 64

def prep4_issue(a, sK, sV, sSH, sWS, srd0, vb, sW):
    SK, SV, SS, SG = srd0, srd0 + 4, srd0 + 8, srd0 + 12
    t = srd0 + 16
    A0, A1, A2, ASH, AST, AD, ASB = vb, vb + 1, vb + 2, vb + 3, vb + 4, vb + 5, vb + 6
    srd(a, SK, sK, 2048 * 1024 * 2)
    srd(a, SV, sV, 2048 * 1024 * 2)
    srd(a, SS, sSH, 1024 * 4 * 2)
    ws_srd(a, SG, sWS, G_OFF, G_BYTES)
    a("s_and_b32 s%d, s2, 15" % t)
    a("s_lshl_b32 s%d, s%d, 6" % (t, t))
    a("s_and_b32 s%d, s%d, 1" % (t + 1, sW))
    a("s_lshl_b32 s%d, s%d, 5" % (t + 1, t + 1))
    a("s_add_u32 s%d, s%d, s%d" % (t, t, t + 1))
    a("s_lshr_b32 s%d, s2, 4" % (t + 1))
    a("s_lshl_b32 s%d, s%d, 7" % (t + 1, t + 1))
    a("s_lshr_b32 s%d, s%d, 1" % (t + 2, sW))
    a("s_lshl_b32 s%d, s%d, 6" % (t + 2, t + 2))
    a("s_add_u32 s%d, s%d, s%d" % (t + 1, t + 1, t + 2))
    a("v_and_b32 v%d, 7, v0" % AD)
    a("v_lshlrev_b32 v%d, 2, v%d" % (AD, AD))
    a("v_add_u32 v%d, s%d, v%d" % (AD, t, AD))
    a("v_and_b32 v%d, 0x38, v0" % ASB)
    a("v_add_u32 v%d, s%d, v%d" % (ASB, t + 1, ASB))
    a("v_add_u32 v%d, -4, v%d" % (A0, ASB))
    a("v_lshlrev_b32 v%d, 11, v%d" % (A0, A0))
    a("v_lshlrev_b32 v%d, 1, v%d" % (A1, AD))
    a("v_add_u32 v%d, v%d, v%d" % (A0, A0, A1))
    a("v_add_u32 v%d, 0x1000, v%d" % (A1, A0))
    a("v_add_u32 v%d, 0x2000, v%d" % (A2, A0))
    a("v_lshlrev_b32 v%d, 3, v%d" % (ASH, AD))
    for i in range(4): a("s_movk_i32 s%d, %d" % (t + 4 + i, 4096 * i))
    KB = vb + 8; VBf = KB + 24; SH = VBf + 18
    def ld(dst, S, row):
        if row < 2: v, so, off = A0, "0", row * 2048
        elif row < 4: v, so, off = A1, "0", (row - 2) * 2048
        else: v, so, off = A2, "s%d" % (t + 4 + (row - 4) // 2), ((row - 4) & 1) * 2048
        a("buffer_load_dwordx2 v[%d:%d], v%d, s[%d:%d], %s offen offset:%d" % (dst, dst + 1, v, S, S + 3, so, off))
    for r in range(2):
        a("buffer_load_dwordx4 v[%d:%d], v%d, s[%d:%d], 0 offen offset:%d" % (SH + 4 * r, SH + 3 + 4 * r, ASH, SS, SS + 3, 16 * r))
    for r in range(12): ld(KB + 2 * r, SK, r)
    for r in range(9): ld(VBf + 2 * r, SV, r + 3)
    a("s_movk_i32 s%d, %d" % (t + 2, G_PITCH))
    a("v_lshrrev_b32 v%d, 3, v0" % AD)
    a("v_lshlrev_b32 v%d, 2, v%d" % (AD, AD))
    a("v_add_u32 v%d, s%d, v%d" % (AD, t, AD))
    a("v_mul_lo_u32 v%d, v%d, s%d" % (AD, AD, t + 2))
    a("v_and_b32 v%d, 7, v0" % AST)
    a("v_lshlrev_b32 v%d, 4, v%d" % (AST, AST))
    a("v_add_u32 v%d, v%d, v%d" % (AD, AD, AST))
    a("s_lshl_b32 s%d, s%d, 1" % (t + 2, t + 1))
    a("s_sub_u32 s%d, 0x1000, s%d" % (t + 2, t + 2))
    a("v_add_u32 v%d, s%d, v%d" % (AST, t + 2, AD))
    a("v_and_b32 v%d, 7, v0" % (vb + 7))
    a("v_xor_b32 v%d, 7, v%d" % (vb + 7, vb + 7))
    a("v_lshlrev_b32 v%d, 5, v%d" % (vb + 7, vb + 7))
    a("v_lshrrev_b32 v%d, 3, v0" % ASH)
    a("v_lshlrev_b32 v%d, 2, v%d" % (ASH, ASH))
    a("v_add_u32 v%d, v%d, v%d" % (vb + 7, vb + 7, ASH))
    a("v_add_u32 v%d, 224, v%d" % (ASH, ASH))

NLOADS = 23

def prep4_compute(a, srd0, vb, tag):
    SK, SV, SS, SG = srd0, srd0 + 4, srd0 + 8, srd0 + 12
    t = srd0 + 16
    A0, A1, A2, ASH, AST, AD, ASB = vb, vb + 1, vb + 2, vb + 3, vb + 4, vb + 5, vb + 6
    KB = vb + 8; VBf = KB + 24; SH = VBf + 18
    KT = SH + 8; R = KT + 24; W = R + 18; VT = W + 8; O = VT + 4
    Z = O + 32
    M = t + 3
    a("s_mov_b32 s%d, 0xffff0000" % M)
    for e in range(4):
        a("s_mov_b32 s%d, 0x%x" % (t + 4 + e, e * G_PITCH))
    a("s_mov_b32 s%d, 0x%x" % (t, G1_REL))
    a("v_add_u32 v%d, s%d, v%d" % (A1, t, AST))
    for p in range(2):
        for c in range(2):
            e = 2 * p + c
            a("v_lshlrev_b32 v%d, 16, v%d" % (W + 0 + c, SH + 2 * e))
            a("v_and_b32 v%d, s%d, v%d" % (W + 2 + c, M, SH + 2 * e))
            a("v_lshlrev_b32 v%d, 16, v%d" % (W + 4 + c, SH + 2 * e + 1))
            a("v_and_b32 v%d, s%d, v%d" % (W + 6 + c, M, SH + 2 * e + 1))
        for r in range(12):
            a("v_lshlrev_b32 v%d, 16, v%d" % (KT + 2 * r, KB + 2 * r + p))
            a("v_and_b32 v%d, s%d, v%d" % (KT + 2 * r + 1, M, KB + 2 * r + p))
        for j in range(9):
            a("v_pk_mul_f32 v[%d:%d], v[%d:%d], v[%d:%d]" % (R + 2 * j, R + 2 * j + 1, KT + 2 * j, KT + 2 * j + 1, W + 6, W + 7))
        for tt in range(1, 4):
            for j in range(9):
                a("v_pk_fma_f32 v[%d:%d], v[%d:%d], v[%d:%d], v[%d:%d]" % (R + 2 * j, R + 2 * j + 1, KT + 2 * (j + tt), KT + 2 * (j + tt) + 1, W + 2 * (3 - tt), W + 2 * (3 - tt) + 1, R + 2 * j, R + 2 * j + 1))
        for j in range(9):
            tv = VT + 2 * (j & 1)
            a("v_cvt_pk_bf16_f32 v%d, v%d, v%d" % (KT + j, R + 2 * j, R + 2 * j + 1))
            a("v_lshlrev_b32 v%d, 16, v%d" % (tv, VBf + 2 * j + p))
            a("v_and_b32 v%d, s%d, v%d" % (tv + 1, M, VBf + 2 * j + p))
            a("v_lshlrev_b32 v%d, 16, v%d" % (R + 2 * j, KT + j))
            a("v_and_b32 v%d, s%d, v%d" % (R + 2 * j + 1, M, KT + j))
            a("v_pk_mul_f32 v[%d:%d], v[%d:%d], v[%d:%d]" % (R + 2 * j, R + 2 * j + 1, R + 2 * j, R + 2 * j + 1, tv, tv + 1))
        for c in range(2):
            e = 2 * p + c
            o0 = O + 8 * e; o1 = o0 + 4
            for i in range(4):
                a("v_cvt_pk_bf16_f32 v%d, v%d, v%d" % (o0 + i, R + 2 * (8 - 2 * i) + c, R + 2 * (7 - 2 * i) + c))
            for i in range(4):
                a("v_cvt_pk_bf16_f32 v%d, v%d, v%d" % (o1 + i, R + 2 * (7 - 2 * i) + c, R + 2 * (6 - 2 * i) + c))
            a("ds_bpermute_b32 v%d, v%d, v%d" % (Z + e, ASH, o0))
            for i in range(8):
                a("ds_bpermute_b32 v%d, v%d, v%d" % (o0 + i, vb + 7, o0 + i))
    for e in range(4):
        o0 = O + 8 * e; o1 = o0 + 4
        a("s_waitcnt lgkmcnt(%d)" % min(15, 9 * (3 - e)))
        a("buffer_store_dwordx4 v[%d:%d], v%d, s[%d:%d], s%d offen sc1" % (o0, o0 + 3, AST, SG, SG + 3, t + 4 + e))
        a("buffer_store_dwordx4 v[%d:%d], v%d, s[%d:%d], s%d offen sc1" % (o1, o1 + 3, A1, SG, SG + 3, t + 4 + e))
    a("v_cmp_eq_u32 vcc, 0x7f8, v%d" % ASB)
    a("s_cbranch_vccz PREP4_NOSP%s" % tag)
    a("v_and_b32 v%d, 7, v0" % A2)
    a("v_cmp_eq_u32 vcc, 7, v%d" % A2)
    for i in range(4): a("v_mov_b32 v%d, 0" % (KT + i))
    for e in range(4):
        z = KT + 4 + 4 * e
        for i in range(3): a("v_mov_b32 v%d, 0" % (z + i))
        a("v_lshlrev_b32 v%d, 16, v%d" % (z + 3, Z + e))
        a("v_cndmask_b32 v%d, 0, v%d, vcc" % (z + 3, z + 3))
    a("v_add_u32 v%d, s%d, v%d" % (A0, t, AD))
    for e in range(4):
        z = KT + 4 + 4 * e
        a("buffer_store_dwordx4 v[%d:%d], v%d, s[%d:%d], s%d offen sc1" % (KT, KT + 3, AD, SG, SG + 3, t + 4 + e))
        a("buffer_store_dwordx4 v[%d:%d], v%d, s[%d:%d], s%d offen sc1" % (z, z + 3, A0, SG, SG + 3, t + 4 + e))
    a.label("PREP4_NOSP%s" % tag)
```

```python
import os
from asmlib import *
from layout import *
from prep import ws_srd, gen_prep_gate

def gen_prep5(a, wgp_sreg, stamps=False):
    S_K, S_V, S_SH, S_G = 4, 8, 12, 16
    def stamp(i):
        if stamps: a("s_memtime s[%d:%d]" % (60 + 2 * i, 61 + 2 * i))
    stamp(0)
    a("s_load_dwordx2 s[20:21], s[0:1], 8")
    a("s_load_dwordx2 s[22:23], s[0:1], 16")
    a("s_load_dwordx2 s[24:25], s[0:1], 24")
    a("s_load_dwordx2 s[26:27], s[0:1], 104")
    a("s_lshr_b32 s30, s%d, 1" % wgp_sreg)
    a("s_lshl_b32 s30, s30, 6")
    a("s_and_b32 s29, s%d, 1" % wgp_sreg)
    a("s_lshl_b32 s31, s29, 10")
    a("v_and_b32 v1, 7, v0")
    a("v_lshrrev_b32 v2, 3, v0")
    a("v_lshlrev_b32 v3, 3, v1")
    a("v_add_u32 v3, s30, v3")
    a("v_lshlrev_b32 v4, 3, v2")
    a("v_add_u32 v4, s31, v4")
    a("v_add_u32 v5, -4, v4")
    a("v_lshlrev_b32 v5, 11, v5")
    a("v_lshlrev_b32 v6, 1, v3")
    a("v_add_u32 v5, v5, v6")
    a("v_add_u32 v6, 0x1000, v5")
    a("v_add_u32 v7, 0x2000, v5")
    a("v_lshlrev_b32 v8, 3, v3")
    a("s_movk_i32 s28, %d" % G_PITCH)
    a("v_and_b32 v1, 63, v0")
    a("v_lshrrev_b32 v9, 3, v1")
    a("v_lshlrev_b32 v11, 2, v9")
    a("v_lshlrev_b32 v9, 3, v9")
    a("v_add_u32 v9, s30, v9")
    a("v_mul_lo_u32 v9, v9, s28")
    a("v_and_b32 v10, 7, v0")
    a("v_lshlrev_b32 v2, 4, v10")
    a("v_add_u32 v9, v9, v2")
    a("v_lshrrev_b32 v2, 6, v0")
    a("v_lshlrev_b32 v2, 7, v2")
    a("s_lshl_b32 s28, s31, 1")
    a("s_sub_u32 s28, 0x1000, s28")
    a("v_sub_u32 v2, s28, v2")
    a("v_xor_b32 v3, 7, v10")
    a("v_add_u32 v10, v9, v2")
    a("v_lshlrev_b32 v3, 5, v3")
    a("v_add_u32 v3, v3, v11")
    a("v_add_u32 v11, 224, v11")
    a("s_waitcnt lgkmcnt(0)")
    srd(a, S_K, 20, 2048 * 1024 * 2)
    srd(a, S_V, 22, 2048 * 1024 * 2)
    srd(a, S_SH, 24, 1024 * 4 * 2)
    ws_srd(a, S_G, 26, G_OFF, G_BYTES)
    a("s_mov_b32 s28, 0xffff0000")
    for i in range(4): a("s_movk_i32 s%d, %d" % (32 + i, 4096 * i))
    for e in range(8):
        a("s_mov_b32 s%d, 0x%x" % (40 + e, e * G_PITCH))
        a("s_mov_b32 s%d, 0x%x" % (48 + e, e * G_PITCH + G1_REL))
    SH = 12
    BUF = [28, 112]
    KT = 196
    R = 220
    W = 238
    VT = 246
    Z = 250
    for r in range(4):
        a("buffer_load_dwordx4 v[%d:%d], v8, s[%d:%d], 0 offen offset:%d" % (SH + 4 * r, SH + 3 + 4 * r, S_SH, S_SH + 3, 16 * r))

    def loads(base, rf="v"):
        def ld(dst, S, row):
            if row < 2: v, so, off = 5, "0", row * 2048
            elif row < 4: v, so, off = 6, "0", (row - 2) * 2048
            else: v, so, off = 7, "s%d" % (32 + (row - 4) // 2), ((row - 4) & 1) * 2048
            a("buffer_load_dwordx4 %s[%d:%d], v%d, s[%d:%d], %s offen offset:%d" % (rf, dst, dst + 3, v, S, S + 3, so, off))
        for r in range(12): ld(base + 4 * r, S_K, r)
        for r in range(9): ld(base + 48 + 4 * r, S_V, r + 3)
        for v in (5, 6, 7): a("v_add_u32 v%d, 0x80000, v%d" % (v, v))

    def compute(base, last):
        for p in range(4):
            for c in range(2):
                e = 2 * p + c
                a("v_lshlrev_b32 v%d, 16, v%d" % (W + 0 + c, SH + 2 * e))
                a("v_and_b32 v%d, s28, v%d" % (W + 2 + c, SH + 2 * e))
                a("v_lshlrev_b32 v%d, 16, v%d" % (W + 4 + c, SH + 2 * e + 1))
                a("v_and_b32 v%d, s28, v%d" % (W + 6 + c, SH + 2 * e + 1))
            for r in range(12):
                a("v_lshlrev_b32 v%d, 16, v%d" % (KT + 2 * r, base + 4 * r + p))
                a("v_and_b32 v%d, s28, v%d" % (KT + 2 * r + 1, base + 4 * r + p))
            for j in range(9):
                a("v_pk_mul_f32 v[%d:%d], v[%d:%d], v[%d:%d]" % (R + 2 * j, R + 2 * j + 1, KT + 2 * j, KT + 2 * j + 1, W + 6, W + 7))
            for t in range(1, 4):
                for j in range(9):
                    a("v_pk_fma_f32 v[%d:%d], v[%d:%d], v[%d:%d], v[%d:%d]" % (R + 2 * j, R + 2 * j + 1, KT + 2 * (j + t), KT + 2 * (j + t) + 1, W + 2 * (3 - t), W + 2 * (3 - t) + 1, R + 2 * j, R + 2 * j + 1))
            for j in range(9):
                t = VT + 2 * (j & 1)
                a("v_cvt_pk_bf16_f32 v%d, v%d, v%d" % (KT + j, R + 2 * j, R + 2 * j + 1))
                a("v_lshlrev_b32 v%d, 16, v%d" % (t, base + 48 + 4 * j + p))
                a("v_and_b32 v%d, s28, v%d" % (t + 1, base + 48 + 4 * j + p))
                a("v_lshlrev_b32 v%d, 16, v%d" % (R + 2 * j, KT + j))
                a("v_and_b32 v%d, s28, v%d" % (R + 2 * j + 1, KT + j))
                a("v_pk_mul_f32 v[%d:%d], v[%d:%d], v[%d:%d]" % (R + 2 * j, R + 2 * j + 1, R + 2 * j, R + 2 * j + 1, t, t + 1))
            for c in range(2):
                e = 2 * p + c
                o0 = KT + 8 * c; o1 = o0 + 4
                for i in range(4):
                    a("v_cvt_pk_bf16_f32 v%d, v%d, v%d" % (o0 + i, R + 2 * (8 - 2 * i) + c, R + 2 * (7 - 2 * i) + c))
                for i in range(4):
                    a("v_cvt_pk_bf16_f32 v%d, v%d, v%d" % (o1 + i, R + 2 * (7 - 2 * i) + c, R + 2 * (6 - 2 * i) + c))
                if last: a("ds_bpermute_b32 v%d, v11, v%d" % (250 + c, o0))
                for i in range(8):
                    a("ds_bpermute_b32 v%d, v3, v%d" % (o0 + i, o0 + i))
            for c in range(2):
                e = 2 * p + c
                o0 = KT + 8 * c; o1 = o0 + 4
                a("s_waitcnt lgkmcnt(%d)" % ((9 if last else 8) * (1 - c)))
                a("buffer_store_dwordx4 v[%d:%d], v10, s[%d:%d], s%d offen sc1" % (o0, o0 + 3, S_G, S_G + 3, 40 + e))
                a("buffer_store_dwordx4 v[%d:%d], v10, s[%d:%d], s%d offen sc1" % (o1, o1 + 3, S_G, S_G + 3, 48 + e))
                if last:
                    zz = 32 + 4 * e
                    a("v_lshlrev_b32 v%d, 16, v%d" % (zz + 3, 250 + c))
                    a("v_cndmask_b32 v%d, 0, v%d, vcc" % (zz + 3, zz + 3))
                    a("s_mov_b64 exec, s[38:39]")
                    a("buffer_store_dwordx4 v[28:31], v9, s[%d:%d], s%d offen sc1" % (S_G, S_G + 3, 40 + e))
                    a("buffer_store_dwordx4 v[%d:%d], v9, s[%d:%d], s%d offen sc1" % (zz, zz + 3, S_G, S_G + 3, 48 + e))
                    a("s_mov_b64 exec, -1")
            a("s_nop 1")
        a("v_add_u32 v10, 0xfffffe00, v10")
    loads(BUF[0])
    loads(BUF[1])
    loads(0, "a")
    loads(84, "a")
    a("s_waitcnt vmcnt(63)")
    stamp(1)
    compute(BUF[0], False)
    stamp(2)
    a("s_waitcnt vmcnt(58)")
    stamp(3)
    compute(BUF[1], False)
    a("s_waitcnt vmcnt(53)")
    stamp(4)
    for i in range(84): a("v_accvgpr_read_b32 v%d, a%d" % (BUF[0] + i, i))
    compute(BUF[0], False)
    a("s_lshl_b32 s36, s29, 8")
    a("v_add_u32 v1, s36, v0")
    a("v_cmp_le_u32 vcc, 448, v1")
    a("s_mov_b64 s[38:39], vcc")
    a("v_and_b32 v1, 7, v0")
    a("v_cmp_eq_u32 vcc, 7, v1")
    for i in range(28, 64): a("v_mov_b32 v%d, 0" % i)
    a("s_waitcnt vmcnt(48)")
    for i in range(84): a("v_accvgpr_read_b32 v%d, a%d" % (BUF[1] + i, 84 + i))
    compute(BUF[1], True)
    stamp(5)
    if stamps:
        a("s_waitcnt vmcnt(0)")
        stamp(6)
        a("s_waitcnt lgkmcnt(0)")
        ws_srd(a, 4, 26, 0x4000000, 1 << 20)
        a("s_lshl_b32 s47, s2, 5")
        for i in range(8):
            a("v_mov_b32 v%d, s%d" % (64 + i, 60 + 2 * i))
        a("v_mov_b32 v72, s47")
        a("s_mov_b64 exec, 1")
        a("buffer_store_dwordx4 v[64:67], v72, s[4:7], 0 offen")
        a("buffer_store_dwordx4 v[68:71], v72, s[4:7], 0 offen offset:16")
        a("s_mov_b64 exec, -1")
```

```python
import sys, os
os.environ.setdefault("PD", "4")
from asmlib import *
from prep import *
import prep4
import conv2
from gemm1 import *
from gemm2v import *
ST = os.environ.get("STAMPS", "") != ""
a = A()
hdr = open("gated_mix__ssm_conv_h3__geglu_ffn__prompt.s.ref").read().split("\n")
for l in hdr:
    if l.startswith("; Override") : break
    a.raw(l)
a.raw("; @launch kernel=g1_kernel grid=(256,1,1) block=(256,1,1) lds=131072")
a.raw("; @launch kernel=g2_kernel grid=(256,1,1) block=(256,1,1) lds=%d" % G2_LDS)
a.raw('.amdgcn_target "amdgcn-amd-amdhsa--gfx950"')
a.raw(".text")
def rt_begin():
    if ST:
        a("s_memrealtime s[92:93]")
def rt_mid():
    if ST:
        a("s_memrealtime s[94:95]")
def rt_end(kidx):
    if ST:
        a("s_waitcnt vmcnt(0) lgkmcnt(0)")
        a("s_memrealtime s[20:21]")
        a("s_load_dwordx2 s[22:23], s[0:1], 104")
        a("s_waitcnt lgkmcnt(0)")
        a("s_add_u32 s24, s22, 0x%x" % (0x5000000 + kidx * 0x10000))
        a("s_addc_u32 s25, s23, 0")
        a("s_mov_b32 s26, 0x10000")
        a("s_mov_b32 s27, 0x00020000")
        a("s_mov_b64 exec, 1")
        for i, r in enumerate((92, 86, 88, 90, 94, 96, 98, 20)):
            a("v_mov_b32 v%d, s%d" % (4 + i, r))
        a("s_lshl_b32 s22, s2, 5")
        a("v_mov_b32 v12, s22")
        a("buffer_store_dwordx4 v[4:7], v12, s[24:27], 0 offen")
        a("buffer_store_dwordx4 v[8:11], v12, s[24:27], 0 offen offset:16")
kernel_header(a, "g1_kernel")
a("s_cmp_ge_u32 s2, 256")
a("s_cbranch_scc1 G1_END")
rt_begin()
a("s_load_dwordx2 s[60:61], s[0:1], 8")
a("s_load_dwordx2 s[62:63], s[0:1], 16")
a("s_load_dwordx2 s[100:101], s[0:1], 24")
a("s_cmp_lt_u32 s2, 32")
a("s_cbranch_scc1 G1_PREP")
gen_gemm1(a, dbg="P", fuse=True, rts=ST)
a.label("CONV_MAIN")
rt_mid()
conv2.conv_main(a, 32)
rt_end(0)
a("s_endpgm")
a.label("G1_PREP")
if conv2.TARGET == 16:
    a("s_load_dwordx2 s[30:31], s[0:1], 104")
    a("v_lshrrev_b32 v1, 6, v0")
    a("v_and_b32 v0, 63, v0")
    a("s_nop 0")
    a("v_readfirstlane_b32 s40, v1")
    a("s_waitcnt lgkmcnt(0)")
    prep4.prep4_issue(a, 60, 62, 100, 30, 64, 64, 40)
    a("s_waitcnt vmcnt(0)")
    prep4.prep4_compute(a, 64, 64, "B")
else:
    import prep5
    prep5.gen_prep5(a, 2)
    a("v_lshrrev_b32 v1, 6, v0")
    a("v_and_b32 v0, 63, v0")
    a("s_nop 0")
    a("v_readfirstlane_b32 s40, v1")
conv2.conv_ptrs(a)
if ST: a("s_memrealtime s[96:97]")
a("s_waitcnt vmcnt(0) lgkmcnt(0)")
conv2.flag_srd(a)
if ST: a("s_memrealtime s[86:87]")
a("s_barrier")
a("s_cmp_lg_u32 s40, 0")
a("s_cbranch_scc1 PREP_P4")
conv2.signal(a)
a.label("PREP_P3")
conv2.poll_issue(a, 210)
a("s_waitcnt vmcnt(0)")
conv2.poll_check(a, 210, 84)
a("s_cmp_lg_u32 s84, 0")
a("s_cbranch_scc1 PREP_P5")
a("s_sleep 64")
a("s_branch PREP_P3")
a.label("PREP_P5")
a("buffer_inv sc1")
a("s_waitcnt vmcnt(0)")
a.label("PREP_P4")
a("s_barrier")
conv2.conv_issue(a)
a("s_waitcnt vmcnt(0)")
a("s_branch CONV_MAIN")
a.label("G1_END")
a("s_endpgm")
kernel_header(a, "g2_kernel")
a("s_cmp_ge_u32 s2, 256")
a("s_cbranch_scc1 G2_END")
rt_begin()
gen_gemm2(a)
rt_end(1)
a.label("G2_END")
a("s_endpgm")
a.raw('.section .rodata,"a"')
sg = 102
a.raw(kernel_desc("g1_kernel", 512, sg, 256))
a.raw(kernel_desc("g2_kernel", 512, sg, 256))
open(sys.argv[1], "w").write(a.text())
```

```python
from asmlib import *
from layout import *
from prep import ws_srd

UC = 5184
HC = 4480
WAVE_LDS = 4 * UC + 2 * HC
CONV_LDS = 4 * WAVE_LDS

P_HK, P_D, P_GW, P_DBG, P_WS, P_Q = 64, 66, 68, 70, 72, 74
S_G, S_H, S_Z, S_Q, S_GW, S_GT, S_F = 4, 8, 12, 32, 36, 52, 80
sW, sD, sLB, T0, T1, T2, sDV, T3, T4 = 40, 60, 61, 62, 63, 76, 78, 77, 79
sHB = 85
KV = 160
GL = 176
VL = 200
VSW = 201
VZ = 204
VT = 208
import os
TARGET = 16 if os.environ.get('DPREP') else 8

def conv_ptrs(a):
    a("s_load_dwordx2 s[%d:%d], s[0:1], 32" % (P_HK, P_HK + 1))
    a("s_load_dwordx2 s[%d:%d], s[0:1], 40" % (P_D, P_D + 1))
    a("s_load_dwordx2 s[%d:%d], s[0:1], 80" % (P_GW, P_GW + 1))
    a("s_load_dwordx2 s[%d:%d], s[0:1], 96" % (P_DBG, P_DBG + 1))
    a("s_load_dwordx2 s[%d:%d], s[0:1], 104" % (P_WS, P_WS + 1))
    a("s_load_dwordx2 s[%d:%d], s[0:1], 0" % (P_Q, P_Q + 1))

def flag_srd(a):
    srd(a, S_F, P_DBG, 256)

def poll_issue(a, vdst):
    a("s_lshr_b32 s%d, s2, %d" % (T0, 4 if TARGET == 16 else 6))
    a("s_lshl_b32 s%d, s%d, %d" % (T0, T0, 2 if TARGET == 16 else 6))
    a("v_mov_b32 v%d, s%d" % (VT, T0))
    a("buffer_load_dword v%d, v%d, s[%d:%d], 0 offen sc1" % (vdst, VT, S_F, S_F + 3))

def poll_check(a, vdst, sdst):
    a("v_readfirstlane_b32 s%d, v%d" % (sdst, vdst))
    a("s_cmp_ge_u32 s%d, %d" % (sdst, TARGET))
    a("s_cselect_b32 s%d, 1, 0" % sdst)

def signal(a):
    if TARGET == 16: a("s_and_b32 s%d, s2, 15" % T0)
    else: a("s_and_b32 s%d, s2, 3" % T0)
    a("s_lshl_b32 s%d, s%d, %d" % (T0, T0, 2 if TARGET == 16 else 6))
    a("v_mov_b32 v%d, s%d" % (VT, T0))
    a("v_mov_b32 v%d, 1" % (VT + 1))
    a("s_mov_b64 exec, 1")
    a("buffer_atomic_add v%d, v%d, s[%d:%d], 0 offen sc1" % (VT + 1, VT, S_F, S_F + 3))
    a("s_mov_b64 exec, -1")

UREG = 65536
def conv_early(a):
    a("s_lshl_b32 s%d, s2, 2" % sD)
    a("s_add_u32 s%d, s%d, s%d" % (sD, sD, sW))
    a("s_mul_i32 s%d, s%d, %d" % (sLB, sW, 4 * UC))
    a("s_add_u32 s%d, s%d, %d" % (sLB, sLB, UREG))
    for i in range(4): a("v_mov_b32 v%d, 0" % (VZ + i))
    a("v_lshlrev_b32 v%d, 4, v0" % VL)
    a("v_add_u32 v%d, s%d, v%d" % (VT + 2, sLB, VL))
    ws_srd(a, S_G, P_WS, G_OFF, G_BYTES)
    a("v_lshrrev_b32 v%d, 4, v0" % VSW)
    a("v_and_b32 v%d, 1, v%d" % (VSW, VSW))
    a("v_lshlrev_b32 v%d, 1, v%d" % (VSW, VSW))
    a("v_xor_b32 v%d, v%d, v0" % (VSW, VSW))
    a("v_lshlrev_b32 v%d, 4, v%d" % (VSW, VSW))
    a("s_mul_i32 s%d, s%d, %d" % (T3, sD, G_PITCH))
    D = []
    for r in (3, 1, 2, 0):
        off = {3: 120, 1: 124, 2: 122, 0: 126}[r]
        for I in range(4):
            g = []
            if I == 0: g += ["s_add_u32 s%d, s%d, 0x%x" % (T4, T3, off), "s_add_u32 m0, s%d, %d" % (sLB, r * UC), "s_nop 0"]
            g.append("buffer_load_dwordx4 v%d, s[%d:%d], s%d offen offset:%d lds" % (VSW, S_G, S_G + 3, T4, I * 1024))
            if I == 3: g.append("ds_write_b128 v%d, v[%d:%d] offset:%d" % (VT + 2, VZ, VZ + 3, r * UC + 4112))
            D.append(g)
    g = ["s_mov_b64 exec, 1"]
    for r in range(4):
        off = {3: 120, 1: 124, 2: 122, 0: 126}[r]
        g.append("s_add_u32 s%d, s%d, 0x%x" % (T4, T3, off + 4096))
        g.append("s_add_u32 m0, s%d, %d" % (sLB, r * UC + 4096))
        g.append("s_nop 0")
        g.append("buffer_load_dwordx4 v%d, s[%d:%d], s%d offen lds" % (VSW, S_G, S_G + 3, T4))
    g.append("s_mov_b64 exec, -1")
    D.append(g)
    return D

def touch_hq(sq):
    r = ["s_lshl_b32 s%d, s2, 2" % sD, "s_add_u32 s%d, s%d, s%d" % (sD, sD, sW), "s_lshl_b32 s%d, s%d, 12" % (T0, sD),
         "s_mov_b32 s76, s%d" % P_HK, "s_mov_b32 s77, s%d" % (P_HK + 1), "s_mov_b32 s78, 0x%x" % (1024 * 2048 * 2), "s_mov_b32 s79, 0x00020000",
         "v_and_b32 v%d, 31, v0" % VT, "v_lshlrev_b32 v%d, 7, v%d" % (VT, VT),
         "buffer_load_dword v%d, v%d, s[76:79], s%d offen" % (VT + 1, VT, T0),
         "buffer_load_dword v%d, v%d, s[%d:%d], s%d offen" % (VT + 1, VT, sq, sq + 3, T0)]
    return r

def conv_issue(a):
    a("s_mul_i32 s%d, s%d, %d" % (sHB, sW, 2 * HC))
    a("v_add_u32 v%d, s%d, v%d" % (VT, sHB, VL))
    a("s_mov_b64 exec, 0xffff")
    for ph in range(2):
        a("ds_write_b128 v%d, v[%d:%d] offset:%d" % (VT, VZ, VZ + 3, ph * HC))
        a("ds_write_b128 v%d, v[%d:%d] offset:%d" % (VT, VZ, VZ + 3, ph * HC + HC - 256))
    a("s_mov_b64 exec, -1")
    srd(a, S_H, P_HK, 1024 * 2048 * 2)
    ws_srd(a, S_Z, P_WS, Z_OFF, Z_BYTES)
    srd(a, S_Q, P_Q, 2048 * 1024 * 2)
    srd(a, S_GW, P_GW, 1024 * 2)
    ws_srd(a, S_GT, P_WS, GT_OFF, GT_BYTES)
    a("s_lshl_b32 s%d, s%d, 12" % (T0, sD))
    a("buffer_load_dwordx4 v[%d:%d], v%d, s[%d:%d], 0 offen" % (GL, GL + 3, VL, S_GW, S_GW + 3))
    a("buffer_load_dwordx4 v[%d:%d], v%d, s[%d:%d], 0 offen offset:1024" % (GL + 4, GL + 7, VL, S_GW, S_GW + 3))
    for i in range(4):
        a("buffer_load_dwordx4 v[%d:%d], v%d, s[%d:%d], s%d offen offset:%d" % (GL + 8 + 4 * i, GL + 11 + 4 * i, VL, S_Q, S_Q + 3, T0, 1024 * i))
    a("s_lshr_b32 s%d, s%d, 1" % (T1, sD))
    a("s_lshl_b32 s%d, s%d, 2" % (T1, T1))
    a("s_load_dword s%d, s[%d:%d], s%d" % (sDV, P_D, P_D + 1, T1))
    a("v_and_b32 v%d, 15, v0" % VT)
    a("v_lshrrev_b32 v%d, 4, v0" % (VT + 1))
    a("v_lshlrev_b32 v%d, 7, v%d" % (VT + 1, VT + 1))
    a("v_lshlrev_b32 v%d, 3, v%d" % (VT, VT))
    a("v_add_u32 v%d, v%d, v%d" % (VT, VT, VT + 1))
    a("v_sub_u32 v%d, 568, v%d" % (VT, VT))
    a("v_lshlrev_b32 v%d, 1, v%d" % (VT, VT))
    a("s_waitcnt lgkmcnt(0)")
    D = []
    for ph in range(2):
        for I in range(4):
            g = []
            if I == 0: g += ["s_add_u32 m0, s%d, %d" % (sHB, ph * HC + (128 - 4 * ph) * 2), "s_nop 0"]
            g.append("buffer_load_dwordx4 v%d, s[%d:%d], s%d offen offset:%d lds" % (VL, S_H, S_H + 3, T0, I * 1024))
            D.append(g)
    for T in range(4):
        D.append(["buffer_load_dwordx4 v[%d:%d], v%d, s[%d:%d], s%d offen offset:%d" % (KV + 4 * T, KV + 4 * T + 3, VT, S_G, S_G + 3, T3, (3 - T) * 1024)])
    return D

NE0 = int(os.environ.get("NE0", "4"))
DSP_ = int(os.environ.get("CDSP", "8"))
def conv_main(a, D, E=None):
    E = E or []
    ne0 = min(NE0, len(E))
    vm = []
    def em(i):
        a(i)
        if i.startswith("buffer_"): vm.append(i)
    pre = [i for g in E[:ne0] for i in g]; rest = [i for g in E[ne0:] for i in g]
    a("v_and_b32 v8, 15, v0")
    a("v_lshrrev_b32 v9, 4, v0")
    a("v_lshlrev_b32 v10, 7, v9")
    a("v_lshlrev_b32 v11, 3, v8")
    a("v_add_u32 v10, v10, v11")
    a("v_lshlrev_b32 v12, 1, v10")
    a("v_add_u32 v13, v8, v9")
    a("v_lshlrev_b32 v13, 4, v13")
    a("v_add_u32 v13, s%d, v13" % sHB)
    a("v_lshrrev_b32 v4, 2, v8")
    a("v_and_b32 v5, 3, v8")
    a("s_movk_i32 s%d, %d" % (T1, UC))
    a("v_mul_lo_u32 v5, v5, s%d" % T1)
    a("v_sub_u32 v6, 3, v4")
    a("v_lshlrev_b32 v6, 8, v6")
    a("v_add_u32 v5, v5, v6")
    a("v_add_u32 v5, s%d, v5" % sLB)
    a("v_and_b32 v6, 1, v4")
    a("v_lshlrev_b32 v6, 1, v6")
    a("v_xor_b32 v7, v9, v6")
    a("v_xor_b32 v6, 2, v7")
    a("v_lshlrev_b32 v6, 4, v6")
    a("v_lshlrev_b32 v7, 4, v7")
    a("v_add_u32 v14, v5, v6")
    a("v_add_u32 v15, v5, v7")
    ACC = 32
    for i in range(32): a("v_mov_b32 v%d, 0" % (ACC + i))
    FB = 64
    def reads(n):
        b = FB + (n % 3) * 24
        r = []
        for ph in range(2):
            r.append("ds_read_b128 v[%d:%d], v13 offset:%d" % (b + 4 * ph, b + 4 * ph + 3, ph * HC + 64 * n))
        m = n >> 2
        for T in range(4):
            if n <= 16 * T + 16:
                r.append("ds_read_b128 v[%d:%d], v%d offset:%d" % (b + 8 + 4 * T, b + 11 + 4 * T, 14 + (m & 1), 3072 - 1024 * T + 256 * m + 64 * (n & 3)))
        return r
    def mf(n):
        b = FB + (n % 3) * 24
        r = []
        for T in range(4):
            if n <= 16 * T + 16:
                for ph in range(2):
                    c = ACC + (T * 2 + ph) * 4
                    r.append("v_mfma_f32_16x16x32_bf16 v[%d:%d], v[%d:%d], v[%d:%d], v[%d:%d]" % (c, c + 3, b + 8 + 4 * T, b + 11 + 4 * T, b + 4 * ph, b + 4 * ph + 3, c, c + 3))
        return r
    NS = 65
    M = T2
    a("s_mov_b32 s%d, 0xffff0000" % M)
    for i in place(pre, [(DSP_ * n, g) for n, g in enumerate(D)]): em(i)
    a("s_waitcnt vmcnt(%d)" % len(vm))
    for i in range(8):
        a("v_lshlrev_b32 v%d, 16, v%d" % (88 + 2 * i, GL + i))
        a("v_and_b32 v%d, s%d, v%d" % (89 + 2 * i, M, GL + i))
    for r in range(2):
        for i in range(8):
            src = GL + 8 + 8 * r + i
            t = 104 + 2 * (i & 1)
            a("v_lshlrev_b32 v%d, 16, v%d" % (t, src))
            a("v_and_b32 v%d, s%d, v%d" % (t + 1, M, src))
            a("v_mul_f32 v%d, v%d, v%d" % (t, t, 88 + 2 * i))
            a("v_mul_f32 v%d, v%d, v%d" % (t + 1, t + 1, 89 + 2 * i))
            a("v_cvt_pk_bf16_f32 v%d, v%d, v%d" % (t, t, t + 1))
            a("v_lshlrev_b32 v%d, 16, v%d" % (t + 1, t))
            a("v_and_b32 v%d, s%d, v%d" % (t, M, t))
            if i == 0:
                a("v_add_f32 v%d, v%d, v%d" % (108 + r, t, t + 1))
            else:
                a("v_add_f32 v%d, v%d, v%d" % (t, t, t + 1))
                a("v_add_f32 v%d, v%d, v%d" % (108 + r, 108 + r, t))
    for step in (1, 2, 4, 8, 16, 32):
        a("v_xor_b32 v104, %d, v0" % step)
        a("v_lshlrev_b32 v104, 2, v104")
        a("ds_bpermute_b32 v110, v104, v108")
        a("ds_bpermute_b32 v111, v104, v109")
        a("s_waitcnt lgkmcnt(0)")
        a("v_add_f32 v108, v108, v110")
        a("v_add_f32 v109, v109, v111")
    a("v_cmp_eq_u32 vcc, 1, v0")
    a("s_nop 1")
    a("v_cndmask_b32 v136, v108, v109, vcc")
    a("v_cvt_pk_bf16_f32 v136, v136, v136")
    a("v_lshlrev_b32 v136, 16, v136")
    a("v_mul_f32 v136, 0xbfb8aa3b, v136")
    a("v_exp_f32 v136, v136")
    a("s_nop 0")
    a("v_add_f32 v136, 1.0, v136")
    a("v_rcp_f32 v136, v136")
    a("s_nop 0")
    a("v_cvt_pk_bf16_f32 v136, v136, v136")
    a("v_lshlrev_b32 v136, 16, v136")
    a("v_lshlrev_b32 v137, 2, v0")
    last = max(k for k, i in enumerate(vm) if "load" in i)
    a("s_waitcnt vmcnt(%d)" % (len(vm) - 1 - last))
    a("s_lshl_b32 s%d, s%d, 3" % (T0, sD))
    a("s_mov_b64 exec, 3")
    a("buffer_store_dword v136, v137, s[%d:%d], s%d offen" % (S_GT, S_GT + 3, T0))
    a("s_mov_b64 exec, -1")
    for i in reads(0): a(i)
    for i in reads(1): a(i)
    nm_total = sum(len(mf(n)) for n in range(NS))
    done_m = 0; done_e = 0
    for n in range(NS):
        nxt = reads(n + 2) if n + 2 < NS else []
        n1 = len(reads(n + 1)) if n + 1 < NS else 0
        a("s_waitcnt lgkmcnt(%d)" % n1)
        m = mf(n)
        pl = [(k, [x]) for k, x in enumerate(nxt)]
        for k in range(len(m)):
            done_m += 1
            tgt = (len(rest) * done_m + nm_total - 1) // nm_total
            pl.append((k, rest[done_e:tgt])); done_e = tgt
        for i in place(m, pl): a(i)
    assert done_e == len(rest)
    a("s_and_b32 s%d, s%d, 1" % (T0, sD))
    a("s_lshl_b32 s%d, s%d, 16" % (T1, sDV))
    a("s_and_b32 s%d, s%d, 0xffff0000" % (sDV, sDV))
    a("s_cmp_eq_u32 s%d, 0" % T0)
    a("s_cselect_b32 s%d, s%d, s%d" % (sDV, T1, sDV))
    a("s_lshl_b32 s%d, s%d, 12" % (T0, sD))
    a("s_nop 7")
    for T in range(4):
        Y = 64; Kf = 72; O = 80 + 4 * T
        c = ACC + T * 8
        for p in range(4):
            a("v_cvt_pk_bf16_f32 v%d, v%d, v%d" % (96, c + 2 * p, c + 2 * p + 1))
            a("v_lshlrev_b32 v%d, 16, v96" % (Y + 2 * p))
            a("v_and_b32 v%d, s%d, v96" % (Y + 2 * p + 1, M))
        for p in range(4):
            src = KV + 4 * T + (3 - p)
            a("v_and_b32 v%d, s%d, v%d" % (Kf + 2 * p, M, src))
            a("v_lshlrev_b32 v%d, 16, v%d" % (Kf + 2 * p + 1, src))
        for e in range(8):
            a("v_mul_f32 v%d, s%d, v%d" % (Kf + e, sDV, Kf + e))
        for p in range(4):
            a("v_cvt_pk_bf16_f32 v96, v%d, v%d" % (Kf + 2 * p, Kf + 2 * p + 1))
            a("v_lshlrev_b32 v%d, 16, v96" % (Kf + 2 * p))
            a("v_and_b32 v%d, s%d, v96" % (Kf + 2 * p + 1, M))
        for e in range(8):
            a("v_add_f32 v%d, v%d, v%d" % (Y + e, Y + e, Kf + e))
        for p in range(4):
            a("v_cvt_pk_bf16_f32 v%d, v%d, v%d" % (O + p, Y + 2 * p, Y + 2 * p + 1))
        a("buffer_store_dwordx4 v[%d:%d], v12, s[%d:%d], s%d offen offset:%d" % (O, O + 3, S_Z, S_Z + 3, T0, T * 1024))
```

```python
from asmlib import *

import os
ROT = int(os.environ.get('ROT', '5'))
PD = int(os.environ.get('PD', '6'))
DS0 = int(os.environ.get('DS0', '1'))
DSP = int(os.environ.get('DSP', '4'))
H1_OFF = 0
H1_BYTES = 2048 * 3584 * 2

def gen_gemm1(a, name="g1_kernel", end_label="G1_END", stamps=False, dbg="", fuse=False, rts=False):
    def rt(r):
        if rts: a("s_memrealtime s[%d:%d]" % (r, r + 1))
    def stamp(i):
        if stamps:
            a("s_memtime s[%d:%d]" % (60 + 2 * i, 61 + 2 * i))
    stamp(0)
    S_X, S_WG, S_WU, S_H = 4, 8, 12, 16
    sKX, sKW, sCNT = 20, 21, 22
    sM0 = 32
    sW = 40
    sT = 41
    vXoff = 2
    vWoff = 10
    vXa = 14
    vWa = 18
    vT = 26
    F = [64, 128]

    a("s_load_dwordx2 s[24:25], s[0:1], 0")
    a("s_load_dwordx2 s[26:27], s[0:1], 56")
    a("s_load_dwordx2 s[28:29], s[0:1], 64")
    a("s_load_dwordx2 s[30:31], s[0:1], 104")
    a("s_and_b32 s41, s2, 7")
    a("s_lshr_b32 s42, s2, 3")
    if fuse: a("s_sub_u32 s42, s42, 4")
    a("s_and_b32 s43, s41, 1")
    a("s_lshl_b32 s43, s43, 2")
    a("s_and_b32 s44, s42, 3")
    a("s_add_u32 s43, s43, s44")
    a("s_lshr_b32 s44, s41, 1")
    a("s_mul_i32 s44, s44, 7")
    a("s_lshr_b32 s45, s42, 2")
    a("s_add_u32 s44, s44, s45")
    if "Z" in dbg:
        a("s_mov_b32 s43, 0")
        a("s_mov_b32 s44, 0")
    if "Y" in dbg:
        a("s_and_b32 s43, s43, 1")
        a("s_and_b32 s44, s44, 1")
    a("s_lshl_b32 s43, s43, 8")
    a("s_lshl_b32 s44, s44, 7")
    a("v_lshrrev_b32 v1, 6, v0")
    a("v_and_b32 v0, 63, v0")
    a("s_nop 0")
    a("v_readfirstlane_b32 s%d, v1" % sW)
    a("s_waitcnt lgkmcnt(0)")
    srd(a, S_X, 24, 2048 * 1024 * 2)
    srd(a, S_WG, 26, 1024 * 3584 * 2)
    srd(a, S_WU, 28, 1024 * 3584 * 2)
    srd(a, S_H, 30, H1_BYTES)
    a("s_lshl_b32 s45, s%d, 13" % sW)
    a("s_lshl_b32 s46, s%d, 12" % sW)
    for b in range(2):
        a("s_add_u32 s%d, s45, 0x%x" % (sM0 + 4 * b + 0, (1 - b) * 65536))
        a("s_add_u32 s%d, s45, 0x%x" % (sM0 + 4 * b + 1, (1 - b) * 65536 + 4096))
        a("s_add_u32 s%d, s46, 0x%x" % (sM0 + 4 * b + 2, (1 - b) * 65536 + 32768))
        a("s_add_u32 s%d, s46, 0x%x" % (sM0 + 4 * b + 3, (1 - b) * 65536 + 49152))
    t0, t1, t2, t3 = vT, vT + 1, vT + 2, vT + 3
    a("v_lshrrev_b32 v%d, 3, v0" % t0)
    a("s_lshl_b32 s45, s%d, 6" % sW)
    a("s_add_u32 s45, s45, s43")
    a("v_add_u32 v%d, s45, v%d" % (t0, t0))
    a("v_lshlrev_b32 v%d, 11, v%d" % (t0, t0))
    a("v_and_b32 v%d, 7, v0" % t1)
    a("v_lshrrev_b32 v%d, 4, v0" % t2)
    a("v_xor_b32 v%d, v%d, v%d" % (t1, t1, t2))
    a("v_lshlrev_b32 v%d, 4, v%d" % (t1, t1))
    a("v_add_u32 v%d, v%d, v%d" % (t0, t0, t1))
    a("v_xor_b32 v%d, 64, v%d" % (t1, t0))
    for j in range(8):
        a("v_add_u32 v%d, 0x%x, v%d" % (vXoff + j, j * 16384 - (j & 3) * 1024, t0 if j % 2 == 0 else t1))
    a("s_lshl_b32 s45, s%d, 4" % sW)
    a("v_add_u32 v%d, s45, v%d" % (t0, t2))
    a("s_movk_i32 s46, 7168")
    a("v_mul_lo_u32 v%d, v%d, s46" % (t0, t0))
    a("s_lshl_b32 s45, s44, 1")
    a("v_add_u32 v%d, s45, v%d" % (t0, t0))
    a("v_and_b32 v%d, 15, v0" % t1)
    a("v_lshlrev_b32 v%d, 1, v%d" % (t3, t2))
    a("v_xor_b32 v%d, v%d, v%d" % (t1, t1, t3))
    a("v_lshlrev_b32 v%d, 4, v%d" % (t1, t1))
    a("v_add_u32 v%d, v%d, v%d" % (t0, t0, t1))
    a("v_xor_b32 v%d, 0x80, v%d" % (t1, t0))
    for j in range(4):
        a("v_add_u32 v%d, 0x%x, v%d" % (vWoff + j, j * 4 * 7168 - j * 1024, t0 if j < 2 else t1))
    if "P" in dbg:
        a("s_lshr_b32 s45, s42, 2")
        a("s_mul_i32 s45, s45, 40")
        a("v_add_u32 v%d, s45, v0" % t0)
        a("v_min_u32 v%d, 255, v%d" % (t0, t0))
        a("v_add_u32 v%d, s43, v%d" % (t0, t0))
        a("v_lshlrev_b32 v%d, 11, v%d" % (t0, t0))
        a("v_lshrrev_b32 v%d, 1, v0" % t1)
        a("v_and_b32 v%d, 15, v%d" % (t1, t1))
        a("v_lshlrev_b32 v%d, 2, v%d" % (t1, t1))
        a("s_and_b32 s45, s42, 3")
        a("v_add_u32 v%d, s45, v%d" % (t1, t1))
        a("v_mul_lo_u32 v%d, v%d, s46" % (t1, t1))
        a("v_and_b32 v%d, 1, v0" % t3)
        a("v_lshlrev_b32 v%d, 7, v%d" % (t3, t3))
        a("v_add_u32 v%d, v%d, v%d" % (t1, t1, t3))
        a("s_lshl_b32 s45, s44, 1")
        a("v_add_u32 v%d, s45, v%d" % (t1, t1))
        a("s_cmp_eq_u32 s%d, 1" % sW)
        a("s_cselect_b32 s52, s26, s24")
        a("s_cselect_b32 s53, s27, s25")
        a("s_cmp_eq_u32 s%d, 2" % sW)
        a("s_cselect_b32 s52, s28, s52")
        a("s_cselect_b32 s53, s29, s53")
        a("s_add_u32 s45, s%d, -1" % sW)
        a("s_mov_b32 s54, 0x%x" % (2048 * 1024 * 2))
        a("s_movk_i32 s57, 128")
        a("s_cmp_lt_u32 s45, 2")
        a("s_cselect_b32 s54, 0x%x, s54" % (1024 * 3584 * 2))
        a("s_mov_b32 s55, 0x00020000")
        a("s_cselect_b32 s57, 0x%x, s57" % (64 * 7168))
        a("s_cselect_b64 vcc, -1, 0")
        a("s_nop 1")
        a("v_cndmask_b32 v41, v%d, v%d, vcc" % (t0, t1))
        a("s_lshl_b32 s56, s57, 1")
    if "K" in dbg:
        a("s_mul_i32 s23, s42, %d" % ROT)
        a("s_and_b32 s23, s23, 15")
        a("s_lshl_b32 s%d, s23, 7" % sKX)
        a("s_mul_i32 s%d, s23, 0x%x" % (sKW, 64 * 7168))
    else:
        a("s_mov_b32 s%d, 0" % sKX)
        a("s_mov_b32 s%d, 0" % sKW)

    def dma(b):
        g = []
        for half in range(2):
            if "W" in dbg: break
            for jj in range(4):
                j = half * 4 + jj
                ins = []
                if jj == 0:
                    ins.append("s_mov_b32 m0, s%d" % (sM0 + 4 * b + half))
                    ins.append("s_nop 0")
                ins.append("buffer_load_dwordx4 v%d, s[%d:%d], s%d offen offset:%d lds" % (vXoff + j, S_X, S_X + 3, sKX, jj * 1024))
                g.append(ins)
        for gu in range(2):
            if "X" in dbg: break
            S = S_WG if gu == 0 else S_WU
            for j in range(4):
                ins = []
                if j == 0:
                    ins.append("s_mov_b32 m0, s%d" % (sM0 + 4 * b + 2 + gu))
                    ins.append("s_nop 0")
                ins.append("buffer_load_dwordx4 v%d, s[%d:%d], s%d offen offset:%d lds" % (vWoff + j, S, S + 3, sKW, j * 1024))
                g.append(ins)
        if "K" in dbg:
            g[-1].append("s_add_u32 s23, s23, 1")
            g[-1].append("s_and_b32 s23, s23, 15")
            g[-1].append("s_lshl_b32 s%d, s23, 7" % sKX)
            g[-1].append("s_mul_i32 s%d, s23, 0x%x" % (sKW, 64 * 7168))
        else:
            g[-1].append("s_add_u32 s%d, s%d, 128" % (sKX, sKX))
            g[-1].append("s_add_u32 s%d, s%d, 0x%x" % (sKW, sKW, 64 * 7168))
        return g

    import prep4, conv2
    dprep = fuse and conv2.TARGET == 16
    if dprep:
        prep4.prep4_issue(a, 60, 62, 100, 30, 64, 64, sW)
    for g in dma(0):
        for i in g: a(i)
    for g in dma(1):
        for i in g: a(i)
    def touch():
        return ["buffer_load_dword v42, v41, s[52:55], s56 offen", "s_add_u32 s56, s56, s57"]
    if "P" in dbg:
        for _ in range(PD - 2):
            for i in touch(): a(i)

    a("s_lshr_b32 s45, s%d, 1" % sW)
    a("s_and_b32 s46, s%d, 1" % sW)
    a("v_and_b32 v%d, 15, v0" % t0)
    a("s_lshl_b32 s47, s45, 7")
    a("v_add_u32 v%d, s47, v%d" % (t0, t0))
    a("v_lshlrev_b32 v%d, 7, v%d" % (t0, t0))
    a("v_lshrrev_b32 v%d, 1, v0" % t1)
    a("v_and_b32 v%d, 7, v%d" % (t1, t1))
    a("v_xor_b32 v%d, v%d, v%d" % (t1, t1, t2))
    a("v_lshlrev_b32 v%d, 4, v%d" % (t1, t1))
    a("v_add_u32 v%d, v%d, v%d" % (vXa + 2, t0, t1))
    a("v_xor_b32 v%d, 64, v%d" % (vXa + 3, vXa + 2))
    a("v_add_u32 v%d, 0x10000, v%d" % (vXa + 0, vXa + 2))
    a("v_add_u32 v%d, 0x10000, v%d" % (vXa + 1, vXa + 3))
    a("v_lshrrev_b32 v%d, 2, v0" % t0)
    a("v_and_b32 v%d, 3, v%d" % (t0, t0))
    a("v_lshlrev_b32 v%d, 3, v%d" % (t1, t2))
    a("v_add_u32 v%d, v%d, v%d" % (t1, t1, t0))
    a("v_lshlrev_b32 v%d, 8, v%d" % (t1, t1))
    a("v_and_b32 v%d, 3, v0" % t3)
    a("v_lshlrev_b32 v%d, 3, v%d" % (t3, t3))
    a("v_add_u32 v%d, v%d, v%d" % (t1, t1, t3))
    a("v_add_u32 v%d, 0x8000, v%d" % (t1, t1))
    a("v_and_b32 v%d, 1, v%d" % (t3, t2))
    a("v_lshlrev_b32 v%d, 2, v%d" % (t3, t3))
    a("v_or_b32 v%d, v%d, v%d" % (t0, t0, t3))
    a("s_lshl_b32 s47, s46, 2")
    for t in range(4):
        a("s_add_u32 s48, s47, %d" % t)
        a("v_xor_b32 v%d, s48, v%d" % (t3, t0))
        a("v_lshlrev_b32 v%d, 5, v%d" % (t3, t3))
        a("v_add_u32 v%d, v%d, v%d" % (vWa + 4 + t, t1, t3))
        a("v_add_u32 v%d, 0x10000, v%d" % (vWa + t, vWa + 4 + t))
    for i in range(256):
        a("v_accvgpr_write_b32 a%d, 0" % i)

    def reads(fs, b, s):
        fb = F[fs]
        r = []
        for i in range(8):
            r.append(["ds_read_b128 v[%d:%d], v%d offset:%d" % (fb + 4 * i, fb + 4 * i + 3, vXa + 2 * b + s, i * 2048)])
        w = []
        for gu in range(2):
            for t in range(4):
                for h in range(2):
                    d = fb + 32 + 4 * (gu * 4 + t) + 2 * h
                    w.append(["ds_read_b64_tr_b16 v[%d:%d], v%d offset:%d" % (d, d + 1, vWa + 4 * b + t, gu * 16384 + s * 8192 + h * 1024)])
        out = []
        for i in range(8):
            out.append(r[i]); out.append(w[2 * i]); out.append(w[2 * i + 1])
        return out

    def mfmas(fs):
        fb = F[fs]
        m = []
        if "M" in dbg: return m
        for i in range(8):
            for wt in range(8):
                c = (wt * 8 + i) * 4
                m.append("v_mfma_f32_16x16x32_bf16 a[%d:%d], v[%d:%d], v[%d:%d], a[%d:%d]" % (
                    c, c + 3, fb + 32 + 4 * wt, fb + 32 + 4 * wt + 3, fb + 4 * i, fb + 4 * i + 3, c, c + 3))
        return m

    stamp(1)
    if fuse and not dprep:
        conv2.conv_ptrs(a)
    if dprep:
        a("s_waitcnt vmcnt(%d)" % (32 + PD - 2))
        rt(96)
        prep4.prep4_compute(a, 64, 64, "A")
        conv2.conv_ptrs(a)
        rt(86)
    a("s_waitcnt vmcnt(%d)" % ((8 if ("X" in dbg or "W" in dbg) else 16) + (PD - 2 if "P" in dbg else 0) + (8 if dprep else 0)))
    a("s_barrier")
    stamp(2)
    for g in reads(0, 0, 0):
        for i in g: a(i)

    def stage(b, do_dma, do_next, first=False, preB=None, vmB=None, extraA=None, extraB=None, tailB=None):
        a("s_waitcnt lgkmcnt(0)")
        pa = [(2 * n, g) for n, g in enumerate(reads(1, b, 1) if "R" not in dbg else [])]
        if extraA: pa += [(1 + 4 * n, g) for n, g in enumerate(extraA)]
        for i in place(mfmas(0), pa): a(i)
        a("s_waitcnt lgkmcnt(0)")
        if preB: preB()
        if do_next:
            if "V" in dbg:
                pass
            elif vmB is not None:
                a("s_waitcnt vmcnt(%d)" % vmB)
            elif first == 1:
                a("s_waitcnt vmcnt(%d)" % (PD - 2 + 8))
            elif "P" in dbg:
                a("s_waitcnt vmcnt(%d)" % (1 if "2" not in dbg else 18))
            else:
                a("s_waitcnt vmcnt(%d)" % (0 if "2" not in dbg else (8 if ("X" in dbg or "W" in dbg) else 16)))
            if "B" not in dbg: a("s_barrier")
            if first == 2:
                conv2.flag_srd(a)
                a("s_cmp_lg_u32 s%d, 0" % sW)
                a("s_cbranch_scc1 G1_P0")
                conv2.signal(a)
                a.label("G1_P0")
        pl = []
        if do_next and "R" not in dbg:
            for n, g in enumerate(reads(0, b ^ 1, 0)): pl.append((2 * n, g))
        if do_dma and "D" not in dbg:
            dl = dma(b)
            if "P" in dbg: dl[-1] = dl[-1] + touch()
            if tailB: dl[-1] = dl[-1] + tailB
            for n, g in enumerate(dl): pl.append((DS0 + DSP * n, g))
        if extraB: pl += [(1 + 4 * n, g) for n, g in enumerate(extraB)]
        for i in place(mfmas(1), pl): a(i)

    a("s_mov_b32 s%d, 0" % sCNT)
    if dprep:
        stage(0, True, True, first=1)
        stage(1, True, True, first=2)
        a("s_mov_b32 s%d, 1" % sCNT)
        rt(98)
    a.label("G1_LOOP")
    stage(0, True, True)
    stage(1, True, True)
    a("s_add_u32 s%d, s%d, 1" % (sCNT, sCNT))
    a("s_cmp_lt_u32 s%d, %d" % (sCNT, 6 if fuse else 7))
    a("s_cbranch_scc1 G1_LOOP")
    if fuse:
        if not dprep: conv2.flag_srd(a)
        a("s_mov_b32 s84, 0")
        stage(0, True, True, tailB=conv2.touch_hq(S_X))
        a("s_cmp_lg_u32 s%d, 0" % sW)
        a("s_cbranch_scc1 G1_P1")
        conv2.poll_issue(a, 202)
        a.label("G1_P1")
        def chk1():
            a("s_cmp_lg_u32 s%d, 0" % sW)
            a("s_cbranch_scc1 G1_P2")
            a("s_waitcnt vmcnt(0)")
            conv2.poll_check(a, 202, 84)
            a("s_cmp_eq_u32 s84, 0")
            a("s_cbranch_scc1 G1_P2")
            a("buffer_inv sc1")
            a.label("G1_P2")
        stage(1, True, True, preB=chk1, vmB=3)
        DE = conv2.conv_early(a)
        def chk2():
            a("s_cmp_lg_u32 s%d, 0" % sW)
            a("s_cbranch_scc1 G1_P4")
            a("s_cmp_lg_u32 s84, 0")
            a("s_cbranch_scc1 G1_P4")
            a.label("G1_P3")
            conv2.poll_issue(a, 202)
            a("s_waitcnt vmcnt(0)")
            conv2.poll_check(a, 202, 84)
            a("s_cmp_lg_u32 s84, 0")
            a("s_cbranch_scc1 G1_P5")
            a("s_sleep 16")
            a("s_branch G1_P3")
            a.label("G1_P5")
            a("buffer_inv sc1")
            a("s_waitcnt vmcnt(0)")
            a.label("G1_P4")
        stage(0, False, True, preB=chk2, extraB=DE[:12])
        stage(1, False, False, extraA=DE[12:])
        rt(88)
        a("s_barrier")
        rt(90)
        D = conv2.conv_issue(a)
    else:
        stage(0, False, True)
        stage(1, False, False)

    stamp(3)
    a("s_nop 7")
    a("s_nop 7")
    vS = 2
    a("s_lshr_b32 s47, s43, 7")
    a("s_add_u32 s47, s47, s45")
    a("s_mul_i32 s47, s47, 112")
    a("s_lshr_b32 s48, s44, 5")
    a("s_add_u32 s47, s47, s48")
    a("s_lshl_b32 s48, s46, 1")
    a("s_add_u32 s47, s47, s48")
    a("s_lshl_b32 s47, s47, 13")
    a("v_and_b32 v%d, 15, v0" % t0)
    a("v_lshlrev_b32 v%d, 4, v%d" % (t0, t0))
    a("v_lshrrev_b32 v%d, 1, v%d" % (t1, t2))
    a("v_lshlrev_b32 v%d, 8, v%d" % (t1, t1))
    a("v_add_u32 v%d, v%d, v%d" % (t0, t0, t1))
    a("v_and_b32 v%d, 1, v%d" % (t1, t2))
    a("v_lshlrev_b32 v%d, 10, v%d" % (t1, t1))
    a("v_add_u32 v%d, v%d, v%d" % (t0, t0, t1))
    a("v_add_u32 v%d, s47, v%d" % (vS, t0))
    a("s_mov_b32 s56, 0")
    a("s_movk_i32 s57, 4096")
    a("s_movk_i32 s58, 8192")
    a("s_movk_i32 s59, 12288")
    import math
    C0 = -2.0 * math.sqrt(2.0 / math.pi) * math.log2(math.e)
    C1 = C0 * 0.044715
    import struct
    def f2u(x): return struct.unpack("<I", struct.pack("<f", x))[0]
    a("s_mov_b32 s50, 0x%x" % f2u(C0))
    a("s_mov_b32 s51, 0x%x" % f2u(C1))
    a("v_mov_b32 v3, s50")
    groups = []
    cnt = 0
    SC = os.environ.get("H1SC", " sc1")
    for ip in range(4):
        for t in range(4):
            G = 212; U = 220; T = 228; P = 236 + 4 * (cnt % 4)
            cnt += 1
            i = 2 * ip
            cg = (t * 8 + i) * 4
            cu = ((4 + t) * 8 + i) * 4
            e = []
            for r in range(8): e.append("v_accvgpr_read_b32 v%d, a%d" % (G + r, cg + r))
            for r in range(8): e.append("v_mul_f32 v%d, v%d, v%d" % (T + r, G + r, G + r))
            for r in range(8): e.append("v_fma_f32 v%d, v%d, s51, v3" % (T + r, T + r))
            for r in range(8): e.append("v_mul_f32 v%d, v%d, v%d" % (T + r, T + r, G + r))
            for r in range(8):
                e.append("v_exp_f32 v%d, v%d" % (T + r, T + r))
                e.append("v_accvgpr_read_b32 v%d, a%d" % (U + r, cu + r))
            for r in range(8): e.append("v_add_f32 v%d, 1.0, v%d" % (T + r, T + r))
            for r in range(8):
                e.append("v_rcp_f32 v%d, v%d" % (T + r, T + r))
                e.append("v_mul_f32 v%d, v%d, v%d" % (U + r, U + r, G + r))
            for r in range(8): e.append("v_mul_f32 v%d, v%d, v%d" % (U + r, U + r, T + r))
            for k in range(4): e.append("v_cvt_pk_bf16_f32 v%d, v%d, v%d" % (P + k, U + 2 * k, U + 2 * k + 1))
            e.append("s_nop 1")
            e.append("v_permlane16_swap_b32 v%d, v%d" % (P, P + 2))
            e.append("v_permlane16_swap_b32 v%d, v%d" % (P + 1, P + 3))
            e.append("s_nop 0")
            e.append("buffer_store_dwordx4 v[%d:%d], v%d, s[%d:%d], s%d offen offset:%d%s" % (P, P + 3, vS, S_H, S_H + 3, 56 + (i >> 2) + 2 * (t >> 1), (i & 3) * 1024 + (t & 1) * 512, SC))
            groups.append(e)
    if fuse:
        return D, groups
    for e in groups:
        for i in e: a(i)

    if stamps:
        stamp(4)
        a("s_waitcnt vmcnt(0)")
        stamp(5)
        a("s_waitcnt lgkmcnt(0)")
        a("s_add_u32 s30, s30, 0x4000000")
        a("s_addc_u32 s31, s31, 0")
        srd(a, S_H, 30, 1 << 20)
        a("s_lshl_b32 s47, s2, 2")
        a("s_add_u32 s47, s47, s%d" % sW)
        a("s_lshl_b32 s47, s47, 5")
        for i in range(6):
            a("v_mov_b32 v%d, s%d" % (64 + i, 60 + 2 * i))
        a("v_mov_b32 v70, s47")
        a("v_cmp_eq_u32 vcc, 0, v0")
        a("s_and_saveexec_b64 s[48:49], vcc")
        a("buffer_store_dwordx4 v[64:67], v70, s[%d:%d], 0 offen" % (S_H, S_H + 3))
        a("buffer_store_dwordx2 v[68:69], v70, s[%d:%d], 0 offen offset:16" % (S_H, S_H + 3))
        a("s_mov_b64 exec, s[48:49]")
```

```python
import os
from asmlib import *
from layout import *
from prep import ws_srd

def gen_prep6(a, wgp_sreg, stamps=False):
    S_K, S_V, S_SH, S_G = 4, 8, 12, 16
    def stamp(i):
        if stamps: a("s_memtime s[%d:%d]" % (60 + 2 * i, 61 + 2 * i))
    a("s_load_dwordx2 s[20:21], s[0:1], 8")
    a("s_load_dwordx2 s[22:23], s[0:1], 16")
    a("s_load_dwordx2 s[24:25], s[0:1], 24")
    a("s_load_dwordx2 s[26:27], s[0:1], 104")
    code_touch(a, 48, 252, 0, "G1_PREP", end_label="G1_END")
    a("s_and_b32 s30, s%d, 3" % wgp_sreg)
    a("s_lshl_b32 s30, s30, 8")
    a("s_lshr_b32 s29, s%d, 2" % wgp_sreg)
    a("s_lshl_b32 s31, s29, 8")
    a("v_and_b32 v1, 7, v0")
    a("v_lshrrev_b32 v2, 3, v0")
    a("v_lshlrev_b32 v3, 3, v1")
    a("v_add_u32 v3, s30, v3")
    a("v_lshlrev_b32 v4, 3, v2")
    a("v_add_u32 v4, s31, v4")
    a("v_add_u32 v5, -4, v4")
    a("v_lshlrev_b32 v5, 11, v5")
    a("v_lshlrev_b32 v6, 1, v3")
    a("v_add_u32 v5, v5, v6")
    a("v_add_u32 v6, 0x1000, v5")
    a("v_add_u32 v7, 0x2000, v5")
    a("v_lshlrev_b32 v8, 3, v3")
    a("s_movk_i32 s28, %d" % G_PITCH)
    a("v_and_b32 v1, 63, v0")
    a("v_lshrrev_b32 v9, 3, v1")
    a("v_lshlrev_b32 v11, 2, v9")
    a("v_lshlrev_b32 v9, 3, v9")
    a("v_add_u32 v9, s30, v9")
    a("v_mul_lo_u32 v9, v9, s28")
    a("v_and_b32 v10, 7, v0")
    a("v_lshlrev_b32 v2, 4, v10")
    a("v_add_u32 v9, v9, v2")
    a("v_lshrrev_b32 v2, 6, v0")
    a("v_lshlrev_b32 v2, 7, v2")
    a("s_lshl_b32 s28, s31, 1")
    a("s_sub_u32 s28, 0x1000, s28")
    a("v_sub_u32 v2, s28, v2")
    a("v_xor_b32 v3, 7, v10")
    a("v_add_u32 v10, v9, v2")
    a("v_lshlrev_b32 v3, 5, v3")
    a("v_add_u32 v3, v3, v11")
    a("s_waitcnt lgkmcnt(0)")
    stamp(0)
    srd(a, S_K, 20, 2048 * 1024 * 2)
    srd(a, S_V, 22, 2048 * 1024 * 2)
    srd(a, S_SH, 24, 1024 * 4 * 2)
    ws_srd(a, S_G, 26, G_OFF, G_BYTES)
    a("s_mov_b32 s28, 0xffff0000")
    for i in range(4): a("s_movk_i32 s%d, %d" % (32 + i, 4096 * i))
    for e in range(8): a("s_mov_b32 s%d, 0x%x" % (40 + e, e * G_PITCH))
    SH = 12; NB = 76
    BUF = [28, 28 + NB]
    KT = 180
    R = 202
    W = 218
    VT = 226
    O = 232
    ZQ = 248
    def shl(it, rf, d):
        for r in range(4):
            a("buffer_load_dwordx4 %s[%d:%d], v8, s[%d:%d], 0 offen offset:%d" % (rf, d + 4 * r, d + 3 + 4 * r, S_SH, S_SH + 3, 16 * r + 512 * it))
    def loads(base, rf="v"):
        def ld(dst, S, row):
            if row < 2: v, so, off = 5, "0", row * 2048
            elif row < 4: v, so, off = 6, "0", (row - 2) * 2048
            else: v, so, off = 7, "s%d" % (32 + (row - 4) // 2), ((row - 4) & 1) * 2048
            a("buffer_load_dwordx4 %s[%d:%d], v%d, s[%d:%d], %s offen offset:%d" % (rf, dst, dst + 3, v, S, S + 3, so, off))
        for r in range(11): ld(base + 4 * r, S_K, r + 1)
        for r in range(8): ld(base + 44 + 4 * r, S_V, r + 4)
        for v in (5, 6, 7): a("v_add_u32 v%d, 128, v%d" % (v, v))
    NL = 19
    pend = []
    def flush():
        if pend:
            a("s_waitcnt lgkmcnt(0)")
            for i in pend: a(i)
            pend.clear()
    def compute(base):
        for p in range(4):
            for c in range(2):
                e = 2 * p + c
                a("v_lshlrev_b32 v%d, 16, v%d" % (W + 0 + c, SH + 2 * e))
                a("v_and_b32 v%d, s28, v%d" % (W + 2 + c, SH + 2 * e))
                a("v_lshlrev_b32 v%d, 16, v%d" % (W + 4 + c, SH + 2 * e + 1))
                a("v_and_b32 v%d, s28, v%d" % (W + 6 + c, SH + 2 * e + 1))
            for r in range(11):
                a("v_lshlrev_b32 v%d, 16, v%d" % (KT + 2 * r, base + 4 * r + p))
                a("v_and_b32 v%d, s28, v%d" % (KT + 2 * r + 1, base + 4 * r + p))
            flush()
            for j in range(8):
                a("v_pk_mul_f32 v[%d:%d], v[%d:%d], v[%d:%d]" % (R + 2 * j, R + 2 * j + 1, KT + 2 * j, KT + 2 * j + 1, W + 6, W + 7))
            for t in range(1, 4):
                for j in range(8):
                    a("v_pk_fma_f32 v[%d:%d], v[%d:%d], v[%d:%d], v[%d:%d]" % (R + 2 * j, R + 2 * j + 1, KT + 2 * (j + t), KT + 2 * (j + t) + 1, W + 2 * (3 - t), W + 2 * (3 - t) + 1, R + 2 * j, R + 2 * j + 1))
            for j in range(8):
                t = VT + 2 * (j & 1)
                a("v_lshlrev_b32 v%d, 16, v%d" % (t, base + 44 + 4 * j + p))
                a("v_and_b32 v%d, s28, v%d" % (t + 1, base + 44 + 4 * j + p))
                a("v_pk_mul_f32 v[%d:%d], v[%d:%d], v[%d:%d]" % (R + 2 * j, R + 2 * j + 1, R + 2 * j, R + 2 * j + 1, t, t + 1))
            ob = O + 8 * (p & 1)
            for c in range(2):
                e = 2 * p + c
                o0 = ob + 4 * c
                for i in range(4):
                    a("v_cvt_pk_bf16_f32 v%d, v%d, v%d" % (o0 + i, R + 2 * (7 - 2 * i) + c, R + 2 * (6 - 2 * i) + c))
                for i in range(4):
                    a("ds_bpermute_b32 v%d, v3, v%d" % (o0 + i, o0 + i))
                pend.append("buffer_store_dwordx4 v[%d:%d], v10, s[%d:%d], s%d offen sc1" % (o0, o0 + 3, S_G, S_G + 3, 40 + e))
        pend.append("v_add_u32 v10, 0x%x, v10" % (64 * G_PITCH))
    def getsh(it):
        for i in range(16): a("v_accvgpr_read_b32 v%d, a%d" % (SH + i, 160 + 16 * (it - 1) + i))
    def capture(fn, *args):
        keep = a.lines; a.lines = []
        fn(*args)
        r = a.lines; a.lines = keep
        return r
    def merged(cl, ll):
        out = []; li = 0
        step = max(1, len(cl) // (len(ll) + 1))
        for n, c in enumerate(cl):
            out.append(c)
            if li < len(ll) and (n + 1) % step == 0:
                out.append(ll[li]); li += 1
        out.extend(ll[li:])
        return out
    start = len(a.lines)
    def younger(marker):
        idx = max(i for i, l in enumerate(a.lines) if l == marker)
        return sum(1 for l in a.lines[idx + 1:] if l.strip().startswith("buffer_"))
    def mark(name):
        a.lines.append("    ; " + name); return "    ; " + name
    shl(0, "v", SH)
    loads(BUF[0]); m0 = mark("L0")
    for it in range(1, 4): shl(it, "a", 160 + 16 * (it - 1))
    loads(BUF[1]); m1 = mark("L1")
    a("s_cmp_lg_u32 s29, 7")
    a("s_cbranch_scc1 PREP6_NP")
    for i in range(4): a("v_mov_b32 v%d, 0" % (ZQ + i))
    a("v_lshrrev_b32 v1, 6, v0")
    a("s_mov_b32 s36, 0x%x" % (64 * G_PITCH))
    a("v_mul_lo_u32 v1, v1, s36")
    a("v_add_u32 v9, v9, v1")
    keep = len(a.lines)
    for e in range(8):
        a("buffer_store_dwordx4 v[%d:%d], v9, s[%d:%d], s%d offen sc1 ; pad" % (ZQ, ZQ + 3, S_G, S_G + 3, 40 + e))
    a.label("PREP6_NP")
    def younger(marker):
        idx = max(i for i, l in enumerate(a.lines) if l == marker)
        return sum(1 for l in a.lines[idx + 1:] if l.strip().startswith("buffer_") and "; pad" not in l)
    stamp(1)
    a("s_waitcnt vmcnt(%d)" % younger(m0))
    stamp(2)
    l2 = capture(loads, 0, "a") + ["    ; L2"]
    c0 = capture(compute, BUF[0])
    a.lines.extend(merged(c0, l2))
    stamp(3)
    a("s_waitcnt vmcnt(%d)" % younger(m1))
    getsh(1)
    l3 = capture(loads, NB, "a") + ["    ; L3"]
    c1 = capture(compute, BUF[1])
    a.lines.extend(merged(c1, l3))
    stamp(4)
    a("s_waitcnt vmcnt(%d)" % younger("    ; L2"))
    stamp(5)
    getsh(2)
    for i in range(NB): a("v_accvgpr_read_b32 v%d, a%d" % (BUF[0] + i, i))
    compute(BUF[0])
    a("s_waitcnt vmcnt(%d)" % younger("    ; L3"))
    getsh(3)
    for i in range(NB): a("v_accvgpr_read_b32 v%d, a%d" % (BUF[1] + i, NB + i))
    compute(BUF[1])
    flush()
    stamp(6)
    if stamps:
        a("s_waitcnt vmcnt(0)")
        stamp(7)
        a("s_waitcnt lgkmcnt(0)")
        ws_srd(a, 4, 26, 0x4000000, 1 << 20)
        a("s_lshl_b32 s47, s2, 5")
        for i in range(8):
            a("v_mov_b32 v%d, s%d" % (64 + i, 60 + 2 * i))
        a("v_mov_b32 v72, s47")
        a("s_mov_b64 exec, 1")
        a("buffer_store_dwordx4 v[64:67], v72, s[4:7], 0 offen")
        a("buffer_store_dwordx4 v[68:71], v72, s[4:7], 0 offen offset:16")
        a("s_mov_b64 exec, -1")
```

```python
import sys, os
os.environ.setdefault("PD", "4")
from asmlib import *
from prep import *
import prep4
import conv2
from gemm1 import *
from gemm2v import *
ST = os.environ.get("STAMPS", "") != ""
a = A()
hdr = open("gated_mix__ssm_conv_h3__geglu_ffn__prompt.s.ref").read().split("\n")
for l in hdr:
    if l.startswith("; Override") : break
    a.raw(l)
a.raw("; @launch kernel=g1_kernel grid=(256,1,1) block=(256,1,1) lds=163840")
a.raw("; @launch kernel=g2_kernel grid=(256,1,1) block=(256,1,1) lds=%d" % G2_LDS)
a.raw('.amdgcn_target "amdgcn-amd-amdhsa--gfx950"')
a.raw(".text")
def rt_begin():
    if ST:
        a("s_memrealtime s[92:93]")
def rt_mid():
    if ST:
        a("s_memrealtime s[94:95]")
def rt_end(kidx):
    if ST:
        a("s_waitcnt vmcnt(0) lgkmcnt(0)")
        a("s_memrealtime s[20:21]")
        a("s_load_dwordx2 s[22:23], s[0:1], 104")
        a("s_waitcnt lgkmcnt(0)")
        a("s_add_u32 s24, s22, 0x%x" % (0x5000000 + kidx * 0x10000))
        a("s_addc_u32 s25, s23, 0")
        a("s_mov_b32 s26, 0x10000")
        a("s_mov_b32 s27, 0x00020000")
        a("s_mov_b64 exec, 1")
        for i, r in enumerate((92, 86, 88, 90, 94, 96, 98, 20)):
            a("v_mov_b32 v%d, s%d" % (4 + i, r))
        a("s_lshl_b32 s22, s2, 5")
        a("v_mov_b32 v12, s22")
        a("buffer_store_dwordx4 v[4:7], v12, s[24:27], 0 offen")
        a("buffer_store_dwordx4 v[8:11], v12, s[24:27], 0 offen offset:16")
kernel_header(a, "g1_kernel")
a("s_cmp_ge_u32 s2, 256")
a("s_cbranch_scc1 G1_END")
rt_begin()
a("s_load_dwordx2 s[60:61], s[0:1], 8")
a("s_load_dwordx2 s[62:63], s[0:1], 16")
a("s_load_dwordx2 s[100:101], s[0:1], 24")
a("s_cmp_lt_u32 s2, 32")
a("s_cbranch_scc1 G1_PREP")
D, E = gen_gemm1(a, dbg="P", fuse=True, rts=ST)
rt_mid()
conv2.conv_main(a, D, E)
rt_end(0)
a("s_endpgm")
a.label("G1_PREP")
if conv2.TARGET == 16:
    a("s_load_dwordx2 s[30:31], s[0:1], 104")
    a("v_lshrrev_b32 v1, 6, v0")
    a("v_and_b32 v0, 63, v0")
    a("s_nop 0")
    a("v_readfirstlane_b32 s40, v1")
    a("s_waitcnt lgkmcnt(0)")
    prep4.prep4_issue(a, 60, 62, 100, 30, 64, 64, 40)
    a("s_waitcnt vmcnt(0)")
    prep4.prep4_compute(a, 64, 64, "B")
else:
    import prep6
    prep6.gen_prep6(a, 2, ST)
    a("v_lshrrev_b32 v1, 6, v0")
    a("v_and_b32 v0, 63, v0")
    a("s_nop 0")
    a("v_readfirstlane_b32 s40, v1")
conv2.conv_ptrs(a)
if ST: a("s_memrealtime s[96:97]")
a("s_waitcnt vmcnt(0) lgkmcnt(0)")
conv2.flag_srd(a)
if ST: a("s_memrealtime s[86:87]")
a("s_barrier")
a("s_cmp_lg_u32 s40, 0")
a("s_cbranch_scc1 PREP_P4")
conv2.signal(a)
a.label("PREP_P3")
conv2.poll_issue(a, 210)
a("s_waitcnt vmcnt(0)")
conv2.poll_check(a, 210, 84)
a("s_cmp_lg_u32 s84, 0")
a("s_cbranch_scc1 PREP_P5")
a("s_sleep 64")
a("s_branch PREP_P3")
a.label("PREP_P5")
a("buffer_inv sc1")
a("s_waitcnt vmcnt(0)")
a.label("PREP_P4")
a("s_barrier")
for g in conv2.conv_early(a):
    for i in g: a(i)
D = conv2.conv_issue(a)
rt_mid()
conv2.conv_main(a, D)
rt_end(0)
a.label("G1_END")
a("s_endpgm")
kernel_header(a, "g2_kernel")
a("s_cmp_ge_u32 s2, 256")
a("s_cbranch_scc1 G2_END")
rt_begin()
gen_gemm2(a)
rt_end(1)
a.label("G2_END")
a("s_endpgm")
a.raw('.section .rodata,"a"')
sg = 102
a.raw(kernel_desc("g1_kernel", 512, sg, 256))
a.raw(kernel_desc("g2_kernel", 512, sg, 256))
open(sys.argv[1], "w").write(a.text())
```

```python
from asmlib import *

import os
ROT = int(os.environ.get('ROT', '5'))
PD = int(os.environ.get('PD', '6'))
DS0 = int(os.environ.get('DS0', '1'))
DSP = int(os.environ.get('DSP', '4'))
H1_OFF = 0
H1_BYTES = 2048 * 3584 * 2

def gen_gemm1(a, name="g1_kernel", end_label="G1_END", stamps=False, dbg="", fuse=False, rts=False):
    PST = os.environ.get("PST", "") != ""
    def rt(r):
        if rts and not (PST and r in (90,)): a("s_memrealtime s[%d:%d]" % (r, r + 1))
    def prt(r):
        if rts and PST: a("s_memrealtime s[%d:%d]" % (r, r + 1))
    def stamp(i):
        if stamps:
            a("s_memtime s[%d:%d]" % (60 + 2 * i, 61 + 2 * i))
    stamp(0)
    S_X, S_WG, S_WU, S_H = 4, 8, 12, 16
    sKX, sKW, sCNT = 20, 21, 22
    sM0 = 32
    sW = 40
    sT = 41
    vXoff = 2
    vWoff = 10
    vXa = 14
    vWa = 18
    vT = 26
    F = [64, 128]

    a("s_load_dwordx2 s[24:25], s[0:1], 0")
    a("s_load_dwordx2 s[26:27], s[0:1], 56")
    a("s_load_dwordx2 s[28:29], s[0:1], 64")
    a("s_load_dwordx2 s[30:31], s[0:1], 104")
    a("s_and_b32 s41, s2, 7")
    a("s_lshr_b32 s42, s2, 3")
    if fuse: a("s_sub_u32 s42, s42, 4")
    a("s_and_b32 s43, s41, 1")
    a("s_lshl_b32 s43, s43, 2")
    a("s_and_b32 s44, s42, 3")
    a("s_add_u32 s43, s43, s44")
    a("s_lshr_b32 s44, s41, 1")
    a("s_mul_i32 s44, s44, 7")
    a("s_lshr_b32 s45, s42, 2")
    a("s_add_u32 s44, s44, s45")
    if "Z" in dbg:
        a("s_mov_b32 s43, 0")
        a("s_mov_b32 s44, 0")
    if "Y" in dbg:
        a("s_and_b32 s43, s43, 1")
        a("s_and_b32 s44, s44, 1")
    a("s_lshl_b32 s43, s43, 8")
    a("s_lshl_b32 s44, s44, 7")
    a("v_lshrrev_b32 v1, 6, v0")
    a("v_and_b32 v0, 63, v0")
    a("s_nop 0")
    a("v_readfirstlane_b32 s%d, v1" % sW)
    a("s_waitcnt lgkmcnt(0)")
    prt(86)
    srd(a, S_X, 24, 2048 * 1024 * 2)
    srd(a, S_WG, 26, 1024 * 3584 * 2)
    srd(a, S_WU, 28, 1024 * 3584 * 2)
    srd(a, S_H, 30, H1_BYTES)
    a("s_lshl_b32 s45, s%d, 13" % sW)
    a("s_lshl_b32 s46, s%d, 12" % sW)
    for b in range(2):
        a("s_add_u32 s%d, s45, 0x%x" % (sM0 + 4 * b + 0, (1 - b) * 65536))
        a("s_add_u32 s%d, s45, 0x%x" % (sM0 + 4 * b + 1, (1 - b) * 65536 + 4096))
        a("s_add_u32 s%d, s46, 0x%x" % (sM0 + 4 * b + 2, (1 - b) * 65536 + 32768))
        a("s_add_u32 s%d, s46, 0x%x" % (sM0 + 4 * b + 3, (1 - b) * 65536 + 49152))
    t0, t1, t2, t3 = vT, vT + 1, vT + 2, vT + 3
    a("v_lshrrev_b32 v%d, 3, v0" % t0)
    a("s_lshl_b32 s45, s%d, 6" % sW)
    a("s_add_u32 s45, s45, s43")
    a("v_add_u32 v%d, s45, v%d" % (t0, t0))
    a("v_lshlrev_b32 v%d, 11, v%d" % (t0, t0))
    a("v_and_b32 v%d, 7, v0" % t1)
    a("v_lshrrev_b32 v%d, 4, v0" % t2)
    a("v_xor_b32 v%d, v%d, v%d" % (t1, t1, t2))
    a("v_lshlrev_b32 v%d, 4, v%d" % (t1, t1))
    a("v_add_u32 v%d, v%d, v%d" % (t0, t0, t1))
    a("v_xor_b32 v%d, 64, v%d" % (t1, t0))
    for j in range(8):
        a("v_add_u32 v%d, 0x%x, v%d" % (vXoff + j, j * 16384 - (j & 3) * 1024, t0 if j % 2 == 0 else t1))
    a("s_lshl_b32 s45, s%d, 4" % sW)
    a("v_add_u32 v%d, s45, v%d" % (t0, t2))
    a("s_movk_i32 s46, 7168")
    a("v_mul_lo_u32 v%d, v%d, s46" % (t0, t0))
    a("s_lshl_b32 s45, s44, 1")
    a("v_add_u32 v%d, s45, v%d" % (t0, t0))
    a("v_and_b32 v%d, 15, v0" % t1)
    a("v_lshlrev_b32 v%d, 1, v%d" % (t3, t2))
    a("v_xor_b32 v%d, v%d, v%d" % (t1, t1, t3))
    a("v_lshlrev_b32 v%d, 4, v%d" % (t1, t1))
    a("v_add_u32 v%d, v%d, v%d" % (t0, t0, t1))
    a("v_xor_b32 v%d, 0x80, v%d" % (t1, t0))
    for j in range(4):
        a("v_add_u32 v%d, 0x%x, v%d" % (vWoff + j, j * 4 * 7168 - j * 1024, t0 if j < 2 else t1))
    if "P" in dbg:
        a("s_lshr_b32 s45, s42, 2")
        a("s_mul_i32 s45, s45, 40")
        a("v_add_u32 v%d, s45, v0" % t0)
        a("v_min_u32 v%d, 255, v%d" % (t0, t0))
        a("v_add_u32 v%d, s43, v%d" % (t0, t0))
        a("v_lshlrev_b32 v%d, 11, v%d" % (t0, t0))
        a("v_lshrrev_b32 v%d, 1, v0" % t1)
        a("v_and_b32 v%d, 15, v%d" % (t1, t1))
        a("v_lshlrev_b32 v%d, 2, v%d" % (t1, t1))
        a("s_and_b32 s45, s42, 3")
        a("v_add_u32 v%d, s45, v%d" % (t1, t1))
        a("v_mul_lo_u32 v%d, v%d, s46" % (t1, t1))
        a("v_and_b32 v%d, 1, v0" % t3)
        a("v_lshlrev_b32 v%d, 7, v%d" % (t3, t3))
        a("v_add_u32 v%d, v%d, v%d" % (t1, t1, t3))
        a("s_lshl_b32 s45, s44, 1")
        a("v_add_u32 v%d, s45, v%d" % (t1, t1))
        a("s_cmp_eq_u32 s%d, 1" % sW)
        a("s_cselect_b32 s52, s26, s24")
        a("s_cselect_b32 s53, s27, s25")
        a("s_cmp_eq_u32 s%d, 2" % sW)
        a("s_cselect_b32 s52, s28, s52")
        a("s_cselect_b32 s53, s29, s53")
        a("s_add_u32 s45, s%d, -1" % sW)
        a("s_mov_b32 s54, 0x%x" % (2048 * 1024 * 2))
        a("s_movk_i32 s57, 128")
        a("s_cmp_lt_u32 s45, 2")
        a("s_cselect_b32 s54, 0x%x, s54" % (1024 * 3584 * 2))
        a("s_mov_b32 s55, 0x00020000")
        a("s_cselect_b32 s57, 0x%x, s57" % (64 * 7168))
        a("s_cselect_b64 vcc, -1, 0")
        a("s_nop 1")
        a("v_cndmask_b32 v41, v%d, v%d, vcc" % (t0, t1))
        a("s_lshl_b32 s56, s57, 1")
    if "K" in dbg:
        a("s_mul_i32 s23, s42, %d" % ROT)
        a("s_and_b32 s23, s23, 15")
        a("s_lshl_b32 s%d, s23, 7" % sKX)
        a("s_mul_i32 s%d, s23, 0x%x" % (sKW, 64 * 7168))
    else:
        a("s_mov_b32 s%d, 0" % sKX)
        a("s_mov_b32 s%d, 0" % sKW)

    def dma(b):
        g = []
        for half in range(2):
            if "W" in dbg: break
            for jj in range(4):
                j = half * 4 + jj
                ins = []
                if jj == 0:
                    ins.append("s_mov_b32 m0, s%d" % (sM0 + 4 * b + half))
                    ins.append("s_nop 0")
                ins.append("buffer_load_dwordx4 v%d, s[%d:%d], s%d offen offset:%d lds" % (vXoff + j, S_X, S_X + 3, sKX, jj * 1024))
                g.append(ins)
        for gu in range(2):
            if "X" in dbg: break
            S = S_WG if gu == 0 else S_WU
            for j in range(4):
                ins = []
                if j == 0:
                    ins.append("s_mov_b32 m0, s%d" % (sM0 + 4 * b + 2 + gu))
                    ins.append("s_nop 0")
                ins.append("buffer_load_dwordx4 v%d, s[%d:%d], s%d offen offset:%d lds" % (vWoff + j, S, S + 3, sKW, j * 1024))
                g.append(ins)
        if "K" in dbg:
            g[-1].append("s_add_u32 s23, s23, 1")
            g[-1].append("s_and_b32 s23, s23, 15")
            g[-1].append("s_lshl_b32 s%d, s23, 7" % sKX)
            g[-1].append("s_mul_i32 s%d, s23, 0x%x" % (sKW, 64 * 7168))
        else:
            g[-1].append("s_add_u32 s%d, s%d, 128" % (sKX, sKX))
            g[-1].append("s_add_u32 s%d, s%d, 0x%x" % (sKW, sKW, 64 * 7168))
        return g

    import prep4, conv2
    dprep = fuse and conv2.TARGET == 16
    if dprep:
        prep4.prep4_issue(a, 60, 62, 100, 30, 64, 64, sW)
    prt(96)
    for g in dma(0):
        for i in g: a(i)
    for g in dma(1):
        for i in g: a(i)
    prt(90)
    def touch():
        return ["buffer_load_dword v42, v41, s[52:55], s56 offen", "s_add_u32 s56, s56, s57"]
    if "P" in dbg:
        for _ in range(PD - 2):
            for i in touch(): a(i)

    a("s_lshr_b32 s45, s%d, 1" % sW)
    a("s_and_b32 s46, s%d, 1" % sW)
    a("v_and_b32 v%d, 15, v0" % t0)
    a("s_lshl_b32 s47, s45, 7")
    a("v_add_u32 v%d, s47, v%d" % (t0, t0))
    a("v_lshlrev_b32 v%d, 7, v%d" % (t0, t0))
    a("v_lshrrev_b32 v%d, 1, v0" % t1)
    a("v_and_b32 v%d, 7, v%d" % (t1, t1))
    a("v_xor_b32 v%d, v%d, v%d" % (t1, t1, t2))
    a("v_lshlrev_b32 v%d, 4, v%d" % (t1, t1))
    a("v_add_u32 v%d, v%d, v%d" % (vXa + 2, t0, t1))
    a("v_xor_b32 v%d, 64, v%d" % (vXa + 3, vXa + 2))
    a("v_add_u32 v%d, 0x10000, v%d" % (vXa + 0, vXa + 2))
    a("v_add_u32 v%d, 0x10000, v%d" % (vXa + 1, vXa + 3))
    a("v_lshrrev_b32 v%d, 2, v0" % t0)
    a("v_and_b32 v%d, 3, v%d" % (t0, t0))
    a("v_lshlrev_b32 v%d, 3, v%d" % (t1, t2))
    a("v_add_u32 v%d, v%d, v%d" % (t1, t1, t0))
    a("v_lshlrev_b32 v%d, 8, v%d" % (t1, t1))
    a("v_and_b32 v%d, 3, v0" % t3)
    a("v_lshlrev_b32 v%d, 3, v%d" % (t3, t3))
    a("v_add_u32 v%d, v%d, v%d" % (t1, t1, t3))
    a("v_add_u32 v%d, 0x8000, v%d" % (t1, t1))
    a("v_and_b32 v%d, 1, v%d" % (t3, t2))
    a("v_lshlrev_b32 v%d, 2, v%d" % (t3, t3))
    a("v_or_b32 v%d, v%d, v%d" % (t0, t0, t3))
    a("s_lshl_b32 s47, s46, 2")
    for t in range(4):
        a("s_add_u32 s48, s47, %d" % t)
        a("v_xor_b32 v%d, s48, v%d" % (t3, t0))
        a("v_lshlrev_b32 v%d, 5, v%d" % (t3, t3))
        a("v_add_u32 v%d, v%d, v%d" % (vWa + 4 + t, t1, t3))
        a("v_add_u32 v%d, 0x10000, v%d" % (vWa + t, vWa + 4 + t))
    for i in range(256):
        a("v_accvgpr_write_b32 a%d, 0" % i)

    def reads(fs, b, s):
        fb = F[fs]
        r = []
        for i in range(8):
            r.append(["ds_read_b128 v[%d:%d], v%d offset:%d" % (fb + 4 * i, fb + 4 * i + 3, vXa + 2 * b + s, i * 2048)])
        w = []
        for gu in range(2):
            for t in range(4):
                for h in range(2):
                    d = fb + 32 + 4 * (gu * 4 + t) + 2 * h
                    w.append(["ds_read_b64_tr_b16 v[%d:%d], v%d offset:%d" % (d, d + 1, vWa + 4 * b + t, gu * 16384 + s * 8192 + h * 1024)])
        out = []
        for i in range(8):
            out.append(r[i]); out.append(w[2 * i]); out.append(w[2 * i + 1])
        return out

    def mfmas(fs):
        fb = F[fs]
        m = []
        if "M" in dbg: return m
        for i in range(8):
            for wt in range(8):
                c = (wt * 8 + i) * 4
                m.append("v_mfma_f32_16x16x32_bf16 a[%d:%d], v[%d:%d], v[%d:%d], a[%d:%d]" % (
                    c, c + 3, fb + 32 + 4 * wt, fb + 32 + 4 * wt + 3, fb + 4 * i, fb + 4 * i + 3, c, c + 3))
        return m

    stamp(1)
    if fuse and not dprep:
        conv2.conv_ptrs(a)
    if dprep:
        a("s_waitcnt vmcnt(%d)" % (32 + PD - 2))
        rt(96)
        prep4.prep4_compute(a, 64, 64, "A")
        conv2.conv_ptrs(a)
        rt(86)
    a("s_waitcnt vmcnt(%d)" % ((8 if ("X" in dbg or "W" in dbg) else 16) + (PD - 2 if "P" in dbg else 0) + (8 if dprep else 0)))
    prt(94)
    a("s_barrier")
    stamp(2)
    if rts and not dprep:
        rt(98)
        if not PST: a("s_memtime s[86:87]")
    for g in reads(0, 0, 0):
        for i in g: a(i)

    def stage(b, do_dma, do_next, first=False, preB=None, vmB=None, extraA=None, extraB=None, tailB=None):
        a("s_waitcnt lgkmcnt(0)")
        pa = [(2 * n, g) for n, g in enumerate(reads(1, b, 1) if "R" not in dbg else [])]
        if extraA: pa += [(1 + 4 * n, g) for n, g in enumerate(extraA)]
        for i in place(mfmas(0), pa): a(i)
        a("s_waitcnt lgkmcnt(0)")
        if preB: preB()
        if do_next:
            if "V" in dbg:
                pass
            elif vmB is not None:
                a("s_waitcnt vmcnt(%d)" % vmB)
            elif first == 1:
                a("s_waitcnt vmcnt(%d)" % (PD - 2 + 8))
            elif "P" in dbg:
                a("s_waitcnt vmcnt(%d)" % (1 if "2" not in dbg else 18))
            else:
                a("s_waitcnt vmcnt(%d)" % (0 if "2" not in dbg else (8 if ("X" in dbg or "W" in dbg) else 16)))
            if "B" not in dbg: a("s_barrier")
            if first == 2:
                conv2.flag_srd(a)
                a("s_cmp_lg_u32 s%d, 0" % sW)
                a("s_cbranch_scc1 G1_P0")
                conv2.signal(a)
                a.label("G1_P0")
        pl = []
        if do_next and "R" not in dbg:
            for n, g in enumerate(reads(0, b ^ 1, 0)): pl.append((2 * n, g))
        if do_dma and "D" not in dbg:
            dl = dma(b)
            if "P" in dbg: dl[-1] = dl[-1] + touch()
            if tailB: dl[-1] = dl[-1] + tailB
            for n, g in enumerate(dl): pl.append((DS0 + DSP * n, g))
        if extraB: pl += [(1 + 4 * n, g) for n, g in enumerate(extraB)]
        for i in place(mfmas(1), pl): a(i)

    a("s_mov_b32 s%d, 0" % sCNT)
    if dprep:
        stage(0, True, True, first=1)
        stage(1, True, True, first=2)
        a("s_mov_b32 s%d, 1" % sCNT)
        rt(98)
    a.label("G1_LOOP")
    stage(0, True, True)
    stage(1, True, True)
    a("s_add_u32 s%d, s%d, 1" % (sCNT, sCNT))
    a("s_cmp_lt_u32 s%d, %d" % (sCNT, 6 if fuse else 7))
    a("s_cbranch_scc1 G1_LOOP")
    if fuse:
        if not dprep: conv2.flag_srd(a)
        a("s_mov_b32 s84, 0")
        stage(0, True, True, tailB=conv2.touch_hq(S_X))
        a("s_cmp_lg_u32 s%d, 0" % sW)
        a("s_cbranch_scc1 G1_P1")
        conv2.poll_issue(a, 202)
        a.label("G1_P1")
        def chk1():
            a("s_cmp_lg_u32 s%d, 0" % sW)
            a("s_cbranch_scc1 G1_P2")
            a("s_waitcnt vmcnt(0)")
            conv2.poll_check(a, 202, 84)
            a("s_cmp_eq_u32 s84, 0")
            a("s_cbranch_scc1 G1_P2")
            a("buffer_inv sc1")
            a.label("G1_P2")
        stage(1, True, True, preB=chk1, vmB=3)
        DE = conv2.conv_early(a)
        def chk2():
            a("s_cmp_lg_u32 s%d, 0" % sW)
            a("s_cbranch_scc1 G1_P4")
            a("s_cmp_lg_u32 s84, 0")
            a("s_cbranch_scc1 G1_P4")
            a.label("G1_P3")
            conv2.poll_issue(a, 202)
            a("s_waitcnt vmcnt(0)")
            conv2.poll_check(a, 202, 84)
            a("s_cmp_lg_u32 s84, 0")
            a("s_cbranch_scc1 G1_P5")
            a("s_sleep 16")
            a("s_branch G1_P3")
            a.label("G1_P5")
            a("buffer_inv sc1")
            a("s_waitcnt vmcnt(0)")
            a.label("G1_P4")
        stage(0, False, True, preB=chk2, extraB=DE[:12])
        stage(1, False, False, extraA=DE[12:])
        rt(88)
        if rts and not PST: a("s_memtime s[96:97]")
        a("s_barrier")
        rt(90)
        D = conv2.conv_issue(a)
    else:
        stage(0, False, True)
        stage(1, False, False)

    stamp(3)
    a("s_nop 7")
    a("s_nop 7")
    vS = 2
    a("s_lshr_b32 s47, s43, 7")
    a("s_add_u32 s47, s47, s45")
    a("s_mul_i32 s47, s47, 112")
    a("s_lshr_b32 s48, s44, 5")
    a("s_add_u32 s47, s47, s48")
    a("s_lshl_b32 s48, s46, 1")
    a("s_add_u32 s47, s47, s48")
    a("s_lshl_b32 s47, s47, 13")
    a("v_and_b32 v%d, 15, v0" % t0)
    a("v_lshlrev_b32 v%d, 4, v%d" % (t0, t0))
    a("v_lshrrev_b32 v%d, 1, v%d" % (t1, t2))
    a("v_lshlrev_b32 v%d, 8, v%d" % (t1, t1))
    a("v_add_u32 v%d, v%d, v%d" % (t0, t0, t1))
    a("v_and_b32 v%d, 1, v%d" % (t1, t2))
    a("v_lshlrev_b32 v%d, 10, v%d" % (t1, t1))
    a("v_add_u32 v%d, v%d, v%d" % (t0, t0, t1))
    a("v_add_u32 v%d, s47, v%d" % (vS, t0))
    a("s_mov_b32 s56, 0")
    a("s_movk_i32 s57, 4096")
    a("s_movk_i32 s58, 8192")
    a("s_movk_i32 s59, 12288")
    import math
    C0 = -2.0 * math.sqrt(2.0 / math.pi) * math.log2(math.e)
    C1 = C0 * 0.044715
    import struct
    def f2u(x): return struct.unpack("<I", struct.pack("<f", x))[0]
    a("s_mov_b32 s50, 0x%x" % f2u(C0))
    a("s_mov_b32 s51, 0x%x" % f2u(C1))
    a("v_mov_b32 v3, s50")
    groups = []
    cnt = 0
    SC = os.environ.get("H1SC", " sc1")
    for ip in range(4):
        for t in range(4):
            G = 212; U = 220; T = 228; P = 236 + 4 * (cnt % 4)
            cnt += 1
            i = 2 * ip
            cg = (t * 8 + i) * 4
            cu = ((4 + t) * 8 + i) * 4
            e = []
            for r in range(8): e.append("v_accvgpr_read_b32 v%d, a%d" % (G + r, cg + r))
            for r in range(8): e.append("v_mul_f32 v%d, v%d, v%d" % (T + r, G + r, G + r))
            for r in range(8): e.append("v_fma_f32 v%d, v%d, s51, v3" % (T + r, T + r))
            for r in range(8): e.append("v_mul_f32 v%d, v%d, v%d" % (T + r, T + r, G + r))
            for r in range(8):
                e.append("v_exp_f32 v%d, v%d" % (T + r, T + r))
                e.append("v_accvgpr_read_b32 v%d, a%d" % (U + r, cu + r))
            for r in range(8): e.append("v_add_f32 v%d, 1.0, v%d" % (T + r, T + r))
            for r in range(8):
                e.append("v_rcp_f32 v%d, v%d" % (T + r, T + r))
                e.append("v_mul_f32 v%d, v%d, v%d" % (U + r, U + r, G + r))
            for r in range(8): e.append("v_mul_f32 v%d, v%d, v%d" % (U + r, U + r, T + r))
            for k in range(4): e.append("v_cvt_pk_bf16_f32 v%d, v%d, v%d" % (P + k, U + 2 * k, U + 2 * k + 1))
            e.append("s_nop 1")
            e.append("v_permlane16_swap_b32 v%d, v%d" % (P, P + 2))
            e.append("v_permlane16_swap_b32 v%d, v%d" % (P + 1, P + 3))
            e.append("s_nop 0")
            e.append("buffer_store_dwordx4 v[%d:%d], v%d, s[%d:%d], s%d offen offset:%d%s" % (P, P + 3, vS, S_H, S_H + 3, 56 + (i >> 2) + 2 * (t >> 1), (i & 3) * 1024 + (t & 1) * 512, SC))
            groups.append(e)
    if fuse:
        return D, groups
    for e in groups:
        for i in e: a(i)

    if stamps:
        stamp(4)
        a("s_waitcnt vmcnt(0)")
        stamp(5)
        a("s_waitcnt lgkmcnt(0)")
        a("s_add_u32 s30, s30, 0x4000000")
        a("s_addc_u32 s31, s31, 0")
        srd(a, S_H, 30, 1 << 20)
        a("s_lshl_b32 s47, s2, 2")
        a("s_add_u32 s47, s47, s%d" % sW)
        a("s_lshl_b32 s47, s47, 5")
        for i in range(6):
            a("v_mov_b32 v%d, s%d" % (64 + i, 60 + 2 * i))
        a("v_mov_b32 v70, s47")
        a("v_cmp_eq_u32 vcc, 0, v0")
        a("s_and_saveexec_b64 s[48:49], vcc")
        a("buffer_store_dwordx4 v[64:67], v70, s[%d:%d], 0 offen" % (S_H, S_H + 3))
        a("buffer_store_dwordx2 v[68:69], v70, s[%d:%d], 0 offen offset:16" % (S_H, S_H + 3))
        a("s_mov_b64 exec, s[48:49]")
```

```python
import sys, os
os.environ.setdefault("PD", "4")
from asmlib import *
from prep import *
import prep4
import conv2
from gemm1 import *
from gemm2v import *
ST = os.environ.get("STAMPS", "") != ""
a = A()
hdr = open("gated_mix__ssm_conv_h3__geglu_ffn__prompt.s.ref").read().split("\n")
for l in hdr:
    if l.startswith("; Override") : break
    a.raw(l)
a.raw("; @launch kernel=g1_kernel grid=(256,1,1) block=(256,1,1) lds=163840")
a.raw("; @launch kernel=g2_kernel grid=(256,1,1) block=(256,1,1) lds=%d" % G2_LDS)
a.raw('.amdgcn_target "amdgcn-amd-amdhsa--gfx950"')
a.raw(".text")
def rt_begin():
    if os.environ.get("BADMAP"):
        a("s_lshr_b32 s3, s2, 3")
        a("s_add_u32 s3, s3, s2")
        a("s_and_b32 s3, s3, 7")
        a("s_and_b32 s2, s2, 0xf8")
        a("s_or_b32 s2, s2, s3")
    if ST:
        a("s_memrealtime s[92:93]")
def rt_mid():
    if ST and not os.environ.get("PST"):
        a("s_memrealtime s[94:95]")
def rt_end(kidx):
    if ST:
        a("s_waitcnt vmcnt(0) lgkmcnt(0)")
        a("s_memrealtime s[20:21]")
        a("s_load_dwordx2 s[22:23], s[0:1], 104")
        a("s_waitcnt lgkmcnt(0)")
        a("s_add_u32 s24, s22, 0x%x" % (0x5000000 + kidx * 0x10000))
        a("s_addc_u32 s25, s23, 0")
        a("s_mov_b32 s26, 0x10000")
        a("s_mov_b32 s27, 0x00020000")
        a("s_mov_b64 exec, 1")
        for i, r in enumerate((92, 86, 88, 90, 94, 96, 98, 20)):
            a("v_mov_b32 v%d, s%d" % (4 + i, r))
        a("s_lshl_b32 s22, s2, 5")
        a("v_mov_b32 v12, s22")
        a("buffer_store_dwordx4 v[4:7], v12, s[24:27], 0 offen")
        a("buffer_store_dwordx4 v[8:11], v12, s[24:27], 0 offen offset:16")
kernel_header(a, "g1_kernel")
a("s_cmp_ge_u32 s2, 256")
a("s_cbranch_scc1 G1_END")
rt_begin()
a("s_load_dwordx2 s[60:61], s[0:1], 8")
a("s_load_dwordx2 s[62:63], s[0:1], 16")
a("s_load_dwordx2 s[100:101], s[0:1], 24")
a("s_cmp_lt_u32 s2, 32")
a("s_cbranch_scc1 G1_PREP")
D, E = gen_gemm1(a, dbg="P", fuse=True, rts=ST)
rt_mid()
conv2.conv_main(a, D, E)
rt_end(0)
a("s_endpgm")
a.label("G1_PREP")
if conv2.TARGET == 16:
    a("s_load_dwordx2 s[30:31], s[0:1], 104")
    a("v_lshrrev_b32 v1, 6, v0")
    a("v_and_b32 v0, 63, v0")
    a("s_nop 0")
    a("v_readfirstlane_b32 s40, v1")
    a("s_waitcnt lgkmcnt(0)")
    prep4.prep4_issue(a, 60, 62, 100, 30, 64, 64, 40)
    a("s_waitcnt vmcnt(0)")
    prep4.prep4_compute(a, 64, 64, "B")
else:
    import prep6
    prep6.gen_prep6(a, 2, ST)
    a("v_lshrrev_b32 v1, 6, v0")
    a("v_and_b32 v0, 63, v0")
    a("s_nop 0")
    a("v_readfirstlane_b32 s40, v1")
conv2.conv_ptrs(a)
if ST: a("s_memrealtime s[96:97]")
a("s_waitcnt vmcnt(0) lgkmcnt(0)")
conv2.flag_srd(a)
if ST: a("s_memrealtime s[86:87]")
a("s_barrier")
a("s_cmp_lg_u32 s40, 0")
a("s_cbranch_scc1 PREP_P4")
conv2.signal(a)
a.label("PREP_P3")
conv2.poll_issue(a, 210)
a("s_waitcnt vmcnt(0)")
conv2.poll_check(a, 210, 84)
a("s_cmp_lg_u32 s84, 0")
a("s_cbranch_scc1 PREP_P5")
a("s_sleep 64")
a("s_branch PREP_P3")
a.label("PREP_P5")
a("buffer_inv sc1")
a("s_waitcnt vmcnt(0)")
a.label("PREP_P4")
a("s_barrier")
for g in conv2.conv_early(a):
    for i in g: a(i)
D = conv2.conv_issue(a)
rt_mid()
conv2.conv_main(a, D)
rt_end(0)
a.label("G1_END")
a("s_endpgm")
kernel_header(a, "g2_kernel")
a("s_cmp_ge_u32 s2, 256")
a("s_cbranch_scc1 G2_END")
rt_begin()
gen_gemm2(a)
rt_end(1)
a.label("G2_END")
a("s_endpgm")
a.raw('.section .rodata,"a"')
sg = 102
a.raw(kernel_desc("g1_kernel", 512, sg, 256))
a.raw(kernel_desc("g2_kernel", 512, sg, 256))
open(sys.argv[1], "w").write(a.text())
```

```python
import sys, os
os.environ.setdefault("PD", "4")
from asmlib import *
from prep import *
import prep4
import conv2
from gemm1 import *
from gemm2v import *
ST = os.environ.get("STAMPS", "") != ""
a = A()
hdr = open("gated_mix__ssm_conv_h3__geglu_ffn__prompt.s.ref").read().split("\n")
for l in hdr:
    if l.startswith("; Override") : break
    a.raw(l)
a.raw("; @launch kernel=g1_kernel grid=(256,1,1) block=(256,1,1) lds=163840")
a.raw("; @launch kernel=g2_kernel grid=(256,1,1) block=(256,1,1) lds=%d" % G2_LDS)
a.raw('.amdgcn_target "amdgcn-amd-amdhsa--gfx950"')
a.raw(".text")
def rt_begin():
    if os.environ.get("BADMAP"):
        a("s_lshr_b32 s3, s2, 3")
        a("s_add_u32 s3, s3, s2")
        a("s_and_b32 s3, s3, 7")
        a("s_and_b32 s2, s2, 0xf8")
        a("s_or_b32 s2, s2, s3")
    if ST:
        a("s_memrealtime s[92:93]")
def rt_mid():
    if ST and not os.environ.get("PST"):
        a("s_memrealtime s[94:95]")
def rt_end(kidx):
    if ST:
        a("s_waitcnt vmcnt(0) lgkmcnt(0)")
        a("s_memrealtime s[20:21]")
        a("s_load_dwordx2 s[22:23], s[0:1], 104")
        a("s_waitcnt lgkmcnt(0)")
        a("s_add_u32 s24, s22, 0x%x" % (0x5000000 + kidx * 0x10000))
        a("s_addc_u32 s25, s23, 0")
        a("s_mov_b32 s26, 0x10000")
        a("s_mov_b32 s27, 0x00020000")
        a("s_mov_b64 exec, 1")
        for i, r in enumerate((92, 86, 88, 90, 94, 96, 98, 20)):
            a("v_mov_b32 v%d, s%d" % (4 + i, r))
        a("s_lshl_b32 s22, s2, 5")
        a("v_mov_b32 v12, s22")
        a("buffer_store_dwordx4 v[4:7], v12, s[24:27], 0 offen")
        a("buffer_store_dwordx4 v[8:11], v12, s[24:27], 0 offen offset:16")
        if kidx == 1 and os.environ.get("DBGOUT"):
            a("s_cmp_lg_u32 s2, 0")
            a("s_cbranch_scc1 DBG_SKIP")
            a("s_load_dwordx2 s[28:29], s[0:1], 96")
            a("s_sub_u32 s24, s24, 0x10000")
            a("s_subb_u32 s25, s25, 0")
            a("v_mov_b32 v12, 0")
            lst = [(0, 0), (0, 1), (0, 7), (32, 0), (32, 6), (32, 2), (32, 7), (255, 0), (255, 6), (255, 2), (255, 7), (128, 0), (128, 2), (128, 7)]
            for i, (w, k) in enumerate(lst):
                a("s_movk_i32 s30, %d" % (w * 32 + k * 4))
                a("buffer_load_dword v%d, v12, s[24:27], s30 offen" % (16 + i))
            a("v_mov_b32 v30, s92")
            a("v_mov_b32 v31, s20")
            a("s_waitcnt vmcnt(0) lgkmcnt(0)")
            a("s_mov_b32 s30, 256")
            a("s_mov_b32 s31, 0x00020000")
            for i in range(4):
                a("buffer_store_dwordx4 v[%d:%d], v12, s[28:31], 0 offen offset:%d" % (16 + 4 * i, 19 + 4 * i, 16 * i))
            a.label("DBG_SKIP")
kernel_header(a, "g1_kernel")
a("s_cmp_ge_u32 s2, 256")
a("s_cbranch_scc1 G1_END")
rt_begin()
a("s_load_dwordx2 s[60:61], s[0:1], 8")
a("s_load_dwordx2 s[62:63], s[0:1], 16")
a("s_load_dwordx2 s[100:101], s[0:1], 24")
a("s_cmp_lt_u32 s2, 32")
a("s_cbranch_scc1 G1_PREP")
D, E = gen_gemm1(a, dbg="P", fuse=True, rts=ST)
rt_mid()
conv2.conv_main(a, D, E)
rt_end(0)
a("s_endpgm")
a.label("G1_PREP")
if conv2.TARGET == 16:
    a("s_load_dwordx2 s[30:31], s[0:1], 104")
    a("v_lshrrev_b32 v1, 6, v0")
    a("v_and_b32 v0, 63, v0")
    a("s_nop 0")
    a("v_readfirstlane_b32 s40, v1")
    a("s_waitcnt lgkmcnt(0)")
    prep4.prep4_issue(a, 60, 62, 100, 30, 64, 64, 40)
    a("s_waitcnt vmcnt(0)")
    prep4.prep4_compute(a, 64, 64, "B")
else:
    import prep6
    prep6.gen_prep6(a, 2, ST)
    a("v_lshrrev_b32 v1, 6, v0")
    a("v_and_b32 v0, 63, v0")
    a("s_nop 0")
    a("v_readfirstlane_b32 s40, v1")
conv2.conv_ptrs(a)
if ST: a("s_memrealtime s[96:97]")
a("s_waitcnt vmcnt(0) lgkmcnt(0)")
conv2.flag_srd(a)
if ST: a("s_memrealtime s[86:87]")
a("s_barrier")
a("s_cmp_lg_u32 s40, 0")
a("s_cbranch_scc1 PREP_P4")
conv2.signal(a)
a.label("PREP_P3")
conv2.poll_issue(a, 210)
a("s_waitcnt vmcnt(0)")
conv2.poll_check(a, 210, 84)
a("s_cmp_lg_u32 s84, 0")
a("s_cbranch_scc1 PREP_P5")
a("s_sleep 64")
a("s_branch PREP_P3")
a.label("PREP_P5")
a("buffer_inv sc1")
a("s_waitcnt vmcnt(0)")
a.label("PREP_P4")
a("s_barrier")
for g in conv2.conv_early(a):
    for i in g: a(i)
D = conv2.conv_issue(a)
rt_mid()
conv2.conv_main(a, D)
rt_end(0)
a.label("G1_END")
a("s_endpgm")
kernel_header(a, "g2_kernel")
a("s_cmp_ge_u32 s2, 256")
a("s_cbranch_scc1 G2_END")
rt_begin()
gen_gemm2(a)
rt_end(1)
a.label("G2_END")
a("s_endpgm")
a.raw('.section .rodata,"a"')
sg = 102
a.raw(kernel_desc("g1_kernel", 512, sg, 256))
a.raw(kernel_desc("g2_kernel", 512, sg, 256))
open(sys.argv[1], "w").write(a.text())
```

```python
class A:
    def __init__(self):
        self.lines = []
    def __call__(self, s):
        self.lines.append("    " + s)
    def label(self, s):
        self.lines.append(s + ":")
    def raw(self, s):
        self.lines.append(s)
    def comment(self, s):
        self.lines.append("    ; " + s)
    def text(self):
        return "\n".join(self.lines) + "\n"

def vr(b, n=1):
    return "v%d" % b if n == 1 else "v[%d:%d]" % (b, b + n - 1)
def ar(b, n=1):
    return "a%d" % b if n == 1 else "a[%d:%d]" % (b, b + n - 1)
def sr(b, n=1):
    return "s%d" % b if n == 1 else "s[%d:%d]" % (b, b + n - 1)

def interleave(main, extra, start=0, every=1):
    out = []
    e = 0
    for idx, m in enumerate(main):
        out.append(m)
        if idx >= start and (idx - start) % every == 0 and e < len(extra):
            out.extend(extra[e]); e += 1
    while e < len(extra):
        out.extend(extra[e]); e += 1
    return out

def kernel_header(a, name):
    a.raw(".globl %s" % name)
    a.raw(".p2align 8")
    a.raw(".type %s,@function" % name)
    a.label(name)

def kernel_desc(name, vgpr, sgpr, accum):
    return """.p2align 6
.amdhsa_kernel %s
  .amdhsa_next_free_vgpr %d
  .amdhsa_next_free_sgpr %d
  .amdhsa_accum_offset %d
  .amdhsa_group_segment_fixed_size 0
  .amdhsa_kernarg_size 112
  .amdhsa_user_sgpr_count 2
  .amdhsa_user_sgpr_kernarg_segment_ptr 1
  .amdhsa_system_sgpr_workgroup_id_x 1
.end_amdhsa_kernel
""" % (name, vgpr, sgpr, accum)

def srd(a, d, base, nbytes):
    a("s_mov_b32 s%d, s%d" % (d, base))
    a("s_mov_b32 s%d, s%d" % (d + 1, base + 1))
    a("s_mov_b32 s%d, 0x%x" % (d + 2, nbytes))
    a("s_mov_b32 s%d, 0x00020000" % (d + 3))

def place(main, placed):
    by = {}
    for pos, ins in placed:
        by.setdefault(min(pos, len(main) - 1) if main else 0, []).extend(ins)
    out = []
    if not main:
        for pos in sorted(by): out.extend(by[pos])
        return out
    for idx, m in enumerate(main):
        out.append(m)
        out.extend(by.get(idx, []))
    return out

_ctn = [0]
def code_touch(a, sd, vt, vtid, start_label, n=1, end_label="CODE_END"):
    import os
    if os.environ.get("NOCT"): return
    _ctn[0] += 1
    L = "CT_PC%d" % _ctn[0]
    a("s_getpc_b64 s[%d:%d]" % (sd, sd + 1))
    a.label(L)
    a("s_add_u32 s%d, s%d, %s-%s" % (sd, sd, start_label, L))
    a("s_addc_u32 s%d, s%d, ((%s-%s)>>32)" % (sd + 1, sd + 1, start_label, L))
    a("s_mov_b32 s%d, %s-%s" % (sd + 2, end_label, start_label))
    a("s_mov_b32 s%d, 0x00020000" % (sd + 3))
    a("v_lshlrev_b32 v%d, 7, v%d" % (vt, vtid))
    for k in range(n):
        if k: a("v_add_u32 v%d, 0x8000, v%d" % (vt, vt))
        a("buffer_load_dword v%d, v%d, s[%d:%d], 0 offen ; pad" % (vt + 1, vt, sd, sd + 3))
```

```python
from asmlib import *
from layout import *
from prep import ws_srd

UC = 5184
HC = 4480
WAVE_LDS = 4 * UC + 2 * HC
CONV_LDS = 4 * WAVE_LDS

P_HK, P_D, P_GW, P_DBG, P_WS, P_Q = 64, 66, 68, 70, 72, 74
S_G, S_H, S_Z, S_Q, S_GW, S_GT, S_F = 4, 8, 12, 32, 36, 52, 80
sW, sD, sLB, T0, T1, T2, sDV, T3, T4 = 40, 60, 61, 62, 63, 76, 78, 77, 79
sHB = 85
KV = 160
GL = 176
VL = 200
VSW = 201
VZ = 204
VT = 208
import os
GSC = ' sc1' if os.environ.get('INV', '') == '' else ''
TARGET = 16 if os.environ.get('DPREP') else 8

def conv_ptrs(a):
    a("s_load_dwordx2 s[%d:%d], s[0:1], 32" % (P_HK, P_HK + 1))
    a("s_load_dwordx2 s[%d:%d], s[0:1], 40" % (P_D, P_D + 1))
    a("s_load_dwordx2 s[%d:%d], s[0:1], 80" % (P_GW, P_GW + 1))
    a("s_load_dwordx2 s[%d:%d], s[0:1], 96" % (P_DBG, P_DBG + 1))
    a("s_load_dwordx2 s[%d:%d], s[0:1], 104" % (P_WS, P_WS + 1))
    a("s_load_dwordx2 s[%d:%d], s[0:1], 0" % (P_Q, P_Q + 1))

def flag_srd(a):
    srd(a, S_F, P_DBG, 256)

def poll_issue(a, vdst):
    a("s_lshr_b32 s%d, s2, %d" % (T0, 4 if TARGET == 16 else 6))
    a("s_lshl_b32 s%d, s%d, %d" % (T0, T0, 2 if TARGET == 16 else 6))
    a("v_mov_b32 v%d, s%d" % (VT, T0))
    a("buffer_load_dword v%d, v%d, s[%d:%d], 0 offen sc1" % (vdst, VT, S_F, S_F + 3))

def poll_check(a, vdst, sdst):
    a("v_readfirstlane_b32 s%d, v%d" % (sdst, vdst))
    a("s_cmp_ge_u32 s%d, %d" % (sdst, TARGET))
    a("s_cselect_b32 s%d, 1, 0" % sdst)

def signal(a):
    if TARGET == 16: a("s_and_b32 s%d, s2, 15" % T0)
    else: a("s_and_b32 s%d, s2, 3" % T0)
    a("s_lshl_b32 s%d, s%d, %d" % (T0, T0, 2 if TARGET == 16 else 6))
    a("v_mov_b32 v%d, s%d" % (VT, T0))
    a("v_mov_b32 v%d, 1" % (VT + 1))
    a("s_mov_b64 exec, 1")
    a("buffer_atomic_add v%d, v%d, s[%d:%d], 0 offen sc1" % (VT + 1, VT, S_F, S_F + 3))
    a("s_mov_b64 exec, -1")

UREG = 65536
def conv_early(a):
    a("s_lshl_b32 s%d, s2, 2" % sD)
    a("s_add_u32 s%d, s%d, s%d" % (sD, sD, sW))
    a("s_mul_i32 s%d, s%d, %d" % (sLB, sW, 4 * UC))
    a("s_add_u32 s%d, s%d, %d" % (sLB, sLB, UREG))
    for i in range(4): a("v_mov_b32 v%d, 0" % (VZ + i))
    a("v_lshlrev_b32 v%d, 4, v0" % VL)
    a("v_add_u32 v%d, s%d, v%d" % (VT + 2, sLB, VL))
    ws_srd(a, S_G, P_WS, G_OFF, G_BYTES)
    a("v_lshrrev_b32 v%d, 4, v0" % VSW)
    a("v_and_b32 v%d, 1, v%d" % (VSW, VSW))
    a("v_lshlrev_b32 v%d, 1, v%d" % (VSW, VSW))
    a("v_xor_b32 v%d, v%d, v0" % (VSW, VSW))
    a("v_lshlrev_b32 v%d, 4, v%d" % (VSW, VSW))
    a("s_mul_i32 s%d, s%d, %d" % (T3, sD, G_PITCH))
    D = []
    for r in (3, 1, 2, 0):
        off = {3: 120, 1: 124, 2: 122, 0: 126}[r]
        for I in range(4):
            g = []
            if I == 0: g += ["s_add_u32 s%d, s%d, 0x%x" % (T4, T3, off), "s_add_u32 m0, s%d, %d" % (sLB, r * UC), "s_nop 0"]
            g.append("buffer_load_dwordx4 v%d, s[%d:%d], s%d offen offset:%d%s lds" % (VSW, S_G, S_G + 3, T4, I * 1024, GSC))
            if I == 3: g.append("ds_write_b128 v%d, v[%d:%d] offset:%d" % (VT + 2, VZ, VZ + 3, r * UC + 4112))
            D.append(g)
    g = ["s_mov_b64 exec, 1"]
    for r in range(4):
        off = {3: 120, 1: 124, 2: 122, 0: 126}[r]
        g.append("s_add_u32 s%d, s%d, 0x%x" % (T4, T3, off + 4096))
        g.append("s_add_u32 m0, s%d, %d" % (sLB, r * UC + 4096))
        g.append("s_nop 0")
        g.append("buffer_load_dwordx4 v%d, s[%d:%d], s%d offen%s lds" % (VSW, S_G, S_G + 3, T4, GSC))
    g.append("s_mov_b64 exec, -1")
    D.append(g)
    return D

def touch_hq(sq):
    r = ["s_lshl_b32 s%d, s2, 2" % sD, "s_add_u32 s%d, s%d, s%d" % (sD, sD, sW), "s_lshl_b32 s%d, s%d, 12" % (T0, sD),
         "s_mov_b32 s76, s%d" % P_HK, "s_mov_b32 s77, s%d" % (P_HK + 1), "s_mov_b32 s78, 0x%x" % (1024 * 2048 * 2), "s_mov_b32 s79, 0x00020000",
         "v_and_b32 v%d, 31, v0" % VT, "v_lshlrev_b32 v%d, 7, v%d" % (VT, VT),
         "buffer_load_dword v%d, v%d, s[76:79], s%d offen" % (VT + 1, VT, T0),
         "buffer_load_dword v%d, v%d, s[%d:%d], s%d offen" % (VT + 1, VT, sq, sq + 3, T0)]
    return r

def conv_issue(a):
    a("s_mul_i32 s%d, s%d, %d" % (sHB, sW, 2 * HC))
    a("v_add_u32 v%d, s%d, v%d" % (VT, sHB, VL))
    a("s_mov_b64 exec, 0xffff")
    for ph in range(2):
        a("ds_write_b128 v%d, v[%d:%d] offset:%d" % (VT, VZ, VZ + 3, ph * HC))
        a("ds_write_b128 v%d, v[%d:%d] offset:%d" % (VT, VZ, VZ + 3, ph * HC + HC - 256))
    a("s_mov_b64 exec, -1")
    srd(a, S_H, P_HK, 1024 * 2048 * 2)
    ws_srd(a, S_Z, P_WS, Z_OFF, Z_BYTES)
    srd(a, S_Q, P_Q, 2048 * 1024 * 2)
    srd(a, S_GW, P_GW, 1024 * 2)
    ws_srd(a, S_GT, P_WS, GT_OFF, GT_BYTES)
    a("s_lshl_b32 s%d, s%d, 12" % (T0, sD))
    a("buffer_load_dwordx4 v[%d:%d], v%d, s[%d:%d], 0 offen" % (GL, GL + 3, VL, S_GW, S_GW + 3))
    a("buffer_load_dwordx4 v[%d:%d], v%d, s[%d:%d], 0 offen offset:1024" % (GL + 4, GL + 7, VL, S_GW, S_GW + 3))
    for i in range(4):
        a("buffer_load_dwordx4 v[%d:%d], v%d, s[%d:%d], s%d offen offset:%d" % (GL + 8 + 4 * i, GL + 11 + 4 * i, VL, S_Q, S_Q + 3, T0, 1024 * i))
    a("s_lshr_b32 s%d, s%d, 1" % (T1, sD))
    a("s_lshl_b32 s%d, s%d, 2" % (T1, T1))
    a("s_load_dword s%d, s[%d:%d], s%d" % (sDV, P_D, P_D + 1, T1))
    a("v_and_b32 v%d, 15, v0" % VT)
    a("v_lshrrev_b32 v%d, 4, v0" % (VT + 1))
    a("v_lshlrev_b32 v%d, 7, v%d" % (VT + 1, VT + 1))
    a("v_lshlrev_b32 v%d, 3, v%d" % (VT, VT))
    a("v_add_u32 v%d, v%d, v%d" % (VT, VT, VT + 1))
    a("v_sub_u32 v%d, 568, v%d" % (VT, VT))
    a("v_lshlrev_b32 v%d, 1, v%d" % (VT, VT))
    a("s_waitcnt lgkmcnt(0)")
    D = []
    for ph in range(2):
        for I in range(4):
            g = []
            if I == 0: g += ["s_add_u32 m0, s%d, %d" % (sHB, ph * HC + (128 - 4 * ph) * 2), "s_nop 0"]
            g.append("buffer_load_dwordx4 v%d, s[%d:%d], s%d offen offset:%d lds" % (VL, S_H, S_H + 3, T0, I * 1024))
            D.append(g)
    for T in range(4):
        D.append(["buffer_load_dwordx4 v[%d:%d], v%d, s[%d:%d], s%d offen offset:%d%s" % (KV + 4 * T, KV + 4 * T + 3, VT, S_G, S_G + 3, T3, (3 - T) * 1024, GSC)])
    return D

NE0 = int(os.environ.get("NE0", "4"))
DSP_ = int(os.environ.get("CDSP", "8"))
def conv_main(a, D, E=None):
    E = E or []
    ne0 = min(NE0, len(E))
    vm = []
    def em(i):
        a(i)
        if i.startswith("buffer_"): vm.append(i)
    pre = [i for g in E[:ne0] for i in g]; rest = [i for g in E[ne0:] for i in g]
    a("v_and_b32 v8, 15, v0")
    a("v_lshrrev_b32 v9, 4, v0")
    a("v_lshlrev_b32 v10, 7, v9")
    a("v_lshlrev_b32 v11, 3, v8")
    a("v_add_u32 v10, v10, v11")
    a("v_lshlrev_b32 v12, 1, v10")
    a("v_add_u32 v13, v8, v9")
    a("v_lshlrev_b32 v13, 4, v13")
    a("v_add_u32 v13, s%d, v13" % sHB)
    a("v_lshrrev_b32 v4, 2, v8")
    a("v_and_b32 v5, 3, v8")
    a("s_movk_i32 s%d, %d" % (T1, UC))
    a("v_mul_lo_u32 v5, v5, s%d" % T1)
    a("v_sub_u32 v6, 3, v4")
    a("v_lshlrev_b32 v6, 8, v6")
    a("v_add_u32 v5, v5, v6")
    a("v_add_u32 v5, s%d, v5" % sLB)
    a("v_and_b32 v6, 1, v4")
    a("v_lshlrev_b32 v6, 1, v6")
    a("v_xor_b32 v7, v9, v6")
    a("v_xor_b32 v6, 2, v7")
    a("v_lshlrev_b32 v6, 4, v6")
    a("v_lshlrev_b32 v7, 4, v7")
    a("v_add_u32 v14, v5, v6")
    a("v_add_u32 v15, v5, v7")
    ACC = 32
    for i in range(32): a("v_mov_b32 v%d, 0" % (ACC + i))
    FB = 64
    def reads(n):
        b = FB + (n % 3) * 24
        r = []
        for ph in range(2):
            r.append("ds_read_b128 v[%d:%d], v13 offset:%d" % (b + 4 * ph, b + 4 * ph + 3, ph * HC + 64 * n))
        m = n >> 2
        for T in range(4):
            if n <= 16 * T + 16:
                r.append("ds_read_b128 v[%d:%d], v%d offset:%d" % (b + 8 + 4 * T, b + 11 + 4 * T, 14 + (m & 1), 3072 - 1024 * T + 256 * m + 64 * (n & 3)))
        return r
    def mf(n):
        b = FB + (n % 3) * 24
        r = []
        for T in range(4):
            if n <= 16 * T + 16:
                for ph in range(2):
                    c = ACC + (T * 2 + ph) * 4
                    r.append("v_mfma_f32_16x16x32_bf16 v[%d:%d], v[%d:%d], v[%d:%d], v[%d:%d]" % (c, c + 3, b + 8 + 4 * T, b + 11 + 4 * T, b + 4 * ph, b + 4 * ph + 3, c, c + 3))
        return r
    NS = 65
    M = T2
    a("s_mov_b32 s%d, 0xffff0000" % M)
    for i in place(pre, [(DSP_ * n, g) for n, g in enumerate(D)]): em(i)
    a("s_waitcnt vmcnt(%d)" % len(vm))
    for i in range(8):
        a("v_lshlrev_b32 v%d, 16, v%d" % (88 + 2 * i, GL + i))
        a("v_and_b32 v%d, s%d, v%d" % (89 + 2 * i, M, GL + i))
    for r in range(2):
        for i in range(8):
            src = GL + 8 + 8 * r + i
            t = 104 + 2 * (i & 1)
            a("v_lshlrev_b32 v%d, 16, v%d" % (t, src))
            a("v_and_b32 v%d, s%d, v%d" % (t + 1, M, src))
            a("v_mul_f32 v%d, v%d, v%d" % (t, t, 88 + 2 * i))
            a("v_mul_f32 v%d, v%d, v%d" % (t + 1, t + 1, 89 + 2 * i))
            a("v_cvt_pk_bf16_f32 v%d, v%d, v%d" % (t, t, t + 1))
            a("v_lshlrev_b32 v%d, 16, v%d" % (t + 1, t))
            a("v_and_b32 v%d, s%d, v%d" % (t, M, t))
            if i == 0:
                a("v_add_f32 v%d, v%d, v%d" % (108 + r, t, t + 1))
            else:
                a("v_add_f32 v%d, v%d, v%d" % (t, t, t + 1))
                a("v_add_f32 v%d, v%d, v%d" % (108 + r, 108 + r, t))
    for step in (1, 2, 4, 8, 16, 32):
        a("v_xor_b32 v104, %d, v0" % step)
        a("v_lshlrev_b32 v104, 2, v104")
        a("ds_bpermute_b32 v110, v104, v108")
        a("ds_bpermute_b32 v111, v104, v109")
        a("s_waitcnt lgkmcnt(0)")
        a("v_add_f32 v108, v108, v110")
        a("v_add_f32 v109, v109, v111")
    a("v_cmp_eq_u32 vcc, 1, v0")
    a("s_nop 1")
    a("v_cndmask_b32 v136, v108, v109, vcc")
    a("v_cvt_pk_bf16_f32 v136, v136, v136")
    a("v_lshlrev_b32 v136, 16, v136")
    a("v_mul_f32 v136, 0xbfb8aa3b, v136")
    a("v_exp_f32 v136, v136")
    a("s_nop 0")
    a("v_add_f32 v136, 1.0, v136")
    a("v_rcp_f32 v136, v136")
    a("s_nop 0")
    a("v_cvt_pk_bf16_f32 v136, v136, v136")
    a("v_lshlrev_b32 v136, 16, v136")
    a("v_lshlrev_b32 v137, 2, v0")
    last = max(k for k, i in enumerate(vm) if "load" in i)
    a("s_waitcnt vmcnt(%d)" % (len(vm) - 1 - last))
    a("s_lshl_b32 s%d, s%d, 3" % (T0, sD))
    a("s_mov_b64 exec, 3")
    a("buffer_store_dword v136, v137, s[%d:%d], s%d offen" % (S_GT, S_GT + 3, T0))
    a("s_mov_b64 exec, -1")
    for i in reads(0): a(i)
    for i in reads(1): a(i)
    nm_total = sum(len(mf(n)) for n in range(NS))
    done_m = 0; done_e = 0
    for n in range(NS):
        nxt = reads(n + 2) if n + 2 < NS else []
        n1 = len(reads(n + 1)) if n + 1 < NS else 0
        a("s_waitcnt lgkmcnt(%d)" % n1)
        m = mf(n)
        pl = [(k, [x]) for k, x in enumerate(nxt)]
        for k in range(len(m)):
            done_m += 1
            tgt = (len(rest) * done_m + nm_total - 1) // nm_total
            pl.append((k, rest[done_e:tgt])); done_e = tgt
        for i in place(m, pl): a(i)
    assert done_e == len(rest)
    a("s_and_b32 s%d, s%d, 1" % (T0, sD))
    a("s_lshl_b32 s%d, s%d, 16" % (T1, sDV))
    a("s_and_b32 s%d, s%d, 0xffff0000" % (sDV, sDV))
    a("s_cmp_eq_u32 s%d, 0" % T0)
    a("s_cselect_b32 s%d, s%d, s%d" % (sDV, T1, sDV))
    a("s_lshl_b32 s%d, s%d, 12" % (T0, sD))
    a("s_nop 7")
    for T in range(4):
        Y = 64; Kf = 72; O = 80 + 4 * T
        c = ACC + T * 8
        for p in range(4):
            a("v_cvt_pk_bf16_f32 v%d, v%d, v%d" % (96, c + 2 * p, c + 2 * p + 1))
            a("v_lshlrev_b32 v%d, 16, v96" % (Y + 2 * p))
            a("v_and_b32 v%d, s%d, v96" % (Y + 2 * p + 1, M))
        for p in range(4):
            src = KV + 4 * T + (3 - p)
            a("v_and_b32 v%d, s%d, v%d" % (Kf + 2 * p, M, src))
            a("v_lshlrev_b32 v%d, 16, v%d" % (Kf + 2 * p + 1, src))
        for e in range(8):
            a("v_mul_f32 v%d, s%d, v%d" % (Kf + e, sDV, Kf + e))
        for p in range(4):
            a("v_cvt_pk_bf16_f32 v96, v%d, v%d" % (Kf + 2 * p, Kf + 2 * p + 1))
            a("v_lshlrev_b32 v%d, 16, v96" % (Kf + 2 * p))
            a("v_and_b32 v%d, s%d, v96" % (Kf + 2 * p + 1, M))
        for e in range(8):
            a("v_add_f32 v%d, v%d, v%d" % (Y + e, Y + e, Kf + e))
        for p in range(4):
            a("v_cvt_pk_bf16_f32 v%d, v%d, v%d" % (O + p, Y + 2 * p, Y + 2 * p + 1))
        a("buffer_store_dwordx4 v[%d:%d], v12, s[%d:%d], s%d offen offset:%d" % (O, O + 3, S_Z, S_Z + 3, T0, T * 1024))
```

```python
from asmlib import *
from layout import G_PITCH, Z_OFF, Z_BYTES

import os
ROT = int(os.environ.get('ROT', '5'))
PD = int(os.environ.get('PD', '6'))
DS0 = int(os.environ.get('DS0', '1'))
DSP = int(os.environ.get('DSP', '4'))
H1_OFF = 0
H1_BYTES = 2048 * 3584 * 2

def gen_gemm1(a, name="g1_kernel", end_label="G1_END", stamps=False, dbg="", fuse=False, rts=False):
    PST = os.environ.get("PST", "") != ""
    def rt(r):
        if rts and not (PST and r in (90,)): a("s_memrealtime s[%d:%d]" % (r, r + 1))
    def prt(r):
        if rts and PST: a("s_memrealtime s[%d:%d]" % (r, r + 1))
    def stamp(i):
        if stamps:
            a("s_memtime s[%d:%d]" % (60 + 2 * i, 61 + 2 * i))
    stamp(0)
    S_X, S_WG, S_WU, S_H = 4, 8, 12, 16
    sKX, sKW, sCNT = 20, 21, 22
    sM0 = 32
    sW = 40
    sT = 41
    vXoff = 2
    vWoff = 10
    vXa = 14
    vWa = 18
    vT = 26
    F = [64, 128]

    a("s_load_dwordx2 s[24:25], s[0:1], 0")
    a("s_load_dwordx2 s[26:27], s[0:1], 56")
    a("s_load_dwordx2 s[28:29], s[0:1], 64")
    a("s_load_dwordx2 s[30:31], s[0:1], 104")
    if fuse: code_touch(a, 76, 45, 0, "g1_kernel", end_label="G1_PREP")
    a("s_and_b32 s41, s2, 7")
    a("s_lshr_b32 s42, s2, 3")
    if fuse: a("s_sub_u32 s42, s42, 4")
    a("s_and_b32 s43, s41, 1")
    a("s_lshl_b32 s43, s43, 2")
    a("s_and_b32 s44, s42, 3")
    a("s_add_u32 s43, s43, s44")
    a("s_lshr_b32 s44, s41, 1")
    a("s_mul_i32 s44, s44, 7")
    a("s_lshr_b32 s45, s42, 2")
    a("s_add_u32 s44, s44, s45")
    if "Z" in dbg:
        a("s_mov_b32 s43, 0")
        a("s_mov_b32 s44, 0")
    if "Y" in dbg:
        a("s_and_b32 s43, s43, 1")
        a("s_and_b32 s44, s44, 1")
    a("s_lshl_b32 s43, s43, 8")
    a("s_lshl_b32 s44, s44, 7")
    a("v_lshrrev_b32 v1, 6, v0")
    a("v_and_b32 v0, 63, v0")
    a("s_nop 0")
    a("v_readfirstlane_b32 s%d, v1" % sW)
    a("s_waitcnt lgkmcnt(0)")
    prt(86)
    srd(a, S_X, 24, 2048 * 1024 * 2)
    srd(a, S_WG, 26, 1024 * 3584 * 2)
    srd(a, S_WU, 28, 1024 * 3584 * 2)
    srd(a, S_H, 30, H1_BYTES)
    a("s_lshl_b32 s45, s%d, 13" % sW)
    a("s_lshl_b32 s46, s%d, 12" % sW)
    for b in range(2):
        a("s_add_u32 s%d, s45, 0x%x" % (sM0 + 4 * b + 0, (1 - b) * 65536))
        a("s_add_u32 s%d, s45, 0x%x" % (sM0 + 4 * b + 1, (1 - b) * 65536 + 4096))
        a("s_add_u32 s%d, s46, 0x%x" % (sM0 + 4 * b + 2, (1 - b) * 65536 + 32768))
        a("s_add_u32 s%d, s46, 0x%x" % (sM0 + 4 * b + 3, (1 - b) * 65536 + 49152))
    t0, t1, t2, t3 = vT, vT + 1, vT + 2, vT + 3
    a("v_lshrrev_b32 v%d, 3, v0" % t0)
    a("s_lshl_b32 s45, s%d, 6" % sW)
    a("s_add_u32 s45, s45, s43")
    a("v_add_u32 v%d, s45, v%d" % (t0, t0))
    a("v_lshlrev_b32 v%d, 11, v%d" % (t0, t0))
    a("v_and_b32 v%d, 7, v0" % t1)
    a("v_lshrrev_b32 v%d, 4, v0" % t2)
    a("v_xor_b32 v%d, v%d, v%d" % (t1, t1, t2))
    a("v_lshlrev_b32 v%d, 4, v%d" % (t1, t1))
    a("v_add_u32 v%d, v%d, v%d" % (t0, t0, t1))
    a("v_xor_b32 v%d, 64, v%d" % (t1, t0))
    for j in range(8):
        a("v_add_u32 v%d, 0x%x, v%d" % (vXoff + j, j * 16384 - (j & 3) * 1024, t0 if j % 2 == 0 else t1))
    a("s_lshl_b32 s45, s%d, 4" % sW)
    a("v_add_u32 v%d, s45, v%d" % (t0, t2))
    a("s_movk_i32 s46, 7168")
    a("v_mul_lo_u32 v%d, v%d, s46" % (t0, t0))
    a("s_lshl_b32 s45, s44, 1")
    a("v_add_u32 v%d, s45, v%d" % (t0, t0))
    a("v_and_b32 v%d, 15, v0" % t1)
    a("v_lshlrev_b32 v%d, 1, v%d" % (t3, t2))
    a("v_xor_b32 v%d, v%d, v%d" % (t1, t1, t3))
    a("v_lshlrev_b32 v%d, 4, v%d" % (t1, t1))
    a("v_add_u32 v%d, v%d, v%d" % (t0, t0, t1))
    a("v_xor_b32 v%d, 0x80, v%d" % (t1, t0))
    for j in range(4):
        a("v_add_u32 v%d, 0x%x, v%d" % (vWoff + j, j * 4 * 7168 - j * 1024, t0 if j < 2 else t1))
    if "P" in dbg:
        a("s_lshr_b32 s45, s42, 2")
        a("s_mul_i32 s45, s45, 40")
        a("v_add_u32 v%d, s45, v0" % t0)
        a("v_min_u32 v%d, 255, v%d" % (t0, t0))
        a("v_add_u32 v%d, s43, v%d" % (t0, t0))
        a("v_lshlrev_b32 v%d, 11, v%d" % (t0, t0))
        a("v_lshrrev_b32 v%d, 1, v0" % t1)
        a("v_and_b32 v%d, 15, v%d" % (t1, t1))
        a("v_lshlrev_b32 v%d, 2, v%d" % (t1, t1))
        a("s_and_b32 s45, s42, 3")
        a("v_add_u32 v%d, s45, v%d" % (t1, t1))
        a("v_mul_lo_u32 v%d, v%d, s46" % (t1, t1))
        a("v_and_b32 v%d, 1, v0" % t3)
        a("v_lshlrev_b32 v%d, 7, v%d" % (t3, t3))
        a("v_add_u32 v%d, v%d, v%d" % (t1, t1, t3))
        a("s_lshl_b32 s45, s44, 1")
        a("v_add_u32 v%d, s45, v%d" % (t1, t1))
        a("s_cmp_eq_u32 s%d, 1" % sW)
        a("s_cselect_b32 s52, s26, s24")
        a("s_cselect_b32 s53, s27, s25")
        a("s_cmp_eq_u32 s%d, 2" % sW)
        a("s_cselect_b32 s52, s28, s52")
        a("s_cselect_b32 s53, s29, s53")
        a("s_add_u32 s45, s%d, -1" % sW)
        a("s_mov_b32 s54, 0x%x" % (2048 * 1024 * 2))
        a("s_movk_i32 s57, 128")
        a("s_cmp_lt_u32 s45, 2")
        a("s_cselect_b32 s54, 0x%x, s54" % (1024 * 3584 * 2))
        a("s_mov_b32 s55, 0x00020000")
        a("s_cselect_b32 s57, 0x%x, s57" % (64 * 7168))
        a("s_cselect_b64 vcc, -1, 0")
        a("s_nop 1")
        a("v_cndmask_b32 v41, v%d, v%d, vcc" % (t0, t1))
        a("s_lshl_b32 s56, s57, 1")
    if "K" in dbg:
        a("s_mul_i32 s23, s42, %d" % ROT)
        a("s_and_b32 s23, s23, 15")
        a("s_lshl_b32 s%d, s23, 7" % sKX)
        a("s_mul_i32 s%d, s23, 0x%x" % (sKW, 64 * 7168))
    else:
        a("s_mov_b32 s%d, 0" % sKX)
        a("s_mov_b32 s%d, 0" % sKW)

    def dma(b):
        g = []
        for half in range(2):
            if "W" in dbg: break
            for jj in range(4):
                j = half * 4 + jj
                ins = []
                if jj == 0:
                    ins.append("s_mov_b32 m0, s%d" % (sM0 + 4 * b + half))
                    ins.append("s_nop 0")
                ins.append("buffer_load_dwordx4 v%d, s[%d:%d], s%d offen offset:%d lds" % (vXoff + j, S_X, S_X + 3, sKX, jj * 1024))
                g.append(ins)
        for gu in range(2):
            if "X" in dbg: break
            S = S_WG if gu == 0 else S_WU
            for j in range(4):
                ins = []
                if j == 0:
                    ins.append("s_mov_b32 m0, s%d" % (sM0 + 4 * b + 2 + gu))
                    ins.append("s_nop 0")
                ins.append("buffer_load_dwordx4 v%d, s[%d:%d], s%d offen offset:%d lds" % (vWoff + j, S, S + 3, sKW, j * 1024))
                g.append(ins)
        if "K" in dbg:
            g[-1].append("s_add_u32 s23, s23, 1")
            g[-1].append("s_and_b32 s23, s23, 15")
            g[-1].append("s_lshl_b32 s%d, s23, 7" % sKX)
            g[-1].append("s_mul_i32 s%d, s23, 0x%x" % (sKW, 64 * 7168))
        else:
            g[-1].append("s_add_u32 s%d, s%d, 128" % (sKX, sKX))
            g[-1].append("s_add_u32 s%d, s%d, 0x%x" % (sKW, sKW, 64 * 7168))
        return g

    import prep4, conv2
    dprep = fuse and conv2.TARGET == 16
    if dprep:
        prep4.prep4_issue(a, 60, 62, 100, 30, 64, 64, sW)
    prt(96)
    for g in dma(0):
        for i in g: a(i)
    for g in dma(1):
        for i in g: a(i)
    prt(90)
    def touch():
        return ["buffer_load_dword v42, v41, s[52:55], s56 offen", "s_add_u32 s56, s56, s57"]
    if "P" in dbg:
        for _ in range(PD - 2):
            for i in touch(): a(i)

    NCT = 0
    a("s_lshr_b32 s45, s%d, 1" % sW)
    a("s_and_b32 s46, s%d, 1" % sW)
    a("v_and_b32 v%d, 15, v0" % t0)
    a("s_lshl_b32 s47, s45, 7")
    a("v_add_u32 v%d, s47, v%d" % (t0, t0))
    a("v_lshlrev_b32 v%d, 7, v%d" % (t0, t0))
    a("v_lshrrev_b32 v%d, 1, v0" % t1)
    a("v_and_b32 v%d, 7, v%d" % (t1, t1))
    a("v_xor_b32 v%d, v%d, v%d" % (t1, t1, t2))
    a("v_lshlrev_b32 v%d, 4, v%d" % (t1, t1))
    a("v_add_u32 v%d, v%d, v%d" % (vXa + 2, t0, t1))
    a("v_xor_b32 v%d, 64, v%d" % (vXa + 3, vXa + 2))
    a("v_add_u32 v%d, 0x10000, v%d" % (vXa + 0, vXa + 2))
    a("v_add_u32 v%d, 0x10000, v%d" % (vXa + 1, vXa + 3))
    a("v_lshrrev_b32 v%d, 2, v0" % t0)
    a("v_and_b32 v%d, 3, v%d" % (t0, t0))
    a("v_lshlrev_b32 v%d, 3, v%d" % (t1, t2))
    a("v_add_u32 v%d, v%d, v%d" % (t1, t1, t0))
    a("v_lshlrev_b32 v%d, 8, v%d" % (t1, t1))
    a("v_and_b32 v%d, 3, v0" % t3)
    a("v_lshlrev_b32 v%d, 3, v%d" % (t3, t3))
    a("v_add_u32 v%d, v%d, v%d" % (t1, t1, t3))
    a("v_add_u32 v%d, 0x8000, v%d" % (t1, t1))
    a("v_and_b32 v%d, 1, v%d" % (t3, t2))
    a("v_lshlrev_b32 v%d, 2, v%d" % (t3, t3))
    a("v_or_b32 v%d, v%d, v%d" % (t0, t0, t3))
    a("s_lshl_b32 s47, s46, 2")
    for t in range(4):
        a("s_add_u32 s48, s47, %d" % t)
        a("v_xor_b32 v%d, s48, v%d" % (t3, t0))
        a("v_lshlrev_b32 v%d, 5, v%d" % (t3, t3))
        a("v_add_u32 v%d, v%d, v%d" % (vWa + 4 + t, t1, t3))
        a("v_add_u32 v%d, 0x10000, v%d" % (vWa + t, vWa + 4 + t))
    if fuse and not dprep:
        conv2.conv_ptrs(a)
    for i in range(256):
        a("v_accvgpr_write_b32 a%d, 0" % i)

    def reads(fs, b, s):
        fb = F[fs]
        r = []
        for i in range(8):
            r.append(["ds_read_b128 v[%d:%d], v%d offset:%d" % (fb + 4 * i, fb + 4 * i + 3, vXa + 2 * b + s, i * 2048)])
        w = []
        for gu in range(2):
            for t in range(4):
                for h in range(2):
                    d = fb + 32 + 4 * (gu * 4 + t) + 2 * h
                    w.append(["ds_read_b64_tr_b16 v[%d:%d], v%d offset:%d" % (d, d + 1, vWa + 4 * b + t, gu * 16384 + s * 8192 + h * 1024)])
        out = []
        for i in range(8):
            out.append(r[i]); out.append(w[2 * i]); out.append(w[2 * i + 1])
        return out

    def mfmas(fs):
        fb = F[fs]
        m = []
        if "M" in dbg: return m
        for i in range(8):
            for wt in range(8):
                c = (wt * 8 + i) * 4
                m.append("v_mfma_f32_16x16x32_bf16 a[%d:%d], v[%d:%d], v[%d:%d], a[%d:%d]" % (
                    c, c + 3, fb + 32 + 4 * wt, fb + 32 + 4 * wt + 3, fb + 4 * i, fb + 4 * i + 3, c, c + 3))
        return m

    stamp(1)
    if fuse and not dprep and os.environ.get("TLB"):
        a("s_waitcnt lgkmcnt(0)")
        a("s_lshl_b32 s80, s2, 2")
        a("s_add_u32 s80, s80, s%d" % sW)
        a("s_lshl_b32 s80, s80, 12")
        a("v_mov_b32 v45, 0")
        a("s_mov_b32 s79, 0x00020000")
        for P, nb, so in ((conv2.P_HK, 1024 * 2048 * 2, "s80"), (conv2.P_GW, 2048, "0"), (conv2.P_D, 2048, "0"), (conv2.P_DBG, 256, "0")):
            a("s_mov_b32 s76, s%d" % P)
            a("s_mov_b32 s77, s%d" % (P + 1))
            a("s_mov_b32 s78, 0x%x" % nb)
            a("buffer_load_dword v46, v45, s[76:79], %s offen%s" % (so, " sc1" if P == conv2.P_DBG else ""))
            NCT += 1
        a("s_add_u32 s76, s30, 0x%x" % Z_OFF)
        a("s_addc_u32 s77, s31, 0")
        a("s_mov_b32 s78, 0x%x" % Z_BYTES)
        a("buffer_load_dword v46, v45, s[76:79], s80 offen")
        NCT += 1
    if dprep:
        a("s_waitcnt vmcnt(%d)" % (32 + PD - 2))
        rt(96)
        prep4.prep4_compute(a, 64, 64, "A")
        conv2.conv_ptrs(a)
        rt(86)
    a("s_waitcnt vmcnt(%d)" % ((8 if ("X" in dbg or "W" in dbg) else 16) + (PD - 2 if "P" in dbg else 0) + (8 if dprep else 0) + NCT))
    prt(94)
    a("s_barrier")
    stamp(2)
    if rts and not dprep:
        rt(98)
        if not PST: a("s_memtime s[86:87]")
    for g in reads(0, 0, 0):
        for i in g: a(i)

    LST = os.environ.get("LST", "") != ""
    if LST:
        a("s_lshl_b32 s90, s%d, 8" % sW)
        a("s_add_u32 s90, s90, 150016")
        a("v_mov_b32 v44, s90")
        a("s_memtime s[90:91]")
    def lst():
        if LST:
            a("v_mov_b32 v43, s90")
            a("ds_write_b32 v44, v43")
            a("v_add_u32 v44, 4, v44")
            a("s_memtime s[90:91]")
    def stage(b, do_dma, do_next, first=False, preB=None, vmB=None, extraA=None, extraB=None, tailB=None, postW=None):
        a("s_waitcnt lgkmcnt(0)")
        lst()
        pa = [(2 * n, g) for n, g in enumerate(reads(1, b, 1) if "R" not in dbg else [])]
        if extraA: pa += [(1 + 4 * n, g) for n, g in enumerate(extraA)]
        for i in place(mfmas(0), pa): a(i)
        a("s_waitcnt lgkmcnt(0)")
        lst()
        if preB: preB()
        if do_next:
            if "V" in dbg:
                pass
            elif vmB is not None:
                a("s_waitcnt vmcnt(%d)" % vmB)
            elif first == 1:
                a("s_waitcnt vmcnt(%d)" % (PD - 2 + 8))
            elif "P" in dbg:
                a("s_waitcnt vmcnt(%d)" % (1 if "2" not in dbg else 18))
            else:
                a("s_waitcnt vmcnt(%d)" % (0 if "2" not in dbg else (8 if ("X" in dbg or "W" in dbg) else 16)))
            if postW: postW()
            if LST:
                a("s_waitcnt lgkmcnt(0)")
                lst()
            if "B" not in dbg: a("s_barrier")
            if LST:
                a("s_waitcnt lgkmcnt(0)")
                lst()
            if first == 2:
                conv2.flag_srd(a)
                a("s_cmp_lg_u32 s%d, 0" % sW)
                a("s_cbranch_scc1 G1_P0")
                conv2.signal(a)
                a.label("G1_P0")
        pl = []
        if do_next and "R" not in dbg:
            for n, g in enumerate(reads(0, b ^ 1, 0)): pl.append((2 * n, g))
        if do_dma and "D" not in dbg:
            dl = dma(b)
            if "P" in dbg: dl[-1] = dl[-1] + touch()
            if tailB: dl[-1] = dl[-1] + tailB
            for n, g in enumerate(dl): pl.append((DS0 + DSP * n, g))
        if extraB: pl += [(1 + 4 * n, g) for n, g in enumerate(extraB)]
        for i in place(mfmas(1), pl): a(i)

    a("s_mov_b32 s%d, 0" % sCNT)
    if dprep:
        stage(0, True, True, first=1)
        stage(1, True, True, first=2)
        a("s_mov_b32 s%d, 1" % sCNT)
        rt(98)
    a.label("G1_LOOP")
    stage(0, True, True)
    stage(1, True, True)
    a("s_add_u32 s%d, s%d, 1" % (sCNT, sCNT))
    a("s_cmp_lt_u32 s%d, %d" % (sCNT, 6 if fuse else 7))
    a("s_cbranch_scc1 G1_LOOP")
    if fuse:
        if not dprep: conv2.flag_srd(a)
        a("s_mov_b32 s84, 0")
        NOINV = os.environ.get("INV", "") == ""
        if NOINV:
            keep = a.lines; a.lines = []
            conv2.poll_issue(a, 202)
            pi = [l.strip() for l in a.lines]; a.lines = keep
            pi = ["s_cmp_lg_u32 s%d, 0" % sW, "s_cbranch_scc1 G1_P1"] + pi + ["G1_P1:"]
            stage(0, True, True, tailB=conv2.touch_hq(S_X), extraB=[pi])
            def post1():
                conv2.poll_check(a, 202, 84)
            stage(1, True, True, vmB=3, postW=post1)
        else:
            stage(0, True, True, tailB=conv2.touch_hq(S_X))
            a("s_cmp_lg_u32 s%d, 0" % sW)
            a("s_cbranch_scc1 G1_P1")
            conv2.poll_issue(a, 202)
            a.label("G1_P1")
            def chk1():
                a("s_cmp_lg_u32 s%d, 0" % sW)
                a("s_cbranch_scc1 G1_P2")
                a("s_waitcnt vmcnt(0)")
                conv2.poll_check(a, 202, 84)
                a("s_cmp_eq_u32 s84, 0")
                a("s_cbranch_scc1 G1_P2")
                a("buffer_inv sc1")
                a.label("G1_P2")
            stage(1, True, True, preB=chk1, vmB=3)
        DE = conv2.conv_early(a)
        def chk2():
            a("s_cmp_lg_u32 s%d, 0" % sW)
            a("s_cbranch_scc1 G1_P4")
            a("s_cmp_lg_u32 s84, 0")
            a("s_cbranch_scc1 G1_P4")
            a.label("G1_P3")
            conv2.poll_issue(a, 202)
            a("s_waitcnt vmcnt(0)")
            conv2.poll_check(a, 202, 84)
            a("s_cmp_lg_u32 s84, 0")
            a("s_cbranch_scc1 G1_P5")
            a("s_sleep 16")
            a("s_branch G1_P3")
            a.label("G1_P5")
            if not NOINV:
                a("buffer_inv sc1")
                a("s_waitcnt vmcnt(0)")
            a.label("G1_P4")
        stage(0, False, True, preB=chk2, extraB=DE[:12])
        stage(1, False, False, extraA=DE[12:])
        if LST:
            a("s_waitcnt lgkmcnt(0)")
            lst()
            a("s_lshl_b32 s90, s%d, 8" % sW)
            a("s_add_u32 s90, s90, 150016")
            a("v_lshlrev_b32 v44, 2, v0")
            a("v_add_u32 v43, s90, v44")
            a("s_waitcnt lgkmcnt(0)")
            a("ds_read_b32 v43, v43")
            a("s_add_u32 s76, s30, 0x6000000")
            a("s_addc_u32 s77, s31, 0")
            a("s_mov_b32 s78, 0x100000")
            a("s_mov_b32 s79, 0x00020000")
            a("s_lshl_b32 s90, s2, 2")
            a("s_add_u32 s90, s90, s%d" % sW)
            a("s_lshl_b32 s90, s90, 8")
            a("s_waitcnt lgkmcnt(0)")
            a("buffer_store_dword v43, v44, s[76:79], s90 offen")
            a("s_waitcnt vmcnt(0)")
            a("s_mul_i32 s%d, s%d, %d" % (conv2.T3, conv2.sD, G_PITCH))
        rt(88)
        if rts and not PST: a("s_memtime s[96:97]")
        a("s_barrier")
        rt(90)
        D = conv2.conv_issue(a)
    else:
        stage(0, False, True)
        stage(1, False, False)

    stamp(3)
    a("s_nop 7")
    a("s_nop 7")
    vS = 2
    a("s_lshr_b32 s47, s43, 7")
    a("s_add_u32 s47, s47, s45")
    a("s_mul_i32 s47, s47, 112")
    a("s_lshr_b32 s48, s44, 5")
    a("s_add_u32 s47, s47, s48")
    a("s_lshl_b32 s48, s46, 1")
    a("s_add_u32 s47, s47, s48")
    a("s_lshl_b32 s47, s47, 13")
    a("v_and_b32 v%d, 15, v0" % t0)
    a("v_lshlrev_b32 v%d, 4, v%d" % (t0, t0))
    a("v_lshrrev_b32 v%d, 1, v%d" % (t1, t2))
    a("v_lshlrev_b32 v%d, 8, v%d" % (t1, t1))
    a("v_add_u32 v%d, v%d, v%d" % (t0, t0, t1))
    a("v_and_b32 v%d, 1, v%d" % (t1, t2))
    a("v_lshlrev_b32 v%d, 10, v%d" % (t1, t1))
    a("v_add_u32 v%d, v%d, v%d" % (t0, t0, t1))
    a("v_add_u32 v%d, s47, v%d" % (vS, t0))
    a("s_mov_b32 s56, 0")
    a("s_movk_i32 s57, 4096")
    a("s_movk_i32 s58, 8192")
    a("s_movk_i32 s59, 12288")
    import math
    C0 = -2.0 * math.sqrt(2.0 / math.pi) * math.log2(math.e)
    C1 = C0 * 0.044715
    import struct
    def f2u(x): return struct.unpack("<I", struct.pack("<f", x))[0]
    a("s_mov_b32 s50, 0x%x" % f2u(C0))
    a("s_mov_b32 s51, 0x%x" % f2u(C1))
    a("v_mov_b32 v3, s50")
    groups = []
    cnt = 0
    SC = os.environ.get("H1SC", " sc1")
    for ip in range(4):
        for t in range(4):
            G = 212; U = 220; T = 228; P = 236 + 4 * (cnt % 4)
            cnt += 1
            i = 2 * ip
            cg = (t * 8 + i) * 4
            cu = ((4 + t) * 8 + i) * 4
            e = []
            for r in range(8): e.append("v_accvgpr_read_b32 v%d, a%d" % (G + r, cg + r))
            for r in range(8): e.append("v_mul_f32 v%d, v%d, v%d" % (T + r, G + r, G + r))
            for r in range(8): e.append("v_fma_f32 v%d, v%d, s51, v3" % (T + r, T + r))
            for r in range(8): e.append("v_mul_f32 v%d, v%d, v%d" % (T + r, T + r, G + r))
            for r in range(8):
                e.append("v_exp_f32 v%d, v%d" % (T + r, T + r))
                e.append("v_accvgpr_read_b32 v%d, a%d" % (U + r, cu + r))
            for r in range(8): e.append("v_add_f32 v%d, 1.0, v%d" % (T + r, T + r))
            for r in range(8):
                e.append("v_rcp_f32 v%d, v%d" % (T + r, T + r))
                e.append("v_mul_f32 v%d, v%d, v%d" % (U + r, U + r, G + r))
            for r in range(8): e.append("v_mul_f32 v%d, v%d, v%d" % (U + r, U + r, T + r))
            for k in range(4): e.append("v_cvt_pk_bf16_f32 v%d, v%d, v%d" % (P + k, U + 2 * k, U + 2 * k + 1))
            e.append("s_nop 1")
            e.append("v_permlane16_swap_b32 v%d, v%d" % (P, P + 2))
            e.append("v_permlane16_swap_b32 v%d, v%d" % (P + 1, P + 3))
            e.append("s_nop 0")
            e.append("buffer_store_dwordx4 v[%d:%d], v%d, s[%d:%d], s%d offen offset:%d%s" % (P, P + 3, vS, S_H, S_H + 3, 56 + (i >> 2) + 2 * (t >> 1), (i & 3) * 1024 + (t & 1) * 512, SC))
            groups.append(e)
    if fuse:
        return D, groups
    for e in groups:
        for i in e: a(i)

    if stamps:
        stamp(4)
        a("s_waitcnt vmcnt(0)")
        stamp(5)
        a("s_waitcnt lgkmcnt(0)")
        a("s_add_u32 s30, s30, 0x4000000")
        a("s_addc_u32 s31, s31, 0")
        srd(a, S_H, 30, 1 << 20)
        a("s_lshl_b32 s47, s2, 2")
        a("s_add_u32 s47, s47, s%d" % sW)
        a("s_lshl_b32 s47, s47, 5")
        for i in range(6):
            a("v_mov_b32 v%d, s%d" % (64 + i, 60 + 2 * i))
        a("v_mov_b32 v70, s47")
        a("v_cmp_eq_u32 vcc, 0, v0")
        a("s_and_saveexec_b64 s[48:49], vcc")
        a("buffer_store_dwordx4 v[64:67], v70, s[%d:%d], 0 offen" % (S_H, S_H + 3))
        a("buffer_store_dwordx2 v[68:69], v70, s[%d:%d], 0 offen offset:16" % (S_H, S_H + 3))
        a("s_mov_b64 exec, s[48:49]")
```

```python
import sys, os
os.environ.setdefault("PD", "4")
from asmlib import *
from prep import *
import prep4
import conv2
from gemm1 import *
from gemm2v import *
ST = os.environ.get("STAMPS", "") != ""
a = A()
hdr = open("gated_mix__ssm_conv_h3__geglu_ffn__prompt.s.ref").read().split("\n")
for l in hdr:
    if l.startswith("; Override") : break
    a.raw(l)
a.raw("; @launch kernel=g1_kernel grid=(256,1,1) block=(256,1,1) lds=163840")
a.raw("; @launch kernel=g2_kernel grid=(256,1,1) block=(256,1,1) lds=%d" % G2_LDS)
a.raw('.amdgcn_target "amdgcn-amd-amdhsa--gfx950"')
a.raw(".text")
def rt_begin():
    if os.environ.get("BADMAP"):
        a("s_lshr_b32 s3, s2, 3")
        a("s_add_u32 s3, s3, s2")
        a("s_and_b32 s3, s3, 7")
        a("s_and_b32 s2, s2, 0xf8")
        a("s_or_b32 s2, s2, s3")
    if ST:
        a("s_memrealtime s[92:93]")
def rt_mid():
    if ST and not os.environ.get("PST"):
        a("s_memrealtime s[94:95]")
def rt_end(kidx):
    if ST:
        a("s_waitcnt vmcnt(0) lgkmcnt(0)")
        a("s_memrealtime s[20:21]")
        a("s_load_dwordx2 s[22:23], s[0:1], 104")
        a("s_waitcnt lgkmcnt(0)")
        a("s_add_u32 s24, s22, 0x%x" % (0x5000000 + kidx * 0x10000))
        a("s_addc_u32 s25, s23, 0")
        a("s_mov_b32 s26, 0x10000")
        a("s_mov_b32 s27, 0x00020000")
        a("s_mov_b64 exec, 1")
        for i, r in enumerate((92, 86, 88, 90, 94, 96, 98, 20)):
            a("v_mov_b32 v%d, s%d" % (4 + i, r))
        a("s_lshl_b32 s22, s2, 5")
        a("v_mov_b32 v12, s22")
        a("buffer_store_dwordx4 v[4:7], v12, s[24:27], 0 offen")
        a("buffer_store_dwordx4 v[8:11], v12, s[24:27], 0 offen offset:16")
        if kidx == 1 and os.environ.get("DBGOUT"):
            a("s_cmp_lg_u32 s2, 0")
            a("s_cbranch_scc1 DBG_SKIP")
            a("s_load_dwordx2 s[28:29], s[0:1], 96")
            a("s_sub_u32 s24, s24, 0x10000")
            a("s_subb_u32 s25, s25, 0")
            a("v_mov_b32 v12, 0")
            lst = [(0, 0), (0, 1), (0, 7), (32, 0), (32, 6), (32, 2), (32, 7), (255, 0), (255, 6), (255, 2), (255, 7), (128, 0), (128, 2), (128, 7)]
            for i, (w, k) in enumerate(lst):
                a("s_movk_i32 s30, %d" % (w * 32 + k * 4))
                a("buffer_load_dword v%d, v12, s[24:27], s30 offen" % (16 + i))
            a("v_mov_b32 v30, s92")
            a("v_mov_b32 v31, s20")
            a("s_waitcnt vmcnt(0) lgkmcnt(0)")
            a("s_mov_b32 s30, 256")
            a("s_mov_b32 s31, 0x00020000")
            for i in range(4):
                a("buffer_store_dwordx4 v[%d:%d], v12, s[28:31], 0 offen offset:%d" % (16 + 4 * i, 19 + 4 * i, 16 * i))
            a.label("DBG_SKIP")
kernel_header(a, "g1_kernel")
a("s_cmp_ge_u32 s2, 256")
a("s_cbranch_scc1 G1_END")
rt_begin()
a("s_load_dwordx2 s[60:61], s[0:1], 8")
a("s_load_dwordx2 s[62:63], s[0:1], 16")
a("s_load_dwordx2 s[100:101], s[0:1], 24")
a("s_cmp_lt_u32 s2, 32")
a("s_cbranch_scc1 G1_PREP")
D, E = gen_gemm1(a, dbg="P", fuse=True, rts=ST)
rt_mid()
conv2.conv_main(a, D, E)
rt_end(0)
a("s_endpgm")
a.label("G1_PREP")
if conv2.TARGET == 16:
    a("s_load_dwordx2 s[30:31], s[0:1], 104")
    a("v_lshrrev_b32 v1, 6, v0")
    a("v_and_b32 v0, 63, v0")
    a("s_nop 0")
    a("v_readfirstlane_b32 s40, v1")
    a("s_waitcnt lgkmcnt(0)")
    prep4.prep4_issue(a, 60, 62, 100, 30, 64, 64, 40)
    a("s_waitcnt vmcnt(0)")
    prep4.prep4_compute(a, 64, 64, "B")
else:
    import prep6
    prep6.gen_prep6(a, 2, ST)
    a("v_lshrrev_b32 v1, 6, v0")
    a("v_and_b32 v0, 63, v0")
    a("s_nop 0")
    a("v_readfirstlane_b32 s40, v1")
conv2.conv_ptrs(a)
if ST: a("s_memrealtime s[96:97]")
a("s_waitcnt vmcnt(0) lgkmcnt(0)")
conv2.flag_srd(a)
if ST: a("s_memrealtime s[86:87]")
a("s_lshl_b32 s84, s40, 6")
a("v_add_u32 v252, s84, v0")
code_touch(a, 48, 252, 252, "g2_kernel")
a("s_barrier")
a("s_cmp_lg_u32 s40, 0")
a("s_cbranch_scc1 PREP_P4")
conv2.signal(a)
a.label("PREP_P3")
conv2.poll_issue(a, 210)
a("s_waitcnt vmcnt(0)")
conv2.poll_check(a, 210, 84)
a("s_cmp_lg_u32 s84, 0")
a("s_cbranch_scc1 PREP_P5")
a("s_sleep 64")
a("s_branch PREP_P3")
a.label("PREP_P5")
if os.environ.get("INV"):
    a("buffer_inv sc1")
    a("s_waitcnt vmcnt(0)")
a.label("PREP_P4")
a("s_barrier")
for g in conv2.conv_early(a):
    for i in g: a(i)
D = conv2.conv_issue(a)
rt_mid()
conv2.conv_main(a, D)
rt_end(0)
a.label("G1_END")
a("s_endpgm")
kernel_header(a, "g2_kernel")
a("s_cmp_ge_u32 s2, 256")
a("s_cbranch_scc1 G2_END")
rt_begin()
gen_gemm2(a)
rt_end(1)
a.label("G2_END")
a("s_endpgm")
a.label("CODE_END")
a.raw('.section .rodata,"a"')
sg = 102
a.raw(kernel_desc("g1_kernel", 512, sg, 256))
a.raw(kernel_desc("g2_kernel", 512, sg, 256))
open(sys.argv[1], "w").write(a.text())
```

```python
from asmlib import *
from layout import *
from prep import ws_srd

UC = 5184
HC = 4480
WAVE_LDS = 4 * UC + 2 * HC
CONV_LDS = 4 * WAVE_LDS

P_HK, P_D, P_GW, P_DBG, P_WS, P_Q = 64, 66, 68, 70, 72, 74
P_WD = 100
S_G, S_H, S_Z, S_Q, S_GW, S_GT, S_F = 4, 8, 12, 32, 36, 52, 80
sW, sD, sLB, T0, T1, T2, sDV, T3, T4 = 40, 60, 61, 62, 63, 76, 78, 77, 79
sHB = 85
KV = 160
GL = 176
VL = 200
VSW = 201
VZ = 204
VT = 208
import os
GSC = ' sc1' if os.environ.get('INV', '') == '' else ''
TARGET = 16 if os.environ.get('DPREP') else 8

def conv_ptrs(a):
    a("s_load_dwordx2 s[%d:%d], s[0:1], 32" % (P_HK, P_HK + 1))
    a("s_load_dwordx2 s[%d:%d], s[0:1], 40" % (P_D, P_D + 1))
    a("s_load_dwordx2 s[%d:%d], s[0:1], 80" % (P_GW, P_GW + 1))
    a("s_load_dwordx2 s[%d:%d], s[0:1], 96" % (P_DBG, P_DBG + 1))
    a("s_load_dwordx2 s[%d:%d], s[0:1], 104" % (P_WS, P_WS + 1))
    a("s_load_dwordx2 s[%d:%d], s[0:1], 0" % (P_Q, P_Q + 1))
    a("s_load_dwordx2 s[%d:%d], s[0:1], 72" % (P_WD, P_WD + 1))

def flag_srd(a):
    srd(a, S_F, P_DBG, 256)

def poll_issue(a, vdst):
    a("s_lshr_b32 s%d, s2, %d" % (T0, 4 if TARGET == 16 else 6))
    a("s_lshl_b32 s%d, s%d, %d" % (T0, T0, 2 if TARGET == 16 else 6))
    a("v_mov_b32 v%d, s%d" % (VT, T0))
    a("buffer_load_dword v%d, v%d, s[%d:%d], 0 offen sc1" % (vdst, VT, S_F, S_F + 3))

def poll_check(a, vdst, sdst):
    a("v_readfirstlane_b32 s%d, v%d" % (sdst, vdst))
    a("s_cmp_ge_u32 s%d, %d" % (sdst, TARGET))
    a("s_cselect_b32 s%d, 1, 0" % sdst)

def signal(a):
    if TARGET == 16: a("s_and_b32 s%d, s2, 15" % T0)
    else: a("s_and_b32 s%d, s2, 3" % T0)
    a("s_lshl_b32 s%d, s%d, %d" % (T0, T0, 2 if TARGET == 16 else 6))
    a("v_mov_b32 v%d, s%d" % (VT, T0))
    a("v_mov_b32 v%d, 1" % (VT + 1))
    a("s_mov_b64 exec, 1")
    a("buffer_atomic_add v%d, v%d, s[%d:%d], 0 offen sc1" % (VT + 1, VT, S_F, S_F + 3))
    a("s_mov_b64 exec, -1")

UREG = 65536
def conv_early(a):
    a("s_lshl_b32 s%d, s2, 2" % sD)
    a("s_add_u32 s%d, s%d, s%d" % (sD, sD, sW))
    a("s_mul_i32 s%d, s%d, %d" % (sLB, sW, 4 * UC))
    a("s_add_u32 s%d, s%d, %d" % (sLB, sLB, UREG))
    for i in range(4): a("v_mov_b32 v%d, 0" % (VZ + i))
    a("v_lshlrev_b32 v%d, 4, v0" % VL)
    a("v_add_u32 v%d, s%d, v%d" % (VT + 2, sLB, VL))
    ws_srd(a, S_G, P_WS, G_OFF, G_BYTES)
    a("v_lshrrev_b32 v%d, 4, v0" % VSW)
    a("v_and_b32 v%d, 1, v%d" % (VSW, VSW))
    a("v_lshlrev_b32 v%d, 1, v%d" % (VSW, VSW))
    a("v_xor_b32 v%d, v%d, v0" % (VSW, VSW))
    a("v_lshlrev_b32 v%d, 4, v%d" % (VSW, VSW))
    a("s_mul_i32 s%d, s%d, %d" % (T3, sD, G_PITCH))
    D = []
    for r in (3, 1, 2, 0):
        off = {3: 120, 1: 124, 2: 122, 0: 126}[r]
        for I in range(4):
            g = []
            if I == 0: g += ["s_add_u32 s%d, s%d, 0x%x" % (T4, T3, off), "s_add_u32 m0, s%d, %d" % (sLB, r * UC), "s_nop 0"]
            g.append("buffer_load_dwordx4 v%d, s[%d:%d], s%d offen offset:%d%s lds" % (VSW, S_G, S_G + 3, T4, I * 1024, GSC))
            if I == 3: g.append("ds_write_b128 v%d, v[%d:%d] offset:%d" % (VT + 2, VZ, VZ + 3, r * UC + 4112))
            D.append(g)
    g = ["s_mov_b64 exec, 1"]
    for r in range(4):
        off = {3: 120, 1: 124, 2: 122, 0: 126}[r]
        g.append("s_add_u32 s%d, s%d, 0x%x" % (T4, T3, off + 4096))
        g.append("s_add_u32 m0, s%d, %d" % (sLB, r * UC + 4096))
        g.append("s_nop 0")
        g.append("buffer_load_dwordx4 v%d, s[%d:%d], s%d offen%s lds" % (VSW, S_G, S_G + 3, T4, GSC))
    g.append("s_mov_b64 exec, -1")
    D.append(g)
    return D

def touch_hq(sq):
    r = ["s_lshl_b32 s%d, s2, 2" % sD, "s_add_u32 s%d, s%d, s%d" % (sD, sD, sW), "s_lshl_b32 s%d, s%d, 12" % (T0, sD),
         "s_mov_b32 s76, s%d" % P_HK, "s_mov_b32 s77, s%d" % (P_HK + 1), "s_mov_b32 s78, 0x%x" % (1024 * 2048 * 2), "s_mov_b32 s79, 0x00020000",
         "v_and_b32 v%d, 31, v0" % VT, "v_lshlrev_b32 v%d, 7, v%d" % (VT, VT),
         "buffer_load_dword v%d, v%d, s[76:79], s%d offen" % (VT + 1, VT, T0),
         "buffer_load_dword v%d, v%d, s[%d:%d], s%d offen" % (VT + 1, VT, sq, sq + 3, T0)]
    return r

def conv_issue(a):
    a("s_mul_i32 s%d, s%d, %d" % (sHB, sW, 2 * HC))
    a("v_add_u32 v%d, s%d, v%d" % (VT, sHB, VL))
    a("s_mov_b64 exec, 0xffff")
    for ph in range(2):
        a("ds_write_b128 v%d, v[%d:%d] offset:%d" % (VT, VZ, VZ + 3, ph * HC))
        a("ds_write_b128 v%d, v[%d:%d] offset:%d" % (VT, VZ, VZ + 3, ph * HC + HC - 256))
    a("s_mov_b64 exec, -1")
    srd(a, S_H, P_HK, 1024 * 2048 * 2)
    ws_srd(a, S_Z, P_WS, Z_OFF, Z_BYTES)
    srd(a, S_Q, P_Q, 2048 * 1024 * 2)
    srd(a, S_GW, P_GW, 1024 * 2)
    ws_srd(a, S_GT, P_WS, GT_OFF, GT_BYTES)
    a("s_lshl_b32 s%d, s%d, 12" % (T0, sD))
    a("buffer_load_dwordx4 v[%d:%d], v%d, s[%d:%d], 0 offen" % (GL, GL + 3, VL, S_GW, S_GW + 3))
    a("buffer_load_dwordx4 v[%d:%d], v%d, s[%d:%d], 0 offen offset:1024" % (GL + 4, GL + 7, VL, S_GW, S_GW + 3))
    for i in range(4):
        a("buffer_load_dwordx4 v[%d:%d], v%d, s[%d:%d], s%d offen offset:%d" % (GL + 8 + 4 * i, GL + 11 + 4 * i, VL, S_Q, S_Q + 3, T0, 1024 * i))
    a("s_lshr_b32 s%d, s%d, 1" % (T1, sD))
    a("s_lshl_b32 s%d, s%d, 2" % (T1, T1))
    a("s_load_dword s%d, s[%d:%d], s%d" % (sDV, P_D, P_D + 1, T1))
    a("v_and_b32 v%d, 15, v0" % VT)
    a("v_lshrrev_b32 v%d, 4, v0" % (VT + 1))
    a("v_lshlrev_b32 v%d, 7, v%d" % (VT + 1, VT + 1))
    a("v_lshlrev_b32 v%d, 3, v%d" % (VT, VT))
    a("v_add_u32 v%d, v%d, v%d" % (VT, VT, VT + 1))
    a("v_sub_u32 v%d, 568, v%d" % (VT, VT))
    a("v_lshlrev_b32 v%d, 1, v%d" % (VT, VT))
    a("s_waitcnt lgkmcnt(0)")
    D = []
    for ph in range(2):
        for I in range(4):
            g = []
            if I == 0: g += ["s_add_u32 m0, s%d, %d" % (sHB, ph * HC + (128 - 4 * ph) * 2), "s_nop 0"]
            g.append("buffer_load_dwordx4 v%d, s[%d:%d], s%d offen offset:%d lds" % (VL, S_H, S_H + 3, T0, I * 1024))
            D.append(g)
    for T in range(4):
        D.append(["buffer_load_dwordx4 v[%d:%d], v%d, s[%d:%d], s%d offen offset:%d%s" % (KV + 4 * T, KV + 4 * T + 3, VT, S_G, S_G + 3, T3, (3 - T) * 1024, GSC)])
    return D

WPF = 0
SPN = int(os.environ.get("SPN", "6"))
G1N = int(os.environ.get("G1N", "0"))
G1POS = int(os.environ.get("G1POS", "40"))
def wd_touch(spare, mall=False):
    n = SPN if spare else G1N
    if mall: n = 7
    if not n: return []
    S = S_GW
    r = ["s_mov_b32 s%d, s%d" % (S, P_WD), "s_mov_b32 s%d, s%d" % (S + 1, P_WD + 1), "s_mov_b32 s%d, 0x%x" % (S + 2, 3584 * 1024 * 2), "s_mov_b32 s%d, 0x00020000" % (S + 3),
         "v_lshrrev_b32 v138, 3, v0", "v_lshlrev_b32 v138, 11, v138", "v_and_b32 v139, 7, v0", "v_lshlrev_b32 v139, 7, v139", "v_add_u32 v138, v138, v139",
         "s_lshr_b32 s%d, s2, 3" % T0]
    if spare:
        r += ["s_mul_i32 s%d, s%d, 896" % (T0, T0), "s_lshl_b32 s%d, s%d, 3" % (T1, sW)]
        if mall:
            r += ["s_add_u32 s%d, s%d, s%d" % (T0, T0, T1), "s_and_b32 s%d, s2, 3" % T1, "s_mul_i32 s%d, s%d, 224" % (T1, T1)]
        step = 32
    else:
        per = -(-(896 - 32 * SPN) // 28)
        per = min(per, 8 * n)
        r += ["s_mul_i32 s%d, s%d, %d" % (T0, T0, per), "s_add_u32 s%d, s%d, %d" % (T0, T0, 32 * SPN - 4 * per), "s_mul_i32 s%d, s%d, 896" % (T1, sW)]
        step = 8
    r += ["s_add_u32 s%d, s%d, s%d" % (T0, T0, T1), "s_lshl_b32 s%d, s%d, 11" % (T0, T0),
         "s_and_b32 s%d, s2, 4" % T1, "s_lshl_b32 s%d, s%d, 8" % (T1, T1), "s_add_u32 s%d, s%d, s%d" % (T0, T0, T1)]
    for b in range(n):
        r.append("buffer_load_dword v139, v138, s[%d:%d], s%d offen" % (S, S + 3, T0))
        r.append("s_add_u32 s%d, s%d, 0x%x" % (T0, T0, step * 2048))
    return r

NE0 = int(os.environ.get("NE0", "2"))
DSP_ = int(os.environ.get("CDSP", "8"))
def conv_main(a, D, E=None):
    E = E or []
    ne0 = min(NE0, len(E))
    vm = []
    def em(i):
        a(i)
        if i.startswith("buffer_"): vm.append(i)
    pre = [i for g in E[:ne0] for i in g]; rest = [i for g in E[ne0:] for i in g]
    a("v_and_b32 v8, 15, v0")
    a("v_lshrrev_b32 v9, 4, v0")
    a("v_lshlrev_b32 v10, 7, v9")
    a("v_lshlrev_b32 v11, 3, v8")
    a("v_add_u32 v10, v10, v11")
    a("v_lshlrev_b32 v12, 1, v10")
    a("v_add_u32 v13, v8, v9")
    a("v_lshlrev_b32 v13, 4, v13")
    a("v_add_u32 v13, s%d, v13" % sHB)
    a("v_lshrrev_b32 v4, 2, v8")
    a("v_and_b32 v5, 3, v8")
    a("s_movk_i32 s%d, %d" % (T1, UC))
    a("v_mul_lo_u32 v5, v5, s%d" % T1)
    a("v_sub_u32 v6, 3, v4")
    a("v_lshlrev_b32 v6, 8, v6")
    a("v_add_u32 v5, v5, v6")
    a("v_add_u32 v5, s%d, v5" % sLB)
    a("v_and_b32 v6, 1, v4")
    a("v_lshlrev_b32 v6, 1, v6")
    a("v_xor_b32 v7, v9, v6")
    a("v_xor_b32 v6, 2, v7")
    a("v_lshlrev_b32 v6, 4, v6")
    a("v_lshlrev_b32 v7, 4, v7")
    a("v_add_u32 v14, v5, v6")
    a("v_add_u32 v15, v5, v7")
    ACC = 32
    for i in range(32): a("v_mov_b32 v%d, 0" % (ACC + i))
    FB = 64
    def reads(n):
        b = FB + (n % 3) * 24
        r = []
        for ph in range(2):
            r.append("ds_read_b128 v[%d:%d], v13 offset:%d" % (b + 4 * ph, b + 4 * ph + 3, ph * HC + 64 * n))
        m = n >> 2
        for T in range(4):
            if n <= 16 * T + 16:
                r.append("ds_read_b128 v[%d:%d], v%d offset:%d" % (b + 8 + 4 * T, b + 11 + 4 * T, 14 + (m & 1), 3072 - 1024 * T + 256 * m + 64 * (n & 3)))
        return r
    def mf(n):
        b = FB + (n % 3) * 24
        r = []
        for T in range(4):
            if n <= 16 * T + 16:
                for ph in range(2):
                    c = ACC + (T * 2 + ph) * 4
                    r.append("v_mfma_f32_16x16x32_bf16 v[%d:%d], v[%d:%d], v[%d:%d], v[%d:%d]" % (c, c + 3, b + 8 + 4 * T, b + 11 + 4 * T, b + 4 * ph, b + 4 * ph + 3, c, c + 3))
        return r
    NS = 65
    M = T2
    a("s_mov_b32 s%d, 0xffff0000" % M)
    for i in place(pre, [(DSP_ * n, g) for n, g in enumerate(D)]): em(i)
    a("s_waitcnt vmcnt(%d)" % len(vm))
    for i in range(8):
        a("v_lshlrev_b32 v%d, 16, v%d" % (88 + 2 * i, GL + i))
        a("v_and_b32 v%d, s%d, v%d" % (89 + 2 * i, M, GL + i))
    for r in range(2):
        for i in range(8):
            src = GL + 8 + 8 * r + i
            t = 104 + 2 * (i & 1)
            a("v_lshlrev_b32 v%d, 16, v%d" % (t, src))
            a("v_and_b32 v%d, s%d, v%d" % (t + 1, M, src))
            a("v_mul_f32 v%d, v%d, v%d" % (t, t, 88 + 2 * i))
            a("v_mul_f32 v%d, v%d, v%d" % (t + 1, t + 1, 89 + 2 * i))
            a("v_cvt_pk_bf16_f32 v%d, v%d, v%d" % (t, t, t + 1))
            a("v_lshlrev_b32 v%d, 16, v%d" % (t + 1, t))
            a("v_and_b32 v%d, s%d, v%d" % (t, M, t))
            if i == 0:
                a("v_add_f32 v%d, v%d, v%d" % (108 + r, t, t + 1))
            else:
                a("v_add_f32 v%d, v%d, v%d" % (t, t, t + 1))
                a("v_add_f32 v%d, v%d, v%d" % (108 + r, 108 + r, t))
    for step in (1, 2, 4, 8, 16, 32):
        a("v_xor_b32 v104, %d, v0" % step)
        a("v_lshlrev_b32 v104, 2, v104")
        a("ds_bpermute_b32 v110, v104, v108")
        a("ds_bpermute_b32 v111, v104, v109")
        a("s_waitcnt lgkmcnt(0)")
        a("v_add_f32 v108, v108, v110")
        a("v_add_f32 v109, v109, v111")
    a("v_cmp_eq_u32 vcc, 1, v0")
    a("s_nop 1")
    a("v_cndmask_b32 v136, v108, v109, vcc")
    a("v_cvt_pk_bf16_f32 v136, v136, v136")
    a("v_lshlrev_b32 v136, 16, v136")
    a("v_mul_f32 v136, 0xbfb8aa3b, v136")
    a("v_exp_f32 v136, v136")
    a("s_nop 0")
    a("v_add_f32 v136, 1.0, v136")
    a("v_rcp_f32 v136, v136")
    a("s_nop 0")
    a("v_cvt_pk_bf16_f32 v136, v136, v136")
    a("v_lshlrev_b32 v136, 16, v136")
    a("v_lshlrev_b32 v137, 2, v0")
    last = max(k for k, i in enumerate(vm) if "load" in i)
    a("s_waitcnt vmcnt(%d)" % (len(vm) - 1 - last))
    a("s_lshl_b32 s%d, s%d, 3" % (T0, sD))
    a("s_mov_b64 exec, 3")
    a("buffer_store_dword v136, v137, s[%d:%d], s%d offen" % (S_GT, S_GT + 3, T0))
    a("s_mov_b64 exec, -1")
    for i in reads(0): a(i)
    for i in reads(1): a(i)

    nm_total = sum(len(mf(n)) for n in range(NS))
    done_m = 0; done_e = 0
    for n in range(NS):
        nxt = reads(n + 2) if n + 2 < NS else []
        n1 = len(reads(n + 1)) if n + 1 < NS else 0
        a("s_waitcnt lgkmcnt(%d)" % n1)
        if E and n == G1POS:
            for i in wd_touch(False): a(i)
        m = mf(n)
        pl = [(k, [x]) for k, x in enumerate(nxt)]
        for k in range(len(m)):
            done_m += 1
            tgt = (len(rest) * done_m + nm_total - 1) // nm_total
            pl.append((k, rest[done_e:tgt])); done_e = tgt
        for i in place(m, pl): a(i)
    assert done_e == len(rest)
    a("s_and_b32 s%d, s%d, 1" % (T0, sD))
    a("s_lshl_b32 s%d, s%d, 16" % (T1, sDV))
    a("s_and_b32 s%d, s%d, 0xffff0000" % (sDV, sDV))
    a("s_cmp_eq_u32 s%d, 0" % T0)
    a("s_cselect_b32 s%d, s%d, s%d" % (sDV, T1, sDV))
    a("s_lshl_b32 s%d, s%d, 12" % (T0, sD))
    a("s_nop 7")
    for T in range(4):
        Y = 64; Kf = 72; O = 80 + 4 * T
        c = ACC + T * 8
        for p in range(4):
            a("v_cvt_pk_bf16_f32 v%d, v%d, v%d" % (96, c + 2 * p, c + 2 * p + 1))
            a("v_lshlrev_b32 v%d, 16, v96" % (Y + 2 * p))
            a("v_and_b32 v%d, s%d, v96" % (Y + 2 * p + 1, M))
        for p in range(4):
            src = KV + 4 * T + (3 - p)
            a("v_and_b32 v%d, s%d, v%d" % (Kf + 2 * p, M, src))
            a("v_lshlrev_b32 v%d, 16, v%d" % (Kf + 2 * p + 1, src))
        for e in range(8):
            a("v_mul_f32 v%d, s%d, v%d" % (Kf + e, sDV, Kf + e))
        for p in range(4):
            a("v_cvt_pk_bf16_f32 v96, v%d, v%d" % (Kf + 2 * p, Kf + 2 * p + 1))
            a("v_lshlrev_b32 v%d, 16, v96" % (Kf + 2 * p))
            a("v_and_b32 v%d, s%d, v96" % (Kf + 2 * p + 1, M))
        for e in range(8):
            a("v_add_f32 v%d, v%d, v%d" % (Y + e, Y + e, Kf + e))
        for p in range(4):
            a("v_cvt_pk_bf16_f32 v%d, v%d, v%d" % (O + p, Y + 2 * p, Y + 2 * p + 1))
        a("buffer_store_dwordx4 v[%d:%d], v12, s[%d:%d], s%d offen offset:%d" % (O, O + 3, S_Z, S_Z + 3, T0, T * 1024))
    if not E or G1POS < 0:
        for i in wd_touch(not E): a(i)
```

```python
from asmlib import *
from layout import G_PITCH, Z_OFF, Z_BYTES

import os
ROT = int(os.environ.get('ROT', '5'))
PD = int(os.environ.get('PD', '6'))
DS0 = int(os.environ.get('DS0', '1'))
DSP = int(os.environ.get('DSP', '4'))
H1_OFF = 0
H1_BYTES = 2048 * 3584 * 2

def gen_gemm1(a, name="g1_kernel", end_label="G1_END", stamps=False, dbg="", fuse=False, rts=False):
    PST = os.environ.get("PST", "") != ""
    def rt(r):
        if rts and not (PST and r in (90,)): a("s_memrealtime s[%d:%d]" % (r, r + 1))
    def prt(r):
        if rts and PST: a("s_memrealtime s[%d:%d]" % (r, r + 1))
    def stamp(i):
        if stamps:
            a("s_memtime s[%d:%d]" % (60 + 2 * i, 61 + 2 * i))
    stamp(0)
    S_X, S_WG, S_WU, S_H = 4, 8, 12, 16
    sKX, sKW, sCNT = 20, 21, 22
    sM0 = 32
    sW = 40
    sT = 41
    vXoff = 2
    vWoff = 10
    vXa = 14
    vWa = 18
    vT = 26
    F = [64, 128]

    a("s_load_dwordx2 s[24:25], s[0:1], 0")
    a("s_load_dwordx2 s[26:27], s[0:1], 56")
    a("s_load_dwordx2 s[28:29], s[0:1], 64")
    a("s_load_dwordx2 s[30:31], s[0:1], 104")
    if fuse: code_touch(a, 76, 45, 0, "g1_kernel", end_label="G1_PREP")
    a("s_and_b32 s41, s2, 7")
    a("s_lshr_b32 s42, s2, 3")
    if fuse: a("s_sub_u32 s42, s42, 4")
    a("s_and_b32 s43, s41, 1")
    a("s_lshl_b32 s43, s43, 2")
    a("s_and_b32 s44, s42, 3")
    a("s_add_u32 s43, s43, s44")
    a("s_lshr_b32 s44, s41, 1")
    a("s_mul_i32 s44, s44, 7")
    a("s_lshr_b32 s45, s42, 2")
    a("s_add_u32 s44, s44, s45")
    if "Z" in dbg:
        a("s_mov_b32 s43, 0")
        a("s_mov_b32 s44, 0")
    if "Y" in dbg:
        a("s_and_b32 s43, s43, 1")
        a("s_and_b32 s44, s44, 1")
    a("s_lshl_b32 s43, s43, 8")
    a("s_lshl_b32 s44, s44, 7")
    a("v_lshrrev_b32 v1, 6, v0")
    a("v_and_b32 v0, 63, v0")
    a("s_nop 0")
    a("v_readfirstlane_b32 s%d, v1" % sW)
    a("s_waitcnt lgkmcnt(0)")
    prt(86)
    srd(a, S_X, 24, 2048 * 1024 * 2)
    srd(a, S_WG, 26, 1024 * 3584 * 2)
    srd(a, S_WU, 28, 1024 * 3584 * 2)
    srd(a, S_H, 30, H1_BYTES)
    a("s_lshl_b32 s45, s%d, 13" % sW)
    a("s_lshl_b32 s46, s%d, 12" % sW)
    for b in range(2):
        a("s_add_u32 s%d, s45, 0x%x" % (sM0 + 4 * b + 0, (1 - b) * 65536))
        a("s_add_u32 s%d, s45, 0x%x" % (sM0 + 4 * b + 1, (1 - b) * 65536 + 4096))
        a("s_add_u32 s%d, s46, 0x%x" % (sM0 + 4 * b + 2, (1 - b) * 65536 + 32768))
        a("s_add_u32 s%d, s46, 0x%x" % (sM0 + 4 * b + 3, (1 - b) * 65536 + 49152))
    t0, t1, t2, t3 = vT, vT + 1, vT + 2, vT + 3
    a("v_lshrrev_b32 v%d, 3, v0" % t0)
    a("s_lshl_b32 s45, s%d, 6" % sW)
    a("s_add_u32 s45, s45, s43")
    a("v_add_u32 v%d, s45, v%d" % (t0, t0))
    a("v_lshlrev_b32 v%d, 11, v%d" % (t0, t0))
    a("v_and_b32 v%d, 7, v0" % t1)
    a("v_lshrrev_b32 v%d, 4, v0" % t2)
    a("v_xor_b32 v%d, v%d, v%d" % (t1, t1, t2))
    a("v_lshlrev_b32 v%d, 4, v%d" % (t1, t1))
    a("v_add_u32 v%d, v%d, v%d" % (t0, t0, t1))
    a("v_xor_b32 v%d, 64, v%d" % (t1, t0))
    for j in range(8):
        a("v_add_u32 v%d, 0x%x, v%d" % (vXoff + j, j * 16384 - (j & 3) * 1024, t0 if j % 2 == 0 else t1))
    a("s_lshl_b32 s45, s%d, 4" % sW)
    a("v_add_u32 v%d, s45, v%d" % (t0, t2))
    a("s_movk_i32 s46, 7168")
    a("v_mul_lo_u32 v%d, v%d, s46" % (t0, t0))
    a("s_lshl_b32 s45, s44, 1")
    a("v_add_u32 v%d, s45, v%d" % (t0, t0))
    a("v_and_b32 v%d, 15, v0" % t1)
    a("v_lshlrev_b32 v%d, 1, v%d" % (t3, t2))
    a("v_xor_b32 v%d, v%d, v%d" % (t1, t1, t3))
    a("v_lshlrev_b32 v%d, 4, v%d" % (t1, t1))
    a("v_add_u32 v%d, v%d, v%d" % (t0, t0, t1))
    a("v_xor_b32 v%d, 0x80, v%d" % (t1, t0))
    for j in range(4):
        a("v_add_u32 v%d, 0x%x, v%d" % (vWoff + j, j * 4 * 7168 - j * 1024, t0 if j < 2 else t1))
    if "P" in dbg:
        a("s_lshr_b32 s45, s42, 2")
        a("s_mul_i32 s45, s45, 40")
        a("v_add_u32 v%d, s45, v0" % t0)
        a("v_min_u32 v%d, 255, v%d" % (t0, t0))
        a("v_add_u32 v%d, s43, v%d" % (t0, t0))
        a("v_lshlrev_b32 v%d, 11, v%d" % (t0, t0))
        a("v_lshrrev_b32 v%d, 1, v0" % t1)
        a("v_and_b32 v%d, 15, v%d" % (t1, t1))
        a("v_lshlrev_b32 v%d, 2, v%d" % (t1, t1))
        a("s_and_b32 s45, s42, 3")
        a("v_add_u32 v%d, s45, v%d" % (t1, t1))
        a("v_mul_lo_u32 v%d, v%d, s46" % (t1, t1))
        a("v_and_b32 v%d, 1, v0" % t3)
        a("v_lshlrev_b32 v%d, 7, v%d" % (t3, t3))
        a("v_add_u32 v%d, v%d, v%d" % (t1, t1, t3))
        a("s_lshl_b32 s45, s44, 1")
        a("v_add_u32 v%d, s45, v%d" % (t1, t1))
        a("s_cmp_eq_u32 s%d, 1" % sW)
        a("s_cselect_b32 s52, s26, s24")
        a("s_cselect_b32 s53, s27, s25")
        a("s_cmp_eq_u32 s%d, 2" % sW)
        a("s_cselect_b32 s52, s28, s52")
        a("s_cselect_b32 s53, s29, s53")
        a("s_add_u32 s45, s%d, -1" % sW)
        a("s_mov_b32 s54, 0x%x" % (2048 * 1024 * 2))
        a("s_movk_i32 s57, 128")
        a("s_cmp_lt_u32 s45, 2")
        a("s_cselect_b32 s54, 0x%x, s54" % (1024 * 3584 * 2))
        a("s_mov_b32 s55, 0x00020000")
        a("s_cselect_b32 s57, 0x%x, s57" % (64 * 7168))
        a("s_cselect_b64 vcc, -1, 0")
        a("s_nop 1")
        a("v_cndmask_b32 v41, v%d, v%d, vcc" % (t0, t1))
        a("s_lshl_b32 s56, s57, 1")
    if "K" in dbg:
        a("s_mul_i32 s23, s42, %d" % ROT)
        a("s_and_b32 s23, s23, 15")
        a("s_lshl_b32 s%d, s23, 7" % sKX)
        a("s_mul_i32 s%d, s23, 0x%x" % (sKW, 64 * 7168))
    else:
        a("s_mov_b32 s%d, 0" % sKX)
        a("s_mov_b32 s%d, 0" % sKW)

    def dma(b):
        g = []
        for half in range(2):
            if "W" in dbg: break
            for jj in range(4):
                j = half * 4 + jj
                ins = []
                if jj == 0:
                    ins.append("s_mov_b32 m0, s%d" % (sM0 + 4 * b + half))
                    ins.append("s_nop 0")
                ins.append("buffer_load_dwordx4 v%d, s[%d:%d], s%d offen offset:%d lds" % (vXoff + j, S_X, S_X + 3, sKX, jj * 1024))
                g.append(ins)
        for gu in range(2):
            if "X" in dbg: break
            S = S_WG if gu == 0 else S_WU
            for j in range(4):
                ins = []
                if j == 0:
                    ins.append("s_mov_b32 m0, s%d" % (sM0 + 4 * b + 2 + gu))
                    ins.append("s_nop 0")
                ins.append("buffer_load_dwordx4 v%d, s[%d:%d], s%d offen offset:%d lds" % (vWoff + j, S, S + 3, sKW, j * 1024))
                g.append(ins)
        if "K" in dbg:
            g[-1].append("s_add_u32 s23, s23, 1")
            g[-1].append("s_and_b32 s23, s23, 15")
            g[-1].append("s_lshl_b32 s%d, s23, 7" % sKX)
            g[-1].append("s_mul_i32 s%d, s23, 0x%x" % (sKW, 64 * 7168))
        else:
            g[-1].append("s_add_u32 s%d, s%d, 128" % (sKX, sKX))
            g[-1].append("s_add_u32 s%d, s%d, 0x%x" % (sKW, sKW, 64 * 7168))
        return g

    import prep4, conv2
    dprep = fuse and conv2.TARGET == 16
    if dprep:
        prep4.prep4_issue(a, 60, 62, 100, 30, 64, 64, sW)
    prt(96)
    for g in dma(0):
        for i in g: a(i)
    for g in dma(1):
        for i in g: a(i)
    prt(90)
    def touch():
        return ["buffer_load_dword v42, v41, s[52:55], s56 offen", "s_add_u32 s56, s56, s57"]
    if "P" in dbg:
        for _ in range(PD - 2):
            for i in touch(): a(i)

    NCT = 0
    a("s_lshr_b32 s45, s%d, 1" % sW)
    a("s_and_b32 s46, s%d, 1" % sW)
    a("v_and_b32 v%d, 15, v0" % t0)
    a("s_lshl_b32 s47, s45, 7")
    a("v_add_u32 v%d, s47, v%d" % (t0, t0))
    a("v_lshlrev_b32 v%d, 7, v%d" % (t0, t0))
    a("v_lshrrev_b32 v%d, 1, v0" % t1)
    a("v_and_b32 v%d, 7, v%d" % (t1, t1))
    a("v_xor_b32 v%d, v%d, v%d" % (t1, t1, t2))
    a("v_lshlrev_b32 v%d, 4, v%d" % (t1, t1))
    a("v_add_u32 v%d, v%d, v%d" % (vXa + 2, t0, t1))
    a("v_xor_b32 v%d, 64, v%d" % (vXa + 3, vXa + 2))
    a("v_add_u32 v%d, 0x10000, v%d" % (vXa + 0, vXa + 2))
    a("v_add_u32 v%d, 0x10000, v%d" % (vXa + 1, vXa + 3))
    a("v_lshrrev_b32 v%d, 2, v0" % t0)
    a("v_and_b32 v%d, 3, v%d" % (t0, t0))
    a("v_lshlrev_b32 v%d, 3, v%d" % (t1, t2))
    a("v_add_u32 v%d, v%d, v%d" % (t1, t1, t0))
    a("v_lshlrev_b32 v%d, 8, v%d" % (t1, t1))
    a("v_and_b32 v%d, 3, v0" % t3)
    a("v_lshlrev_b32 v%d, 3, v%d" % (t3, t3))
    a("v_add_u32 v%d, v%d, v%d" % (t1, t1, t3))
    a("v_add_u32 v%d, 0x8000, v%d" % (t1, t1))
    a("v_and_b32 v%d, 1, v%d" % (t3, t2))
    a("v_lshlrev_b32 v%d, 2, v%d" % (t3, t3))
    a("v_or_b32 v%d, v%d, v%d" % (t0, t0, t3))
    a("s_lshl_b32 s47, s46, 2")
    for t in range(4):
        a("s_add_u32 s48, s47, %d" % t)
        a("v_xor_b32 v%d, s48, v%d" % (t3, t0))
        a("v_lshlrev_b32 v%d, 5, v%d" % (t3, t3))
        a("v_add_u32 v%d, v%d, v%d" % (vWa + 4 + t, t1, t3))
        a("v_add_u32 v%d, 0x10000, v%d" % (vWa + t, vWa + 4 + t))
    if fuse and not dprep:
        conv2.conv_ptrs(a)
    for i in range(256):
        a("v_accvgpr_write_b32 a%d, 0" % i)

    def reads(fs, b, s):
        fb = F[fs]
        r = []
        for i in range(8):
            r.append(["ds_read_b128 v[%d:%d], v%d offset:%d" % (fb + 4 * i, fb + 4 * i + 3, vXa + 2 * b + s, i * 2048)])
        w = []
        for gu in range(2):
            for t in range(4):
                for h in range(2):
                    d = fb + 32 + 4 * (gu * 4 + t) + 2 * h
                    w.append(["ds_read_b64_tr_b16 v[%d:%d], v%d offset:%d" % (d, d + 1, vWa + 4 * b + t, gu * 16384 + s * 8192 + h * 1024)])
        out = []
        for i in range(8):
            out.append(r[i]); out.append(w[2 * i]); out.append(w[2 * i + 1])
        return out

    def mfmas(fs):
        fb = F[fs]
        m = []
        if "M" in dbg: return m
        for i in range(8):
            for wt in range(8):
                c = (wt * 8 + i) * 4
                m.append("v_mfma_f32_16x16x32_bf16 a[%d:%d], v[%d:%d], v[%d:%d], a[%d:%d]" % (
                    c, c + 3, fb + 32 + 4 * wt, fb + 32 + 4 * wt + 3, fb + 4 * i, fb + 4 * i + 3, c, c + 3))
        return m

    stamp(1)
    if fuse and not dprep and os.environ.get("TLB"):
        a("s_waitcnt lgkmcnt(0)")
        a("s_lshl_b32 s80, s2, 2")
        a("s_add_u32 s80, s80, s%d" % sW)
        a("s_lshl_b32 s80, s80, 12")
        a("v_mov_b32 v45, 0")
        a("s_mov_b32 s79, 0x00020000")
        for P, nb, so in ((conv2.P_HK, 1024 * 2048 * 2, "s80"), (conv2.P_GW, 2048, "0"), (conv2.P_D, 2048, "0"), (conv2.P_DBG, 256, "0")):
            a("s_mov_b32 s76, s%d" % P)
            a("s_mov_b32 s77, s%d" % (P + 1))
            a("s_mov_b32 s78, 0x%x" % nb)
            a("buffer_load_dword v46, v45, s[76:79], %s offen%s" % (so, " sc1" if P == conv2.P_DBG else ""))
            NCT += 1
        a("s_add_u32 s76, s30, 0x%x" % Z_OFF)
        a("s_addc_u32 s77, s31, 0")
        a("s_mov_b32 s78, 0x%x" % Z_BYTES)
        a("buffer_load_dword v46, v45, s[76:79], s80 offen")
        NCT += 1
    if dprep:
        a("s_waitcnt vmcnt(%d)" % (32 + PD - 2))
        rt(96)
        prep4.prep4_compute(a, 64, 64, "A")
        conv2.conv_ptrs(a)
        rt(86)
    a("s_waitcnt vmcnt(%d)" % ((8 if ("X" in dbg or "W" in dbg) else 16) + (PD - 2 if "P" in dbg else 0) + (8 if dprep else 0) + NCT))
    prt(94)
    a("s_barrier")
    stamp(2)
    if rts and not dprep:
        rt(98)
        if not PST: a("s_memtime s[86:87]")
    for g in reads(0, 0, 0):
        for i in g: a(i)

    LST = os.environ.get("LST", "") != ""
    if LST:
        a("s_lshl_b32 s90, s%d, 8" % sW)
        a("s_add_u32 s90, s90, 150016")
        a("v_mov_b32 v44, s90")
        a("s_memtime s[90:91]")
    def lst():
        if LST:
            a("v_mov_b32 v43, s90")
            a("ds_write_b32 v44, v43")
            a("v_add_u32 v44, 4, v44")
            a("s_memtime s[90:91]")
    def stage(b, do_dma, do_next, first=False, preB=None, vmB=None, extraA=None, extraB=None, tailB=None, postW=None):
        a("s_waitcnt lgkmcnt(0)")
        lst()
        pa = [(2 * n, g) for n, g in enumerate(reads(1, b, 1) if "R" not in dbg else [])]
        if extraA: pa += [(1 + 4 * n, g) for n, g in enumerate(extraA)]
        for i in place(mfmas(0), pa): a(i)
        a("s_waitcnt lgkmcnt(0)")
        lst()
        if preB: preB()
        if do_next:
            if "V" in dbg:
                pass
            elif vmB is not None:
                a("s_waitcnt vmcnt(%d)" % vmB)
            elif first == 1:
                a("s_waitcnt vmcnt(%d)" % (PD - 2 + 8))
            elif "P" in dbg:
                a("s_waitcnt vmcnt(%d)" % (1 if "2" not in dbg else 18))
            else:
                a("s_waitcnt vmcnt(%d)" % (0 if "2" not in dbg else (8 if ("X" in dbg or "W" in dbg) else 16)))
            if postW: postW()
            if LST:
                a("s_waitcnt lgkmcnt(0)")
                lst()
            if "B" not in dbg: a("s_barrier")
            if LST:
                a("s_waitcnt lgkmcnt(0)")
                lst()
            if first == 2:
                conv2.flag_srd(a)
                a("s_cmp_lg_u32 s%d, 0" % sW)
                a("s_cbranch_scc1 G1_P0")
                conv2.signal(a)
                a.label("G1_P0")
        pl = []
        if do_next and "R" not in dbg:
            for n, g in enumerate(reads(0, b ^ 1, 0)): pl.append((2 * n, g))
        if do_dma and "D" not in dbg:
            dl = dma(b)
            if "P" in dbg: dl[-1] = dl[-1] + touch()
            if tailB: dl[-1] = dl[-1] + tailB
            for n, g in enumerate(dl): pl.append((DS0 + DSP * n, g))
        if extraB: pl += [(1 + 4 * n, g) for n, g in enumerate(extraB)]
        for i in place(mfmas(1), pl): a(i)

    a("s_mov_b32 s%d, 0" % sCNT)
    if dprep:
        stage(0, True, True, first=1)
        stage(1, True, True, first=2)
        a("s_mov_b32 s%d, 1" % sCNT)
        rt(98)
    a.label("G1_LOOP")
    stage(0, True, True)
    stage(1, True, True)
    a("s_add_u32 s%d, s%d, 1" % (sCNT, sCNT))
    a("s_cmp_lt_u32 s%d, %d" % (sCNT, 6 if fuse else 7))
    a("s_cbranch_scc1 G1_LOOP")
    if fuse:
        if not dprep: conv2.flag_srd(a)
        a("s_mov_b32 s84, 0")
        NOINV = os.environ.get("INV", "") == ""
        if NOINV:
            keep = a.lines; a.lines = []
            conv2.poll_issue(a, 202)
            pi = [l.strip() for l in a.lines]; a.lines = keep
            pi = ["s_cmp_lg_u32 s%d, 0" % sW, "s_cbranch_scc1 G1_P1"] + pi + ["G1_P1:"]
            WPF = conv2.WPF
            n12 = max(1, (WPF + 1) // 2); n13 = max(1, WPF // 2)
            ws_ = conv2.wd_setup() if WPF else []
            stage(0, True, True, tailB=(n12 - 1) * touch() + conv2.touch_hq(S_X), extraB=[pi], extraA=[ws_[i:i + 2] for i in range(0, len(ws_), 2)])
            def post1():
                conv2.poll_check(a, 202, 84)
            stage(1, True, True, vmB=2 + n12, postW=post1, tailB=(n13 - 1) * touch())
        else:
            stage(0, True, True, tailB=conv2.touch_hq(S_X))
            a("s_cmp_lg_u32 s%d, 0" % sW)
            a("s_cbranch_scc1 G1_P1")
            conv2.poll_issue(a, 202)
            a.label("G1_P1")
            def chk1():
                a("s_cmp_lg_u32 s%d, 0" % sW)
                a("s_cbranch_scc1 G1_P2")
                a("s_waitcnt vmcnt(0)")
                conv2.poll_check(a, 202, 84)
                a("s_cmp_eq_u32 s84, 0")
                a("s_cbranch_scc1 G1_P2")
                a("buffer_inv sc1")
                a.label("G1_P2")
            stage(1, True, True, preB=chk1, vmB=3)
        DE = conv2.conv_early(a)
        def chk2():
            a("s_cmp_lg_u32 s%d, 0" % sW)
            a("s_cbranch_scc1 G1_P4")
            a("s_cmp_lg_u32 s84, 0")
            a("s_cbranch_scc1 G1_P4")
            a.label("G1_P3")
            conv2.poll_issue(a, 202)
            a("s_waitcnt vmcnt(0)")
            conv2.poll_check(a, 202, 84)
            a("s_cmp_lg_u32 s84, 0")
            a("s_cbranch_scc1 G1_P5")
            a("s_sleep 16")
            a("s_branch G1_P3")
            a.label("G1_P5")
            if not NOINV:
                a("buffer_inv sc1")
                a("s_waitcnt vmcnt(0)")
            a.label("G1_P4")
        stage(0, False, True, preB=chk2, extraB=DE[:12], vmB=(n13 if NOINV else 1))
        stage(1, False, False, extraA=DE[12:])
        if LST:
            a("s_waitcnt lgkmcnt(0)")
            lst()
            a("s_lshl_b32 s90, s%d, 8" % sW)
            a("s_add_u32 s90, s90, 150016")
            a("v_lshlrev_b32 v44, 2, v0")
            a("v_add_u32 v43, s90, v44")
            a("s_waitcnt lgkmcnt(0)")
            a("ds_read_b32 v43, v43")
            a("s_add_u32 s76, s30, 0x6000000")
            a("s_addc_u32 s77, s31, 0")
            a("s_mov_b32 s78, 0x100000")
            a("s_mov_b32 s79, 0x00020000")
            a("s_lshl_b32 s90, s2, 2")
            a("s_add_u32 s90, s90, s%d" % sW)
            a("s_lshl_b32 s90, s90, 8")
            a("s_waitcnt lgkmcnt(0)")
            a("buffer_store_dword v43, v44, s[76:79], s90 offen")
            a("s_waitcnt vmcnt(0)")
            a("s_mul_i32 s%d, s%d, %d" % (conv2.T3, conv2.sD, G_PITCH))
        rt(88)
        if rts and not PST: a("s_memtime s[96:97]")
        a("s_barrier")
        rt(90)
        D = conv2.conv_issue(a)
    else:
        stage(0, False, True)
        stage(1, False, False)

    stamp(3)
    a("s_nop 7")
    a("s_nop 7")
    vS = 2
    a("s_lshr_b32 s47, s43, 7")
    a("s_add_u32 s47, s47, s45")
    a("s_mul_i32 s47, s47, 112")
    a("s_lshr_b32 s48, s44, 5")
    a("s_add_u32 s47, s47, s48")
    a("s_lshl_b32 s48, s46, 1")
    a("s_add_u32 s47, s47, s48")
    a("s_lshl_b32 s47, s47, 13")
    a("v_and_b32 v%d, 15, v0" % t0)
    a("v_lshlrev_b32 v%d, 4, v%d" % (t0, t0))
    a("v_lshrrev_b32 v%d, 1, v%d" % (t1, t2))
    a("v_lshlrev_b32 v%d, 8, v%d" % (t1, t1))
    a("v_add_u32 v%d, v%d, v%d" % (t0, t0, t1))
    a("v_and_b32 v%d, 1, v%d" % (t1, t2))
    a("v_lshlrev_b32 v%d, 10, v%d" % (t1, t1))
    a("v_add_u32 v%d, v%d, v%d" % (t0, t0, t1))
    a("v_add_u32 v%d, s47, v%d" % (vS, t0))
    a("s_mov_b32 s56, 0")
    a("s_movk_i32 s57, 4096")
    a("s_movk_i32 s58, 8192")
    a("s_movk_i32 s59, 12288")
    import math
    C0 = -2.0 * math.sqrt(2.0 / math.pi) * math.log2(math.e)
    C1 = C0 * 0.044715
    import struct
    def f2u(x): return struct.unpack("<I", struct.pack("<f", x))[0]
    a("s_mov_b32 s50, 0x%x" % f2u(C0))
    a("s_mov_b32 s51, 0x%x" % f2u(C1))
    a("v_mov_b32 v3, s50")
    groups = []
    cnt = 0
    SC = os.environ.get("H1SC", " sc1")
    for ip in range(4):
        for t in range(4):
            G = 212; U = 220; T = 228; P = 236 + 4 * (cnt % 4)
            cnt += 1
            i = 2 * ip
            cg = (t * 8 + i) * 4
            cu = ((4 + t) * 8 + i) * 4
            e = []
            for r in range(8): e.append("v_accvgpr_read_b32 v%d, a%d" % (G + r, cg + r))
            for r in range(8): e.append("v_mul_f32 v%d, v%d, v%d" % (T + r, G + r, G + r))
            for r in range(8): e.append("v_fma_f32 v%d, v%d, s51, v3" % (T + r, T + r))
            for r in range(8): e.append("v_mul_f32 v%d, v%d, v%d" % (T + r, T + r, G + r))
            for r in range(8):
                e.append("v_exp_f32 v%d, v%d" % (T + r, T + r))
                e.append("v_accvgpr_read_b32 v%d, a%d" % (U + r, cu + r))
            for r in range(8): e.append("v_add_f32 v%d, 1.0, v%d" % (T + r, T + r))
            for r in range(8):
                e.append("v_rcp_f32 v%d, v%d" % (T + r, T + r))
                e.append("v_mul_f32 v%d, v%d, v%d" % (U + r, U + r, G + r))
            for r in range(8): e.append("v_mul_f32 v%d, v%d, v%d" % (U + r, U + r, T + r))
            for k in range(4): e.append("v_cvt_pk_bf16_f32 v%d, v%d, v%d" % (P + k, U + 2 * k, U + 2 * k + 1))
            e.append("s_nop 1")
            e.append("v_permlane16_swap_b32 v%d, v%d" % (P, P + 2))
            e.append("v_permlane16_swap_b32 v%d, v%d" % (P + 1, P + 3))
            e.append("s_nop 0")
            e.append("buffer_store_dwordx4 v[%d:%d], v%d, s[%d:%d], s%d offen offset:%d%s" % (P, P + 3, vS, S_H, S_H + 3, 56 + (i >> 2) + 2 * (t >> 1), (i & 3) * 1024 + (t & 1) * 512, SC))
            groups.append(e)
    if fuse:
        return D, groups
    for e in groups:
        for i in e: a(i)

    if stamps:
        stamp(4)
        a("s_waitcnt vmcnt(0)")
        stamp(5)
        a("s_waitcnt lgkmcnt(0)")
        a("s_add_u32 s30, s30, 0x4000000")
        a("s_addc_u32 s31, s31, 0")
        srd(a, S_H, 30, 1 << 20)
        a("s_lshl_b32 s47, s2, 2")
        a("s_add_u32 s47, s47, s%d" % sW)
        a("s_lshl_b32 s47, s47, 5")
        for i in range(6):
            a("v_mov_b32 v%d, s%d" % (64 + i, 60 + 2 * i))
        a("v_mov_b32 v70, s47")
        a("v_cmp_eq_u32 vcc, 0, v0")
        a("s_and_saveexec_b64 s[48:49], vcc")
        a("buffer_store_dwordx4 v[64:67], v70, s[%d:%d], 0 offen" % (S_H, S_H + 3))
        a("buffer_store_dwordx2 v[68:69], v70, s[%d:%d], 0 offen offset:16" % (S_H, S_H + 3))
        a("s_mov_b64 exec, s[48:49]")
```

```python
import sys, os
os.environ.setdefault("PD", "4")
from asmlib import *
from prep import *
import prep4
import conv2
from gemm1 import *
from gemm2v import *
ST = os.environ.get("STAMPS", "") != ""
a = A()
hdr = open("gated_mix__ssm_conv_h3__geglu_ffn__prompt.s.ref").read().split("\n")
for l in hdr:
    if l.startswith("; Override") : break
    a.raw(l)
a.raw("; @launch kernel=g1_kernel grid=(256,1,1) block=(256,1,1) lds=163840")
a.raw("; @launch kernel=g2_kernel grid=(256,1,1) block=(256,1,1) lds=%d" % G2_LDS)
a.raw('.amdgcn_target "amdgcn-amd-amdhsa--gfx950"')
a.raw(".text")
def rt_begin():
    if os.environ.get("BADMAP"):
        a("s_lshr_b32 s3, s2, 3")
        a("s_add_u32 s3, s3, s2")
        a("s_and_b32 s3, s3, 7")
        a("s_and_b32 s2, s2, 0xf8")
        a("s_or_b32 s2, s2, s3")
    if ST:
        a("s_memrealtime s[92:93]")
def rt_mid():
    if ST and not os.environ.get("PST"):
        a("s_memrealtime s[94:95]")
def rt_end(kidx):
    if ST:
        a("s_waitcnt vmcnt(0) lgkmcnt(0)")
        a("s_memrealtime s[20:21]")
        a("s_load_dwordx2 s[22:23], s[0:1], 104")
        a("s_waitcnt lgkmcnt(0)")
        a("s_add_u32 s24, s22, 0x%x" % (0x5000000 + kidx * 0x10000))
        a("s_addc_u32 s25, s23, 0")
        a("s_mov_b32 s26, 0x10000")
        a("s_mov_b32 s27, 0x00020000")
        a("s_mov_b64 exec, 1")
        if os.environ.get("XCC"): a("s_getreg_b32 s90, hwreg(HW_REG_XCC_ID)")
        for i, r in enumerate((92, 86, 88, 90, 94, 96, 98, 20)):
            a("v_mov_b32 v%d, s%d" % (4 + i, r))
        a("s_lshl_b32 s22, s2, 5")
        a("v_mov_b32 v12, s22")
        a("buffer_store_dwordx4 v[4:7], v12, s[24:27], 0 offen")
        a("buffer_store_dwordx4 v[8:11], v12, s[24:27], 0 offen offset:16")
        if kidx == 1 and os.environ.get("DBGOUT"):
            a("s_cmp_lg_u32 s2, 0")
            a("s_cbranch_scc1 DBG_SKIP")
            a("s_load_dwordx2 s[28:29], s[0:1], 96")
            a("s_sub_u32 s24, s24, 0x10000")
            a("s_subb_u32 s25, s25, 0")
            a("v_mov_b32 v12, 0")
            lst = [(0, 0), (0, 1), (0, 7), (32, 0), (32, 6), (32, 2), (32, 7), (255, 0), (255, 6), (255, 2), (255, 7), (128, 0), (128, 2), (128, 7)]
            for i, (w, k) in enumerate(lst):
                a("s_movk_i32 s30, %d" % (w * 32 + k * 4))
                a("buffer_load_dword v%d, v12, s[24:27], s30 offen" % (16 + i))
            a("v_mov_b32 v30, s92")
            a("v_mov_b32 v31, s20")
            a("s_waitcnt vmcnt(0) lgkmcnt(0)")
            a("s_mov_b32 s30, 256")
            a("s_mov_b32 s31, 0x00020000")
            for i in range(4):
                a("buffer_store_dwordx4 v[%d:%d], v12, s[28:31], 0 offen offset:%d" % (16 + 4 * i, 19 + 4 * i, 16 * i))
            a.label("DBG_SKIP")
kernel_header(a, "g1_kernel")
a("s_cmp_ge_u32 s2, 256")
a("s_cbranch_scc1 G1_END")
rt_begin()
a("s_load_dwordx2 s[60:61], s[0:1], 8")
a("s_load_dwordx2 s[62:63], s[0:1], 16")
a("s_load_dwordx2 s[100:101], s[0:1], 24")
a("s_cmp_lt_u32 s2, 32")
a("s_cbranch_scc1 G1_PREP")
D, E = gen_gemm1(a, dbg="P", fuse=True, rts=ST)
rt_mid()
conv2.conv_main(a, D, E)
rt_end(0)
a("s_endpgm")
a.label("G1_PREP")
if conv2.TARGET == 16:
    a("s_load_dwordx2 s[30:31], s[0:1], 104")
    a("v_lshrrev_b32 v1, 6, v0")
    a("v_and_b32 v0, 63, v0")
    a("s_nop 0")
    a("v_readfirstlane_b32 s40, v1")
    a("s_waitcnt lgkmcnt(0)")
    prep4.prep4_issue(a, 60, 62, 100, 30, 64, 64, 40)
    a("s_waitcnt vmcnt(0)")
    prep4.prep4_compute(a, 64, 64, "B")
else:
    import prep6
    prep6.gen_prep6(a, 2, ST)
    a("v_lshrrev_b32 v1, 6, v0")
    a("v_and_b32 v0, 63, v0")
    a("s_nop 0")
    a("v_readfirstlane_b32 s40, v1")
conv2.conv_ptrs(a)
if ST: a("s_memrealtime s[96:97]")
a("s_waitcnt vmcnt(0) lgkmcnt(0)")
conv2.flag_srd(a)
if ST: a("s_memrealtime s[86:87]")
a("s_lshl_b32 s84, s40, 6")
a("v_add_u32 v252, s84, v0")
code_touch(a, 48, 252, 252, "g2_kernel")
a("s_barrier")
MP = os.environ.get("MALLPF", "1")
if MP == "1":
    a("s_cmp_eq_u32 s40, 0")
    a("s_cbranch_scc1 PREP_M1")
    for i in conv2.wd_touch(True, True): a(i)
    a.label("PREP_M1")
a("s_cmp_lg_u32 s40, 0")
a("s_cbranch_scc1 PREP_P4")
conv2.signal(a)
if MP == "1":
    for i in conv2.wd_touch(True, True): a(i)
a.label("PREP_P3")
conv2.poll_issue(a, 210)
a("s_waitcnt vmcnt(0)")
conv2.poll_check(a, 210, 84)
a("s_cmp_lg_u32 s84, 0")
a("s_cbranch_scc1 PREP_P5")
a("s_sleep 64")
a("s_branch PREP_P3")
a.label("PREP_P5")
if os.environ.get("INV"):
    a("buffer_inv sc1")
    a("s_waitcnt vmcnt(0)")
a.label("PREP_P4")
a("s_barrier")
for g in conv2.conv_early(a):
    for i in g: a(i)
D = conv2.conv_issue(a)
rt_mid()
conv2.conv_main(a, D)
rt_end(0)
a.label("G1_END")
a("s_endpgm")
kernel_header(a, "g2_kernel")
a("s_cmp_ge_u32 s2, 256")
a("s_cbranch_scc1 G2_END")
rt_begin()
gen_gemm2(a)
rt_end(1)
a.label("G2_END")
a("s_endpgm")
a.label("CODE_END")
a.raw('.section .rodata,"a"')
sg = 102
a.raw(kernel_desc("g1_kernel", 512, sg, 256))
a.raw(kernel_desc("g2_kernel", 512, sg, 256))
open(sys.argv[1], "w").write(a.text())
```

```python
class A:
    def __init__(self):
        self.lines = []
    def __call__(self, s):
        self.lines.append("    " + s)
    def label(self, s):
        self.lines.append(s + ":")
    def raw(self, s):
        self.lines.append(s)
    def comment(self, s):
        self.lines.append("    ; " + s)
    def text(self):
        return "\n".join(self.lines) + "\n"

def vr(b, n=1):
    return "v%d" % b if n == 1 else "v[%d:%d]" % (b, b + n - 1)
def ar(b, n=1):
    return "a%d" % b if n == 1 else "a[%d:%d]" % (b, b + n - 1)
def sr(b, n=1):
    return "s%d" % b if n == 1 else "s[%d:%d]" % (b, b + n - 1)

def interleave(main, extra, start=0, every=1):
    out = []
    e = 0
    for idx, m in enumerate(main):
        out.append(m)
        if idx >= start and (idx - start) % every == 0 and e < len(extra):
            out.extend(extra[e]); e += 1
    while e < len(extra):
        out.extend(extra[e]); e += 1
    return out

def kernel_header(a, name):
    a.raw(".globl %s" % name)
    a.raw(".p2align 8")
    a.raw(".type %s,@function" % name)
    a.label(name)

def kernel_desc(name, vgpr, sgpr, accum):
    return """.p2align 6
.amdhsa_kernel %s
  .amdhsa_next_free_vgpr %d
  .amdhsa_next_free_sgpr %d
  .amdhsa_accum_offset %d
  .amdhsa_group_segment_fixed_size 0
  .amdhsa_kernarg_size 112
  .amdhsa_user_sgpr_count 2
  .amdhsa_user_sgpr_kernarg_segment_ptr 1
  .amdhsa_system_sgpr_workgroup_id_x 1
.end_amdhsa_kernel
""" % (name, vgpr, sgpr, accum)

def srd(a, d, base, nbytes):
    a("s_mov_b32 s%d, s%d" % (d, base))
    a("s_mov_b32 s%d, s%d" % (d + 1, base + 1))
    a("s_mov_b32 s%d, 0x%x" % (d + 2, nbytes))
    a("s_mov_b32 s%d, 0x00020000" % (d + 3))

def place(main, placed):
    by = {}
    for pos, ins in placed:
        by.setdefault(min(pos, len(main) - 1) if main else 0, []).extend(ins)
    out = []
    if not main:
        for pos in sorted(by): out.extend(by[pos])
        return out
    for idx, m in enumerate(main):
        out.append(m)
        out.extend(by.get(idx, []))
    return out

_ctn = [0]
def code_touch(a, sd, vt, vtid, start_label, n=1, end_label="CODE_END"):
    import os
    if os.environ.get("NOCT"): return
    _ctn[0] += 1
    L = "CT_PC%d" % _ctn[0]
    a("s_getpc_b64 s[%d:%d]" % (sd, sd + 1))
    a.label(L)
    a("s_add_u32 s%d, s%d, %s-%s" % (sd, sd, start_label, L))
    a("s_addc_u32 s%d, s%d, ((%s-%s)>>32)" % (sd + 1, sd + 1, start_label, L))
    a("s_mov_b32 s%d, %s-%s" % (sd + 2, end_label, start_label))
    a("s_mov_b32 s%d, 0x00020000" % (sd + 3))
    a("v_lshlrev_b32 v%d, 7, v%d" % (vt, vtid))
    for k in range(n):
        if k: a("v_add_u32 v%d, 0x8000, v%d" % (vt, vt))
        a("buffer_load_dword v%d, v%d, s[%d:%d], 0 offen ; pad" % (vt + 1, vt, sd, sd + 3))

def page_warm(a, items, sd, vt, vlane):
    for ko, nb, off in items:
        a("s_load_dwordx2 s[%d:%d], s[0:1], %d" % (sd, sd + 1, ko))
        a("v_lshlrev_b32 v%d, 21, v%d" % (vt, vlane))
        a("v_min_u32 v%d, 0x%x, v%d" % (vt, nb - 4, vt))
        a("s_mov_b32 s%d, 0x%x" % (sd + 2, nb))
        a("s_mov_b32 s%d, 0x00020000" % (sd + 3))
        a("s_mov_b64 exec, 0x%x" % ((1 << (nb // (1 << 21) + 2)) - 1))
        a("s_waitcnt lgkmcnt(0)")
        a("buffer_load_dword v%d, v%d, s[%d:%d], 0 offen ; pad" % (vt + 1, vt, sd, sd + 3))
        a("s_mov_b64 exec, -1")
```

```python
import sys, os
os.environ.setdefault("PD", "4")
from asmlib import *
from prep import *
import prep4
import conv2
from gemm1 import *
from gemm2v import *
ST = os.environ.get("STAMPS", "") != ""
a = A()
hdr = open("gated_mix__ssm_conv_h3__geglu_ffn__prompt.s.ref").read().split("\n")
for l in hdr:
    if l.startswith("; Override") : break
    a.raw(l)
a.raw("; @launch kernel=g1_kernel grid=(256,1,1) block=(256,1,1) lds=163840")
a.raw("; @launch kernel=g2_kernel grid=(256,1,1) block=(256,1,1) lds=%d" % G2_LDS)
a.raw('.amdgcn_target "amdgcn-amd-amdhsa--gfx950"')
a.raw(".text")
def rt_begin():
    if os.environ.get("BADMAP"):
        a("s_lshr_b32 s3, s2, 3")
        a("s_add_u32 s3, s3, s2")
        a("s_and_b32 s3, s3, 7")
        a("s_and_b32 s2, s2, 0xf8")
        a("s_or_b32 s2, s2, s3")
    if ST:
        a("s_memrealtime s[92:93]")
def rt_mid():
    if ST and not os.environ.get("PST"):
        a("s_memrealtime s[94:95]")
def rt_end(kidx):
    if ST:
        a("s_waitcnt vmcnt(0) lgkmcnt(0)")
        a("s_memrealtime s[20:21]")
        a("s_load_dwordx2 s[22:23], s[0:1], 104")
        a("s_waitcnt lgkmcnt(0)")
        a("s_add_u32 s24, s22, 0x%x" % (0x5000000 + kidx * 0x10000))
        a("s_addc_u32 s25, s23, 0")
        a("s_mov_b32 s26, 0x10000")
        a("s_mov_b32 s27, 0x00020000")
        a("s_mov_b64 exec, 1")
        if os.environ.get("XCC"): a("s_getreg_b32 s90, hwreg(HW_REG_XCC_ID)")
        for i, r in enumerate((92, 86, 88, 90, 94, 96, 98, 20)):
            a("v_mov_b32 v%d, s%d" % (4 + i, r))
        a("s_lshl_b32 s22, s2, 5")
        a("v_mov_b32 v12, s22")
        a("buffer_store_dwordx4 v[4:7], v12, s[24:27], 0 offen")
        a("buffer_store_dwordx4 v[8:11], v12, s[24:27], 0 offen offset:16")
        if kidx == 1 and os.environ.get("DBGOUT"):
            a("s_cmp_lg_u32 s2, 0")
            a("s_cbranch_scc1 DBG_SKIP")
            a("s_load_dwordx2 s[28:29], s[0:1], 96")
            a("s_sub_u32 s24, s24, 0x10000")
            a("s_subb_u32 s25, s25, 0")
            a("v_mov_b32 v12, 0")
            lst = [(0, 0), (0, 1), (0, 7), (32, 0), (32, 6), (32, 2), (32, 7), (255, 0), (255, 6), (255, 2), (255, 7), (128, 0), (128, 2), (128, 7)]
            for i, (w, k) in enumerate(lst):
                a("s_movk_i32 s30, %d" % (w * 32 + k * 4))
                a("buffer_load_dword v%d, v12, s[24:27], s30 offen" % (16 + i))
            a("v_mov_b32 v30, s92")
            a("v_mov_b32 v31, s20")
            a("s_waitcnt vmcnt(0) lgkmcnt(0)")
            a("s_mov_b32 s30, 256")
            a("s_mov_b32 s31, 0x00020000")
            for i in range(4):
                a("buffer_store_dwordx4 v[%d:%d], v12, s[28:31], 0 offen offset:%d" % (16 + 4 * i, 19 + 4 * i, 16 * i))
            a.label("DBG_SKIP")
kernel_header(a, "g1_kernel")
a("s_cmp_ge_u32 s2, 256")
a("s_cbranch_scc1 G1_END")
rt_begin()
a("s_load_dwordx2 s[60:61], s[0:1], 8")
a("s_load_dwordx2 s[62:63], s[0:1], 16")
a("s_load_dwordx2 s[100:101], s[0:1], 24")
a("s_cmp_lt_u32 s2, 32")
a("s_cbranch_scc1 G1_PREP")
D, E = gen_gemm1(a, dbg="P", fuse=True, rts=ST)
rt_mid()
conv2.conv_main(a, D, E)
rt_end(0)
a("s_endpgm")
a.label("G1_PREP")
if conv2.TARGET == 16:
    a("s_load_dwordx2 s[30:31], s[0:1], 104")
    a("v_lshrrev_b32 v1, 6, v0")
    a("v_and_b32 v0, 63, v0")
    a("s_nop 0")
    a("v_readfirstlane_b32 s40, v1")
    a("s_waitcnt lgkmcnt(0)")
    prep4.prep4_issue(a, 60, 62, 100, 30, 64, 64, 40)
    a("s_waitcnt vmcnt(0)")
    prep4.prep4_compute(a, 64, 64, "B")
else:
    import prep6
    if os.environ.get("DLY0"): a("s_sleep %s" % os.environ["DLY0"])
    if "1" in os.environ.get("PW", ""):
        a("v_and_b32 v250, 63, v0")
        page_warm(a, [(56, 1024 * 3584 * 2, 0), (64, 1024 * 3584 * 2, 0), (0, 2048 * 1024 * 2, 0)], 48, 254, 250)
    prep6.gen_prep6(a, 2, ST)
    a("v_lshrrev_b32 v1, 6, v0")
    a("v_and_b32 v0, 63, v0")
    a("s_nop 0")
    a("v_readfirstlane_b32 s40, v1")
conv2.conv_ptrs(a)
if ST: a("s_memrealtime s[96:97]")
a("s_waitcnt vmcnt(0) lgkmcnt(0)")
conv2.flag_srd(a)
if ST: a("s_memrealtime s[86:87]")
a("s_lshl_b32 s84, s40, 6")
a("v_add_u32 v252, s84, v0")
code_touch(a, 48, 252, 252, "g2_kernel")
if os.environ.get("DLY") == "1": a("s_sleep 64")
a("s_barrier")
MP = os.environ.get("MALLPF", "1")
if MP == "1":
    a("s_cmp_eq_u32 s40, 0")
    a("s_cbranch_scc1 PREP_M1")
    if "2" in os.environ.get("PW", ""):
        a("s_cmp_lg_u32 s40, 1")
        a("s_cbranch_scc1 PREP_M2")
        page_warm(a, [(104, 34 << 20, 0), (32, 1024 * 2048 * 2, 0), (88, 2048 * 1024 * 2, 0), (80, 2048, 0), (40, 2048, 0)], 48, 254, 0)
        a.label("PREP_M2")
    for i in conv2.wd_touch(True, True): a(i)
    a.label("PREP_M1")
a("s_cmp_lg_u32 s40, 0")
a("s_cbranch_scc1 PREP_P4")
conv2.signal(a)
if MP == "1":
    for i in conv2.wd_touch(True, True): a(i)
a.label("PREP_P3")
conv2.poll_issue(a, 210)
a("s_waitcnt vmcnt(0)")
conv2.poll_check(a, 210, 84)
a("s_cmp_lg_u32 s84, 0")
a("s_cbranch_scc1 PREP_P5")
a("s_sleep 64")
a("s_branch PREP_P3")
a.label("PREP_P5")
if os.environ.get("INV"):
    a("buffer_inv sc1")
    a("s_waitcnt vmcnt(0)")
a.label("PREP_P4")
if os.environ.get("DLY") == "2": a("s_sleep 64")
a("s_barrier")
for i in conv2.gate_loads(): a(i)
for g in conv2.conv_early(a):
    for i in g: a(i)
conv2.conv_setup(a)
D = conv2.conv_issue(a)
rt_mid()
conv2.conv_main(a, D, None, [i for g in conv2.gate_compute() for i in g])
rt_end(0)
a.label("G1_END")
a("s_endpgm")
kernel_header(a, "g2_kernel")
a("s_cmp_ge_u32 s2, 256")
a("s_cbranch_scc1 G2_END")
rt_begin()
gen_gemm2(a, rts=ST)
rt_end(1)
a.label("G2_END")
a("s_endpgm")
a.label("CODE_END")
a.raw('.section .rodata,"a"')
sg = 102
a.raw(kernel_desc("g1_kernel", 512, sg, 256))
a.raw(kernel_desc("g2_kernel", 512, sg, 256))
open(sys.argv[1], "w").write(a.text())
```

```python
from asmlib import *
from layout import *
from prep import ws_srd
import os

G2_WAVE = 36864
G2_ZB = 4 * G2_WAVE
G2_LDS = G2_ZB + 16384
NST = 28
RING = int(os.environ.get("G2RING", "6"))
BLK = int(os.environ.get("G2BLK", "4"))
RJW = int(os.environ.get("G2RJW", "1"))

def gen_gemm2(a, dbg="", stamps=False, rts=False):
    def stamp(i):
        if stamps:
            a("s_memtime s[%d:%d]" % (60 + 2 * i, 61 + 2 * i))
        if rts and i in (1, 2, 3, 4):
            r = {1: 98, 2: 86, 3: 88, 4: 90}[i]
            a("s_memrealtime s[%d:%d]" % (r, r + 1))
    stamp(0)
    S_H, S_W, S_Z, S_Q, S_O, S_GT = 4, 8, 12, 16, 20, 24
    sW, sLB, sX, sWK = 40, 41, 42, 43
    sM0, sN0 = 44, 45
    a("s_load_dwordx2 s[34:35], s[0:1], 104")
    a("s_load_dwordx2 s[30:31], s[0:1], 72")
    a("s_load_dwordx2 s[28:29], s[0:1], 0")
    a("s_load_dwordx2 s[32:33], s[0:1], 88")
    code_touch(a, 76, 28, 0, "g2_kernel")
    a("s_and_b32 s46, s2, 7")
    a("s_lshr_b32 s47, s2, 3")
    a("s_and_b32 s48, s46, 3")
    a("s_lshl_b32 s48, s48, 2")
    a("s_and_b32 s49, s47, 3")
    a("s_add_u32 s48, s48, s49")
    a("s_lshr_b32 s49, s46, 2")
    a("s_lshl_b32 s49, s49, 3")
    a("s_lshr_b32 s50, s47, 2")
    a("s_add_u32 s49, s49, s50")
    if "Z" in dbg:
        a("s_mov_b32 s48, 0")
        a("s_mov_b32 s49, 0")
    a("s_lshl_b32 s%d, s48, 7" % sM0)
    a("s_lshl_b32 s%d, s49, 6" % sN0)
    a("v_lshrrev_b32 v1, 6, v0")
    a("v_and_b32 v0, 63, v0")
    a("s_nop 0")
    a("v_readfirstlane_b32 s%d, v1" % sW)
    a("v_lshlrev_b32 v2, 4, v0")
    a("v_lshrrev_b32 v3, 4, v0")
    a("s_mul_i32 s%d, s%d, %d" % (sLB, sW, G2_WAVE))
    a("s_mul_i32 s50, s48, 112")
    a("s_mul_i32 s51, s%d, 28" % sW)
    a("s_add_u32 s50, s50, s51")
    a("s_lshl_b32 s%d, s50, 13" % sX)
    a("s_lshl_b32 s%d, s51, 16" % sWK)
    if BLK:
        a("s_lshr_b32 s50, s47, 2")
        a("s_and_b32 s51, s47, 3")
        a("s_mul_i32 s51, s51, %d" % RJW)
        a("s_add_u32 s50, s50, s51")
        for _ in range((7 + 3 * RJW) // BLK):
            a("s_sub_u32 s51, s50, %d" % BLK)
            a("s_cmp_ge_u32 s50, %d" % BLK)
            a("s_cselect_b32 s50, s51, s50")
        a("s_mov_b32 s38, s50")
        a("s_mov_b32 s39, s50")
        a("s_mov_b32 s36, s%d" % sX)
        a("s_mov_b32 s37, s%d" % sWK)
        a("s_lshl_b32 s51, s50, 13")
        a("s_add_u32 s%d, s36, s51" % sX)
        a("s_lshl_b32 s51, s50, 16")
        a("s_add_u32 s%d, s37, s51" % sWK)
    def adv(t, sreg, sbase, sidx, sh):
        if not BLK:
            return [("s_add_u32 s%d, s%d, 0x%x" % (sreg, sreg, 1 << sh), None)]
        r = [("s_add_u32 s%d, s%d, 1" % (sidx, sidx), None),
             ("s_cmp_eq_u32 s%d, %d" % (sidx, BLK), None),
             ("s_cselect_b32 s%d, 0, s%d" % (sidx, sidx), None)]
        if t % BLK == BLK - 1:
            r.append(("s_add_u32 s%d, s%d, 0x%x" % (sbase, sbase, BLK << sh), None))
        r.append(("s_lshl_b32 s%d, s%d, %d" % (sreg, sidx, sh), None))
        r.append(("s_add_u32 s%d, s%d, s%d" % (sreg, sreg, sbase), None))
        return r
    for aa in range(4):
        a("s_xor_b32 s50, s%d, %d" % (sW, aa))
        a("s_lshl_b32 s50, s50, 11")
        a("v_add_u32 v%d, s50, v2" % (16 + aa))
    a("v_lshrrev_b32 v8, 3, v0")
    a("v_lshlrev_b32 v8, 11, v8")
    a("s_lshl_b32 s50, s%d, 1" % sN0)
    a("v_add_u32 v8, s50, v8")
    a("v_and_b32 v9, 7, v0")
    a("v_and_b32 v10, 1, v3")
    a("v_lshlrev_b32 v10, 1, v10")
    a("v_xor_b32 v9, v9, v10")
    a("v_lshlrev_b32 v9, 4, v9")
    a("v_add_u32 v8, v8, v9")
    a("v_xor_b32 v9, 64, v8")
    for I in range(4):
        a("v_add_u32 v%d, 0x%x, v%d" % (4 + I, I * 8 * 2048 - I * 1024, 8 if I % 2 == 0 else 9))
    a("s_waitcnt lgkmcnt(0)")
    ws_srd(a, S_H, 34, H1_OFF, H1_BYTES)
    srd(a, S_W, 30, 3584 * 1024 * 2)

    vm = []
    def emit(ins, tag=None):
        a(ins)
        if ins.startswith("buffer_"):
            vm.append(tag)
    def younger_than(tag):
        idx = max(i for i, x in enumerate(vm) if x == tag)
        return len(vm) - 1 - idx
    def ldx(t):
        g = []
        base = (t % RING) * 32
        for i in range(8):
            g.append([("buffer_load_dwordx4 a[%d:%d], v%d, s[%d:%d], s%d offen offset:%d" % (base + 4 * i, base + 4 * i + 3, 16 + (i >> 1), S_H, S_H + 3, sX, (i & 1) * 1024), ("x", t))])
        g[-1].extend(adv(t, sX, 36, 38, 13))
        return g
    def ldw(t):
        g = []
        for I in range(4):
            ins = []
            if I == 0:
                ins.append(("s_add_u32 m0, s%d, %d" % (sLB, (t % RING) * 4096), None))
                ins.append(("s_nop 0", None))
            ins.append(("buffer_load_dwordx4 v%d, s[%d:%d], s%d offen offset:%d lds" % (4 + I, S_W, S_W + 3, sWK, I * 1024), ("w", t)))
            g.append(ins)
        g[-1].extend(adv(t, sWK, 37, 39, 16))
        return g
    def mix(t):
        g = []
        if 0 <= t + RING < NST: g += ldw(t + RING)
        if 0 <= t + RING - 1 < NST: g += ldx(t + RING - 1)
        return g
    for t in range(-RING, 0):
        for g in mix(t):
            for it in g: emit(*it)
    ws_srd(a, S_Z, 34, Z_OFF, Z_BYTES)
    srd(a, S_Q, 28, 2048 * 1024 * 2)
    srd(a, S_O, 32, 2048 * 1024 * 2)
    ws_srd(a, S_GT, 34, GT_OFF, GT_BYTES)
    extras = []
    extras2 = []
    a("v_lshrrev_b32 v8, 2, v0")
    a("v_add_u32 v8, s%d, v8" % sN0)
    a("v_lshlrev_b32 v8, 12, v8")
    a("v_and_b32 v9, 3, v0")
    a("v_lshlrev_b32 v9, 4, v9")
    a("v_add_u32 v14, v8, v9")
    a("s_lshl_b32 s56, s%d, 5" % sW)
    a("s_add_u32 s56, s56, s%d" % sM0)
    a("s_lshl_b32 s56, s56, 1")
    a("s_lshl_b32 s57, s%d, 12" % sW)
    a("s_add_u32 s57, s57, %d" % G2_ZB)
    for I in range(4):
        g = []
        if I == 0: g += [("s_mov_b32 m0, s57", None), ("s_nop 0", None)]
        else: g += [("v_add_u32 v14, 0x%x, v14" % (16 * 4096 - 1024), None)]
        g.append(("buffer_load_dwordx4 v14, s[%d:%d], s56 offen offset:%d lds" % (S_Z, S_Z + 3, I * 1024), "e"))
        extras.append(g)
    a("v_and_b32 v9, 15, v0")
    a("s_lshl_b32 s50, s%d, 5" % sW)
    a("s_add_u32 s50, s50, s%d" % sM0)
    a("v_add_u32 v9, s50, v9")
    a("v_lshlrev_b32 v13, 2, v9")
    a("v_lshlrev_b32 v12, 11, v9")
    a("v_lshlrev_b32 v10, 3, v3")
    a("v_add_u32 v12, v12, v10")
    a("s_lshl_b32 s50, s%d, 1" % sN0)
    a("v_add_u32 v12, s50, v12")
    a("s_mov_b32 s53, 0x8000")
    QR = 96
    for sl in range(2):
        for nt in range(4):
            extras.append([("buffer_load_dwordx2 v[%d:%d], v12, s[%d:%d], %s offen offset:%d" % (QR + (sl * 4 + nt) * 2, QR + (sl * 4 + nt) * 2 + 1, S_Q, S_Q + 3, "0" if sl == 0 else "s53", nt * 32), "e")])
    extras.append([("buffer_load_dword v%d, v13, s[%d:%d], 0 offen" % (QR + 16, S_GT, S_GT + 3), "e")])
    extras.append([("buffer_load_dword v%d, v13, s[%d:%d], 0 offen offset:64" % (QR + 17, S_GT, S_GT + 3), "e")])
    a("v_lshrrev_b32 v8, 2, v0")
    a("v_and_b32 v8, 3, v8")
    a("v_lshlrev_b32 v9, 3, v3")
    a("v_add_u32 v9, v9, v8")
    a("v_lshlrev_b32 v9, 7, v9")
    a("v_and_b32 v10, 3, v0")
    a("v_lshlrev_b32 v10, 3, v10")
    a("v_add_u32 v9, v9, v10")
    a("v_add_u32 v9, s%d, v9" % sLB)
    a("v_lshrrev_b32 v10, 1, v8")
    a("v_and_b32 v11, 1, v3")
    a("v_lshlrev_b32 v11, 1, v11")
    a("v_or_b32 v10, v10, v11")
    for nt in range(4):
        a("v_xor_b32 v11, %d, v10" % nt)
        a("v_lshlrev_b32 v11, 5, v11")
        a("v_add_u32 v%d, v9, v11" % (20 + nt))
    a("v_lshlrev_b32 v9, 2, v3")
    a("v_add_u32 v9, v9, v8")
    a("v_lshlrev_b32 v9, 6, v9")
    a("v_and_b32 v10, 3, v0")
    a("v_lshlrev_b32 v10, 3, v10")
    a("v_add_u32 v9, v9, v10")
    a("v_add_u32 v24, s57, v9")
    a("v_and_b32 v9, 15, v0")
    a("v_and_b32 v10, 1, v3")
    a("v_lshlrev_b32 v10, 4, v10")
    a("v_add_u32 v9, v9, v10")
    a("s_lshl_b32 s50, s%d, 5" % sW)
    a("s_add_u32 s50, s50, s%d" % sM0)
    a("v_add_u32 v9, s50, v9")
    a("v_lshlrev_b32 v9, 11, v9")
    a("v_lshrrev_b32 v10, 1, v3")
    a("v_lshlrev_b32 v10, 4, v10")
    a("v_add_u32 v9, v9, v10")
    a("s_lshl_b32 s50, s%d, 1" % sN0)
    a("v_add_u32 v15, s50, v9")
    a("s_xor_b32 s50, s%d, 3" % sW)
    a("s_mul_i32 s50, s50, %d" % G2_WAVE)
    a("v_add_u32 v30, s50, v2")
    a("v_add_u32 v25, s%d, v2" % sLB)
    a("s_xor_b32 s50, s%d, 2" % sW)
    a("s_mul_i32 s50, s50, %d" % G2_WAVE)
    a("v_add_u32 v26, s50, v2")
    a("s_xor_b32 s50, s%d, 1" % sW)
    a("s_mul_i32 s50, s50, %d" % G2_WAVE)
    a("v_add_u32 v27, s50, v2")
    ACC = 128
    for i in range(128): a("v_mov_b32 v%d, 0" % (ACC + i))
    F = [32, 48]

    def reads(t):
        fb = F[t & 1]
        w = []
        for nt in range(4):
            for h in range(2):
                d = fb + 4 * nt + 2 * h
                w.append("ds_read_b64_tr_b16 v[%d:%d], v%d offset:%d" % (d, d + 1, 20 + nt, (t % RING) * 4096 + h * 512))
        return w

    def mfmas(t):
        fb = F[t & 1]
        xb = (t % RING) * 32
        m = []
        if "M" in dbg: return m
        for i in range(8):
            for nt in range(4):
                c = ACC + (i * 4 + nt) * 4
                m.append("v_mfma_f32_16x16x32_bf16 v[%d:%d], v[%d:%d], a[%d:%d], v[%d:%d]" % (
                    c, c + 3, fb + 4 * nt, fb + 4 * nt + 3, xb + 4 * i, xb + 4 * i + 3, c, c + 3))
        return m

    MK = 58
    a("s_mov_b32 s%d, 0xffff0000" % MK)
    G_ = QR + 16; OG = QR + 18
    QP = 64
    def rnd4l(R, T):
        return ["v_cvt_pk_bf16_f32 v%d, v%d, v%d" % (T, R, R + 1), "v_cvt_pk_bf16_f32 v%d, v%d, v%d" % (T + 1, R + 2, R + 3),
                "v_lshlrev_b32 v%d, 16, v%d" % (R, T), "v_and_b32 v%d, s%d, v%d" % (R + 1, MK, T),
                "v_lshlrev_b32 v%d, 16, v%d" % (R + 2, T + 1), "v_and_b32 v%d, s%d, v%d" % (R + 3, MK, T + 1)]
    ZRD = ["ds_read_b64_tr_b16 v[%d:%d], v24 offset:%d" % (QP + 4 * k + 2, QP + 4 * k + 3, (k & 3) * 1024 + (k >> 2) * 32) for k in range(8)]
    def precompute():
        r = []
        for sl in range(2):
            r.append("v_sub_f32 v%d, 1.0, v%d" % (OG + sl, G_ + sl))
            r.append("v_cvt_pk_bf16_f32 v%d, v%d, v%d" % (OG + sl, OG + sl, OG + sl))
            r.append("v_and_b32 v%d, s%d, v%d" % (OG + sl, MK, OG + sl))
        for k in range(8):
            sl = k >> 2
            Q = QP + 4 * k; Z = 124; T = 120
            qs = QR + 2 * k; zs = Q + 2
            r += ["v_lshlrev_b32 v%d, 16, v%d" % (Z, zs), "v_and_b32 v%d, s%d, v%d" % (Z + 1, MK, zs),
                  "v_lshlrev_b32 v%d, 16, v%d" % (Z + 2, zs + 1), "v_and_b32 v%d, s%d, v%d" % (Z + 3, MK, zs + 1)]
            r += ["v_lshlrev_b32 v%d, 16, v%d" % (Q, qs), "v_and_b32 v%d, s%d, v%d" % (Q + 1, MK, qs),
                  "v_lshlrev_b32 v%d, 16, v%d" % (Q + 2, qs + 1), "v_and_b32 v%d, s%d, v%d" % (Q + 3, MK, qs + 1)]
            for i in range(4): r.append("v_mul_f32 v%d, v%d, v%d" % (Q + i, Q + i, Z + i))
            r += rnd4l(Q, T)
            for i in range(4): r.append("v_mul_f32 v%d, v%d, v%d" % (Q + i, Q + i, G_ + sl))
            r += rnd4l(Q, T)
        return r
    PC = precompute()
    NPC = int(os.environ.get("G2NPC", "4"))
    XE = int(os.environ.get("G2XE", "23"))
    XZ = int(os.environ.get("G2XZ", "26"))
    stamp(1)
    a("s_waitcnt vmcnt(%d)" % younger_than(("w", 0)))
    stamp(2)
    for i in reads(0): a(i)
    steps = []
    real_lines = a.lines
    XT = NST - RING + 1
    for t in range(NST):
        a.lines = []
        n = younger_than(("x", t))
        if t + 1 < NST: n = min(n, younger_than(("w", t + 1)))
        assert n <= 63
        if t == XZ: n = min(n, younger_than("e"))
        a("s_waitcnt vmcnt(%d) lgkmcnt(0)" % n)
        if rts and t == 7: a("s_memrealtime s[94:95]")
        if rts and t == 21: a("s_memrealtime s[96:97]")
        pl = []
        if t == XZ:
            for k, g in enumerate(ZRD): pl.append((2 * k + 17, [(g, None)]))
        if t > XZ:
            for k in range(32): pl.append((k, [(g, None) for g in PC[NPC * k:NPC * k + NPC]]))
            PC = PC[NPC * 32:]
        if t + 1 < NST:
            for n, g in enumerate(reads(t + 1)): pl.append((2 * n, [(g, None)]))
        for n, g in enumerate(mix(t)): pl.append(((n * 8) // 3 + 1, g))
        if t == XE:
            for n, g in enumerate(extras): pl.append((11 + (3 * n) // 2, g))
        for it in place([(m, None) for m in mfmas(t)], pl): emit(*it)
        steps.append(a.lines)
    a.lines = real_lines
    nit = (NST - RING) // RING
    if True:
        for st_ in steps: a.lines.extend(st_)
    else:
        for t in range(RING, nit * RING): assert steps[t] == steps[t - RING], t
        a("s_mov_b32 s58, 0")
        a.label("G2_LOOP")
        for t in range(RING): a.lines.extend(steps[t])
        a("s_add_u32 s58, s58, 1")
        a("s_cmp_lt_u32 s58, %d" % nit)
        a("s_cbranch_scc1 G2_LOOP")
        for t in range(nit * RING, NST): a.lines.extend(steps[t])

    stamp(3)
    for i in PC: a(i)
    a("s_nop 7")
    for k in range(24):
        c = ACC + (8 + k) * 4
        a("ds_write_b128 v25, v[%d:%d] offset:%d" % (c, c + 3, k * 1024))
    a("s_waitcnt lgkmcnt(0)")
    a("s_barrier")
    RT = ACC + 32
    KS = [0, 4, 1, 5, 2, 6, 3, 7]
    for k in KS:
        for p, va in enumerate((27, 26, 30)):
            d = RT + (p * 8 + k) * 4
            a("ds_read_b128 v[%d:%d], v%d offset:%d" % (d, d + 3, va, (p * 8 + k) * 1024))
    stamp(4)
    for nt in range(4):
        for sl in range(2):
            k = sl * 4 + nt
            B = ACC + 4 * k
            T = 124; O = 32 + 4 * nt + 2 * sl
            a("s_waitcnt lgkmcnt(%d)" % min(15, 3 * (7 - KS.index(k))))
            for p in range(3):
                for r in range(4):
                    a("v_add_f32 v%d, v%d, v%d" % (B + r, B + r, RT + (p * 8 + k) * 4 + r))
            for i in rnd4l(B, T): a(i)
            for r in range(4): a("v_mul_f32 v%d, v%d, v%d" % (B + r, B + r, OG + sl))
            for i in rnd4l(B, T): a(i)
            for r in range(4): a("v_add_f32 v%d, v%d, v%d" % (B + r, B + r, QP + 4 * k + r))
            a("v_cvt_pk_bf16_f32 v%d, v%d, v%d" % (O, B, B + 1))
            a("v_cvt_pk_bf16_f32 v%d, v%d, v%d" % (O + 1, B + 2, B + 3))
        O = 32 + 4 * nt
        a("s_nop 1")
        a("v_permlane16_swap_b32 v%d, v%d" % (O, O + 2))
        a("v_permlane16_swap_b32 v%d, v%d" % (O + 1, O + 3))
        a("s_nop 0")
        a("buffer_store_dwordx4 v[%d:%d], v15, s[%d:%d], 0 offen offset:%d%s" % (O, O + 3, S_O, S_O + 3, nt * 32, os.environ.get("OSC", "")))

    if stamps:
        a("s_waitcnt vmcnt(0)")
        stamp(5)
        a("s_waitcnt lgkmcnt(0)")
        ws_srd(a, S_H, 34, 0x4000000, 1 << 20)
        a("s_lshl_b32 s47, s2, 2")
        a("s_add_u32 s47, s47, s%d" % sW)
        a("s_lshl_b32 s47, s47, 5")
        for i in range(6):
            a("v_mov_b32 v%d, s%d" % (64 + i, 60 + 2 * i))
        a("v_mov_b32 v70, s47")
        a("v_cmp_eq_u32 vcc, 0, v0")
        a("s_and_saveexec_b64 s[48:49], vcc")
        a("buffer_store_dwordx4 v[64:67], v70, s[%d:%d], 0 offen" % (S_H, S_H + 3))
        a("buffer_store_dwordx2 v[68:69], v70, s[%d:%d], 0 offen offset:16" % (S_H, S_H + 3))
        a("s_mov_b64 exec, s[48:49]")
```

```python
from asmlib import *
from layout import *
from prep import ws_srd

UC = 5184
HC = 4480
WAVE_LDS = 4 * UC + 2 * HC
CONV_LDS = 4 * WAVE_LDS

P_HK, P_D, P_GW, P_DBG, P_WS, P_Q = 64, 66, 68, 70, 72, 74
P_WD = 100
S_G, S_H, S_Z, S_Q, S_GW, S_GT, S_F = 4, 8, 12, 32, 36, 52, 80
sW, sD, sLB, T0, T1, T2, sDV, T3, T4 = 40, 60, 61, 62, 63, 76, 78, 77, 79
sHB = 85
KV = 160
GL = 176
VL = 200
VSW = 201
VZ = 204
VT = 208
import os
GSC = ' sc1' if os.environ.get('INV', '') == '' else ''
TARGET = 16 if os.environ.get('DPREP') else 8

def conv_ptrs(a):
    a("s_load_dwordx2 s[%d:%d], s[0:1], 32" % (P_HK, P_HK + 1))
    a("s_load_dwordx2 s[%d:%d], s[0:1], 40" % (P_D, P_D + 1))
    a("s_load_dwordx2 s[%d:%d], s[0:1], 80" % (P_GW, P_GW + 1))
    a("s_load_dwordx2 s[%d:%d], s[0:1], 96" % (P_DBG, P_DBG + 1))
    a("s_load_dwordx2 s[%d:%d], s[0:1], 104" % (P_WS, P_WS + 1))
    a("s_load_dwordx2 s[%d:%d], s[0:1], 0" % (P_Q, P_Q + 1))
    a("s_load_dwordx2 s[%d:%d], s[0:1], 72" % (P_WD, P_WD + 1))

def flag_srd(a):
    srd(a, S_F, P_DBG, 256)

def poll_issue(a, vdst):
    a("s_lshr_b32 s%d, s2, %d" % (T0, 4 if TARGET == 16 else 6))
    a("s_lshl_b32 s%d, s%d, %d" % (T0, T0, 2 if TARGET == 16 else 6))
    a("v_mov_b32 v%d, s%d" % (VT, T0))
    a("buffer_load_dword v%d, v%d, s[%d:%d], 0 offen sc1" % (vdst, VT, S_F, S_F + 3))

def poll_check(a, vdst, sdst):
    a("v_readfirstlane_b32 s%d, v%d" % (sdst, vdst))
    a("s_cmp_ge_u32 s%d, %d" % (sdst, TARGET))
    a("s_cselect_b32 s%d, 1, 0" % sdst)

def signal(a):
    if TARGET == 16: a("s_and_b32 s%d, s2, 15" % T0)
    else: a("s_and_b32 s%d, s2, 3" % T0)
    a("s_lshl_b32 s%d, s%d, %d" % (T0, T0, 2 if TARGET == 16 else 6))
    a("v_mov_b32 v%d, s%d" % (VT, T0))
    a("v_mov_b32 v%d, 1" % (VT + 1))
    a("s_mov_b64 exec, 1")
    a("buffer_atomic_add v%d, v%d, s[%d:%d], 0 offen sc1" % (VT + 1, VT, S_F, S_F + 3))
    a("s_mov_b64 exec, -1")

UREG = 65536
def capture(a, fn, *args):
    keep = a.lines; a.lines = []
    r = fn(*args)
    l = [x.strip() for x in a.lines]; a.lines = keep
    return l, r

def conv_early(a):
    a("s_lshl_b32 s%d, s2, 2" % sD)
    a("s_add_u32 s%d, s%d, s%d" % (sD, sD, sW))
    a("s_mul_i32 s%d, s%d, %d" % (sLB, sW, 4 * UC))
    a("s_add_u32 s%d, s%d, %d" % (sLB, sLB, UREG))
    for i in range(4): a("v_mov_b32 v%d, 0" % (VZ + i))
    a("v_lshlrev_b32 v%d, 4, v0" % VL)
    a("v_add_u32 v%d, s%d, v%d" % (VT + 2, sLB, VL))
    ws_srd(a, S_G, P_WS, G_OFF, G_BYTES)
    a("v_lshrrev_b32 v%d, 4, v0" % VSW)
    a("v_and_b32 v%d, 1, v%d" % (VSW, VSW))
    a("v_lshlrev_b32 v%d, 1, v%d" % (VSW, VSW))
    a("v_xor_b32 v%d, v%d, v0" % (VSW, VSW))
    a("v_lshlrev_b32 v%d, 4, v%d" % (VSW, VSW))
    a("s_mul_i32 s%d, s%d, %d" % (T3, sD, G_PITCH))
    D = []
    for r in (3, 1, 2, 0):
        off = {3: 120, 1: 124, 2: 122, 0: 126}[r]
        for I in range(4):
            g = []
            if I == 0: g += ["s_add_u32 s%d, s%d, 0x%x" % (T4, T3, off), "s_add_u32 m0, s%d, %d" % (sLB, r * UC), "s_nop 0"]
            g.append("buffer_load_dwordx4 v%d, s[%d:%d], s%d offen offset:%d%s lds" % (VSW, S_G, S_G + 3, T4, I * 1024, GSC))
            if I == 3: g.append("ds_write_b128 v%d, v[%d:%d] offset:%d" % (VT + 2, VZ, VZ + 3, r * UC + 4112))
            D.append(g)
    g = ["s_mov_b64 exec, 1"]
    for r in range(4):
        off = {3: 120, 1: 124, 2: 122, 0: 126}[r]
        g.append("s_add_u32 s%d, s%d, 0x%x" % (T4, T3, off + 4096))
        g.append("s_add_u32 m0, s%d, %d" % (sLB, r * UC + 4096))
        g.append("s_nop 0")
        g.append("buffer_load_dwordx4 v%d, s[%d:%d], s%d offen%s lds" % (VSW, S_G, S_G + 3, T4, GSC))
    g.append("s_mov_b64 exec, -1")
    D.append(g)
    return D

GQ = 212
GWF = 236
GTM = 252
GA = 26
def touch_h():
    return ["s_lshl_b32 s%d, s2, 2" % sD, "s_add_u32 s%d, s%d, s%d" % (sD, sD, sW), "s_lshl_b32 s%d, s%d, 12" % (T0, sD),
         "s_mov_b32 s76, s%d" % P_HK, "s_mov_b32 s77, s%d" % (P_HK + 1), "s_mov_b32 s78, 0x%x" % (1024 * 2048 * 2), "s_mov_b32 s79, 0x00020000",
         "v_and_b32 v%d, 31, v0" % VT, "v_lshlrev_b32 v%d, 7, v%d" % (VT, VT),
         "buffer_load_dword v%d, v%d, s[76:79], s%d offen" % (VT + 1, VT, T0)]

def gate_loads():
    r = ["s_lshl_b32 s%d, s2, 2" % sD, "s_add_u32 s%d, s%d, s%d" % (sD, sD, sW), "s_lshl_b32 s%d, s%d, 12" % (T0, sD),
         "v_lshlrev_b32 v%d, 4, v0" % (GA + 1),
         "s_mov_b32 s76, s%d" % P_GW, "s_mov_b32 s77, s%d" % (P_GW + 1), "s_mov_b32 s78, 0x800", "s_mov_b32 s79, 0x00020000",
         "buffer_load_dwordx4 v[%d:%d], v%d, s[76:79], 0 offen" % (GQ, GQ + 3, GA + 1),
         "buffer_load_dwordx4 v[%d:%d], v%d, s[76:79], 0 offen offset:1024" % (GQ + 4, GQ + 7, GA + 1),
         "s_mov_b32 s76, s%d" % P_Q, "s_mov_b32 s77, s%d" % (P_Q + 1), "s_mov_b32 s78, 0x%x" % (2048 * 1024 * 2)]
    for i in range(4):
        r.append("buffer_load_dwordx4 v[%d:%d], v%d, s[76:79], s%d offen offset:%d" % (GQ + 8 + 4 * i, GQ + 11 + 4 * i, GA + 1, T0, 1024 * i))
    return r

def gate_compute():
    r = []
    for i in range(8):
        r.append("v_lshlrev_b32 v%d, 16, v%d" % (GWF + 2 * i, GQ + i))
        r.append("v_and_b32 v%d, 0xffff0000, v%d" % (GWF + 2 * i + 1, GQ + i))
    for rr in range(2):
        for i in range(8):
            src = GQ + 8 + 8 * rr + i
            t = GTM + 2 * (i & 1)
            r.append("v_lshlrev_b32 v%d, 16, v%d" % (t, src))
            r.append("v_and_b32 v%d, 0xffff0000, v%d" % (t + 1, src))
            r.append("v_mul_f32 v%d, v%d, v%d" % (t, t, GWF + 2 * i))
            r.append("v_mul_f32 v%d, v%d, v%d" % (t + 1, t + 1, GWF + 2 * i + 1))
            r.append("v_cvt_pk_bf16_f32 v%d, v%d, v%d" % (t, t, t + 1))
            r.append("v_lshlrev_b32 v%d, 16, v%d" % (t + 1, t))
            r.append("v_and_b32 v%d, 0xffff0000, v%d" % (t, t))
            if i == 0:
                r.append("v_add_f32 v%d, v%d, v%d" % (GA + rr, t, t + 1))
            else:
                r.append("v_add_f32 v%d, v%d, v%d" % (t, t, t + 1))
                r.append("v_add_f32 v%d, v%d, v%d" % (GA + rr, GA + rr, t))
    G = [[x] for x in r]
    for m in ("row_shr:1 row_mask:0xf bank_mask:0xf bound_ctrl:0", "row_shr:2 row_mask:0xf bank_mask:0xf bound_ctrl:0",
              "row_shr:4 row_mask:0xf bank_mask:0xf bound_ctrl:0", "row_shr:8 row_mask:0xf bank_mask:0xf bound_ctrl:0",
              "row_bcast:15 row_mask:0xa bank_mask:0xf", "row_bcast:31 row_mask:0xc bank_mask:0xf"):
        G.append(["s_nop 1"] + ["v_add_f32_dpp v%d, v%d, v%d %s" % (GA + rr, GA + rr, GA + rr, m) for rr in range(2)])
    for op in ("v_cvt_pk_bf16_f32 v%d, v%d, v%d", "v_lshlrev_b32 v%d, 16, v%d", "v_mul_f32 v%d, 0xbfb8aa3b, v%d", "v_exp_f32 v%d, v%d", "N",
               "v_add_f32 v%d, 1.0, v%d", "v_rcp_f32 v%d, v%d", "N", "v_cvt_pk_bf16_f32 v%d, v%d, v%d", "v_lshlrev_b32 v%d, 16, v%d"):
        if op == "N": G.append(["s_nop 0"]); continue
        G.append([op % ((GA + rr,) * op.count("%d")) for rr in range(2)])
    G.append(["s_lshl_b32 s%d, s%d, 3" % (T0, sD), "s_add_u32 s%d, s%d, 0x%x" % (S_GT, P_WS, GT_OFF), "s_addc_u32 s%d, s%d, 0" % (S_GT + 1, P_WS + 1),
              "s_mov_b32 s%d, 0x%x" % (S_GT + 2, GT_BYTES), "s_mov_b32 s%d, 0x00020000" % (S_GT + 3), "v_mov_b32 v%d, 0" % GTM])
    G.append(["s_mov_b32 exec_lo, 0", "s_mov_b32 exec_hi, 0x80000000",
              "buffer_store_dwordx2 v[%d:%d], v%d, s[%d:%d], s%d offen" % (GA, GA + 1, GTM, S_GT, S_GT + 3, T0), "s_mov_b64 exec, -1"])
    return G

VZA = 211
def conv_setup(a):
    a("s_mul_i32 s%d, s%d, %d" % (sHB, sW, 2 * HC))
    a("v_add_u32 v%d, s%d, v%d" % (VZA, sHB, VL))
    srd(a, S_H, P_HK, 1024 * 2048 * 2)
    ws_srd(a, S_Z, P_WS, Z_OFF, Z_BYTES)
    a("s_lshr_b32 s%d, s%d, 1" % (T1, sD))
    a("s_lshl_b32 s%d, s%d, 2" % (T1, T1))
    a("s_load_dword s%d, s[%d:%d], s%d" % (sDV, P_D, P_D + 1, T1))
    a("v_and_b32 v%d, 15, v0" % VT)
    a("v_lshrrev_b32 v%d, 4, v0" % (VT + 1))
    a("v_lshlrev_b32 v%d, 7, v%d" % (VT + 1, VT + 1))
    a("v_lshlrev_b32 v%d, 3, v%d" % (VT, VT))
    a("v_add_u32 v%d, v%d, v%d" % (VT, VT, VT + 1))
    a("v_sub_u32 v%d, 568, v%d" % (VT, VT))
    a("v_lshlrev_b32 v%d, 1, v%d" % (VT, VT))
    a("v_and_b32 v8, 15, v0")
    a("v_lshrrev_b32 v9, 4, v0")
    a("v_lshlrev_b32 v10, 7, v9")
    a("v_lshlrev_b32 v11, 3, v8")
    a("v_add_u32 v10, v10, v11")
    a("v_lshlrev_b32 v12, 1, v10")
    a("v_add_u32 v13, v8, v9")
    a("v_lshlrev_b32 v13, 4, v13")
    a("v_add_u32 v13, s%d, v13" % sHB)
    a("v_lshrrev_b32 v4, 2, v8")
    a("v_and_b32 v5, 3, v8")
    a("s_movk_i32 s%d, %d" % (T1, UC))
    a("v_mul_lo_u32 v5, v5, s%d" % T1)
    a("v_sub_u32 v6, 3, v4")
    a("v_lshlrev_b32 v6, 8, v6")
    a("v_add_u32 v5, v5, v6")
    a("v_add_u32 v5, s%d, v5" % sLB)
    a("v_and_b32 v6, 1, v4")
    a("v_lshlrev_b32 v6, 1, v6")
    a("v_xor_b32 v7, v9, v6")
    a("v_xor_b32 v6, 2, v7")
    a("v_lshlrev_b32 v6, 4, v6")
    a("v_lshlrev_b32 v7, 4, v7")
    a("v_add_u32 v14, v5, v6")
    a("v_add_u32 v15, v5, v7")
    a("s_mov_b32 s%d, 0xffff0000" % T2)

def conv_issue(a):
    a("s_mov_b64 exec, 0xffff")
    for ph in range(2):
        a("ds_write_b128 v%d, v[%d:%d] offset:%d" % (VZA, VZ, VZ + 3, ph * HC))
        a("ds_write_b128 v%d, v[%d:%d] offset:%d" % (VZA, VZ, VZ + 3, ph * HC + HC - 256))
    a("s_mov_b64 exec, -1")
    a("s_lshl_b32 s%d, s%d, 12" % (T0, sD))
    for i in range(32): a("v_mov_b32 v%d, 0" % (32 + i))
    a("s_waitcnt lgkmcnt(0)")
    D = []
    for ph in range(2):
        for I in range(4):
            g = []
            if I == 0: g += ["s_add_u32 m0, s%d, %d" % (sHB, ph * HC + (128 - 4 * ph) * 2), "s_nop 0"]
            g.append("buffer_load_dwordx4 v%d, s[%d:%d], s%d offen offset:%d lds" % (VL, S_H, S_H + 3, T0, I * 1024))
            D.append(g)
    for T in range(4):
        D.append(["buffer_load_dwordx4 v[%d:%d], v%d, s[%d:%d], s%d offen offset:%d%s" % (KV + 4 * T, KV + 4 * T + 3, VT, S_G, S_G + 3, T3, (3 - T) * 1024, GSC)])
    return D

WPF = 0
SPN = int(os.environ.get("SPN", "6"))
G1N = int(os.environ.get("G1N", "0"))
G1POS = int(os.environ.get("G1POS", "40"))
def wd_touch(spare, mall=False):
    n = SPN if spare else G1N
    if mall: n = 7
    if not n: return []
    S = S_GW
    r = ["s_mov_b32 s%d, s%d" % (S, P_WD), "s_mov_b32 s%d, s%d" % (S + 1, P_WD + 1), "s_mov_b32 s%d, 0x%x" % (S + 2, 3584 * 1024 * 2), "s_mov_b32 s%d, 0x00020000" % (S + 3),
         "v_lshrrev_b32 v138, 3, v0", "v_lshlrev_b32 v138, 11, v138", "v_and_b32 v139, 7, v0", "v_lshlrev_b32 v139, 7, v139", "v_add_u32 v138, v138, v139",
         "s_lshr_b32 s%d, s2, 3" % T0]
    if spare:
        r += ["s_mul_i32 s%d, s%d, 896" % (T0, T0), "s_lshl_b32 s%d, s%d, 3" % (T1, sW)]
        if mall:
            r += ["s_add_u32 s%d, s%d, s%d" % (T0, T0, T1), "s_and_b32 s%d, s2, 3" % T1, "s_mul_i32 s%d, s%d, 224" % (T1, T1)]
        step = 32
    else:
        per = -(-(896 - 32 * SPN) // 28)
        per = min(per, 8 * n)
        r += ["s_mul_i32 s%d, s%d, %d" % (T0, T0, per), "s_add_u32 s%d, s%d, %d" % (T0, T0, 32 * SPN - 4 * per), "s_mul_i32 s%d, s%d, 896" % (T1, sW)]
        step = 8
    r += ["s_add_u32 s%d, s%d, s%d" % (T0, T0, T1), "s_lshl_b32 s%d, s%d, 11" % (T0, T0),
         "s_and_b32 s%d, s2, 4" % T1, "s_lshl_b32 s%d, s%d, 8" % (T1, T1), "s_add_u32 s%d, s%d, s%d" % (T0, T0, T1)]
    for b in range(n):
        r.append("buffer_load_dword v139, v138, s[%d:%d], s%d offen" % (S, S + 3, T0))
        r.append("s_add_u32 s%d, s%d, 0x%x" % (T0, T0, step * 2048))
    return r

NE0 = int(os.environ.get("NE0", "2"))
DSP_ = int(os.environ.get("CDSP", "8"))
NPRE = int(os.environ.get("NPRE", "300"))
def conv_main(a, D, E=None, pre_extra=None):
    E = E or []
    vm = []
    def em(i):
        a(i)
        if i.startswith("buffer_"): vm.append(i)
    pre = E[:NPRE]; rest = E[NPRE:]
    ACC = 32
    FB = 64
    def reads(n):
        b = FB + (n % 3) * 24
        r = []
        for ph in range(2):
            r.append("ds_read_b128 v[%d:%d], v13 offset:%d" % (b + 4 * ph, b + 4 * ph + 3, ph * HC + 64 * n))
        m = n >> 2
        for T in range(4):
            if n <= 16 * T + 16:
                r.append("ds_read_b128 v[%d:%d], v%d offset:%d" % (b + 8 + 4 * T, b + 11 + 4 * T, 14 + (m & 1), 3072 - 1024 * T + 256 * m + 64 * (n & 3)))
        return r
    def mf(n):
        b = FB + (n % 3) * 24
        r = []
        for T in range(4):
            if n <= 16 * T + 16:
                for ph in range(2):
                    c = ACC + (T * 2 + ph) * 4
                    r.append("v_mfma_f32_16x16x32_bf16 v[%d:%d], v[%d:%d], v[%d:%d], v[%d:%d]" % (c, c + 3, b + 8 + 4 * T, b + 11 + 4 * T, b + 4 * ph, b + 4 * ph + 3, c, c + 3))
        return r
    NS = 65
    M = T2
    for i in place(pre, [(DSP_ * n, g) for n, g in enumerate(D)]): em(i)
    if pre_extra:
        a("s_waitcnt vmcnt(%d)" % len(vm))
        for i in pre_extra: em(i)
    last = max(k for k, i in enumerate(vm) if "load" in i)
    a("s_waitcnt vmcnt(%d)" % (len(vm) - 1 - last))
    for i in reads(0): a(i)
    for i in reads(1): a(i)

    nm_total = sum(len(mf(n)) for n in range(NS))
    done_m = 0; done_e = 0
    for n in range(NS):
        nxt = reads(n + 2) if n + 2 < NS else []
        n1 = len(reads(n + 1)) if n + 1 < NS else 0
        a("s_waitcnt lgkmcnt(%d)" % n1)
        if E and n == G1POS:
            for i in wd_touch(False): a(i)
        m = mf(n)
        pl = [(k, [x]) for k, x in enumerate(nxt)]
        for k in range(len(m)):
            done_m += 1
            tgt = (len(rest) * done_m + nm_total - 1) // nm_total
            pl.append((k, rest[done_e:tgt])); done_e = tgt
        for i in place(m, pl): a(i)
    assert done_e == len(rest)
    a("s_and_b32 s%d, s%d, 1" % (T0, sD))
    a("s_lshl_b32 s%d, s%d, 16" % (T1, sDV))
    a("s_and_b32 s%d, s%d, 0xffff0000" % (sDV, sDV))
    a("s_cmp_eq_u32 s%d, 0" % T0)
    a("s_cselect_b32 s%d, s%d, s%d" % (sDV, T1, sDV))
    a("s_lshl_b32 s%d, s%d, 12" % (T0, sD))
    a("s_nop 7")
    for T in range(4):
        Y = 64; Kf = 72; O = 80 + 4 * T
        c = ACC + T * 8
        for p in range(4):
            a("v_cvt_pk_bf16_f32 v%d, v%d, v%d" % (96, c + 2 * p, c + 2 * p + 1))
            a("v_lshlrev_b32 v%d, 16, v96" % (Y + 2 * p))
            a("v_and_b32 v%d, s%d, v96" % (Y + 2 * p + 1, M))
        for p in range(4):
            src = KV + 4 * T + (3 - p)
            a("v_and_b32 v%d, s%d, v%d" % (Kf + 2 * p, M, src))
            a("v_lshlrev_b32 v%d, 16, v%d" % (Kf + 2 * p + 1, src))
        for e in range(8):
            a("v_mul_f32 v%d, s%d, v%d" % (Kf + e, sDV, Kf + e))
        for p in range(4):
            a("v_cvt_pk_bf16_f32 v96, v%d, v%d" % (Kf + 2 * p, Kf + 2 * p + 1))
            a("v_lshlrev_b32 v%d, 16, v96" % (Kf + 2 * p))
            a("v_and_b32 v%d, s%d, v96" % (Kf + 2 * p + 1, M))
        for e in range(8):
            a("v_add_f32 v%d, v%d, v%d" % (Y + e, Y + e, Kf + e))
        for p in range(4):
            a("v_cvt_pk_bf16_f32 v%d, v%d, v%d" % (O + p, Y + 2 * p, Y + 2 * p + 1))
        a("buffer_store_dwordx4 v[%d:%d], v12, s[%d:%d], s%d offen offset:%d%s" % (O, O + 3, S_Z, S_Z + 3, T0, T * 1024, os.environ.get("ZSC", "")))
    if not E or G1POS < 0:
        for i in wd_touch(not E): a(i)
```

```python
from asmlib import *
from layout import G_PITCH, Z_OFF, Z_BYTES

import os
ROT = int(os.environ.get('ROT', '5'))
PD = int(os.environ.get('PD', '6'))
DS0 = int(os.environ.get('DS0', '1'))
DSP = int(os.environ.get('DSP', '4'))
H1_OFF = 0
H1_BYTES = 2048 * 3584 * 2

def gen_gemm1(a, name="g1_kernel", end_label="G1_END", stamps=False, dbg="", fuse=False, rts=False):
    PST = os.environ.get("PST", "") != ""
    def rt(r):
        if rts and not (PST and r in (90,)): a("s_memrealtime s[%d:%d]" % (r, r + 1))
    def prt(r):
        if rts and PST: a("s_memrealtime s[%d:%d]" % (r, r + 1))
    def stamp(i):
        if stamps:
            a("s_memtime s[%d:%d]" % (60 + 2 * i, 61 + 2 * i))
    stamp(0)
    S_X, S_WG, S_WU, S_H = 4, 8, 12, 16
    sKX, sKW, sCNT = 20, 21, 22
    sM0 = 32
    sW = 40
    sT = 41
    vXoff = 2
    vWoff = 10
    vXa = 14
    vWa = 18
    vT = 26
    F = [64, 128]

    a("s_load_dwordx2 s[24:25], s[0:1], 0")
    a("s_load_dwordx2 s[26:27], s[0:1], 56")
    a("s_load_dwordx2 s[28:29], s[0:1], 64")
    a("s_load_dwordx2 s[30:31], s[0:1], 104")
    if fuse: code_touch(a, 76, 45, 0, "g1_kernel", end_label="G1_PREP")
    a("s_and_b32 s41, s2, 7")
    a("s_lshr_b32 s42, s2, 3")
    if fuse: a("s_sub_u32 s42, s42, 4")
    a("s_and_b32 s43, s41, 1")
    a("s_lshl_b32 s43, s43, 2")
    a("s_and_b32 s44, s42, 3")
    a("s_add_u32 s43, s43, s44")
    a("s_lshr_b32 s44, s41, 1")
    a("s_mul_i32 s44, s44, 7")
    a("s_lshr_b32 s45, s42, 2")
    a("s_add_u32 s44, s44, s45")
    if "Z" in dbg:
        a("s_mov_b32 s43, 0")
        a("s_mov_b32 s44, 0")
    if "Y" in dbg:
        a("s_and_b32 s43, s43, 1")
        a("s_and_b32 s44, s44, 1")
    a("s_lshl_b32 s43, s43, 8")
    a("s_lshl_b32 s44, s44, 7")
    a("v_lshrrev_b32 v1, 6, v0")
    a("v_and_b32 v0, 63, v0")
    a("s_nop 0")
    a("v_readfirstlane_b32 s%d, v1" % sW)
    a("s_waitcnt lgkmcnt(0)")
    prt(86)
    srd(a, S_X, 24, 2048 * 1024 * 2)
    srd(a, S_WG, 26, 1024 * 3584 * 2)
    srd(a, S_WU, 28, 1024 * 3584 * 2)
    srd(a, S_H, 30, H1_BYTES)
    a("s_lshl_b32 s45, s%d, 13" % sW)
    a("s_lshl_b32 s46, s%d, 12" % sW)
    for b in range(2):
        a("s_add_u32 s%d, s45, 0x%x" % (sM0 + 4 * b + 0, (1 - b) * 65536))
        a("s_add_u32 s%d, s45, 0x%x" % (sM0 + 4 * b + 1, (1 - b) * 65536 + 4096))
        a("s_add_u32 s%d, s46, 0x%x" % (sM0 + 4 * b + 2, (1 - b) * 65536 + 32768))
        a("s_add_u32 s%d, s46, 0x%x" % (sM0 + 4 * b + 3, (1 - b) * 65536 + 49152))
    t0, t1, t2, t3 = vT, vT + 1, vT + 2, vT + 3
    a("v_lshrrev_b32 v%d, 3, v0" % t0)
    a("s_lshl_b32 s45, s%d, 6" % sW)
    a("s_add_u32 s45, s45, s43")
    a("v_add_u32 v%d, s45, v%d" % (t0, t0))
    a("v_lshlrev_b32 v%d, 11, v%d" % (t0, t0))
    a("v_and_b32 v%d, 7, v0" % t1)
    a("v_lshrrev_b32 v%d, 4, v0" % t2)
    a("v_xor_b32 v%d, v%d, v%d" % (t1, t1, t2))
    a("v_lshlrev_b32 v%d, 4, v%d" % (t1, t1))
    a("v_add_u32 v%d, v%d, v%d" % (t0, t0, t1))
    a("v_xor_b32 v%d, 64, v%d" % (t1, t0))
    for j in range(8):
        a("v_add_u32 v%d, 0x%x, v%d" % (vXoff + j, j * 16384 - (j & 3) * 1024, t0 if j % 2 == 0 else t1))
    a("s_lshl_b32 s45, s%d, 4" % sW)
    a("v_add_u32 v%d, s45, v%d" % (t0, t2))
    a("s_movk_i32 s46, 7168")
    a("v_mul_lo_u32 v%d, v%d, s46" % (t0, t0))
    a("s_lshl_b32 s45, s44, 1")
    a("v_add_u32 v%d, s45, v%d" % (t0, t0))
    a("v_and_b32 v%d, 15, v0" % t1)
    a("v_lshlrev_b32 v%d, 1, v%d" % (t3, t2))
    a("v_xor_b32 v%d, v%d, v%d" % (t1, t1, t3))
    a("v_lshlrev_b32 v%d, 4, v%d" % (t1, t1))
    a("v_add_u32 v%d, v%d, v%d" % (t0, t0, t1))
    a("v_xor_b32 v%d, 0x80, v%d" % (t1, t0))
    for j in range(4):
        a("v_add_u32 v%d, 0x%x, v%d" % (vWoff + j, j * 4 * 7168 - j * 1024, t0 if j < 2 else t1))
    if "P" in dbg:
        a("s_lshr_b32 s45, s42, 2")
        a("s_mul_i32 s45, s45, 40")
        a("v_add_u32 v%d, s45, v0" % t0)
        a("v_min_u32 v%d, 255, v%d" % (t0, t0))
        a("v_add_u32 v%d, s43, v%d" % (t0, t0))
        a("v_lshlrev_b32 v%d, 11, v%d" % (t0, t0))
        a("v_lshrrev_b32 v%d, 1, v0" % t1)
        a("v_and_b32 v%d, 15, v%d" % (t1, t1))
        a("v_lshlrev_b32 v%d, 2, v%d" % (t1, t1))
        a("s_and_b32 s45, s42, 3")
        a("v_add_u32 v%d, s45, v%d" % (t1, t1))
        a("v_mul_lo_u32 v%d, v%d, s46" % (t1, t1))
        a("v_and_b32 v%d, 1, v0" % t3)
        a("v_lshlrev_b32 v%d, 7, v%d" % (t3, t3))
        a("v_add_u32 v%d, v%d, v%d" % (t1, t1, t3))
        a("s_lshl_b32 s45, s44, 1")
        a("v_add_u32 v%d, s45, v%d" % (t1, t1))
        a("s_cmp_eq_u32 s%d, 1" % sW)
        a("s_cselect_b32 s52, s26, s24")
        a("s_cselect_b32 s53, s27, s25")
        a("s_cmp_eq_u32 s%d, 2" % sW)
        a("s_cselect_b32 s52, s28, s52")
        a("s_cselect_b32 s53, s29, s53")
        a("s_add_u32 s45, s%d, -1" % sW)
        a("s_mov_b32 s54, 0x%x" % (2048 * 1024 * 2))
        a("s_movk_i32 s57, 128")
        a("s_cmp_lt_u32 s45, 2")
        a("s_cselect_b32 s54, 0x%x, s54" % (1024 * 3584 * 2))
        a("s_mov_b32 s55, 0x00020000")
        a("s_cselect_b32 s57, 0x%x, s57" % (64 * 7168))
        a("s_cselect_b64 vcc, -1, 0")
        a("s_nop 1")
        a("v_cndmask_b32 v41, v%d, v%d, vcc" % (t0, t1))
        a("s_lshl_b32 s56, s57, 1")
    if "K" in dbg:
        a("s_mul_i32 s23, s42, %d" % ROT)
        a("s_and_b32 s23, s23, 15")
        a("s_lshl_b32 s%d, s23, 7" % sKX)
        a("s_mul_i32 s%d, s23, 0x%x" % (sKW, 64 * 7168))
    else:
        a("s_mov_b32 s%d, 0" % sKX)
        a("s_mov_b32 s%d, 0" % sKW)

    def dma(b):
        g = []
        for half in range(2):
            if "W" in dbg: break
            for jj in range(4):
                j = half * 4 + jj
                ins = []
                if jj == 0:
                    ins.append("s_mov_b32 m0, s%d" % (sM0 + 4 * b + half))
                    ins.append("s_nop 0")
                ins.append("buffer_load_dwordx4 v%d, s[%d:%d], s%d offen offset:%d lds" % (vXoff + j, S_X, S_X + 3, sKX, jj * 1024))
                g.append(ins)
        for gu in range(2):
            if "X" in dbg: break
            S = S_WG if gu == 0 else S_WU
            for j in range(4):
                ins = []
                if j == 0:
                    ins.append("s_mov_b32 m0, s%d" % (sM0 + 4 * b + 2 + gu))
                    ins.append("s_nop 0")
                ins.append("buffer_load_dwordx4 v%d, s[%d:%d], s%d offen offset:%d lds" % (vWoff + j, S, S + 3, sKW, j * 1024))
                g.append(ins)
        if "K" in dbg:
            g[-1].append("s_add_u32 s23, s23, 1")
            g[-1].append("s_and_b32 s23, s23, 15")
            g[-1].append("s_lshl_b32 s%d, s23, 7" % sKX)
            g[-1].append("s_mul_i32 s%d, s23, 0x%x" % (sKW, 64 * 7168))
        else:
            g[-1].append("s_add_u32 s%d, s%d, 128" % (sKX, sKX))
            g[-1].append("s_add_u32 s%d, s%d, 0x%x" % (sKW, sKW, 64 * 7168))
        return g

    import prep4, conv2
    dprep = fuse and conv2.TARGET == 16
    if dprep:
        prep4.prep4_issue(a, 60, 62, 100, 30, 64, 64, sW)
    prt(96)
    for g in dma(0):
        for i in g: a(i)
    for g in dma(1):
        for i in g: a(i)
    prt(90)
    def touch():
        return ["buffer_load_dword v42, v41, s[52:55], s56 offen", "s_add_u32 s56, s56, s57"]
    if "P" in dbg:
        for _ in range(PD - 2):
            for i in touch(): a(i)

    NCT = 0
    a("s_lshr_b32 s45, s%d, 1" % sW)
    a("s_and_b32 s46, s%d, 1" % sW)
    a("v_and_b32 v%d, 15, v0" % t0)
    a("s_lshl_b32 s47, s45, 7")
    a("v_add_u32 v%d, s47, v%d" % (t0, t0))
    a("v_lshlrev_b32 v%d, 7, v%d" % (t0, t0))
    a("v_lshrrev_b32 v%d, 1, v0" % t1)
    a("v_and_b32 v%d, 7, v%d" % (t1, t1))
    a("v_xor_b32 v%d, v%d, v%d" % (t1, t1, t2))
    a("v_lshlrev_b32 v%d, 4, v%d" % (t1, t1))
    a("v_add_u32 v%d, v%d, v%d" % (vXa + 2, t0, t1))
    a("v_xor_b32 v%d, 64, v%d" % (vXa + 3, vXa + 2))
    a("v_add_u32 v%d, 0x10000, v%d" % (vXa + 0, vXa + 2))
    a("v_add_u32 v%d, 0x10000, v%d" % (vXa + 1, vXa + 3))
    a("v_lshrrev_b32 v%d, 2, v0" % t0)
    a("v_and_b32 v%d, 3, v%d" % (t0, t0))
    a("v_lshlrev_b32 v%d, 3, v%d" % (t1, t2))
    a("v_add_u32 v%d, v%d, v%d" % (t1, t1, t0))
    a("v_lshlrev_b32 v%d, 8, v%d" % (t1, t1))
    a("v_and_b32 v%d, 3, v0" % t3)
    a("v_lshlrev_b32 v%d, 3, v%d" % (t3, t3))
    a("v_add_u32 v%d, v%d, v%d" % (t1, t1, t3))
    a("v_add_u32 v%d, 0x8000, v%d" % (t1, t1))
    a("v_and_b32 v%d, 1, v%d" % (t3, t2))
    a("v_lshlrev_b32 v%d, 2, v%d" % (t3, t3))
    a("v_or_b32 v%d, v%d, v%d" % (t0, t0, t3))
    a("s_lshl_b32 s47, s46, 2")
    for t in range(4):
        a("s_add_u32 s48, s47, %d" % t)
        a("v_xor_b32 v%d, s48, v%d" % (t3, t0))
        a("v_lshlrev_b32 v%d, 5, v%d" % (t3, t3))
        a("v_add_u32 v%d, v%d, v%d" % (vWa + 4 + t, t1, t3))
        a("v_add_u32 v%d, 0x10000, v%d" % (vWa + t, vWa + 4 + t))
    if fuse and not dprep:
        conv2.conv_ptrs(a)
    for i in range(256):
        a("v_accvgpr_write_b32 a%d, 0" % i)

    def reads(fs, b, s):
        fb = F[fs]
        r = []
        for i in range(8):
            r.append(["ds_read_b128 v[%d:%d], v%d offset:%d" % (fb + 4 * i, fb + 4 * i + 3, vXa + 2 * b + s, i * 2048)])
        w = []
        for gu in range(2):
            for t in range(4):
                for h in range(2):
                    d = fb + 32 + 4 * (gu * 4 + t) + 2 * h
                    w.append(["ds_read_b64_tr_b16 v[%d:%d], v%d offset:%d" % (d, d + 1, vWa + 4 * b + t, gu * 16384 + s * 8192 + h * 1024)])
        out = []
        for i in range(8):
            out.append(r[i]); out.append(w[2 * i]); out.append(w[2 * i + 1])
        return out

    def mfmas(fs):
        fb = F[fs]
        m = []
        if "M" in dbg: return m
        for i in range(8):
            for wt in range(8):
                c = (wt * 8 + i) * 4
                m.append("v_mfma_f32_16x16x32_bf16 a[%d:%d], v[%d:%d], v[%d:%d], a[%d:%d]" % (
                    c, c + 3, fb + 32 + 4 * wt, fb + 32 + 4 * wt + 3, fb + 4 * i, fb + 4 * i + 3, c, c + 3))
        return m

    stamp(1)
    if fuse and not dprep and os.environ.get("TLB"):
        a("s_waitcnt lgkmcnt(0)")
        a("s_lshl_b32 s80, s2, 2")
        a("s_add_u32 s80, s80, s%d" % sW)
        a("s_lshl_b32 s80, s80, 12")
        a("v_mov_b32 v45, 0")
        a("s_mov_b32 s79, 0x00020000")
        for P, nb, so in ((conv2.P_HK, 1024 * 2048 * 2, "s80"), (conv2.P_GW, 2048, "0"), (conv2.P_D, 2048, "0"), (conv2.P_DBG, 256, "0")):
            a("s_mov_b32 s76, s%d" % P)
            a("s_mov_b32 s77, s%d" % (P + 1))
            a("s_mov_b32 s78, 0x%x" % nb)
            a("buffer_load_dword v46, v45, s[76:79], %s offen%s" % (so, " sc1" if P == conv2.P_DBG else ""))
            NCT += 1
        a("s_add_u32 s76, s30, 0x%x" % Z_OFF)
        a("s_addc_u32 s77, s31, 0")
        a("s_mov_b32 s78, 0x%x" % Z_BYTES)
        a("buffer_load_dword v46, v45, s[76:79], s80 offen")
        NCT += 1
    if dprep:
        a("s_waitcnt vmcnt(%d)" % (32 + PD - 2))
        rt(96)
        prep4.prep4_compute(a, 64, 64, "A")
        conv2.conv_ptrs(a)
        rt(86)
    a("s_waitcnt vmcnt(%d)" % ((8 if ("X" in dbg or "W" in dbg) else 16) + (PD - 2 if "P" in dbg else 0) + (8 if dprep else 0) + NCT))
    prt(94)
    a("s_barrier")
    stamp(2)
    if rts and not dprep:
        rt(98)
        if not PST: a("s_memtime s[86:87]")
    for g in reads(0, 0, 0):
        for i in g: a(i)

    LST = os.environ.get("LST", "") != ""
    if LST:
        a("s_lshl_b32 s90, s%d, 8" % sW)
        a("s_add_u32 s90, s90, 150016")
        a("v_mov_b32 v44, s90")
        a("s_memtime s[90:91]")
    def lst():
        if LST:
            a("v_mov_b32 v43, s90")
            a("ds_write_b32 v44, v43")
            a("v_add_u32 v44, 4, v44")
            a("s_memtime s[90:91]")
    def stage(b, do_dma, do_next, first=False, preB=None, vmB=None, extraA=None, extraB=None, tailB=None, postW=None, plB=None):
        a("s_waitcnt lgkmcnt(0)")
        lst()
        pa = [(2 * n, g) for n, g in enumerate(reads(1, b, 1) if "R" not in dbg else [])]
        if extraA: pa += [(1 + 4 * n, g) for n, g in enumerate(extraA)]
        for i in place(mfmas(0), pa): a(i)
        a("s_waitcnt lgkmcnt(0)")
        lst()
        if preB: preB()
        if do_next:
            if "V" in dbg:
                pass
            elif vmB is not None:
                a("s_waitcnt vmcnt(%d)" % vmB)
            elif first == 1:
                a("s_waitcnt vmcnt(%d)" % (PD - 2 + 8))
            elif "P" in dbg:
                a("s_waitcnt vmcnt(%d)" % (1 if "2" not in dbg else 18))
            else:
                a("s_waitcnt vmcnt(%d)" % (0 if "2" not in dbg else (8 if ("X" in dbg or "W" in dbg) else 16)))
            if postW: postW()
            if LST:
                a("s_waitcnt lgkmcnt(0)")
                lst()
            if "B" not in dbg: a("s_barrier")
            if LST:
                a("s_waitcnt lgkmcnt(0)")
                lst()
            if first == 2:
                conv2.flag_srd(a)
                a("s_cmp_lg_u32 s%d, 0" % sW)
                a("s_cbranch_scc1 G1_P0")
                conv2.signal(a)
                a.label("G1_P0")
        pl = []
        if do_next and "R" not in dbg:
            for n, g in enumerate(reads(0, b ^ 1, 0)): pl.append((2 * n, g))
        if do_dma and "D" not in dbg:
            dl = dma(b)
            if "P" in dbg: dl[-1] = dl[-1] + touch()
            if tailB: dl[-1] = dl[-1] + tailB
            for n, g in enumerate(dl): pl.append((DS0 + DSP * n, g))
        if extraB: pl += [(1 + 4 * n, g) for n, g in enumerate(extraB)]
        if plB: pl += plB
        for i in place(mfmas(1), pl): a(i)

    def epilogue():
        vS = 2
        a("s_lshr_b32 s47, s43, 7")
        a("s_add_u32 s47, s47, s45")
        a("s_mul_i32 s47, s47, 112")
        a("s_lshr_b32 s48, s44, 5")
        a("s_add_u32 s47, s47, s48")
        a("s_lshl_b32 s48, s46, 1")
        a("s_add_u32 s47, s47, s48")
        a("s_lshl_b32 s47, s47, 13")
        a("v_and_b32 v%d, 15, v0" % t0)
        a("v_lshlrev_b32 v%d, 4, v%d" % (t0, t0))
        a("v_lshrrev_b32 v%d, 1, v%d" % (t1, t2))
        a("v_lshlrev_b32 v%d, 8, v%d" % (t1, t1))
        a("v_add_u32 v%d, v%d, v%d" % (t0, t0, t1))
        a("v_and_b32 v%d, 1, v%d" % (t1, t2))
        a("v_lshlrev_b32 v%d, 10, v%d" % (t1, t1))
        a("v_add_u32 v%d, v%d, v%d" % (t0, t0, t1))
        a("v_add_u32 v%d, s47, v%d" % (vS, t0))
        a("s_mov_b32 s56, 0")
        a("s_movk_i32 s57, 4096")
        a("s_movk_i32 s58, 8192")
        a("s_movk_i32 s59, 12288")
        import math
        C0 = -2.0 * math.sqrt(2.0 / math.pi) * math.log2(math.e)
        C1 = C0 * 0.044715
        import struct
        def f2u(x): return struct.unpack("<I", struct.pack("<f", x))[0]
        a("s_mov_b32 s50, 0x%x" % f2u(C0))
        a("s_mov_b32 s51, 0x%x" % f2u(C1))
        a("v_mov_b32 v3, s50")
        groups = []
        cnt = 0
        SC = os.environ.get("H1SC", " sc1")
        for ip in range(4):
            for t in range(4):
                G = 212; U = 220; T = 228; P = 236 + 4 * (cnt % 4)
                cnt += 1
                i = 2 * ip
                cg = (t * 8 + i) * 4
                cu = ((4 + t) * 8 + i) * 4
                e = []
                for r in range(8): e.append("v_accvgpr_read_b32 v%d, a%d" % (G + r, cg + r))
                for r in range(8): e.append("v_mul_f32 v%d, v%d, v%d" % (T + r, G + r, G + r))
                for r in range(8): e.append("v_fma_f32 v%d, v%d, s51, v3" % (T + r, T + r))
                for r in range(8): e.append("v_mul_f32 v%d, v%d, v%d" % (T + r, T + r, G + r))
                for r in range(8):
                    e.append("v_exp_f32 v%d, v%d" % (T + r, T + r))
                    e.append("v_accvgpr_read_b32 v%d, a%d" % (U + r, cu + r))
                for r in range(8): e.append("v_add_f32 v%d, 1.0, v%d" % (T + r, T + r))
                for r in range(8):
                    e.append("v_rcp_f32 v%d, v%d" % (T + r, T + r))
                    e.append("v_mul_f32 v%d, v%d, v%d" % (U + r, U + r, G + r))
                for r in range(8): e.append("v_mul_f32 v%d, v%d, v%d" % (U + r, U + r, T + r))
                for k in range(4): e.append("v_cvt_pk_bf16_f32 v%d, v%d, v%d" % (P + k, U + 2 * k, U + 2 * k + 1))
                e.append("s_nop 1")
                e.append("v_permlane16_swap_b32 v%d, v%d" % (P, P + 2))
                e.append("v_permlane16_swap_b32 v%d, v%d" % (P + 1, P + 3))
                e.append("s_nop 0")
                e.append("buffer_store_dwordx4 v[%d:%d], v%d, s[%d:%d], s%d offen offset:%d%s" % (P, P + 3, vS, S_H, S_H + 3, 56 + (i >> 2) + 2 * (t >> 1), (i & 3) * 1024 + (t & 1) * 512, SC))
                groups.append(e)
        return groups

    a("s_mov_b32 s%d, 0" % sCNT)
    if dprep:
        stage(0, True, True, first=1)
        stage(1, True, True, first=2)
        a("s_mov_b32 s%d, 1" % sCNT)
        rt(98)
    a.label("G1_LOOP")
    stage(0, True, True)
    stage(1, True, True)
    a("s_add_u32 s%d, s%d, 1" % (sCNT, sCNT))
    a("s_cmp_lt_u32 s%d, %d" % (sCNT, 6 if fuse else 7))
    a("s_cbranch_scc1 G1_LOOP")
    if fuse:
        if not dprep: conv2.flag_srd(a)
        a("s_mov_b32 s84, 0")
        pi, _ = conv2.capture(a, conv2.poll_issue, a, 202)
        pi = ["s_cmp_lg_u32 s%d, 0" % sW, "s_cbranch_scc1 G1_P1"] + pi + ["G1_P1:"]
        stage(0, True, True, tailB=conv2.touch_h() + conv2.gate_loads(), extraB=[pi])
        def post1():
            conv2.poll_check(a, 202, 84)
        stage(1, True, True, vmB=8, postW=post1)
        ces, DE = conv2.capture(a, conv2.conv_early, a)
        def chk2():
            a("s_cmp_lg_u32 s%d, 0" % sW)
            a("s_cbranch_scc1 G1_P4")
            a("s_cmp_lg_u32 s84, 0")
            a("s_cbranch_scc1 G1_P4")
            a.label("G1_P3")
            conv2.poll_issue(a, 202)
            a("s_waitcnt vmcnt(0)")
            conv2.poll_check(a, 202, 84)
            a("s_cmp_lg_u32 s84, 0")
            a("s_cbranch_scc1 G1_P4")
            a("s_sleep 16")
            a("s_branch G1_P3")
            a.label("G1_P4")
        GC = conv2.gate_compute()
        def spread(groups, lo, hi):
            tot = sum(len(g) for g in groups); r = []; c = 0
            for g in groups:
                r.append((lo + (c * (hi - lo)) // max(tot, 1), g)); c += len(g)
            return r
        n14 = 0; c = 0
        while c < 120: c += len(GC[n14]); n14 += 1
        stage(0, False, True, preB=chk2, extraB=DE[:12], extraA=[ces[i:i + 2] for i in range(0, len(ces), 2)], plB=spread(GC[:n14], 2, 64))
        a("s_waitcnt lgkmcnt(0)")
        lst()
        mA = mfmas(0); mB = mfmas(1)
        A_ = [mA[8 * i:8 * i + 8] for i in range(8)]; B_ = [mB[8 * i:8 * i + 8] for i in range(8)]
        pl = [(n, g) for n, g in enumerate(reads(1, 1, 1))]
        pl += [(1 + 4 * n, g) for n, g in enumerate(DE[12:])]
        pl += spread(GC[n14:], 0, 32)
        for i in place(A_[0] + A_[1] + A_[2] + A_[3], pl): a(i)
        a("s_waitcnt lgkmcnt(0)")
        lst()
        es, groups = conv2.capture(a, epilogue)
        cs, _ = conv2.capture(a, conv2.conv_setup, a)
        EF = [i for g in groups for i in g]
        NE15 = int(os.environ.get("NE15", "200"))
        seq = B_[0] + B_[1] + A_[4] + A_[5] + B_[2] + B_[3] + A_[6] + A_[7] + B_[4] + B_[5] + B_[6] + B_[7]
        pl = spread([[i] for i in es + cs], 0, 20) + spread([[i] for i in EF[:NE15]], 20, 96)
        EF = EF[NE15:]
        for i in place(seq, pl): a(i)
        if LST:
            a("s_waitcnt lgkmcnt(0)")
            lst()
            a("s_lshl_b32 s90, s%d, 8" % sW)
            a("s_add_u32 s90, s90, 150016")
            a("v_lshlrev_b32 v44, 2, v0")
            a("v_add_u32 v43, s90, v44")
            a("s_waitcnt lgkmcnt(0)")
            a("ds_read_b32 v43, v43")
            a("s_add_u32 s76, s30, 0x6000000")
            a("s_addc_u32 s77, s31, 0")
            a("s_mov_b32 s78, 0x100000")
            a("s_mov_b32 s79, 0x00020000")
            a("s_lshl_b32 s90, s2, 2")
            a("s_add_u32 s90, s90, s%d" % sW)
            a("s_lshl_b32 s90, s90, 8")
            a("s_waitcnt lgkmcnt(0)")
            a("buffer_store_dword v43, v44, s[76:79], s90 offen")
            a("s_waitcnt vmcnt(0)")
            a("s_mul_i32 s%d, s%d, %d" % (conv2.T3, conv2.sD, G_PITCH))
        rt(88)
        if rts and not PST: a("s_memtime s[96:97]")
        a("s_barrier")
        rt(90)
        D = conv2.conv_issue(a)
    else:
        stage(0, False, True)
        stage(1, False, False)

    if fuse:
        return D, EF
    groups = epilogue()
    for e in groups:
        for i in e: a(i)

    if stamps:
        stamp(4)
        a("s_waitcnt vmcnt(0)")
        stamp(5)
        a("s_waitcnt lgkmcnt(0)")
        a("s_add_u32 s30, s30, 0x4000000")
        a("s_addc_u32 s31, s31, 0")
        srd(a, S_H, 30, 1 << 20)
        a("s_lshl_b32 s47, s2, 2")
        a("s_add_u32 s47, s47, s%d" % sW)
        a("s_lshl_b32 s47, s47, 5")
        for i in range(6):
            a("v_mov_b32 v%d, s%d" % (64 + i, 60 + 2 * i))
        a("v_mov_b32 v70, s47")
        a("v_cmp_eq_u32 vcc, 0, v0")
        a("s_and_saveexec_b64 s[48:49], vcc")
        a("buffer_store_dwordx4 v[64:67], v70, s[%d:%d], 0 offen" % (S_H, S_H + 3))
        a("buffer_store_dwordx2 v[68:69], v70, s[%d:%d], 0 offen offset:16" % (S_H, S_H + 3))
        a("s_mov_b64 exec, s[48:49]")
```

```python
from asmlib import *
from layout import *
from prep import ws_srd

UC = 5184
HC = 4480
WAVE_LDS = 4 * UC + 2 * HC
CONV_LDS = 4 * WAVE_LDS

P_HK, P_D, P_GW, P_DBG, P_WS, P_Q = 64, 66, 68, 70, 72, 74
P_WD = 100
S_G, S_H, S_Z, S_Q, S_GW, S_GT, S_F = 4, 8, 12, 32, 36, 52, 80
sW, sD, sLB, T0, T1, T2, sDV, T3, T4 = 40, 60, 61, 62, 63, 76, 78, 77, 79
sHB = 85
KV = 160
GL = 176
VL = 200
VSW = 201
VZ = 204
VT = 208
import os
GSC = ' sc1' if os.environ.get('INV', '') == '' else ''
TARGET = 16 if os.environ.get('DPREP') else 8

def conv_ptrs(a):
    a("s_load_dwordx2 s[%d:%d], s[0:1], 32" % (P_HK, P_HK + 1))
    a("s_load_dwordx2 s[%d:%d], s[0:1], 40" % (P_D, P_D + 1))
    a("s_load_dwordx2 s[%d:%d], s[0:1], 80" % (P_GW, P_GW + 1))
    a("s_load_dwordx2 s[%d:%d], s[0:1], 96" % (P_DBG, P_DBG + 1))
    a("s_load_dwordx2 s[%d:%d], s[0:1], 104" % (P_WS, P_WS + 1))
    a("s_load_dwordx2 s[%d:%d], s[0:1], 0" % (P_Q, P_Q + 1))
    a("s_load_dwordx2 s[%d:%d], s[0:1], 72" % (P_WD, P_WD + 1))

def flag_srd(a):
    srd(a, S_F, P_DBG, 256)

def poll_issue(a, vdst):
    a("s_lshr_b32 s%d, s2, %d" % (T0, 4 if TARGET == 16 else 6))
    a("s_lshl_b32 s%d, s%d, %d" % (T0, T0, 2 if TARGET == 16 else 6))
    a("v_mov_b32 v%d, s%d" % (VT, T0))
    a("buffer_load_dword v%d, v%d, s[%d:%d], 0 offen sc1" % (vdst, VT, S_F, S_F + 3))

def poll_check(a, vdst, sdst):
    a("v_readfirstlane_b32 s%d, v%d" % (sdst, vdst))
    a("s_cmp_ge_u32 s%d, %d" % (sdst, TARGET))
    a("s_cselect_b32 s%d, 1, 0" % sdst)

def signal(a):
    if TARGET == 16: a("s_and_b32 s%d, s2, 15" % T0)
    else: a("s_and_b32 s%d, s2, 3" % T0)
    a("s_lshl_b32 s%d, s%d, %d" % (T0, T0, 2 if TARGET == 16 else 6))
    a("v_mov_b32 v%d, s%d" % (VT, T0))
    a("v_mov_b32 v%d, 1" % (VT + 1))
    a("s_mov_b64 exec, 1")
    a("buffer_atomic_add v%d, v%d, s[%d:%d], 0 offen sc1" % (VT + 1, VT, S_F, S_F + 3))
    a("s_mov_b64 exec, -1")

UREG = 65536
TKOFF = 163328
def capture(a, fn, *args):
    keep = a.lines; a.lines = []
    r = fn(*args)
    l = [x.strip() for x in a.lines]; a.lines = keep
    return l, r

def conv_early(a):
    a("s_lshl_b32 s%d, s2, 2" % sD)
    a("s_add_u32 s%d, s%d, s%d" % (sD, sD, sW))
    a("s_mul_i32 s%d, s%d, %d" % (sLB, sW, 4 * UC))
    a("s_add_u32 s%d, s%d, %d" % (sLB, sLB, UREG))
    for i in range(4): a("v_mov_b32 v%d, 0" % (VZ + i))
    a("v_lshlrev_b32 v%d, 4, v0" % VL)
    a("v_add_u32 v%d, s%d, v%d" % (VT + 2, sLB, VL))
    ws_srd(a, S_G, P_WS, G_OFF, G_BYTES)
    a("v_lshrrev_b32 v%d, 4, v0" % VSW)
    a("v_and_b32 v%d, 1, v%d" % (VSW, VSW))
    a("v_lshlrev_b32 v%d, 1, v%d" % (VSW, VSW))
    a("v_xor_b32 v%d, v%d, v0" % (VSW, VSW))
    a("v_lshlrev_b32 v%d, 4, v%d" % (VSW, VSW))
    a("s_mul_i32 s%d, s%d, %d" % (T3, sD, G_PITCH))
    D = []
    for r in (3, 1, 2, 0):
        off = {3: 120, 1: 124, 2: 122, 0: 126}[r]
        for I in range(4):
            g = []
            if I == 0: g += ["s_add_u32 s%d, s%d, 0x%x" % (T4, T3, off), "s_add_u32 m0, s%d, %d" % (sLB, r * UC), "s_nop 0"]
            g.append("buffer_load_dwordx4 v%d, s[%d:%d], s%d offen offset:%d%s lds" % (VSW, S_G, S_G + 3, T4, I * 1024, GSC))
            if I == 3: g.append("ds_write_b128 v%d, v[%d:%d] offset:%d" % (VT + 2, VZ, VZ + 3, r * UC + 4112))
            D.append(g)
    g = ["s_mov_b64 exec, 1"]
    for r in range(4):
        off = {3: 120, 1: 124, 2: 122, 0: 126}[r]
        g.append("s_add_u32 s%d, s%d, 0x%x" % (T4, T3, off + 4096))
        g.append("s_add_u32 m0, s%d, %d" % (sLB, r * UC + 4096))
        g.append("s_nop 0")
        g.append("buffer_load_dwordx4 v%d, s[%d:%d], s%d offen%s lds" % (VSW, S_G, S_G + 3, T4, GSC))
    g.append("s_mov_b64 exec, -1")
    D.append(g)
    return D

GQ = 212
GWF = 236
GTM = 252
GA = 26
def touch_h():
    return ["s_lshl_b32 s%d, s2, 2" % sD, "s_add_u32 s%d, s%d, s%d" % (sD, sD, sW), "s_lshl_b32 s%d, s%d, 12" % (T0, sD),
         "s_mov_b32 s76, s%d" % P_HK, "s_mov_b32 s77, s%d" % (P_HK + 1), "s_mov_b32 s78, 0x%x" % (1024 * 2048 * 2), "s_mov_b32 s79, 0x00020000",
         "v_and_b32 v%d, 31, v0" % VT, "v_lshlrev_b32 v%d, 7, v%d" % (VT, VT),
         "buffer_load_dword v%d, v%d, s[76:79], s%d offen" % (VT + 1, VT, T0)]

def gate_loads():
    r = ["s_lshl_b32 s%d, s2, 2" % sD, "s_add_u32 s%d, s%d, s%d" % (sD, sD, sW), "s_lshl_b32 s%d, s%d, 12" % (T0, sD),
         "v_lshlrev_b32 v%d, 4, v0" % (GA + 1),
         "s_mov_b32 s76, s%d" % P_GW, "s_mov_b32 s77, s%d" % (P_GW + 1), "s_mov_b32 s78, 0x800", "s_mov_b32 s79, 0x00020000",
         "buffer_load_dwordx4 v[%d:%d], v%d, s[76:79], 0 offen" % (GQ, GQ + 3, GA + 1),
         "buffer_load_dwordx4 v[%d:%d], v%d, s[76:79], 0 offen offset:1024" % (GQ + 4, GQ + 7, GA + 1),
         "s_mov_b32 s76, s%d" % P_Q, "s_mov_b32 s77, s%d" % (P_Q + 1), "s_mov_b32 s78, 0x%x" % (2048 * 1024 * 2)]
    for i in range(4):
        r.append("buffer_load_dwordx4 v[%d:%d], v%d, s[76:79], s%d offen offset:%d" % (GQ + 8 + 4 * i, GQ + 11 + 4 * i, GA + 1, T0, 1024 * i))
    return r

def gate_compute():
    r = []
    for i in range(8):
        r.append("v_lshlrev_b32 v%d, 16, v%d" % (GWF + 2 * i, GQ + i))
        r.append("v_and_b32 v%d, 0xffff0000, v%d" % (GWF + 2 * i + 1, GQ + i))
    for rr in range(2):
        for i in range(8):
            src = GQ + 8 + 8 * rr + i
            t = GTM + 2 * (i & 1)
            r.append("v_lshlrev_b32 v%d, 16, v%d" % (t, src))
            r.append("v_and_b32 v%d, 0xffff0000, v%d" % (t + 1, src))
            r.append("v_mul_f32 v%d, v%d, v%d" % (t, t, GWF + 2 * i))
            r.append("v_mul_f32 v%d, v%d, v%d" % (t + 1, t + 1, GWF + 2 * i + 1))
            r.append("v_cvt_pk_bf16_f32 v%d, v%d, v%d" % (t, t, t + 1))
            r.append("v_lshlrev_b32 v%d, 16, v%d" % (t + 1, t))
            r.append("v_and_b32 v%d, 0xffff0000, v%d" % (t, t))
            if i == 0:
                r.append("v_add_f32 v%d, v%d, v%d" % (GA + rr, t, t + 1))
            else:
                r.append("v_add_f32 v%d, v%d, v%d" % (t, t, t + 1))
                r.append("v_add_f32 v%d, v%d, v%d" % (GA + rr, GA + rr, t))
    G = [[x] for x in r]
    for m in ("row_shr:1 row_mask:0xf bank_mask:0xf bound_ctrl:0", "row_shr:2 row_mask:0xf bank_mask:0xf bound_ctrl:0",
              "row_shr:4 row_mask:0xf bank_mask:0xf bound_ctrl:0", "row_shr:8 row_mask:0xf bank_mask:0xf bound_ctrl:0",
              "row_bcast:15 row_mask:0xa bank_mask:0xf", "row_bcast:31 row_mask:0xc bank_mask:0xf"):
        G.append(["s_nop 1"] + ["v_add_f32_dpp v%d, v%d, v%d %s" % (GA + rr, GA + rr, GA + rr, m) for rr in range(2)])
    for op in ("v_cvt_pk_bf16_f32 v%d, v%d, v%d", "v_lshlrev_b32 v%d, 16, v%d", "v_mul_f32 v%d, 0xbfb8aa3b, v%d", "v_exp_f32 v%d, v%d", "N",
               "v_add_f32 v%d, 1.0, v%d", "v_rcp_f32 v%d, v%d", "N", "v_cvt_pk_bf16_f32 v%d, v%d, v%d", "v_lshlrev_b32 v%d, 16, v%d"):
        if op == "N": G.append(["s_nop 0"]); continue
        G.append([op % ((GA + rr,) * op.count("%d")) for rr in range(2)])
    G.append(["s_lshl_b32 s%d, s%d, 3" % (T0, sD), "s_add_u32 s%d, s%d, 0x%x" % (S_GT, P_WS, GT_OFF), "s_addc_u32 s%d, s%d, 0" % (S_GT + 1, P_WS + 1),
              "s_mov_b32 s%d, 0x%x" % (S_GT + 2, GT_BYTES), "s_mov_b32 s%d, 0x00020000" % (S_GT + 3), "v_mov_b32 v%d, 0" % GTM])
    G.append(["s_mov_b32 exec_lo, 0", "s_mov_b32 exec_hi, 0x80000000",
              "buffer_store_dwordx2 v[%d:%d], v%d, s[%d:%d], s%d offen" % (GA, GA + 1, GTM, S_GT, S_GT + 3, T0), "s_mov_b64 exec, -1"])
    return G

VZA = 211
def conv_setup(a):
    a("s_mul_i32 s%d, s%d, %d" % (sHB, sW, 2 * HC))
    a("v_add_u32 v%d, s%d, v%d" % (VZA, sHB, VL))
    srd(a, S_H, P_HK, 1024 * 2048 * 2)
    ws_srd(a, S_Z, P_WS, Z_OFF, Z_BYTES)
    a("s_lshr_b32 s%d, s%d, 1" % (T1, sD))
    a("s_lshl_b32 s%d, s%d, 2" % (T1, T1))
    a("s_load_dword s%d, s[%d:%d], s%d" % (sDV, P_D, P_D + 1, T1))
    a("v_and_b32 v%d, 15, v0" % VT)
    a("v_lshrrev_b32 v%d, 4, v0" % (VT + 1))
    a("v_lshlrev_b32 v%d, 7, v%d" % (VT + 1, VT + 1))
    a("v_lshlrev_b32 v%d, 3, v%d" % (VT, VT))
    a("v_add_u32 v%d, v%d, v%d" % (VT, VT, VT + 1))
    a("v_sub_u32 v%d, 568, v%d" % (VT, VT))
    a("v_lshlrev_b32 v%d, 1, v%d" % (VT, VT))
    a("v_and_b32 v8, 15, v0")
    a("v_lshrrev_b32 v9, 4, v0")
    a("v_lshlrev_b32 v10, 7, v9")
    a("v_lshlrev_b32 v11, 3, v8")
    a("v_add_u32 v10, v10, v11")
    a("v_lshlrev_b32 v12, 1, v10")
    a("v_add_u32 v13, v8, v9")
    a("v_lshlrev_b32 v13, 4, v13")
    a("v_add_u32 v13, s%d, v13" % sHB)
    a("v_lshrrev_b32 v4, 2, v8")
    a("v_and_b32 v5, 3, v8")
    a("s_movk_i32 s%d, %d" % (T1, UC))
    a("v_mul_lo_u32 v5, v5, s%d" % T1)
    a("v_sub_u32 v6, 3, v4")
    a("v_lshlrev_b32 v6, 8, v6")
    a("v_add_u32 v5, v5, v6")
    a("v_add_u32 v5, s%d, v5" % sLB)
    a("v_and_b32 v6, 1, v4")
    a("v_lshlrev_b32 v6, 1, v6")
    a("v_xor_b32 v7, v9, v6")
    a("v_xor_b32 v6, 2, v7")
    a("v_lshlrev_b32 v6, 4, v6")
    a("v_lshlrev_b32 v7, 4, v7")
    a("v_add_u32 v14, v5, v6")
    a("v_add_u32 v15, v5, v7")
    a("s_mov_b32 s%d, 0xffff0000" % T2)

def conv_issue(a):
    a("s_mov_b64 exec, 0xffff")
    for ph in range(2):
        a("ds_write_b128 v%d, v[%d:%d] offset:%d" % (VZA, VZ, VZ + 3, ph * HC))
        a("ds_write_b128 v%d, v[%d:%d] offset:%d" % (VZA, VZ, VZ + 3, ph * HC + HC - 256))
    a("s_mov_b64 exec, -1")
    a("s_lshl_b32 s%d, s%d, 12" % (T0, sD))
    for i in range(32): a("v_mov_b32 v%d, 0" % (32 + i))
    a("s_waitcnt lgkmcnt(0)")
    D = []
    for ph in range(2):
        for I in range(4):
            g = []
            if I == 0: g += ["s_add_u32 m0, s%d, %d" % (sHB, ph * HC + (128 - 4 * ph) * 2), "s_nop 0"]
            g.append("buffer_load_dwordx4 v%d, s[%d:%d], s%d offen offset:%d lds" % (VL, S_H, S_H + 3, T0, I * 1024))
            D.append(g)
    for T in range(4):
        D.append(["buffer_load_dwordx4 v[%d:%d], v%d, s[%d:%d], s%d offen offset:%d%s" % (KV + 4 * T, KV + 4 * T + 3, VT, S_G, S_G + 3, T3, (3 - T) * 1024, GSC)])
    return D

WPF = 0
SPN = int(os.environ.get("SPN", "10"))
G1N = int(os.environ.get("G1N", "0"))
G1POS = int(os.environ.get("G1POS", "40"))
def wd_touch(spare, mall=False):
    n = SPN if spare else G1N
    if mall: n = 7
    if not n: return []
    S = S_GW
    r = ["s_mov_b32 s%d, s%d" % (S, P_WD), "s_mov_b32 s%d, s%d" % (S + 1, P_WD + 1), "s_mov_b32 s%d, 0x%x" % (S + 2, 3584 * 1024 * 2), "s_mov_b32 s%d, 0x00020000" % (S + 3),
         "v_lshrrev_b32 v138, 3, v0", "v_lshlrev_b32 v138, 11, v138", "v_and_b32 v139, 7, v0", "v_lshlrev_b32 v139, 7, v139", "v_add_u32 v138, v138, v139",
         "s_lshr_b32 s%d, s2, 3" % T0]
    G2W = os.environ.get("G2", "x") in "wx"
    G2MAP = int(os.environ.get("G2MAP", "2"))
    if spare and G2W:
        r = r[:-1]
        r += ["s_lshr_b32 s%d, s2, 1" % T0, "s_and_b32 s%d, s%d, 2" % (T0, T0), "s_lshr_b32 s%d, s2, 3" % T1, "s_and_b32 s%d, s%d, 1" % (T1, T1),
              "s_add_u32 s%d, s%d, s%d" % (T0, T0, T1), "s_mul_i32 s%d, s%d, 896" % (T0, T0), "s_lshl_b32 s%d, s%d, 3" % (T1, sW), "s_add_u32 s%d, s%d, s%d" % (T0, T0, T1)]
        if G2MAP == 1:
            if mall: r += ["s_and_b32 s%d, s2, 3" % T1, "s_mul_i32 s%d, s%d, 224" % (T1, T1), "s_add_u32 s%d, s%d, s%d" % (T0, T0, T1)]
            r += ["s_lshl_b32 s%d, s%d, 11" % (T0, T0), "s_and_b32 s%d, s2, 16" % T1, "s_lshl_b32 s%d, s%d, 6" % (T1, T1), "s_add_u32 s%d, s%d, s%d" % (T0, T0, T1)]
        else:
            if mall: r += ["s_and_b32 s%d, s2, 1" % T1, "s_mul_i32 s%d, s%d, 448" % (T1, T1), "s_add_u32 s%d, s%d, s%d" % (T0, T0, T1)]
            r += ["s_lshr_b32 s%d, s2, 4" % T1, "s_mul_i32 s%d, s%d, %d" % (T1, T1, 224 if mall else 32 * SPN), "s_add_u32 s%d, s%d, s%d" % (T0, T0, T1)]
            r += ["s_lshl_b32 s%d, s%d, 11" % (T0, T0), "s_and_b32 s%d, s2, 2" % T1, "s_lshl_b32 s%d, s%d, 9" % (T1, T1), "s_add_u32 s%d, s%d, s%d" % (T0, T0, T1)]
        step = 32
    else:
        if spare:
            r += ["s_mul_i32 s%d, s%d, 896" % (T0, T0), "s_lshl_b32 s%d, s%d, 3" % (T1, sW)]
            if mall:
                r += ["s_add_u32 s%d, s%d, s%d" % (T0, T0, T1), "s_and_b32 s%d, s2, 3" % T1, "s_mul_i32 s%d, s%d, 224" % (T1, T1)]
            step = 32
        else:
            per = -(-(896 - 32 * SPN) // 28)
            per = min(per, 8 * n)
            r += ["s_mul_i32 s%d, s%d, %d" % (T0, T0, per), "s_add_u32 s%d, s%d, %d" % (T0, T0, 32 * SPN - 4 * per), "s_mul_i32 s%d, s%d, 896" % (T1, sW)]
            step = 8
        r += ["s_add_u32 s%d, s%d, s%d" % (T0, T0, T1), "s_lshl_b32 s%d, s%d, 11" % (T0, T0),
             "s_and_b32 s%d, s2, 4" % T1, "s_lshl_b32 s%d, s%d, 8" % (T1, T1), "s_add_u32 s%d, s%d, s%d" % (T0, T0, T1)]
    for b in range(n):
        r.append("buffer_load_dword v139, v138, s[%d:%d], s%d offen" % (S, S + 3, T0))
        TG = os.environ.get("TG", "")
        if ("m" in TG and mall) or ("l" in TG and not mall):
            r.append("buffer_load_dword v139, v138, s[%d:%d], s%d offen offset:64" % (S, S + 3, T0))
        if ("M" in TG and mall) or ("L" in TG and not mall):
            for o in (32, 64, 96): r.append("buffer_load_dword v139, v138, s[%d:%d], s%d offen offset:%d" % (S, S + 3, T0, o))
        r.append("s_add_u32 s%d, s%d, 0x%x" % (T0, T0, step * 2048))
    return r

NE0 = int(os.environ.get("NE0", "2"))
DSP_ = int(os.environ.get("CDSP", "8"))
NPRE = int(os.environ.get("NPRE", "300"))
def conv_main(a, D, E=None, pre_extra=None):
    E = E or []
    vm = []
    def em(i):
        a(i)
        if i.startswith("buffer_"): vm.append(i)
    pre = E[:NPRE]; rest = E[NPRE:]
    ACC = 32
    FB = 64
    def reads(n):
        b = FB + (n % 3) * 24
        r = []
        for ph in range(2):
            r.append("ds_read_b128 v[%d:%d], v13 offset:%d" % (b + 4 * ph, b + 4 * ph + 3, ph * HC + 64 * n))
        m = n >> 2
        for T in range(4):
            if n <= 16 * T + 16:
                r.append("ds_read_b128 v[%d:%d], v%d offset:%d" % (b + 8 + 4 * T, b + 11 + 4 * T, 14 + (m & 1), 3072 - 1024 * T + 256 * m + 64 * (n & 3)))
        return r
    def mf(n):
        b = FB + (n % 3) * 24
        r = []
        for T in range(4):
            if n <= 16 * T + 16:
                for ph in range(2):
                    c = ACC + (T * 2 + ph) * 4
                    r.append("v_mfma_f32_16x16x32_bf16 v[%d:%d], v[%d:%d], v[%d:%d], v[%d:%d]" % (c, c + 3, b + 8 + 4 * T, b + 11 + 4 * T, b + 4 * ph, b + 4 * ph + 3, c, c + 3))
        return r
    NS = 65
    M = T2
    for i in place(pre, [(DSP_ * n, g) for n, g in enumerate(D)]): em(i)
    if pre_extra:
        a("s_waitcnt vmcnt(%d)" % len(vm))
        for i in pre_extra: em(i)
    last = max(k for k, i in enumerate(vm) if "load" in i)
    a("s_waitcnt vmcnt(%d)" % (len(vm) - 1 - last))
    for i in reads(0): a(i)
    for i in reads(1): a(i)

    nm_total = sum(len(mf(n)) for n in range(NS))
    done_m = 0; done_e = 0
    for n in range(NS):
        nxt = reads(n + 2) if n + 2 < NS else []
        n1 = len(reads(n + 1)) if n + 1 < NS else 0
        a("s_waitcnt lgkmcnt(%d)" % n1)
        if E and n == G1POS:
            for i in wd_touch(False): a(i)
        m = mf(n)
        pl = [(k, [x]) for k, x in enumerate(nxt)]
        for k in range(len(m)):
            done_m += 1
            tgt = (len(rest) * done_m + nm_total - 1) // nm_total
            pl.append((k, rest[done_e:tgt])); done_e = tgt
        for i in place(m, pl): a(i)
    assert done_e == len(rest)
    POIT = bool(E) and os.environ.get("G2", "x") in "wx" and os.environ.get("POIS", "b") == "t"
    if POIT:
        a("v_mov_b32 v100, %d" % TKOFF)
        a("ds_read_b32 v100, v100")
    a("s_and_b32 s%d, s%d, 1" % (T0, sD))
    a("s_lshl_b32 s%d, s%d, 16" % (T1, sDV))
    a("s_and_b32 s%d, s%d, 0xffff0000" % (sDV, sDV))
    a("s_cmp_eq_u32 s%d, 0" % T0)
    a("s_cselect_b32 s%d, s%d, s%d" % (sDV, T1, sDV))
    a("s_lshl_b32 s%d, s%d, 12" % (T0, sD))
    a("s_nop 7")
    for T in range(4):
        Y = 64; Kf = 72; O = 80 + 4 * T
        c = ACC + T * 8
        for p in range(4):
            a("v_cvt_pk_bf16_f32 v%d, v%d, v%d" % (96, c + 2 * p, c + 2 * p + 1))
            a("v_lshlrev_b32 v%d, 16, v96" % (Y + 2 * p))
            a("v_and_b32 v%d, s%d, v96" % (Y + 2 * p + 1, M))
        for p in range(4):
            src = KV + 4 * T + (3 - p)
            a("v_and_b32 v%d, s%d, v%d" % (Kf + 2 * p, M, src))
            a("v_lshlrev_b32 v%d, 16, v%d" % (Kf + 2 * p + 1, src))
        for e in range(8):
            a("v_mul_f32 v%d, s%d, v%d" % (Kf + e, sDV, Kf + e))
        for p in range(4):
            a("v_cvt_pk_bf16_f32 v96, v%d, v%d" % (Kf + 2 * p, Kf + 2 * p + 1))
            a("v_lshlrev_b32 v%d, 16, v96" % (Kf + 2 * p))
            a("v_and_b32 v%d, s%d, v96" % (Kf + 2 * p + 1, M))
        for e in range(8):
            a("v_add_f32 v%d, v%d, v%d" % (Y + e, Y + e, Kf + e))
        for p in range(4):
            a("v_cvt_pk_bf16_f32 v%d, v%d, v%d" % (O + p, Y + 2 * p, Y + 2 * p + 1))
        a("buffer_store_dwordx4 v[%d:%d], v12, s[%d:%d], s%d offen offset:%d%s" % (O, O + 3, S_Z, S_Z + 3, T0, T * 1024, os.environ.get("ZSC", "")))
    if not E or G1POS < 0:
        for i in wd_touch(not E): a(i)
    POIE = os.environ.get("G2", "x") in "wx" and os.environ.get("POIS", "b") == "e"
    if POIE:
        PA, PB, PC = [int(x) for x in os.environ.get("PABC", "96,64,32").split(",")]
        assert 32 * PA + 32 * PB + 96 * PC >= 8192
        L = "G1" if E else "SP"
        if not E:
            a("s_mov_b32 s%d, %d" % (T0, PA // 4))
            a("s_mul_i32 s%d, s2, %d" % (T1, PA * 1024))
        else:
            a("s_lshr_b32 s%d, s2, 3" % T0)
            a("s_lshl_b32 s%d, s%d, 2" % (T0, T0))
            a("s_lshr_b32 s%d, s2, 1" % T1)
            a("s_and_b32 s%d, s%d, 3" % (T1, T1))
            a("s_add_u32 s%d, s%d, s%d" % (T1, T1, T0))
            a("s_mul_i32 s%d, s%d, %d" % (T1, T1, PC * 1024))
            a("s_add_u32 s%d, s%d, %d" % (T1, T1, (32 * PA + 32 * PB - 16 * PC) * 1024))
            a("s_and_b32 s%d, s2, 1" % T0)
            a("s_mul_i32 s%d, s%d, %d" % (T0, T0, PC // 4))
            a("s_mul_i32 s%d, s2, %d" % (T4, PB * 1024))
            a("s_add_u32 s%d, s%d, %d" % (T4, T4, ((32 * PA - 224 * PB) * 1024) & 0xffffffff))
            a("s_cmp_ge_u32 s2, 224")
            a("s_cselect_b32 s%d, %d, s%d" % (T0, PB // 4, T0))
            a("s_cselect_b32 s%d, s%d, s%d" % (T1, T4, T1))
            a("s_cmp_eq_u32 s%d, 0" % T0)
            a("s_cbranch_scc1 %s_PE1" % L)
        a("s_mul_i32 s%d, s%d, s%d" % (T4, T0, sW))
        a("s_lshl_b32 s%d, s%d, 10" % (T4, T4))
        a("s_add_u32 s%d, s%d, s%d" % (T1, T1, T4))
        ws_srd(a, S_Q, P_WS, XB_OFF, XB_BYTES)
        for i in range(4): a("v_mov_b32 v%d, -1" % (100 + i))
        a("v_lshlrev_b32 v104, 4, v0")
        a.label("%s_PE0" % L)
        a("buffer_store_dwordx4 v[100:103], v104, s[%d:%d], s%d offen sc1" % (S_Q, S_Q + 3, T1))
        a("s_add_u32 s%d, s%d, 1024" % (T1, T1))
        a("s_sub_u32 s%d, s%d, 1" % (T0, T0))
        a("s_cmp_lg_u32 s%d, 0" % T0)
        a("s_cbranch_scc1 %s_PE0" % L)
        a.label("%s_PE1" % L)
    if POIT:
        NCH = int(os.environ.get("PNCH", "128"))
        CH = XB_BYTES // NCH
        a("s_waitcnt lgkmcnt(0)")
        a("v_readfirstlane_b32 s%d, v100" % T0)
        a("s_cmp_ge_u32 s%d, %d" % (T0, NCH))
        a("s_cbranch_scc1 G1_NOPOIS")
        ws_srd(a, S_GW, P_WS, XB_OFF, XB_BYTES)
        a("s_mul_i32 s%d, s%d, %d" % (T0, T0, CH))
        a("s_mul_i32 s%d, s%d, %d" % (T1, sW, CH // 4))
        a("s_add_u32 s%d, s%d, s%d" % (T0, T0, T1))
        for i in range(4): a("v_mov_b32 v%d, -1" % (100 + i))
        a("v_lshlrev_b32 v104, 4, v0")
        n = CH // 4096
        for k in range(n):
            a("buffer_store_dwordx4 v[100:103], v104, s[%d:%d], s%d offen offset:%d sc1" % (S_GW, S_GW + 3, T0, (k & 3) * 1024))
            if (k & 3) == 3 and k + 1 < n: a("s_add_u32 s%d, s%d, 4096" % (T0, T0))
        a.label("G1_NOPOIS")
```

```python
from asmlib import *
from layout import G_PITCH, Z_OFF, Z_BYTES

import os
ROT = int(os.environ.get('ROT', '5'))
PD = int(os.environ.get('PD', '6'))
DS0 = int(os.environ.get('DS0', '1'))
DSP = int(os.environ.get('DSP', '4'))
H1_OFF = 0
H1_BYTES = 2048 * 3584 * 2

def gen_gemm1(a, name="g1_kernel", end_label="G1_END", stamps=False, dbg="", fuse=False, rts=False):
    PST = os.environ.get("PST", "") != ""
    def rt(r):
        if rts and not (PST and r in (90,)): a("s_memrealtime s[%d:%d]" % (r, r + 1))
    def prt(r):
        if rts and PST: a("s_memrealtime s[%d:%d]" % (r, r + 1))
    def stamp(i):
        if stamps:
            a("s_memtime s[%d:%d]" % (60 + 2 * i, 61 + 2 * i))
    stamp(0)
    S_X, S_WG, S_WU, S_H = 4, 8, 12, 16
    sKX, sKW, sCNT = 20, 21, 22
    sM0 = 32
    sW = 40
    sT = 41
    vXoff = 2
    vWoff = 10
    vXa = 14
    vWa = 18
    vT = 26
    F = [64, 128]

    a("s_load_dwordx2 s[24:25], s[0:1], 0")
    a("s_load_dwordx2 s[26:27], s[0:1], 56")
    a("s_load_dwordx2 s[28:29], s[0:1], 64")
    a("s_load_dwordx2 s[30:31], s[0:1], 104")
    if fuse: code_touch(a, 76, 45, 0, "g1_kernel", end_label="G1_PREP")
    a("s_and_b32 s41, s2, 7")
    a("s_lshr_b32 s42, s2, 3")
    if fuse: a("s_sub_u32 s42, s42, 4")
    a("s_and_b32 s43, s41, 1")
    a("s_lshl_b32 s43, s43, 2")
    a("s_and_b32 s44, s42, 3")
    a("s_add_u32 s43, s43, s44")
    a("s_lshr_b32 s44, s41, 1")
    a("s_mul_i32 s44, s44, 7")
    a("s_lshr_b32 s45, s42, 2")
    a("s_add_u32 s44, s44, s45")
    if "Z" in dbg:
        a("s_mov_b32 s43, 0")
        a("s_mov_b32 s44, 0")
    if "Y" in dbg:
        a("s_and_b32 s43, s43, 1")
        a("s_and_b32 s44, s44, 1")
    a("s_lshl_b32 s43, s43, 8")
    a("s_lshl_b32 s44, s44, 7")
    a("v_lshrrev_b32 v1, 6, v0")
    a("v_and_b32 v0, 63, v0")
    a("s_nop 0")
    a("v_readfirstlane_b32 s%d, v1" % sW)
    a("s_waitcnt lgkmcnt(0)")
    prt(86)
    srd(a, S_X, 24, 2048 * 1024 * 2)
    srd(a, S_WG, 26, 1024 * 3584 * 2)
    srd(a, S_WU, 28, 1024 * 3584 * 2)
    srd(a, S_H, 30, H1_BYTES)
    a("s_lshl_b32 s45, s%d, 13" % sW)
    a("s_lshl_b32 s46, s%d, 12" % sW)
    for b in range(2):
        a("s_add_u32 s%d, s45, 0x%x" % (sM0 + 4 * b + 0, (1 - b) * 65536))
        a("s_add_u32 s%d, s45, 0x%x" % (sM0 + 4 * b + 1, (1 - b) * 65536 + 4096))
        a("s_add_u32 s%d, s46, 0x%x" % (sM0 + 4 * b + 2, (1 - b) * 65536 + 32768))
        a("s_add_u32 s%d, s46, 0x%x" % (sM0 + 4 * b + 3, (1 - b) * 65536 + 49152))
    t0, t1, t2, t3 = vT, vT + 1, vT + 2, vT + 3
    a("v_lshrrev_b32 v%d, 3, v0" % t0)
    a("s_lshl_b32 s45, s%d, 6" % sW)
    a("s_add_u32 s45, s45, s43")
    a("v_add_u32 v%d, s45, v%d" % (t0, t0))
    a("v_lshlrev_b32 v%d, 11, v%d" % (t0, t0))
    a("v_and_b32 v%d, 7, v0" % t1)
    a("v_lshrrev_b32 v%d, 4, v0" % t2)
    a("v_xor_b32 v%d, v%d, v%d" % (t1, t1, t2))
    a("v_lshlrev_b32 v%d, 4, v%d" % (t1, t1))
    a("v_add_u32 v%d, v%d, v%d" % (t0, t0, t1))
    a("v_xor_b32 v%d, 64, v%d" % (t1, t0))
    for j in range(8):
        a("v_add_u32 v%d, 0x%x, v%d" % (vXoff + j, j * 16384 - (j & 3) * 1024, t0 if j % 2 == 0 else t1))
    a("s_lshl_b32 s45, s%d, 4" % sW)
    a("v_add_u32 v%d, s45, v%d" % (t0, t2))
    a("s_movk_i32 s46, 7168")
    a("v_mul_lo_u32 v%d, v%d, s46" % (t0, t0))
    a("s_lshl_b32 s45, s44, 1")
    a("v_add_u32 v%d, s45, v%d" % (t0, t0))
    a("v_and_b32 v%d, 15, v0" % t1)
    a("v_lshlrev_b32 v%d, 1, v%d" % (t3, t2))
    a("v_xor_b32 v%d, v%d, v%d" % (t1, t1, t3))
    a("v_lshlrev_b32 v%d, 4, v%d" % (t1, t1))
    a("v_add_u32 v%d, v%d, v%d" % (t0, t0, t1))
    a("v_xor_b32 v%d, 0x80, v%d" % (t1, t0))
    for j in range(4):
        a("v_add_u32 v%d, 0x%x, v%d" % (vWoff + j, j * 4 * 7168 - j * 1024, t0 if j < 2 else t1))
    if "P" in dbg:
        a("s_lshr_b32 s45, s42, 2")
        a("s_mul_i32 s45, s45, 40")
        a("v_add_u32 v%d, s45, v0" % t0)
        a("v_min_u32 v%d, 255, v%d" % (t0, t0))
        a("v_add_u32 v%d, s43, v%d" % (t0, t0))
        a("v_lshlrev_b32 v%d, 11, v%d" % (t0, t0))
        a("v_lshrrev_b32 v%d, 1, v0" % t1)
        a("v_and_b32 v%d, 15, v%d" % (t1, t1))
        a("v_lshlrev_b32 v%d, 2, v%d" % (t1, t1))
        a("s_and_b32 s45, s42, 3")
        a("v_add_u32 v%d, s45, v%d" % (t1, t1))
        a("v_mul_lo_u32 v%d, v%d, s46" % (t1, t1))
        a("v_and_b32 v%d, 1, v0" % t3)
        a("v_lshlrev_b32 v%d, 7, v%d" % (t3, t3))
        a("v_add_u32 v%d, v%d, v%d" % (t1, t1, t3))
        a("s_lshl_b32 s45, s44, 1")
        a("v_add_u32 v%d, s45, v%d" % (t1, t1))
        a("s_cmp_eq_u32 s%d, 1" % sW)
        a("s_cselect_b32 s52, s26, s24")
        a("s_cselect_b32 s53, s27, s25")
        a("s_cmp_eq_u32 s%d, 2" % sW)
        a("s_cselect_b32 s52, s28, s52")
        a("s_cselect_b32 s53, s29, s53")
        a("s_add_u32 s45, s%d, -1" % sW)
        a("s_mov_b32 s54, 0x%x" % (2048 * 1024 * 2))
        a("s_movk_i32 s57, 128")
        a("s_cmp_lt_u32 s45, 2")
        a("s_cselect_b32 s54, 0x%x, s54" % (1024 * 3584 * 2))
        a("s_mov_b32 s55, 0x00020000")
        a("s_cselect_b32 s57, 0x%x, s57" % (64 * 7168))
        a("s_cselect_b64 vcc, -1, 0")
        a("s_nop 1")
        a("v_cndmask_b32 v41, v%d, v%d, vcc" % (t0, t1))
        a("s_lshl_b32 s56, s57, 1")
    if "K" in dbg:
        a("s_mul_i32 s23, s42, %d" % ROT)
        a("s_and_b32 s23, s23, 15")
        a("s_lshl_b32 s%d, s23, 7" % sKX)
        a("s_mul_i32 s%d, s23, 0x%x" % (sKW, 64 * 7168))
    else:
        a("s_mov_b32 s%d, 0" % sKX)
        a("s_mov_b32 s%d, 0" % sKW)

    def dma(b):
        g = []
        for half in range(2):
            if "W" in dbg: break
            for jj in range(4):
                j = half * 4 + jj
                ins = []
                if jj == 0:
                    ins.append("s_mov_b32 m0, s%d" % (sM0 + 4 * b + half))
                    ins.append("s_nop 0")
                ins.append("buffer_load_dwordx4 v%d, s[%d:%d], s%d offen offset:%d lds" % (vXoff + j, S_X, S_X + 3, sKX, jj * 1024))
                g.append(ins)
        for gu in range(2):
            if "X" in dbg: break
            S = S_WG if gu == 0 else S_WU
            for j in range(4):
                ins = []
                if j == 0:
                    ins.append("s_mov_b32 m0, s%d" % (sM0 + 4 * b + 2 + gu))
                    ins.append("s_nop 0")
                ins.append("buffer_load_dwordx4 v%d, s[%d:%d], s%d offen offset:%d lds" % (vWoff + j, S, S + 3, sKW, j * 1024))
                g.append(ins)
        if "K" in dbg:
            g[-1].append("s_add_u32 s23, s23, 1")
            g[-1].append("s_and_b32 s23, s23, 15")
            g[-1].append("s_lshl_b32 s%d, s23, 7" % sKX)
            g[-1].append("s_mul_i32 s%d, s23, 0x%x" % (sKW, 64 * 7168))
        else:
            g[-1].append("s_add_u32 s%d, s%d, 128" % (sKX, sKX))
            g[-1].append("s_add_u32 s%d, s%d, 0x%x" % (sKW, sKW, 64 * 7168))
        return g

    import prep4, conv2
    dprep = fuse and conv2.TARGET == 16
    if dprep:
        prep4.prep4_issue(a, 60, 62, 100, 30, 64, 64, sW)
    prt(96)
    for g in dma(0):
        for i in g: a(i)
    for g in dma(1):
        for i in g: a(i)
    prt(90)
    def touch():
        return ["buffer_load_dword v42, v41, s[52:55], s56 offen", "s_add_u32 s56, s56, s57"]
    if "P" in dbg:
        for _ in range(PD - 2):
            for i in touch(): a(i)

    NCT = 0
    a("s_lshr_b32 s45, s%d, 1" % sW)
    a("s_and_b32 s46, s%d, 1" % sW)
    a("v_and_b32 v%d, 15, v0" % t0)
    a("s_lshl_b32 s47, s45, 7")
    a("v_add_u32 v%d, s47, v%d" % (t0, t0))
    a("v_lshlrev_b32 v%d, 7, v%d" % (t0, t0))
    a("v_lshrrev_b32 v%d, 1, v0" % t1)
    a("v_and_b32 v%d, 7, v%d" % (t1, t1))
    a("v_xor_b32 v%d, v%d, v%d" % (t1, t1, t2))
    a("v_lshlrev_b32 v%d, 4, v%d" % (t1, t1))
    a("v_add_u32 v%d, v%d, v%d" % (vXa + 2, t0, t1))
    a("v_xor_b32 v%d, 64, v%d" % (vXa + 3, vXa + 2))
    a("v_add_u32 v%d, 0x10000, v%d" % (vXa + 0, vXa + 2))
    a("v_add_u32 v%d, 0x10000, v%d" % (vXa + 1, vXa + 3))
    a("v_lshrrev_b32 v%d, 2, v0" % t0)
    a("v_and_b32 v%d, 3, v%d" % (t0, t0))
    a("v_lshlrev_b32 v%d, 3, v%d" % (t1, t2))
    a("v_add_u32 v%d, v%d, v%d" % (t1, t1, t0))
    a("v_lshlrev_b32 v%d, 8, v%d" % (t1, t1))
    a("v_and_b32 v%d, 3, v0" % t3)
    a("v_lshlrev_b32 v%d, 3, v%d" % (t3, t3))
    a("v_add_u32 v%d, v%d, v%d" % (t1, t1, t3))
    a("v_add_u32 v%d, 0x8000, v%d" % (t1, t1))
    a("v_and_b32 v%d, 1, v%d" % (t3, t2))
    a("v_lshlrev_b32 v%d, 2, v%d" % (t3, t3))
    a("v_or_b32 v%d, v%d, v%d" % (t0, t0, t3))
    a("s_lshl_b32 s47, s46, 2")
    for t in range(4):
        a("s_add_u32 s48, s47, %d" % t)
        a("v_xor_b32 v%d, s48, v%d" % (t3, t0))
        a("v_lshlrev_b32 v%d, 5, v%d" % (t3, t3))
        a("v_add_u32 v%d, v%d, v%d" % (vWa + 4 + t, t1, t3))
        a("v_add_u32 v%d, 0x10000, v%d" % (vWa + t, vWa + 4 + t))
    if fuse and not dprep:
        conv2.conv_ptrs(a)
    POIS = fuse and os.environ.get("G2", "x") in "wx" and os.environ.get("POIS", "e") == "g"
    from layout import XB_OFF, XB_BYTES
    PSTR = int(os.environ.get("PSTR", "1"))
    PSET = ["s_add_u32 s52, s30, 0x%x" % XB_OFF, "s_addc_u32 s53, s31, 0", "s_mov_b32 s54, 0x%x" % XB_BYTES, "s_mov_b32 s55, 0x00020000",
            "s_lshl_b32 s56, s2, 2", "s_add_u32 s56, s56, s%d" % sW, "s_sub_u32 s56, s56, 128", "s_lshl_b32 s56, s56, 10" if PSTR != 1 else "s_mul_i32 s56, s56, 9472", "v_lshlrev_b32 v52, 4, v0"]
    PSET += ["v_mov_b32 v%d, -1" % (48 + i) for i in range(4)]
    PST_ = ["buffer_store_dwordx4 v[48:51], v52, s[52:55], s56 offen sc1", "s_add_u32 s56, s56, 0x%x" % (PSTR * 1024)]
    NPO = 10 if POIS else 0
    POIL = fuse and os.environ.get("G2", "x") in "wx" and os.environ.get("POIS", "e") == "l"
    POIP = fuse and os.environ.get("G2", "x") in "wx" and os.environ.get("POIS", "e") in ("p", "q")
    if POIL or POIP:
        for i in PSET: a(i.replace("s52", "s80").replace("s53", "s81").replace("s54", "s82").replace("s55", "s83").replace("s56", "s84"))
    PSL = [i.replace("s[52:55]", "s[80:83]").replace("s56", "s84") for i in PST_]
    for i in range(256):
        a("v_accvgpr_write_b32 a%d, 0" % i)
        if POIP and os.environ["POIS"] == "p" and i % 24 == 8 and i < 240:
            for j in PSL: a(j)
            NCT += 1
    if POIP and os.environ["POIS"] == "q":
        for _ in range(10):
            for j in PSL: a(j)
            NCT += 1

    def reads(fs, b, s):
        fb = F[fs]
        r = []
        for i in range(8):
            r.append(["ds_read_b128 v[%d:%d], v%d offset:%d" % (fb + 4 * i, fb + 4 * i + 3, vXa + 2 * b + s, i * 2048)])
        w = []
        for gu in range(2):
            for t in range(4):
                for h in range(2):
                    d = fb + 32 + 4 * (gu * 4 + t) + 2 * h
                    w.append(["ds_read_b64_tr_b16 v[%d:%d], v%d offset:%d" % (d, d + 1, vWa + 4 * b + t, gu * 16384 + s * 8192 + h * 1024)])
        out = []
        for i in range(8):
            out.append(r[i]); out.append(w[2 * i]); out.append(w[2 * i + 1])
        return out

    def mfmas(fs):
        fb = F[fs]
        m = []
        if "M" in dbg: return m
        for i in range(8):
            for wt in range(8):
                c = (wt * 8 + i) * 4
                m.append("v_mfma_f32_16x16x32_bf16 a[%d:%d], v[%d:%d], v[%d:%d], a[%d:%d]" % (
                    c, c + 3, fb + 32 + 4 * wt, fb + 32 + 4 * wt + 3, fb + 4 * i, fb + 4 * i + 3, c, c + 3))
        return m

    stamp(1)
    if fuse and not dprep and os.environ.get("TLB"):
        a("s_waitcnt lgkmcnt(0)")
        a("s_lshl_b32 s80, s2, 2")
        a("s_add_u32 s80, s80, s%d" % sW)
        a("s_lshl_b32 s80, s80, 12")
        a("v_mov_b32 v45, 0")
        a("s_mov_b32 s79, 0x00020000")
        for P, nb, so in ((conv2.P_HK, 1024 * 2048 * 2, "s80"), (conv2.P_GW, 2048, "0"), (conv2.P_D, 2048, "0"), (conv2.P_DBG, 256, "0")):
            a("s_mov_b32 s76, s%d" % P)
            a("s_mov_b32 s77, s%d" % (P + 1))
            a("s_mov_b32 s78, 0x%x" % nb)
            a("buffer_load_dword v46, v45, s[76:79], %s offen%s" % (so, " sc1" if P == conv2.P_DBG else ""))
            NCT += 1
        a("s_add_u32 s76, s30, 0x%x" % Z_OFF)
        a("s_addc_u32 s77, s31, 0")
        a("s_mov_b32 s78, 0x%x" % Z_BYTES)
        a("buffer_load_dword v46, v45, s[76:79], s80 offen")
        NCT += 1
    if dprep:
        a("s_waitcnt vmcnt(%d)" % (32 + PD - 2))
        rt(96)
        prep4.prep4_compute(a, 64, 64, "A")
        conv2.conv_ptrs(a)
        rt(86)
    a("s_waitcnt vmcnt(%d)" % ((8 if ("X" in dbg or "W" in dbg) else 16) + (PD - 2 if "P" in dbg else 0) + (8 if dprep else 0) + NCT))
    prt(94)
    a("s_barrier")
    stamp(2)
    if rts and not dprep:
        rt(98)
        if not PST: a("s_memtime s[86:87]")
    for g in reads(0, 0, 0):
        for i in g: a(i)

    LST = os.environ.get("LST", "") != ""
    if LST:
        a("s_lshl_b32 s90, s%d, 8" % sW)
        a("s_add_u32 s90, s90, 150016")
        a("v_mov_b32 v44, s90")
        a("s_memtime s[90:91]")
    def lst():
        if LST:
            a("v_mov_b32 v43, s90")
            a("ds_write_b32 v44, v43")
            a("v_add_u32 v44, 4, v44")
            a("s_memtime s[90:91]")
    def stage(b, do_dma, do_next, first=False, preB=None, vmB=None, extraA=None, extraB=None, tailB=None, postW=None, plB=None, plA=None):
        a("s_waitcnt lgkmcnt(0)")
        lst()
        pa = [(2 * n, g) for n, g in enumerate(reads(1, b, 1) if "R" not in dbg else [])]
        if extraA: pa += [(1 + 4 * n, g) for n, g in enumerate(extraA)]
        if plA: pa += plA
        for i in place(mfmas(0), pa): a(i)
        a("s_waitcnt lgkmcnt(0)")
        lst()
        if preB: preB()
        if do_next:
            if "V" in dbg:
                pass
            elif vmB is not None:
                a("s_waitcnt vmcnt(%d)" % vmB)
            elif first == 1:
                a("s_waitcnt vmcnt(%d)" % (PD - 2 + 8))
            elif "P" in dbg:
                a("s_waitcnt vmcnt(%d)" % (1 if "2" not in dbg else 18))
            else:
                a("s_waitcnt vmcnt(%d)" % (0 if "2" not in dbg else (8 if ("X" in dbg or "W" in dbg) else 16)))
            if postW: postW()
            if LST:
                a("s_waitcnt lgkmcnt(0)")
                lst()
            if "B" not in dbg: a("s_barrier")
            if LST:
                a("s_waitcnt lgkmcnt(0)")
                lst()
            if first == 2:
                conv2.flag_srd(a)
                a("s_cmp_lg_u32 s%d, 0" % sW)
                a("s_cbranch_scc1 G1_P0")
                conv2.signal(a)
                a.label("G1_P0")
        pl = []
        if do_next and "R" not in dbg:
            for n, g in enumerate(reads(0, b ^ 1, 0)): pl.append((2 * n, g))
        if do_dma and "D" not in dbg:
            dl = dma(b)
            if "P" in dbg: dl[-1] = dl[-1] + touch()
            if tailB: dl[-1] = dl[-1] + tailB
            for n, g in enumerate(dl): pl.append((DS0 + DSP * n, g))
        if extraB: pl += [(1 + 4 * n, g) for n, g in enumerate(extraB)]
        if plB: pl += plB
        for i in place(mfmas(1), pl): a(i)

    def epilogue():
        vS = 2
        a("s_lshr_b32 s47, s43, 7")
        a("s_add_u32 s47, s47, s45")
        a("s_mul_i32 s47, s47, 112")
        a("s_lshr_b32 s48, s44, 5")
        a("s_add_u32 s47, s47, s48")
        a("s_lshl_b32 s48, s46, 1")
        a("s_add_u32 s47, s47, s48")
        a("s_lshl_b32 s47, s47, 13")
        a("v_and_b32 v%d, 15, v0" % t0)
        a("v_lshlrev_b32 v%d, 4, v%d" % (t0, t0))
        a("v_lshrrev_b32 v%d, 1, v%d" % (t1, t2))
        a("v_lshlrev_b32 v%d, 8, v%d" % (t1, t1))
        a("v_add_u32 v%d, v%d, v%d" % (t0, t0, t1))
        a("v_and_b32 v%d, 1, v%d" % (t1, t2))
        a("v_lshlrev_b32 v%d, 10, v%d" % (t1, t1))
        a("v_add_u32 v%d, v%d, v%d" % (t0, t0, t1))
        a("v_add_u32 v%d, s47, v%d" % (vS, t0))
        a("s_mov_b32 s56, 0")
        a("s_movk_i32 s57, 4096")
        a("s_movk_i32 s58, 8192")
        a("s_movk_i32 s59, 12288")
        import math
        C0 = -2.0 * math.sqrt(2.0 / math.pi) * math.log2(math.e)
        C1 = C0 * 0.044715
        import struct
        def f2u(x): return struct.unpack("<I", struct.pack("<f", x))[0]
        a("s_mov_b32 s50, 0x%x" % f2u(C0))
        a("s_mov_b32 s51, 0x%x" % f2u(C1))
        a("v_mov_b32 v3, s50")
        groups = []
        cnt = 0
        SC = os.environ.get("H1SC", " sc1")
        for ip in range(4):
            for t in range(4):
                G = 212; U = 220; T = 228; P = 236 + 4 * (cnt % 4)
                cnt += 1
                i = 2 * ip
                cg = (t * 8 + i) * 4
                cu = ((4 + t) * 8 + i) * 4
                e = []
                for r in range(8): e.append("v_accvgpr_read_b32 v%d, a%d" % (G + r, cg + r))
                for r in range(8): e.append("v_mul_f32 v%d, v%d, v%d" % (T + r, G + r, G + r))
                for r in range(8): e.append("v_fma_f32 v%d, v%d, s51, v3" % (T + r, T + r))
                for r in range(8): e.append("v_mul_f32 v%d, v%d, v%d" % (T + r, T + r, G + r))
                for r in range(8):
                    e.append("v_exp_f32 v%d, v%d" % (T + r, T + r))
                    e.append("v_accvgpr_read_b32 v%d, a%d" % (U + r, cu + r))
                for r in range(8): e.append("v_add_f32 v%d, 1.0, v%d" % (T + r, T + r))
                for r in range(8):
                    e.append("v_rcp_f32 v%d, v%d" % (T + r, T + r))
                    e.append("v_mul_f32 v%d, v%d, v%d" % (U + r, U + r, G + r))
                for r in range(8): e.append("v_mul_f32 v%d, v%d, v%d" % (U + r, U + r, T + r))
                for k in range(4): e.append("v_cvt_pk_bf16_f32 v%d, v%d, v%d" % (P + k, U + 2 * k, U + 2 * k + 1))
                e.append("s_nop 1")
                e.append("v_permlane16_swap_b32 v%d, v%d" % (P, P + 2))
                e.append("v_permlane16_swap_b32 v%d, v%d" % (P + 1, P + 3))
                e.append("s_nop 0")
                e.append("buffer_store_dwordx4 v[%d:%d], v%d, s[%d:%d], s%d offen offset:%d%s" % (P, P + 3, vS, S_H, S_H + 3, 56 + (i >> 2) + 2 * (t >> 1), (i & 3) * 1024 + (t & 1) * 512, SC))
                groups.append(e)
        return groups

    a("s_mov_b32 s%d, 0" % sCNT)
    if dprep:
        stage(0, True, True, first=1)
        stage(1, True, True, first=2)
        a("s_mov_b32 s%d, 1" % sCNT)
        rt(98)
    a.label("G1_LOOP")
    if POIL:
        stage(0, True, True, tailB=PSL, vmB=2)
        stage(1, True, True, tailB=PSL, vmB=2)
    else:
        stage(0, True, True)
        stage(1, True, True)
    a("s_add_u32 s%d, s%d, 1" % (sCNT, sCNT))
    a("s_cmp_lt_u32 s%d, %d" % (sCNT, 6 if fuse else 7))
    a("s_cbranch_scc1 G1_LOOP")
    if fuse:
        if not dprep: conv2.flag_srd(a)
        a("s_mov_b32 s84, 0")
        pi, _ = conv2.capture(a, conv2.poll_issue, a, 202)
        POIT = os.environ.get("G2", "x") in "wx" and os.environ.get("POIS", "e") == "t"
        if POIT:
            pi = pi + ["v_mov_b32 v203, 1", "v_mov_b32 v209, 32", "s_mov_b64 exec, 1", "buffer_atomic_add v203, v209, s[80:83], 0 offen sc0 sc1", "s_mov_b64 exec, -1"]
        pi = ["s_cmp_lg_u32 s%d, 0" % sW, "s_cbranch_scc1 G1_P1"] + pi + ["G1_P1:"]
        stage(0, True, True, tailB=conv2.touch_h() + conv2.gate_loads(), extraB=[pi], vmB=2 if POIL else None)
        def post1():
            conv2.poll_check(a, 202, 84)
        tk = None
        if POIT:
            tk = [(2, ["v_readfirstlane_b32 s62, v203", "s_lshl_b32 s63, s%d, 2" % sW, "s_add_u32 s63, s63, %d" % conv2.TKOFF]),
                  (4, ["v_mov_b32 v203, s62", "v_mov_b32 v210, s63"]), (6, ["ds_write_b32 v210, v203"])]
        stage(1, True, True, vmB=8, postW=post1, plB=tk)
        ces, DE = conv2.capture(a, conv2.conv_early, a)
        def chk2():
            a("s_cmp_lg_u32 s%d, 0" % sW)
            a("s_cbranch_scc1 G1_P4")
            a("s_cmp_lg_u32 s84, 0")
            a("s_cbranch_scc1 G1_P4")
            a.label("G1_P3")
            conv2.poll_issue(a, 202)
            a("s_waitcnt vmcnt(0)")
            conv2.poll_check(a, 202, 84)
            a("s_cmp_lg_u32 s84, 0")
            a("s_cbranch_scc1 G1_P4")
            a("s_sleep 16")
            a("s_branch G1_P3")
            a.label("G1_P4")
        GC = conv2.gate_compute()
        def spread(groups, lo, hi):
            tot = sum(len(g) for g in groups); r = []; c = 0
            for g in groups:
                r.append((lo + (c * (hi - lo)) // max(tot, 1), g)); c += len(g)
            return r
        n14 = 0; c = 0
        while c < 120: c += len(GC[n14]); n14 += 1
        stage(0, False, True, preB=chk2, extraB=DE[:12], extraA=[ces[i:i + 2] for i in range(0, len(ces), 2)], plB=spread(GC[:n14], 2, 64),
              plA=([(n, [i]) for n, i in enumerate(PSET)] + [(15 + 5 * n, PST_) for n in range(NPO)]) if POIS else None, vmB=1 + NPO)
        a("s_waitcnt lgkmcnt(0)")
        lst()
        mA = mfmas(0); mB = mfmas(1)
        A_ = [mA[8 * i:8 * i + 8] for i in range(8)]; B_ = [mB[8 * i:8 * i + 8] for i in range(8)]
        pl = [(n, g) for n, g in enumerate(reads(1, 1, 1))]
        pl += [(1 + 4 * n, g) for n, g in enumerate(DE[12:])]
        pl += spread(GC[n14:], 0, 32)
        for i in place(A_[0] + A_[1] + A_[2] + A_[3], pl): a(i)
        a("s_waitcnt lgkmcnt(0)")
        lst()
        es, groups = conv2.capture(a, epilogue)
        cs, _ = conv2.capture(a, conv2.conv_setup, a)
        EF = [i for g in groups for i in g]
        NE15 = int(os.environ.get("NE15", "200"))
        seq = B_[0] + B_[1] + A_[4] + A_[5] + B_[2] + B_[3] + A_[6] + A_[7] + B_[4] + B_[5] + B_[6] + B_[7]
        pl = spread([[i] for i in es + cs], 0, 20) + spread([[i] for i in EF[:NE15]], 20, 96)
        EF = EF[NE15:]
        for i in place(seq, pl): a(i)
        if LST:
            a("s_waitcnt lgkmcnt(0)")
            lst()
            a("s_lshl_b32 s90, s%d, 8" % sW)
            a("s_add_u32 s90, s90, 150016")
            a("v_lshlrev_b32 v44, 2, v0")
            a("v_add_u32 v43, s90, v44")
            a("s_waitcnt lgkmcnt(0)")
            a("ds_read_b32 v43, v43")
            a("s_add_u32 s76, s30, 0x6000000")
            a("s_addc_u32 s77, s31, 0")
            a("s_mov_b32 s78, 0x100000")
            a("s_mov_b32 s79, 0x00020000")
            a("s_lshl_b32 s90, s2, 2")
            a("s_add_u32 s90, s90, s%d" % sW)
            a("s_lshl_b32 s90, s90, 8")
            a("s_waitcnt lgkmcnt(0)")
            a("buffer_store_dword v43, v44, s[76:79], s90 offen")
            a("s_waitcnt vmcnt(0)")
            a("s_mul_i32 s%d, s%d, %d" % (conv2.T3, conv2.sD, G_PITCH))
        rt(88)
        if rts and not PST: a("s_memtime s[96:97]")
        a("s_barrier")
        rt(90)
        D = conv2.conv_issue(a)
    else:
        stage(0, False, True)
        stage(1, False, False)

    if fuse:
        return D, EF
    groups = epilogue()
    for e in groups:
        for i in e: a(i)

    if stamps:
        stamp(4)
        a("s_waitcnt vmcnt(0)")
        stamp(5)
        a("s_waitcnt lgkmcnt(0)")
        a("s_add_u32 s30, s30, 0x4000000")
        a("s_addc_u32 s31, s31, 0")
        srd(a, S_H, 30, 1 << 20)
        a("s_lshl_b32 s47, s2, 2")
        a("s_add_u32 s47, s47, s%d" % sW)
        a("s_lshl_b32 s47, s47, 5")
        for i in range(6):
            a("v_mov_b32 v%d, s%d" % (64 + i, 60 + 2 * i))
        a("v_mov_b32 v70, s47")
        a("v_cmp_eq_u32 vcc, 0, v0")
        a("s_and_saveexec_b64 s[48:49], vcc")
        a("buffer_store_dwordx4 v[64:67], v70, s[%d:%d], 0 offen" % (S_H, S_H + 3))
        a("buffer_store_dwordx2 v[68:69], v70, s[%d:%d], 0 offen offset:16" % (S_H, S_H + 3))
        a("s_mov_b64 exec, s[48:49]")
```

```python
from asmlib import *
from layout import *
from prep import ws_srd
import os

NST = 28
WR = int(os.environ.get("G2WR", "8"))
XR = int(os.environ.get("G2XR", "8"))
BLK = int(os.environ.get("G2BLK", "4"))
RJW = int(os.environ.get("G2RJW", "1"))
MAP = int(os.environ.get("G2MAP", "2"))
G2_ZB = 2 * WR * 8192
G2_LDS = max(G2_ZB + 16384, 65536 + 16384)
if G2_ZB < 65536: G2_ZB = 65536

def gen_gemm2(a, dbg="", stamps=False, rts=False):
    def stamp(i):
        if rts and i in (1, 2, 3, 4):
            r = {1: 98, 2: 86, 3: 88, 4: 90}[i]
            a("s_memrealtime s[%d:%d]" % (r, r + 1))
    S_H, S_W, S_Z, S_Q, S_O, S_GT, S_XB = 4, 8, 12, 16, 20, 24, 60
    sW, sLB, sX, sWK = 40, 41, 42, 43
    sMF, sNF = 44, 45
    sMH, sKQ, sKH = 64, 65, 66
    sXS, sXL = 68, 70
    a("s_load_dwordx2 s[34:35], s[0:1], 104")
    a("s_load_dwordx2 s[30:31], s[0:1], 72")
    a("s_load_dwordx2 s[28:29], s[0:1], 0")
    a("s_load_dwordx2 s[32:33], s[0:1], 88")
    code_touch(a, 76, 28, 0, "g2_kernel")
    a("v_lshrrev_b32 v1, 6, v0")
    a("v_and_b32 v0, 63, v0")
    a("s_and_b32 s46, s2, 7")
    a("v_readfirstlane_b32 s%d, v1" % sW)
    a("s_lshr_b32 s47, s2, 3")
    a("s_lshr_b32 s%d, s46, 2" % sKH)
    if MAP == 1:
        a("s_and_b32 s48, s46, 3")
        a("s_lshl_b32 s48, s48, 2")
        a("s_and_b32 s51, s47, 3")
        a("s_add_u32 s48, s48, s51")
        a("s_lshr_b32 s49, s47, 2")
        a("s_mov_b32 s50, s49")
        maxr = 7 + 3 * RJW
    else:
        a("s_and_b32 s48, s46, 1")
        a("s_lshl_b32 s48, s48, 3")
        a("s_and_b32 s51, s47, 7")
        a("s_add_u32 s48, s48, s51")
        a("s_and_b32 s49, s46, 2")
        a("s_lshl_b32 s49, s49, 1")
        a("s_lshr_b32 s50, s47, 3")
        a("s_add_u32 s49, s49, s50")
        maxr = 3 + 7 * RJW
    if "Z" in dbg:
        a("s_mov_b32 s48, 0")
        a("s_mov_b32 s49, 0")
    if "Y" in dbg:
        a("s_mov_b32 s48, 0")
    if "U" in dbg:
        a("s_mov_b32 s49, 0")
    a("v_lshlrev_b32 v2, 4, v0")
    a("v_lshrrev_b32 v3, 4, v0")
    a("s_and_b32 s%d, s%d, 1" % (sMH, sW))
    a("s_lshr_b32 s%d, s%d, 1" % (sKQ, sW))
    a("s_mul_i32 s52, s%d, 56" % sKH)
    a("s_mul_i32 s53, s%d, 28" % sKQ)
    a("s_add_u32 s52, s52, s53")
    a("s_mul_i32 s53, s48, 112")
    a("s_add_u32 s53, s53, s52")
    a("s_lshl_b32 s%d, s53, 13" % sX)
    a("s_lshl_b32 s%d, s52, 16" % sWK)
    if BLK:
        a("s_mul_i32 s51, s51, %d" % RJW)
        a("s_add_u32 s50, s50, s51")
        for _ in range(maxr // BLK):
            a("s_sub_u32 s51, s50, %d" % BLK)
            a("s_cmp_ge_u32 s50, %d" % BLK)
            a("s_cselect_b32 s50, s51, s50")
        a("s_mov_b32 s38, s50")
        a("s_mov_b32 s39, s50")
        a("s_mov_b32 s36, s%d" % sX)
        a("s_mov_b32 s37, s%d" % sWK)
        a("s_lshl_b32 s51, s50, 13")
        a("s_add_u32 s%d, s36, s51" % sX)
        a("s_lshl_b32 s51, s50, 16")
        a("s_add_u32 s%d, s37, s51" % sWK)
    def adv(t, sreg, sbase, sidx, sh):
        if not BLK:
            return [("s_add_u32 s%d, s%d, 0x%x" % (sreg, sreg, 1 << sh), None)]
        r = [("s_add_u32 s%d, s%d, 1" % (sidx, sidx), None),
             ("s_cmp_eq_u32 s%d, %d" % (sidx, BLK), None),
             ("s_cselect_b32 s%d, 0, s%d" % (sidx, sidx), None)]
        if t % BLK == BLK - 1:
            r.append(("s_add_u32 s%d, s%d, 0x%x" % (sbase, sbase, BLK << sh), None))
        r.append(("s_lshl_b32 s%d, s%d, %d" % (sreg, sidx, sh), None))
        r.append(("s_add_u32 s%d, s%d, s%d" % (sreg, sreg, sbase), None))
        return r
    a("s_mul_i32 s67, s%d, %d" % (sKQ, WR * 8192))
    a("s_lshl_b32 s50, s%d, 12" % sMH)
    a("s_add_u32 s%d, s67, s50" % sLB)
    a("s_lshl_b32 s51, s%d, 11" % sKH)
    a("s_add_u32 s51, s51, s50")
    a("v_add_u32 v16, s51, v2")
    a("v_xor_b32 v17, 0x800, v16")
    a("s_lshl_b32 s49, s49, 7")
    a("s_lshl_b32 s48, s48, 7")
    a("v_lshrrev_b32 v8, 3, v0")
    a("v_lshlrev_b32 v8, 11, v8")
    a("s_lshl_b32 s50, s%d, 6" % sMH)
    a("s_add_u32 s50, s50, s49")
    a("s_lshl_b32 s50, s50, 1")
    a("v_add_u32 v8, s50, v8")
    a("v_and_b32 v9, 7, v0")
    a("v_and_b32 v10, 1, v3")
    a("v_lshlrev_b32 v10, 1, v10")
    a("v_xor_b32 v9, v9, v10")
    a("v_lshlrev_b32 v9, 4, v9")
    a("v_add_u32 v8, v8, v9")
    a("v_xor_b32 v9, 64, v8")
    for I in range(4):
        a("v_add_u32 v%d, 0x%x, v%d" % (4 + I, I * 8 * 2048 - I * 1024, 8 if I % 2 == 0 else 9))
    a("s_waitcnt lgkmcnt(0)")
    ws_srd(a, S_H, 34, H1_OFF, H1_BYTES)
    srd(a, S_W, 30, 3584 * 1024 * 2)

    vm = []
    def emit(ins, tag=None):
        a(ins)
        if ins.startswith("buffer_"):
            vm.append(tag)
    def younger_than(tag):
        idx = max(i for i, x in enumerate(vm) if x == tag)
        return len(vm) - 1 - idx
    def ldx(t):
        g = []
        base = (t % XR) * 16
        for i in range(4):
            g.append([("buffer_load_dwordx4 a[%d:%d], v%d, s[%d:%d], s%d offen offset:%d" % (base + 4 * i, base + 4 * i + 3, 16 + (i >> 1), S_H, S_H + 3, sX, (i & 1) * 1024), ("x", t))])
        g[-1].extend(adv(t, sX, 36, 38, 13))
        return g
    def ldw(t):
        g = []
        for I in range(4):
            ins = []
            if I == 0:
                ins.append(("s_add_u32 m0, s%d, %d" % (sLB, (t % WR) * 8192), None))
                ins.append(("s_nop 0", None))
            ins.append(("buffer_load_dwordx4 v%d, s[%d:%d], s%d offen offset:%d lds" % (4 + I, S_W, S_W + 3, sWK, I * 1024), ("w", t)))
            g.append(ins)
        g[-1].extend(adv(t, sWK, 37, 39, 16))
        return g
    def mix(t):
        g = []
        if 0 <= t + WR < NST: g += ldw(t + WR)
        if 0 <= t + XR - 1 < NST: g += ldx(t + XR - 1)
        return g
    for t in range(-max(WR, XR), 0):
        for g in mix(t):
            for it in g: emit(*it)
    a("s_lshl_b32 s50, s%d, 6" % sMH)
    a("s_add_u32 s%d, s48, s50" % sMF)
    a("s_lshl_b32 s50, s%d, 5" % sKH)
    a("s_add_u32 s%d, s%d, s50" % (sMF, sMF))
    a("s_lshl_b32 s50, s%d, 6" % sKQ)
    a("s_add_u32 s%d, s49, s50" % sNF)
    ws_srd(a, S_Z, 34, Z_OFF, Z_BYTES)
    srd(a, S_Q, 28, 2048 * 1024 * 2)
    srd(a, S_O, 32, 2048 * 1024 * 2)
    ws_srd(a, S_GT, 34, GT_OFF, GT_BYTES)
    ws_srd(a, S_XB, 34, XB_OFF, XB_BYTES)
    a("s_lshl_b32 s50, s2, 2")
    a("s_add_u32 s50, s50, s%d" % sW)
    a("s_lshl_b32 s%d, s50, 13" % sXS)
    a("s_add_u32 s%d, s%d, 4096" % (sXS + 1, sXS))
    a("s_xor_b32 s%d, s%d, 0x%x" % (sXL, sXS, 4 << 15))
    a("s_add_u32 s%d, s%d, 4096" % (sXL + 1, sXL))
    extras = []
    a("v_lshrrev_b32 v8, 2, v0")
    a("v_add_u32 v8, s%d, v8" % sNF)
    a("v_lshlrev_b32 v8, 12, v8")
    a("v_and_b32 v9, 3, v0")
    a("v_lshlrev_b32 v9, 4, v9")
    a("v_add_u32 v14, v8, v9")
    a("s_lshl_b32 s56, s%d, 1" % sMF)
    a("s_lshl_b32 s57, s%d, 12" % sW)
    a("s_add_u32 s57, s57, %d" % G2_ZB)
    for I in range(4):
        g = []
        if I == 0: g += [("s_mov_b32 m0, s57", None), ("s_nop 0", None)]
        else: g += [("v_add_u32 v14, 0x%x, v14" % (16 * 4096 - 1024), None)]
        g.append(("buffer_load_dwordx4 v14, s[%d:%d], s56 offen offset:%d lds" % (S_Z, S_Z + 3, I * 1024), "e"))
        extras.append(g)
    a("v_and_b32 v9, 15, v0")
    a("v_add_u32 v9, s%d, v9" % sMF)
    a("v_lshlrev_b32 v13, 2, v9")
    a("v_lshlrev_b32 v12, 11, v9")
    a("v_lshlrev_b32 v10, 3, v3")
    a("v_add_u32 v12, v12, v10")
    a("s_lshl_b32 s50, s%d, 1" % sNF)
    a("v_add_u32 v12, s50, v12")
    a("s_mov_b32 s53, 0x8000")
    QR = 96
    for sl in range(2):
        for nt in range(4):
            extras.append([("buffer_load_dwordx2 v[%d:%d], v12, s[%d:%d], %s offen offset:%d" % (QR + (sl * 4 + nt) * 2, QR + (sl * 4 + nt) * 2 + 1, S_Q, S_Q + 3, "0" if sl == 0 else "s53", nt * 32), "e")])
    extras.append([("buffer_load_dword v%d, v13, s[%d:%d], 0 offen" % (QR + 16, S_GT, S_GT + 3), "e")])
    extras.append([("buffer_load_dword v%d, v13, s[%d:%d], 0 offen offset:64" % (QR + 17, S_GT, S_GT + 3), "e")])
    a("v_lshrrev_b32 v8, 2, v0")
    a("v_and_b32 v8, 3, v8")
    a("v_lshlrev_b32 v9, 3, v3")
    a("v_add_u32 v9, v9, v8")
    a("v_lshlrev_b32 v9, 7, v9")
    a("v_and_b32 v10, 3, v0")
    a("v_lshlrev_b32 v10, 3, v10")
    a("v_add_u32 v9, v9, v10")
    a("s_lshl_b32 s50, s%d, 12" % sKQ)
    a("s_add_u32 s50, s50, s67")
    a("v_add_u32 v9, s50, v9")
    a("v_lshrrev_b32 v10, 1, v8")
    a("v_and_b32 v11, 1, v3")
    a("v_lshlrev_b32 v11, 1, v11")
    a("v_or_b32 v10, v10, v11")
    for nt in range(4):
        a("v_xor_b32 v11, %d, v10" % nt)
        a("v_lshlrev_b32 v11, 5, v11")
        a("v_add_u32 v%d, v9, v11" % (20 + nt))
        a("v_xor_b32 v%d, 0x1000, v%d" % (24 + nt, 20 + nt))
    a("v_lshlrev_b32 v9, 2, v3")
    a("v_add_u32 v9, v9, v8")
    a("v_lshlrev_b32 v9, 6, v9")
    a("v_and_b32 v10, 3, v0")
    a("v_lshlrev_b32 v10, 3, v10")
    a("v_add_u32 v9, v9, v10")
    a("v_add_u32 v30, s57, v9")
    a("v_and_b32 v9, 15, v0")
    a("v_and_b32 v10, 1, v3")
    a("v_lshlrev_b32 v10, 4, v10")
    a("v_add_u32 v9, v9, v10")
    a("v_add_u32 v9, s%d, v9" % sMF)
    a("v_lshlrev_b32 v9, 11, v9")
    a("v_lshrrev_b32 v10, 1, v3")
    a("v_lshlrev_b32 v10, 4, v10")
    a("v_add_u32 v9, v9, v10")
    a("s_lshl_b32 s50, s%d, 1" % sNF)
    a("v_add_u32 v15, s50, v9")
    a("s_lshl_b32 s50, s%d, 14" % sW)
    a("v_add_u32 v18, s50, v2")
    a("v_xor_b32 v19, 0x8000, v18")
    ACC = 128
    for i in range(128): a("v_mov_b32 v%d, 0" % (ACC + i))
    F = [128, 160]

    def reads(t):
        fb = F[t & 1]
        w = []
        for n in NORD:
            for h in range(2):
                d = fb + 4 * n + 2 * h
                w.append("ds_read_b64_tr_b16 a[%d:%d], v%d offset:%d" % (d, d + 1, 20 + n, (t % WR) * 8192 + h * 512))
        return w
    NORD = [4, 5, 6, 7, 0, 1, 2, 3]
    QORD = [(1, 1), (0, 1), (1, 0), (0, 0)]
    def cq(rm, rn, k): return ACC + ((rm * 2 + rn) * 8 + k) * 4
    def mfmas(t):
        fb = F[t & 1]
        xb = (t % XR) * 16
        m = []
        if "M" in dbg: return ["s_nop 0"] * 32
        for rm, rn in QORD:
            for sl in range(2):
                for nt in range(4):
                    c = cq(rm, rn, sl * 4 + nt)
                    n = rn * 4 + nt; i = rm * 2 + sl
                    m.append("v_mfma_f32_16x16x32_bf16 v[%d:%d], a[%d:%d], a[%d:%d], v[%d:%d]" % (
                        c, c + 3, fb + 4 * n, fb + 4 * n + 3, xb + 4 * i, xb + 4 * i + 3, c, c + 3))
        return m

    MK = 58
    a("s_mov_b32 s%d, 0xffff0000" % MK)
    G_ = QR + 16; OG = QR + 18
    QP = 64
    def rnd4l(R, T):
        return ["v_cvt_pk_bf16_f32 v%d, v%d, v%d" % (T, R, R + 1), "v_cvt_pk_bf16_f32 v%d, v%d, v%d" % (T + 1, R + 2, R + 3),
                "v_lshlrev_b32 v%d, 16, v%d" % (R, T), "v_and_b32 v%d, s%d, v%d" % (R + 1, MK, T),
                "v_lshlrev_b32 v%d, 16, v%d" % (R + 2, T + 1), "v_and_b32 v%d, s%d, v%d" % (R + 3, MK, T + 1)]
    ZRD = ["ds_read_b64_tr_b16 v[%d:%d], v30 offset:%d" % (QP + 4 * k + 2, QP + 4 * k + 3, (k & 3) * 1024 + (k >> 2) * 32) for k in range(8)]
    def precompute():
        r = []
        for sl in range(2):
            r.append("v_sub_f32 v%d, 1.0, v%d" % (OG + sl, G_ + sl))
            r.append("v_cvt_pk_bf16_f32 v%d, v%d, v%d" % (OG + sl, OG + sl, OG + sl))
            r.append("v_and_b32 v%d, s%d, v%d" % (OG + sl, MK, OG + sl))
        for k in range(8):
            sl = k >> 2
            Q = QP + 4 * k; Z = 124; T = 120
            qs = QR + 2 * k; zs = Q + 2
            r += ["v_lshlrev_b32 v%d, 16, v%d" % (Z, zs), "v_and_b32 v%d, s%d, v%d" % (Z + 1, MK, zs),
                  "v_lshlrev_b32 v%d, 16, v%d" % (Z + 2, zs + 1), "v_and_b32 v%d, s%d, v%d" % (Z + 3, MK, zs + 1)]
            r += ["v_lshlrev_b32 v%d, 16, v%d" % (Q, qs), "v_and_b32 v%d, s%d, v%d" % (Q + 1, MK, qs),
                  "v_lshlrev_b32 v%d, 16, v%d" % (Q + 2, qs + 1), "v_and_b32 v%d, s%d, v%d" % (Q + 3, MK, qs + 1)]
            for i in range(4): r.append("v_mul_f32 v%d, v%d, v%d" % (Q + i, Q + i, Z + i))
            r += rnd4l(Q, T)
            for i in range(4): r.append("v_mul_f32 v%d, v%d, v%d" % (Q + i, Q + i, G_ + sl))
            r += rnd4l(Q, T)
        return r
    PC = precompute()
    XE = int(os.environ.get("G2XE", "22"))
    XZ = NST - 1
    LSP = int(os.environ.get("G2LSP", "4"))
    stamp(1)
    a("s_waitcnt vmcnt(%d)" % younger_than(("w", 0)))
    a("s_barrier")
    stamp(2)
    for i in reads(0): a(i)
    for t in range(NST):
        n = younger_than(("x", t))
        if t + 1 < NST: n = min(n, younger_than(("w", t + 1)))
        assert n <= 63, n
        if t == XZ: n = min(n, younger_than("e"))
        a("s_waitcnt vmcnt(%d) lgkmcnt(0)" % n)
        if "B" not in dbg: a("s_barrier")
        if rts and t == 7: a("s_memrealtime s[94:95]")
        if rts and t == 21: a("s_memrealtime s[96:97]")
        pl = []
        if t + 1 < NST:
            for n, g in enumerate(reads(t + 1)): pl.append((n + (n >> 1), [(g, None)]))
        for n, g in enumerate(mix(t)): pl.append((LSP * n + 1, g))
        if t == XE:
            for n, g in enumerate(extras): pl.append((2 + 2 * n, g))
        if t == NST - 1:
            for k, g in enumerate(ZRD): pl.append((k, [(g, None)]))
            for k in range(8):
                c = cq(1, 1, k)
                pl.append((16 + k, [("ds_write_b128 v18, v[%d:%d] offset:%d" % (c, c + 3, k * 1024), None)]))
                c = cq(0, 1, k)
                pl.append((24 + k, [("ds_write_b128 v18, v[%d:%d] offset:%d" % (c, c + 3, (8 + k) * 1024), None)]))
        for it in place([(m, None) for m in mfmas(t)], pl): emit(*it)

    stamp(3)
    a("s_waitcnt lgkmcnt(0)")
    a("s_barrier")
    for k in range(8):
        c = cq(1, 1, k)
        a("ds_read_b128 v[%d:%d], v19 offset:%d" % (c, c + 3, k * 1024))
    for k in range(8):
        c = cq(0, 1, k)
        a("ds_read_b128 v[%d:%d], v19 offset:%d" % (c, c + 3, (8 + k) * 1024))
    for k in range(8):
        a("s_waitcnt lgkmcnt(%d)" % (15 - k))
        c = cq(1, 0, k); d = cq(1, 1, k)
        for r in range(4): a("v_add_f32 v%d, v%d, v%d" % (c + r, c + r, d + r))
        for r in range(4): a("v_min_u32 v%d, -2, v%d" % (c + r, c + r))
        a("buffer_store_dwordx4 v[%d:%d], v2, s[%d:%d], s%d offen offset:%d sc1" % (c, c + 3, S_XB, S_XB + 3, sXS + (k >> 2), (k & 3) * 1024))
    RX = 32
    def sweep():
        for k in range(8):
            a("buffer_load_dwordx4 v[%d:%d], v2, s[%d:%d], s%d offen offset:%d sc1" % (RX + 4 * k, RX + 4 * k + 3, S_XB, S_XB + 3, sXL + (k >> 2), (k & 3) * 1024))
    NP0 = int(os.environ.get("G2NP0", "0"))
    a("s_waitcnt lgkmcnt(0)")
    for i in PC[:NP0]: a(i)
    sweep()
    stamp(4)
    for k in range(8):
        c = cq(0, 0, k); d = cq(0, 1, k)
        for r in range(4): a("v_add_f32 v%d, v%d, v%d" % (c + r, c + r, d + r))
    for i in PC[NP0:]: a(i)
    a("s_mov_b32 s72, 0x8000")
    a("s_branch G2_CHK")
    a.label("G2_POLL")
    a("s_sub_u32 s72, s72, 1")
    a("s_cmp_eq_u32 s72, 0")
    a("s_cbranch_scc1 G2_FIN")
    sweep()
    a.label("G2_CHK")
    a("s_waitcnt vmcnt(0)")
    a("v_max3_u32 v120, v%d, v%d, v%d" % (RX, RX + 1, RX + 2))
    a("v_max3_u32 v121, v%d, v%d, v%d" % (RX + 3, RX + 4, RX + 5))
    for i in range(13):
        d = 120 + (i & 1)
        a("v_max3_u32 v%d, v%d, v%d, v%d" % (d, d, RX + 6 + 2 * i, RX + 7 + 2 * i))
    a("v_max_u32 v120, v120, v121")
    a("v_cmp_eq_u32 vcc, -1, v120")
    a("s_nop 1")
    if "P" not in dbg: a("s_cbranch_vccnz G2_POLL")
    a.label("G2_FIN")
    if "C" in dbg:
        a("s_memrealtime s[94:95]")
        a("s_sub_u32 s96, 0x8000, s72")
    for nt in range(4):
        for sl in range(2):
            k = sl * 4 + nt
            B = cq(0, 0, k)
            T = 124; O = 96 + 4 * nt + 2 * sl
            for r in range(4): a("v_add_f32 v%d, v%d, v%d" % (B + r, B + r, RX + 4 * k + r))
            for i in rnd4l(B, T): a(i)
            for r in range(4): a("v_mul_f32 v%d, v%d, v%d" % (B + r, B + r, OG + sl))
            for i in rnd4l(B, T): a(i)
            for r in range(4): a("v_add_f32 v%d, v%d, v%d" % (B + r, B + r, QP + 4 * k + r))
            a("v_cvt_pk_bf16_f32 v%d, v%d, v%d" % (O, B, B + 1))
            a("v_cvt_pk_bf16_f32 v%d, v%d, v%d" % (O + 1, B + 2, B + 3))
        O = 96 + 4 * nt
        a("s_nop 1")
        a("v_permlane16_swap_b32 v%d, v%d" % (O, O + 2))
        a("v_permlane16_swap_b32 v%d, v%d" % (O + 1, O + 3))
        a("s_nop 0")
        a("buffer_store_dwordx4 v[%d:%d], v15, s[%d:%d], 0 offen offset:%d" % (O, O + 3, S_O, S_O + 3, nt * 32))

def poison(a):
    r = ["s_add_u32 s76, s72, 0x%x" % XB_OFF, "s_addc_u32 s77, s73, 0", "s_mov_b32 s78, 0x%x" % XB_BYTES, "s_mov_b32 s79, 0x00020000",
         "s_lshl_b32 s62, s2, 2", "s_add_u32 s62, s62, s40", "s_lshl_b32 s62, s62, 16", "v_lshlrev_b32 v248, 4, v0"]
    for i in range(4): r.append("v_mov_b32 v%d, -1" % (244 + i))
    for b in range(16):
        for k in range(4):
            r.append("buffer_store_dwordx4 v[244:247], v248, s[76:79], s62 offen offset:%d sc1" % (k * 1024))
        r.append("s_add_u32 s62, s62, 4096")
    return r
```

```python
from asmlib import *
from layout import *
from prep import ws_srd
import os

NST = 28
WR = int(os.environ.get("G2WR", "8"))
XR = int(os.environ.get("G2XR", "8"))
BLK = int(os.environ.get("G2BLK", "4"))
RJW = int(os.environ.get("G2RJW", "1"))
MAP = int(os.environ.get("G2MAP", "2"))
D = int(os.environ.get("G2D", "8"))
assert WR == 8 and D <= WR and D <= XR and D >= 2
G2_ZB = 2 * WR * 8192
G2_LDS = max(G2_ZB + 16384, 65536 + 16384)
if G2_ZB < 65536: G2_ZB = 65536

def gen_gemm2(a, dbg="", stamps=False, rts=False):
    def stamp(i):
        if rts and i in (1, 2, 3, 4):
            r = {1: 98, 2: 86, 3: 88, 4: 90}[i]
            a("s_memrealtime s[%d:%d]" % (r, r + 1))
    S_H, S_W, S_Z, S_Q, S_O, S_GT, S_XB = 4, 8, 12, 16, 20, 24, 60
    sW, sLB, sX, sWK = 40, 41, 42, 43
    sMF, sNF = 44, 45
    sMH, sKQ, sKH = 64, 65, 66
    sXS, sXL = 68, 70
    a("s_load_dwordx2 s[34:35], s[0:1], 104")
    a("s_load_dwordx2 s[30:31], s[0:1], 72")
    a("s_load_dwordx2 s[28:29], s[0:1], 0")
    a("s_load_dwordx2 s[32:33], s[0:1], 88")
    a("s_load_dwordx2 s[74:75], s[0:1], 96")
    code_touch(a, 76, 28, 0, "g2_kernel")
    a("v_lshrrev_b32 v1, 6, v0")
    a("v_and_b32 v0, 63, v0")
    a("s_and_b32 s46, s2, 7")
    a("v_readfirstlane_b32 s%d, v1" % sW)
    a("s_lshr_b32 s47, s2, 3")
    a("s_lshr_b32 s%d, s46, 2" % sKH)
    if MAP == 1:
        a("s_and_b32 s48, s46, 3")
        a("s_lshl_b32 s48, s48, 2")
        a("s_and_b32 s51, s47, 3")
        a("s_add_u32 s48, s48, s51")
        a("s_lshr_b32 s49, s47, 2")
        a("s_mov_b32 s50, s49")
        maxr = 7 + 3 * RJW
    else:
        a("s_and_b32 s48, s46, 1")
        a("s_lshl_b32 s48, s48, 3")
        a("s_and_b32 s51, s47, 7")
        a("s_add_u32 s48, s48, s51")
        a("s_and_b32 s49, s46, 2")
        a("s_lshl_b32 s49, s49, 1")
        a("s_lshr_b32 s50, s47, 3")
        a("s_add_u32 s49, s49, s50")
        maxr = 3 + 7 * RJW
    if "Z" in dbg:
        a("s_mov_b32 s48, 0")
        a("s_mov_b32 s49, 0")
    if "Y" in dbg:
        a("s_mov_b32 s48, 0")
    if "U" in dbg:
        a("s_mov_b32 s49, 0")
    a("v_lshlrev_b32 v2, 4, v0")
    a("v_lshrrev_b32 v3, 4, v0")
    a("s_and_b32 s%d, s%d, 1" % (sMH, sW))
    a("s_lshr_b32 s%d, s%d, 1" % (sKQ, sW))
    a("s_mul_i32 s52, s%d, 56" % sKH)
    a("s_mul_i32 s53, s%d, 28" % sKQ)
    a("s_add_u32 s52, s52, s53")
    a("s_mul_i32 s53, s48, 112")
    a("s_add_u32 s53, s53, s52")
    a("s_lshl_b32 s%d, s53, 13" % sX)
    a("s_lshl_b32 s%d, s52, 16" % sWK)
    if BLK:
        a("s_mul_i32 s51, s51, %d" % RJW)
        a("s_add_u32 s50, s50, s51")
        for _ in range(maxr // BLK):
            a("s_sub_u32 s51, s50, %d" % BLK)
            a("s_cmp_ge_u32 s50, %d" % BLK)
            a("s_cselect_b32 s50, s51, s50")
        a("s_mov_b32 s38, s50")
        a("s_mov_b32 s39, s50")
        a("s_mov_b32 s36, s%d" % sX)
        a("s_mov_b32 s37, s%d" % sWK)
        a("s_lshl_b32 s51, s50, 13")
        a("s_add_u32 s%d, s36, s51" % sX)
        a("s_lshl_b32 s51, s50, 16")
        a("s_add_u32 s%d, s37, s51" % sWK)
    def adv(t, sreg, sbase, sidx, sh):
        if not BLK:
            return [("s_add_u32 s%d, s%d, 0x%x" % (sreg, sreg, 1 << sh), None)]
        r = [("s_add_u32 s%d, s%d, 1" % (sidx, sidx), None),
             ("s_cmp_eq_u32 s%d, %d" % (sidx, BLK), None),
             ("s_cselect_b32 s%d, 0, s%d" % (sidx, sidx), None)]
        if t % BLK == BLK - 1:
            r.append(("s_add_u32 s%d, s%d, 0x%x" % (sbase, sbase, BLK << sh), None))
        r.append(("s_lshl_b32 s%d, s%d, %d" % (sreg, sidx, sh), None))
        r.append(("s_add_u32 s%d, s%d, s%d" % (sreg, sreg, sbase), None))
        return r
    a("s_mul_i32 s67, s%d, %d" % (sKQ, WR * 8192))
    a("s_lshl_b32 s50, s%d, 12" % sMH)
    a("s_add_u32 s%d, s67, s50" % sLB)
    a("s_lshl_b32 s51, s%d, 11" % sKQ)
    a("s_add_u32 s51, s51, s50")
    a("v_add_u32 v16, s51, v2")
    a("v_xor_b32 v17, 0x800, v16")
    a("s_lshl_b32 s49, s49, 7")
    a("s_lshl_b32 s48, s48, 7")
    a("v_lshrrev_b32 v8, 3, v0")
    a("s_lshl_b32 s50, s%d, 4" % sMH)
    a("v_add_u32 v8, s50, v8")
    a("v_lshlrev_b32 v8, 11, v8")
    a("s_lshl_b32 s50, s%d, 6" % sKH)
    a("s_add_u32 s50, s50, s49")
    a("s_lshl_b32 s50, s50, 1")
    a("v_add_u32 v8, s50, v8")
    a("v_and_b32 v9, 7, v0")
    a("v_and_b32 v10, 1, v3")
    a("v_lshlrev_b32 v10, 1, v10")
    a("v_xor_b32 v9, v9, v10")
    a("v_lshlrev_b32 v9, 4, v9")
    a("v_add_u32 v8, v8, v9")
    a("v_xor_b32 v9, 64, v8")
    a("v_xor_b32 v10, 0x80, v8")
    a("v_xor_b32 v11, 0x80, v9")
    for I in range(4):
        src = {0: 10, 1: 11, 2: 8, 3: 9}[I]
        off = (I & 1) * (8 * 2048 - 1024)
        a("v_add_u32 v%d, 0x%x, v%d" % (4 + I, off, src))
    a("s_waitcnt lgkmcnt(0)")
    ws_srd(a, S_H, 34, H1_OFF, H1_BYTES)
    srd(a, S_W, 30, 3584 * 1024 * 2)

    vm = []
    def emit(ins, tag=None):
        a(ins)
        if ins.startswith("buffer_"):
            vm.append(tag)
    def younger_than(tag):
        idx = max(i for i, x in enumerate(vm) if x == tag)
        return len(vm) - 1 - idx
    def ldx(t):
        g = []
        base = (t % XR) * 16
        for i in range(4):
            g.append([("buffer_load_dwordx4 a[%d:%d], v%d, s[%d:%d], s%d offen offset:%d" % (base + 4 * i, base + 4 * i + 3, 16 + (i >> 1), S_H, S_H + 3, sX, (i & 1) * 1024), ("x", t))])
        g[-1].extend(adv(t, sX, 36, 38, 13))
        return g
    def ldw(t):
        g = []
        for I in range(4 if t < NST - D else 2):
            ins = []
            if I == 0:
                if t == NST - D:
                    ins += [("s_mov_b32 s80, s%d" % sWK, None), ("s_mov_b32 s81, s37", None), ("s_mov_b32 s82, s39", None)]
                ins.append(("s_add_u32 m0, s%d, %d" % (sLB, (t % WR) * 8192), None))
                ins.append(("s_nop 0", None))
            if I == 2:
                ins.append(("s_add_u32 m0, s%d, %d" % (sLB, (t % WR) * 8192 + 2048), None))
                ins.append(("s_nop 0", None))
            ins.append(("buffer_load_dwordx4 v%d, s[%d:%d], s%d offen offset:%d lds" % (4 + I, S_W, S_W + 3, sWK, (I & 1) * 1024), ("w", t)))
            g.append(ins)
        g[-1].extend(adv(t, sWK, 37, 39, 16))
        return g
    def ldk(t):
        g = []
        for I in (2, 3):
            ins = []
            if I == 2:
                ins.append(("s_add_u32 m0, s%d, %d" % (sLB, (t % WR) * 8192 + 2048), None))
                ins.append(("s_nop 0", None))
            ins.append(("buffer_load_dwordx4 v%d, s[%d:%d], s80 offen offset:%d lds" % (4 + I, S_W, S_W + 3, (I & 1) * 1024), ("k", t)))
            g.append(ins)
        g[-1].extend(adv(t, 80, 81, 82, 16))
        return g
    def mix(t):
        g = []
        if 0 <= t + WR < NST: g += ldw(t + WR)
        if 0 <= t + XR - 1 < NST: g += ldx(t + XR - 1)
        return g
    for t in range(-max(WR, XR), 0):
        for g in mix(t):
            for it in g: emit(*it)
    a("s_lshl_b32 s50, s%d, 6" % sMH)
    a("s_add_u32 s%d, s48, s50" % sMF)
    a("s_lshl_b32 s50, s%d, 5" % sKQ)
    a("s_add_u32 s%d, s%d, s50" % (sMF, sMF))
    a("s_lshl_b32 s50, s%d, 6" % sKH)
    a("s_add_u32 s%d, s49, s50" % sNF)
    ws_srd(a, S_Z, 34, Z_OFF, Z_BYTES)
    srd(a, S_Q, 28, 2048 * 1024 * 2)
    srd(a, S_O, 32, 2048 * 1024 * 2)
    ws_srd(a, S_GT, 34, GT_OFF, GT_BYTES)
    ws_srd(a, S_XB, 34, XB_OFF, XB_BYTES)
    PB = os.environ.get("POIS", "e") == "b"
    S_DB = 76
    if PB:
        srd(a, S_DB, 74, 256)
        for i in range(4): a("v_mov_b32 v%d, -1" % (32 + i))
        a("s_lshr_b32 s50, s2, 2")
        a("s_lshl_b32 s50, s50, 2")
        a("v_mov_b32 v36, s50")
        a("v_xor_b32 v37, 4, v36")
        a("s_and_b32 s73, s2, 3")
        a("s_lshl_b32 s50, 1, s73")
        a("v_mov_b32 v38, s50")
    a("s_lshl_b32 s50, s2, 2")
    a("s_add_u32 s50, s50, s%d" % sW)
    a("s_lshl_b32 s%d, s50, 13" % sXS)
    a("s_add_u32 s%d, s%d, 4096" % (sXS + 1, sXS))
    a("s_xor_b32 s%d, s%d, 0x%x" % (sXL, sXS, 4 << 15))
    a("s_add_u32 s%d, s%d, 4096" % (sXL + 1, sXL))
    extras = []
    a("v_lshrrev_b32 v8, 2, v0")
    a("v_add_u32 v8, s%d, v8" % sNF)
    a("v_lshlrev_b32 v8, 12, v8")
    a("v_and_b32 v9, 3, v0")
    a("v_lshlrev_b32 v9, 4, v9")
    a("v_add_u32 v14, v8, v9")
    a("s_lshl_b32 s56, s%d, 1" % sMF)
    a("s_lshl_b32 s57, s%d, 12" % sW)
    a("s_add_u32 s57, s57, %d" % G2_ZB)
    for I in range(4):
        g = []
        if I == 0: g += [("s_mov_b32 m0, s57", None), ("s_nop 0", None)]
        else: g += [("v_add_u32 v14, 0x%x, v14" % (16 * 4096 - 1024), None)]
        g.append(("buffer_load_dwordx4 v14, s[%d:%d], s56 offen offset:%d lds" % (S_Z, S_Z + 3, I * 1024), "e"))
        extras.append(g)
    a("v_and_b32 v9, 15, v0")
    a("v_add_u32 v9, s%d, v9" % sMF)
    a("v_lshlrev_b32 v13, 2, v9")
    a("v_lshlrev_b32 v12, 11, v9")
    a("v_lshlrev_b32 v10, 3, v3")
    a("v_add_u32 v12, v12, v10")
    a("s_lshl_b32 s50, s%d, 1" % sNF)
    a("v_add_u32 v12, s50, v12")
    a("s_mov_b32 s53, 0x8000")
    QR = 96
    for sl in range(2):
        for nt in range(4):
            extras.append([("buffer_load_dwordx2 v[%d:%d], v12, s[%d:%d], %s offen offset:%d" % (QR + (sl * 4 + nt) * 2, QR + (sl * 4 + nt) * 2 + 1, S_Q, S_Q + 3, "0" if sl == 0 else "s53", nt * 32), "e")])
    extras.append([("buffer_load_dword v%d, v13, s[%d:%d], 0 offen" % (QR + 16, S_GT, S_GT + 3), "e")])
    extras.append([("buffer_load_dword v%d, v13, s[%d:%d], 0 offen offset:64" % (QR + 17, S_GT, S_GT + 3), "e")])
    a("v_lshrrev_b32 v8, 2, v0")
    a("v_and_b32 v8, 3, v8")
    a("v_lshlrev_b32 v9, 7, v8")
    a("v_lshrrev_b32 v10, 1, v3")
    a("v_lshlrev_b32 v10, 12, v10")
    a("v_add_u32 v9, v9, v10")
    a("v_and_b32 v11, 1, v3")
    a("v_lshlrev_b32 v10, 10, v11")
    a("v_add_u32 v9, v9, v10")
    a("v_and_b32 v10, 3, v0")
    a("v_lshlrev_b32 v10, 3, v10")
    a("v_add_u32 v9, v9, v10")
    a("v_add_u32 v9, s67, v9")
    a("v_lshrrev_b32 v10, 1, v8")
    a("v_lshlrev_b32 v11, 1, v11")
    a("v_or_b32 v10, v10, v11")
    for nt in range(4):
        a("v_xor_b32 v11, %d, v10" % nt)
        a("v_lshlrev_b32 v11, 5, v11")
        a("v_add_u32 v%d, v9, v11" % (20 + nt))
    a("v_lshlrev_b32 v9, 2, v3")
    a("v_add_u32 v9, v9, v8")
    a("v_lshlrev_b32 v9, 6, v9")
    a("v_and_b32 v10, 3, v0")
    a("v_lshlrev_b32 v10, 3, v10")
    a("v_add_u32 v9, v9, v10")
    a("v_add_u32 v30, s57, v9")
    a("v_and_b32 v9, 15, v0")
    a("v_and_b32 v10, 1, v3")
    a("v_lshlrev_b32 v10, 4, v10")
    a("v_add_u32 v9, v9, v10")
    a("v_add_u32 v9, s%d, v9" % sMF)
    a("v_lshlrev_b32 v9, 11, v9")
    a("v_lshrrev_b32 v10, 1, v3")
    a("v_lshlrev_b32 v10, 4, v10")
    a("v_add_u32 v9, v9, v10")
    a("s_lshl_b32 s50, s%d, 1" % sNF)
    a("v_add_u32 v15, s50, v9")
    a("v_add_u32 v18, s%d, v2" % sLB)
    a("v_xor_b32 v19, 0x%x, v18" % (WR * 8192))
    ACC = 128
    for i in range(128): a("v_mov_b32 v%d, 0" % (ACC + i))
    F = [128, 160]

    def reads(t, lss=(0, 1), par=None):
        fb = F[(t if par is None else par) & 1]
        w = []
        for ls in lss:
            for nt in range(4):
                for h in range(2):
                    d = fb + 4 * (ls * 4 + nt) + 2 * h
                    w.append("ds_read_b64_tr_b16 a[%d:%d], v%d offset:%d" % (d, d + 1, 20 + nt, (t % WR) * 8192 + ls * 2048 + h * 512))
        return w
    def cq(ls, rm, k): return ACC + ((ls * 2 + rm) * 8 + k) * 4
    def mfmas(t, lss=(0, 1)):
        fb = F[t & 1]
        xb = (t % XR) * 16
        m = []
        if "M" in dbg: return ["s_nop 0"] * (16 * len(lss))
        for ls in lss:
            for rm in (1, 0):
                for sl in range(2):
                    for nt in range(4):
                        c = cq(ls, rm, sl * 4 + nt)
                        n = ls * 4 + nt; i = rm * 2 + sl
                        m.append("v_mfma_f32_16x16x32_bf16 v[%d:%d], a[%d:%d], a[%d:%d], v[%d:%d]" % (
                            c, c + 3, fb + 4 * n, fb + 4 * n + 3, xb + 4 * i, xb + 4 * i + 3, c, c + 3))
        return m
    def soff(base, k): return (base + (k >> 1)) * 8192 + (k & 1) * 1024

    MK = 58
    a("s_mov_b32 s%d, 0xffff0000" % MK)
    G_ = QR + 16; OG = QR + 18
    QP = 64
    def rnd4l(R, T):
        return ["v_cvt_pk_bf16_f32 v%d, v%d, v%d" % (T, R, R + 1), "v_cvt_pk_bf16_f32 v%d, v%d, v%d" % (T + 1, R + 2, R + 3),
                "v_lshlrev_b32 v%d, 16, v%d" % (R, T), "v_and_b32 v%d, s%d, v%d" % (R + 1, MK, T),
                "v_lshlrev_b32 v%d, 16, v%d" % (R + 2, T + 1), "v_and_b32 v%d, s%d, v%d" % (R + 3, MK, T + 1)]
    ZRD = ["ds_read_b64_tr_b16 v[%d:%d], v30 offset:%d" % (QP + 4 * k + 2, QP + 4 * k + 3, (k & 3) * 1024 + (k >> 2) * 32) for k in range(8)]
    def precompute():
        r = []
        for sl in range(2):
            r.append("v_sub_f32 v%d, 1.0, v%d" % (OG + sl, G_ + sl))
            r.append("v_cvt_pk_bf16_f32 v%d, v%d, v%d" % (OG + sl, OG + sl, OG + sl))
            r.append("v_and_b32 v%d, s%d, v%d" % (OG + sl, MK, OG + sl))
        for k in range(8):
            sl = k >> 2
            Q = QP + 4 * k; Z = 124; T = 120
            qs = QR + 2 * k; zs = Q + 2
            r += ["v_lshlrev_b32 v%d, 16, v%d" % (Z, zs), "v_and_b32 v%d, s%d, v%d" % (Z + 1, MK, zs),
                  "v_lshlrev_b32 v%d, 16, v%d" % (Z + 2, zs + 1), "v_and_b32 v%d, s%d, v%d" % (Z + 3, MK, zs + 1)]
            r += ["v_lshlrev_b32 v%d, 16, v%d" % (Q, qs), "v_and_b32 v%d, s%d, v%d" % (Q + 1, MK, qs),
                  "v_lshlrev_b32 v%d, 16, v%d" % (Q + 2, qs + 1), "v_and_b32 v%d, s%d, v%d" % (Q + 3, MK, qs + 1)]
            for i in range(4): r.append("v_mul_f32 v%d, v%d, v%d" % (Q + i, Q + i, Z + i))
            r += rnd4l(Q, T)
            for i in range(4): r.append("v_mul_f32 v%d, v%d, v%d" % (Q + i, Q + i, G_ + sl))
            r += rnd4l(Q, T)
        return r
    PC = precompute()
    LSP = int(os.environ.get("G2LSP", "4"))
    T0 = NST - D
    H = T0 + D // 2
    DQ = []
    for t in range(T0, H): DQ += ldk(t)
    DQ += extras
    for t in range(H, NST): DQ += ldk(t)
    DS = int(os.environ.get("G2DS", str(NST - XR)))
    DN = int(os.environ.get("G2DN", "8"))
    PS0 = int(os.environ.get("G2PS0", "1")); PSN = int(os.environ.get("G2PSN", "2")); PSIG = int(os.environ.get("G2PSIG", "12")); PCHK = int(os.environ.get("G2PCHK", str(DS - 1)))
    RX = 32
    def sweep():
        return [("buffer_load_dwordx4 v[%d:%d], v2, s[%d:%d], s%d offen offset:%d sc1" % (RX + 4 * k, RX + 4 * k + 3, S_XB, S_XB + 3, sXL + (k >> 2), (k & 3) * 1024), "s") for k in range(8)]
    stamp(1)
    a("s_waitcnt vmcnt(%d)" % younger_than(("w", 0)))
    a("s_barrier")
    stamp(2)
    for i in reads(0, (0, 1) if T0 > 0 else (0,)): a(i)
    for t in range(NST):
        n = younger_than(("x", t))
        if t + 1 < NST: n = min(n, younger_than(("w", t + 1)))
        assert n <= 63, n
        if PB and t == PSIG: n = min(n, younger_than("p"))
        a("s_waitcnt vmcnt(%d) lgkmcnt(0)" % n)
        if "B" not in dbg: a("s_barrier")
        if rts and t == 7: a("s_memrealtime s[94:95]")
        if rts and t == T0 and "C" not in dbg: a("s_memrealtime s[96:97]")
        lss = (0, 1) if t < T0 else (0,)
        nm = 16 * len(lss)
        pl = []
        if t + 1 < NST:
            for n, g in enumerate(reads(t + 1, (0, 1) if t + 1 < T0 else (0,))): pl.append((n + (n >> 1), [(g, None)]))
        gl = mix(t)
        if PB and PS0 <= t < PS0 + 8 // PSN:
            for k in range((t - PS0) * PSN, (t - PS0 + 1) * PSN):
                gl = gl + [[("buffer_store_dwordx4 v[32:35], v2, s[%d:%d], s%d offen offset:%d sc1" % (S_XB, S_XB + 3, sXS + (k >> 2), (k & 3) * 1024), "p")]]
        if PB and t == PSIG:
            pl.append((0, [("s_cmp_lg_u32 s%d, 0" % sW, None), ("s_cbranch_scc1 G2_SIG", None), ("s_mov_b64 exec, 1", None),
                           (" buffer_atomic_or v38, v36, s[%d:%d], 0 offen sc1" % (S_DB, S_DB + 3), None), ("s_mov_b64 exec, -1", None), ("G2_SIG:", None)]))
        if PB and t == PCHK:
            gl = gl + [[("buffer_load_dword v39, v37, s[%d:%d], 0 offen sc1" % (S_DB, S_DB + 3), "f")]]
        if t >= DS:
            k = max(0, DN - len(gl)) if t < NST - 1 else len(DQ)
            gl = gl + DQ[:k]; DQ = DQ[k:]
        for n, g in enumerate(gl): pl.append(((n * nm) // max(8, len(gl)) + 1, g))
        if t == NST - 1:
            for k in range(8):
                c = cq(0, 1, k)
                pl.append((8 + k, [("ds_write_b128 v18, v[%d:%d] offset:%d" % (c, c + 3, soff(4, k)), None)]))
        for it in place([(m, None) for m in mfmas(t, lss)], pl): emit(*it)
    assert not DQ

    a("s_waitcnt lgkmcnt(0)")
    a("s_barrier")
    for k in range(8):
        c = cq(0, 1, k)
        a("ds_read_b128 v[%d:%d], v19 offset:%d" % (c, c + 3, soff(4, k)))
    for k in range(8):
        a("s_waitcnt lgkmcnt(%d)" % (7 - k))
        c = cq(0, 0, k); d = cq(0, 1, k)
        for r in range(4): a("v_add_f32 v%d, v%d, v%d" % (c + r, c + r, d + r))
        for r in range(4): a("v_min_u32 v%d, -2, v%d" % (c + r, c + r))
        emit("buffer_store_dwordx4 v[%d:%d], v2, s[%d:%d], s%d offen offset:%d sc1" % (c, c + 3, S_XB, S_XB + 3, sXS + (k >> 2), (k & 3) * 1024), "st")
    stamp(4)
    SW = int(os.environ.get("G2SW", str(NST - 2)))
    NPC = int(os.environ.get("G2NPC", "2"))
    if D:
        n = younger_than(("k", H - 1))
        if PB: n = min(n, younger_than("f"))
        a("s_waitcnt vmcnt(%d)" % n)
        if PB:
            a("s_mov_b32 s72, 0x8000")
            a.label("G2_FCHK")
            a("v_readfirstlane_b32 s50, v39")
            a("s_lshr_b32 s50, s50, s73")
            a("s_and_b32 s50, s50, 1")
            a("s_cbranch_scc1 G2_FOK")
            a("s_sub_u32 s72, s72, 1")
            a("s_cmp_eq_u32 s72, 0")
            a("s_cbranch_scc1 G2_FOK")
            a("s_sleep 4")
            a("buffer_load_dword v39, v37, s[%d:%d], 0 offen sc1" % (S_DB, S_DB + 3))
            a("s_waitcnt vmcnt(0)")
            a("s_branch G2_FCHK")
            a.label("G2_FOK")
        a("s_barrier")
        for i in reads(T0, (1,)): a(i)
    for t in range(T0, NST):
        if t == H - 1:
            a("s_waitcnt vmcnt(%d) lgkmcnt(0)" % younger_than(("k", NST - 1)))
            a("s_barrier")
        else:
            a("s_waitcnt lgkmcnt(0)")
        pl = []
        if t + 1 < NST:
            for n, g in enumerate(reads(t + 1, (1,))): pl.append((n, [(g, None)]))
        if t == H - 1:
            for k, g in enumerate(ZRD): pl.append((8 + k, [(g, None)]))
        if t >= H:
            for k in range(16): pl.append((k, [(g, None) for g in PC[NPC * k:NPC * k + NPC]]))
            PC = PC[NPC * 16:]
        if t == SW:
            for k, g in enumerate(sweep()): pl.append((2 * k, [g]))
        if t == NST - 1:
            for k in range(8):
                c = cq(1, 1, k)
                pl.append((8 + k, [("ds_write_b128 v18, v[%d:%d] offset:%d" % (c, c + 3, soff(0, k)), None)]))
        for it in place([(m, None) for m in mfmas(t, (1,))], pl): emit(*it)
    stamp(3)
    NP1 = int(os.environ.get("G2NP1", "40"))
    for i in PC[:NP1]: a(i)
    PC = PC[NP1:]
    a("s_waitcnt lgkmcnt(0)")
    a("s_barrier")
    for k in range(8):
        c = cq(1, 1, k)
        a("ds_read_b128 v[%d:%d], v19 offset:%d" % (c, c + 3, soff(0, k)))
    if SW >= NST:
        for g in sweep(): emit(*g)
    for i in PC: a(i)
    a("s_waitcnt lgkmcnt(0)")
    for k in range(8):
        c = cq(1, 0, k); d = cq(1, 1, k)
        for r in range(4): a("v_add_f32 v%d, v%d, v%d" % (c + r, c + r, d + r))
    a("s_mov_b32 s72, 0x8000")
    a("s_branch G2_CHK")
    a.label("G2_POLL")
    a("s_sub_u32 s72, s72, 1")
    a("s_cmp_eq_u32 s72, 0")
    a("s_cbranch_scc1 G2_FIN")
    for g in sweep(): a(g[0])
    a.label("G2_CHK")
    a("s_waitcnt vmcnt(0)")
    a("v_max3_u32 v120, v%d, v%d, v%d" % (RX, RX + 1, RX + 2))
    a("v_max3_u32 v121, v%d, v%d, v%d" % (RX + 3, RX + 4, RX + 5))
    for i in range(13):
        d = 120 + (i & 1)
        a("v_max3_u32 v%d, v%d, v%d, v%d" % (d, d, RX + 6 + 2 * i, RX + 7 + 2 * i))
    a("v_max_u32 v120, v120, v121")
    a("v_cmp_eq_u32 vcc, -1, v120")
    a("s_nop 1")
    if "P" not in dbg: a("s_cbranch_vccnz G2_POLL")
    a.label("G2_FIN")
    if "C" in dbg:
        a("s_memrealtime s[94:95]")
        a("s_sub_u32 s96, 0x8000, s72")
    for nt in range(4):
        for sl in range(2):
            k = sl * 4 + nt
            B = cq(1, 0, k)
            T = 124; O = 96 + 4 * nt + 2 * sl
            for r in range(4): a("v_add_f32 v%d, v%d, v%d" % (B + r, B + r, RX + 4 * k + r))
            for i in rnd4l(B, T): a(i)
            for r in range(4): a("v_mul_f32 v%d, v%d, v%d" % (B + r, B + r, OG + sl))
            for i in rnd4l(B, T): a(i)
            for r in range(4): a("v_add_f32 v%d, v%d, v%d" % (B + r, B + r, QP + 4 * k + r))
            a("v_cvt_pk_bf16_f32 v%d, v%d, v%d" % (O, B, B + 1))
            a("v_cvt_pk_bf16_f32 v%d, v%d, v%d" % (O + 1, B + 2, B + 3))
        O = 96 + 4 * nt
        a("s_nop 1")
        a("v_permlane16_swap_b32 v%d, v%d" % (O, O + 2))
        a("v_permlane16_swap_b32 v%d, v%d" % (O + 1, O + 3))
        a("s_nop 0")
        a("buffer_store_dwordx4 v[%d:%d], v15, s[%d:%d], 0 offen offset:%d" % (O, O + 3, S_O, S_O + 3, nt * 32))

def poison(a):
    r = ["s_add_u32 s76, s72, 0x%x" % XB_OFF, "s_addc_u32 s77, s73, 0", "s_mov_b32 s78, 0x%x" % XB_BYTES, "s_mov_b32 s79, 0x00020000",
         "s_lshl_b32 s62, s2, 2", "s_add_u32 s62, s62, s40", "s_lshl_b32 s62, s62, 16", "v_lshlrev_b32 v248, 4, v0"]
    for i in range(4): r.append("v_mov_b32 v%d, -1" % (244 + i))
    for b in range(16):
        for k in range(4):
            r.append("buffer_store_dwordx4 v[244:247], v248, s[76:79], s62 offen offset:%d sc1" % (k * 1024))
        r.append("s_add_u32 s62, s62, 4096")
    return r
```

```python
import sys, os
os.environ.setdefault("PD", "4")
from asmlib import *
from prep import *
import prep4
import conv2
from gemm1 import *
G2W = os.environ.get('G2', 'x') in 'wx'
if os.environ.get('G2', 'x') == 'x':
    from gemm2x import *
elif G2W:
    from gemm2w import *
else:
    from gemm2v import *
ST = os.environ.get("STAMPS", "") != ""
a = A()
hdr = open("gated_mix__ssm_conv_h3__geglu_ffn__prompt.s.ref").read().split("\n")
for l in hdr:
    if l.startswith("; Override") : break
    a.raw(l)
a.raw("; @launch kernel=g1_kernel grid=(256,1,1) block=(256,1,1) lds=163840")
a.raw("; @launch kernel=g2_kernel grid=(256,1,1) block=(256,1,1) lds=%d" % G2_LDS)
a.raw('.amdgcn_target "amdgcn-amd-amdhsa--gfx950"')
a.raw(".text")
def rt_begin():
    if os.environ.get("BADMAP"):
        a("s_lshr_b32 s3, s2, 3")
        a("s_add_u32 s3, s3, s2")
        a("s_and_b32 s3, s3, 7")
        a("s_and_b32 s2, s2, 0xf8")
        a("s_or_b32 s2, s2, s3")
    if ST:
        a("s_memrealtime s[92:93]")
def rt_mid():
    if ST and not os.environ.get("PST"):
        a("s_memrealtime s[94:95]")
def rt_end(kidx):
    if ST:
        a("s_waitcnt vmcnt(0) lgkmcnt(0)")
        a("s_memrealtime s[20:21]")
        a("s_load_dwordx2 s[22:23], s[0:1], 104")
        a("s_waitcnt lgkmcnt(0)")
        a("s_add_u32 s24, s22, 0x%x" % (0x5000000 + kidx * 0x10000))
        a("s_addc_u32 s25, s23, 0")
        a("s_mov_b32 s26, 0x10000")
        a("s_mov_b32 s27, 0x00020000")
        a("s_mov_b64 exec, 1")
        if os.environ.get("XCC"): a("s_getreg_b32 s90, hwreg(HW_REG_XCC_ID)")
        for i, r in enumerate((92, 86, 88, 90, 94, 96, 98, 20)):
            a("v_mov_b32 v%d, s%d" % (4 + i, r))
        a("s_lshl_b32 s22, s2, 5")
        a("v_mov_b32 v12, s22")
        a("buffer_store_dwordx4 v[4:7], v12, s[24:27], 0 offen")
        a("buffer_store_dwordx4 v[8:11], v12, s[24:27], 0 offen offset:16")
        if kidx == 1 and os.environ.get("DBGOUT"):
            a("s_cmp_lg_u32 s2, 0")
            a("s_cbranch_scc1 DBG_SKIP")
            a("s_load_dwordx2 s[28:29], s[0:1], 96")
            a("s_sub_u32 s24, s24, 0x10000")
            a("s_subb_u32 s25, s25, 0")
            a("v_mov_b32 v12, 0")
            lst = [(0, 0), (0, 1), (0, 7), (32, 0), (32, 6), (32, 2), (32, 7), (255, 0), (255, 6), (255, 2), (255, 7), (128, 0), (128, 2), (128, 7)]
            for i, (w, k) in enumerate(lst):
                a("s_movk_i32 s30, %d" % (w * 32 + k * 4))
                a("buffer_load_dword v%d, v12, s[24:27], s30 offen" % (16 + i))
            a("v_mov_b32 v30, s92")
            a("v_mov_b32 v31, s20")
            a("s_waitcnt vmcnt(0) lgkmcnt(0)")
            a("s_mov_b32 s30, 256")
            a("s_mov_b32 s31, 0x00020000")
            for i in range(4):
                a("buffer_store_dwordx4 v[%d:%d], v12, s[28:31], 0 offen offset:%d" % (16 + 4 * i, 19 + 4 * i, 16 * i))
            a.label("DBG_SKIP")
kernel_header(a, "g1_kernel")
a("s_cmp_ge_u32 s2, 256")
a("s_cbranch_scc1 G1_END")
rt_begin()
a("s_load_dwordx2 s[60:61], s[0:1], 8")
a("s_load_dwordx2 s[62:63], s[0:1], 16")
a("s_load_dwordx2 s[100:101], s[0:1], 24")
a("s_cmp_lt_u32 s2, 32")
a("s_cbranch_scc1 G1_PREP")
D, E = gen_gemm1(a, dbg="P", fuse=True, rts=ST)
rt_mid()
conv2.conv_main(a, D, E)
rt_end(0)
a("s_endpgm")
a.label("G1_PREP")
if conv2.TARGET == 16:
    a("s_load_dwordx2 s[30:31], s[0:1], 104")
    a("v_lshrrev_b32 v1, 6, v0")
    a("v_and_b32 v0, 63, v0")
    a("s_nop 0")
    a("v_readfirstlane_b32 s40, v1")
    a("s_waitcnt lgkmcnt(0)")
    prep4.prep4_issue(a, 60, 62, 100, 30, 64, 64, 40)
    a("s_waitcnt vmcnt(0)")
    prep4.prep4_compute(a, 64, 64, "B")
else:
    import prep6
    if os.environ.get("DLY0"): a("s_sleep %s" % os.environ["DLY0"])
    if "1" in os.environ.get("PW", ""):
        a("v_and_b32 v250, 63, v0")
        page_warm(a, [(56, 1024 * 3584 * 2, 0), (64, 1024 * 3584 * 2, 0), (0, 2048 * 1024 * 2, 0)], 48, 254, 250)
    prep6.gen_prep6(a, 2, ST)
    a("v_lshrrev_b32 v1, 6, v0")
    a("v_and_b32 v0, 63, v0")
    a("s_nop 0")
    a("v_readfirstlane_b32 s40, v1")
conv2.conv_ptrs(a)
if ST: a("s_memrealtime s[96:97]")
a("s_waitcnt vmcnt(0) lgkmcnt(0)")
conv2.flag_srd(a)
if ST: a("s_memrealtime s[86:87]")
a("s_lshl_b32 s84, s40, 6")
a("v_add_u32 v252, s84, v0")
code_touch(a, 48, 252, 252, "g2_kernel")
if os.environ.get("DLY") == "1": a("s_sleep 64")
a("s_barrier")
MP = os.environ.get("MALLPF", "1")
if MP == "1":
    a("s_cmp_eq_u32 s40, 0")
    a("s_cbranch_scc1 PREP_M1")
    if "2" in os.environ.get("PW", ""):
        a("s_cmp_lg_u32 s40, 1")
        a("s_cbranch_scc1 PREP_M2")
        page_warm(a, [(104, 34 << 20, 0), (32, 1024 * 2048 * 2, 0), (88, 2048 * 1024 * 2, 0), (80, 2048, 0), (40, 2048, 0)], 48, 254, 0)
        a.label("PREP_M2")
    for i in conv2.wd_touch(True, True): a(i)
    if G2W and os.environ.get('POIS', 'b') == 's':
        for i in poison(a): a(i)
    a.label("PREP_M1")
a("s_cmp_lg_u32 s40, 0")
a("s_cbranch_scc1 PREP_P4")
conv2.signal(a)
if MP == "1":
    for i in conv2.wd_touch(True, True): a(i)
    if G2W and os.environ.get('POIS', 'b') == 's':
        for i in poison(a): a(i)
a.label("PREP_P3")
conv2.poll_issue(a, 210)
a("s_waitcnt vmcnt(0)")
conv2.poll_check(a, 210, 84)
a("s_cmp_lg_u32 s84, 0")
a("s_cbranch_scc1 PREP_P5")
a("s_sleep 64")
a("s_branch PREP_P3")
a.label("PREP_P5")
if os.environ.get("INV"):
    a("buffer_inv sc1")
    a("s_waitcnt vmcnt(0)")
a.label("PREP_P4")
if os.environ.get("DLY") == "2": a("s_sleep 64")
a("s_barrier")
for i in conv2.gate_loads(): a(i)
for g in conv2.conv_early(a):
    for i in g: a(i)
conv2.conv_setup(a)
D = conv2.conv_issue(a)
rt_mid()
conv2.conv_main(a, D, None, [i for g in conv2.gate_compute() for i in g])
rt_end(0)
a.label("G1_END")
a("s_endpgm")
kernel_header(a, "g2_kernel")
a("s_cmp_ge_u32 s2, 256")
a("s_cbranch_scc1 G2_END")
rt_begin()
gen_gemm2(a, rts=ST, dbg=os.environ.get('G2DBG', ''))
rt_end(1)
a.label("G2_END")
a("s_endpgm")
a.label("CODE_END")
a.raw('.section .rodata,"a"')
sg = 102
a.raw(kernel_desc("g1_kernel", 512, sg, 256))
a.raw(kernel_desc("g2_kernel", 512, sg, 256))
open(sys.argv[1], "w").write(a.text())
```

```python
from asmlib import *
from layout import *
from prep import ws_srd
import os

NST = 28
WR = int(os.environ.get("G2WR", "8"))
XR = int(os.environ.get("G2XR", "8"))
BLK = int(os.environ.get("G2BLK", "4"))
RJW = int(os.environ.get("G2RJW", "1"))
MAP = int(os.environ.get("G2MAP", "2"))
D = int(os.environ.get("G2D", "8"))
assert WR == 8 and D <= WR and D <= XR and D >= 2
G2_ZB = 2 * WR * 8192
G2_LDS = max(G2_ZB + 16384, 65536 + 16384)
if G2_ZB < 65536: G2_ZB = 65536

def gen_gemm2(a, dbg="", stamps=False, rts=False):
    def stamp(i):
        if rts and i in (1, 2, 3, 4):
            r = {1: 98, 2: 86, 3: 88, 4: 90}[i]
            a("s_memrealtime s[%d:%d]" % (r, r + 1))
    S_H, S_W, S_Z, S_Q, S_O, S_GT, S_XB = 4, 8, 12, 16, 20, 24, 60
    sW, sLB, sX, sWK = 40, 41, 42, 43
    sMF, sNF = 44, 45
    sMH, sKQ, sKH = 64, 65, 66
    sXS, sXL = 68, 70
    a("s_load_dwordx2 s[34:35], s[0:1], 104")
    a("s_load_dwordx2 s[30:31], s[0:1], 72")
    a("s_load_dwordx2 s[28:29], s[0:1], 0")
    a("s_load_dwordx2 s[32:33], s[0:1], 88")
    a("s_load_dwordx2 s[74:75], s[0:1], 96")
    code_touch(a, 76, 28, 0, "g2_kernel")
    a("v_lshrrev_b32 v1, 6, v0")
    a("v_and_b32 v0, 63, v0")
    a("s_and_b32 s46, s2, 7")
    a("v_readfirstlane_b32 s%d, v1" % sW)
    a("s_lshr_b32 s47, s2, 3")
    a("s_lshr_b32 s%d, s46, 2" % sKH)
    if MAP == 1:
        a("s_and_b32 s48, s46, 3")
        a("s_lshl_b32 s48, s48, 2")
        a("s_and_b32 s51, s47, 3")
        a("s_add_u32 s48, s48, s51")
        a("s_lshr_b32 s49, s47, 2")
        a("s_mov_b32 s50, s49")
        maxr = 7 + 3 * RJW
    else:
        a("s_and_b32 s48, s46, 1")
        a("s_lshl_b32 s48, s48, 3")
        a("s_and_b32 s51, s47, 7")
        a("s_add_u32 s48, s48, s51")
        a("s_and_b32 s49, s46, 2")
        a("s_lshl_b32 s49, s49, 1")
        a("s_lshr_b32 s50, s47, 3")
        a("s_add_u32 s49, s49, s50")
        maxr = 3 + 7 * RJW
    if "Z" in dbg:
        a("s_mov_b32 s48, 0")
        a("s_mov_b32 s49, 0")
    if "Y" in dbg:
        a("s_mov_b32 s48, 0")
    if "U" in dbg:
        a("s_mov_b32 s49, 0")
    a("v_lshlrev_b32 v2, 4, v0")
    a("v_lshrrev_b32 v3, 4, v0")
    a("s_and_b32 s%d, s%d, 1" % (sMH, sW))
    a("s_lshr_b32 s%d, s%d, 1" % (sKQ, sW))
    a("s_mul_i32 s52, s%d, 56" % sKH)
    a("s_mul_i32 s53, s%d, 28" % sKQ)
    a("s_add_u32 s52, s52, s53")
    a("s_mul_i32 s53, s48, 112")
    a("s_add_u32 s53, s53, s52")
    a("s_lshl_b32 s%d, s53, 13" % sX)
    a("s_lshl_b32 s%d, s52, 16" % sWK)
    if BLK:
        a("s_mul_i32 s51, s51, %d" % RJW)
        a("s_add_u32 s50, s50, s51")
        for _ in range(maxr // BLK):
            a("s_sub_u32 s51, s50, %d" % BLK)
            a("s_cmp_ge_u32 s50, %d" % BLK)
            a("s_cselect_b32 s50, s51, s50")
        a("s_mov_b32 s38, s50")
        a("s_mov_b32 s39, s50")
        a("s_mov_b32 s36, s%d" % sX)
        a("s_mov_b32 s37, s%d" % sWK)
        a("s_lshl_b32 s51, s50, 13")
        a("s_add_u32 s%d, s36, s51" % sX)
        a("s_lshl_b32 s51, s50, 16")
        a("s_add_u32 s%d, s37, s51" % sWK)
    def adv(t, sreg, sbase, sidx, sh):
        if not BLK:
            return [("s_add_u32 s%d, s%d, 0x%x" % (sreg, sreg, 1 << sh), None)]
        r = [("s_add_u32 s%d, s%d, 1" % (sidx, sidx), None),
             ("s_cmp_eq_u32 s%d, %d" % (sidx, BLK), None),
             ("s_cselect_b32 s%d, 0, s%d" % (sidx, sidx), None)]
        if t % BLK == BLK - 1:
            r.append(("s_add_u32 s%d, s%d, 0x%x" % (sbase, sbase, BLK << sh), None))
        r.append(("s_lshl_b32 s%d, s%d, %d" % (sreg, sidx, sh), None))
        r.append(("s_add_u32 s%d, s%d, s%d" % (sreg, sreg, sbase), None))
        return r
    a("s_mul_i32 s67, s%d, %d" % (sKQ, WR * 8192))
    a("s_lshl_b32 s50, s%d, 12" % sMH)
    a("s_add_u32 s%d, s67, s50" % sLB)
    a("s_lshl_b32 s51, s%d, 11" % sKQ)
    a("s_add_u32 s51, s51, s50")
    a("v_add_u32 v16, s51, v2")
    a("v_xor_b32 v17, 0x800, v16")
    a("s_lshl_b32 s49, s49, 7")
    a("s_lshl_b32 s48, s48, 7")
    a("v_lshrrev_b32 v8, 3, v0")
    a("s_lshl_b32 s50, s%d, 4" % sMH)
    a("v_add_u32 v8, s50, v8")
    a("v_lshlrev_b32 v8, 11, v8")
    a("s_lshl_b32 s50, s%d, 6" % sKH)
    a("s_add_u32 s50, s50, s49")
    a("s_lshl_b32 s50, s50, 1")
    a("v_add_u32 v8, s50, v8")
    a("v_and_b32 v9, 7, v0")
    a("v_and_b32 v10, 1, v3")
    a("v_lshlrev_b32 v10, 1, v10")
    a("v_xor_b32 v9, v9, v10")
    a("v_lshlrev_b32 v9, 4, v9")
    a("v_add_u32 v8, v8, v9")
    a("v_xor_b32 v9, 64, v8")
    a("v_xor_b32 v10, 0x80, v8")
    a("v_xor_b32 v11, 0x80, v9")
    for I in range(4):
        src = {0: 10, 1: 11, 2: 8, 3: 9}[I]
        off = (I & 1) * (8 * 2048 - 1024)
        a("v_add_u32 v%d, 0x%x, v%d" % (4 + I, off, src))
    a("s_waitcnt lgkmcnt(0)")
    ws_srd(a, S_H, 34, H1_OFF, H1_BYTES)
    srd(a, S_W, 30, 3584 * 1024 * 2)

    vm = []
    def emit(ins, tag=None):
        a(ins)
        if ins.startswith("buffer_"):
            vm.append(tag)
    def younger_than(tag):
        idx = max(i for i, x in enumerate(vm) if x == tag)
        return len(vm) - 1 - idx
    def ldx(t):
        g = []
        base = (t % XR) * 16
        for i in range(4):
            g.append([("buffer_load_dwordx4 a[%d:%d], v%d, s[%d:%d], s%d offen offset:%d" % (base + 4 * i, base + 4 * i + 3, 16 + (i >> 1), S_H, S_H + 3, sX, (i & 1) * 1024), ("x", t))])
        g[-1].extend(adv(t, sX, 36, 38, 13))
        return g
    def ldw(t):
        g = []
        for I in range(4 if t < NST - D else 2):
            ins = []
            if I == 0:
                if t == NST - D:
                    ins += [("s_mov_b32 s80, s%d" % sWK, None), ("s_mov_b32 s81, s37", None), ("s_mov_b32 s82, s39", None)]
                ins.append(("s_add_u32 m0, s%d, %d" % (sLB, (t % WR) * 8192), None))
                ins.append(("s_nop 0", None))
            if I == 2:
                ins.append(("s_add_u32 m0, s%d, %d" % (sLB, (t % WR) * 8192 + 2048), None))
                ins.append(("s_nop 0", None))
            ins.append(("buffer_load_dwordx4 v%d, s[%d:%d], s%d offen offset:%d lds" % (4 + I, S_W, S_W + 3, sWK, (I & 1) * 1024), ("w", t)))
            g.append(ins)
        g[-1].extend(adv(t, sWK, 37, 39, 16))
        return g
    def ldk(t):
        g = []
        for I in (2, 3):
            ins = []
            if I == 2:
                ins.append(("s_add_u32 m0, s%d, %d" % (sLB, (t % WR) * 8192 + 2048), None))
                ins.append(("s_nop 0", None))
            ins.append(("buffer_load_dwordx4 v%d, s[%d:%d], s80 offen offset:%d lds" % (4 + I, S_W, S_W + 3, (I & 1) * 1024), ("k", t)))
            g.append(ins)
        g[-1].extend(adv(t, 80, 81, 82, 16))
        return g
    def mix(t):
        g = []
        if 0 <= t + WR < NST: g += ldw(t + WR)
        if 0 <= t + XR - 1 < NST: g += ldx(t + XR - 1)
        return g
    for t in range(-max(WR, XR), 0):
        for g in mix(t):
            for it in g: emit(*it)
    a("s_lshl_b32 s50, s%d, 6" % sMH)
    a("s_add_u32 s%d, s48, s50" % sMF)
    a("s_lshl_b32 s50, s%d, 5" % sKQ)
    a("s_add_u32 s%d, s%d, s50" % (sMF, sMF))
    a("s_lshl_b32 s50, s%d, 6" % sKH)
    a("s_add_u32 s%d, s49, s50" % sNF)
    ws_srd(a, S_Z, 34, Z_OFF, Z_BYTES)
    srd(a, S_Q, 28, 2048 * 1024 * 2)
    srd(a, S_O, 32, 2048 * 1024 * 2)
    ws_srd(a, S_GT, 34, GT_OFF, GT_BYTES)
    ws_srd(a, S_XB, 34, XB_OFF, XB_BYTES)
    PB = os.environ.get("POIS", "e") == "b"
    S_DB = 76
    if PB:
        srd(a, S_DB, 74, 256)
        for i in range(4): a("v_mov_b32 v%d, -1" % (32 + i))
        a("s_lshr_b32 s50, s2, 2")
        a("s_lshl_b32 s50, s50, 2")
        a("v_mov_b32 v36, s50")
        a("v_xor_b32 v37, 4, v36")
        a("s_and_b32 s73, s2, 3")
        a("s_lshl_b32 s50, 1, s73")
        a("v_mov_b32 v38, s50")
    a("s_lshl_b32 s50, s2, 2")
    a("s_add_u32 s50, s50, s%d" % sW)
    a("s_lshl_b32 s%d, s50, 13" % sXS)
    a("s_add_u32 s%d, s%d, 4096" % (sXS + 1, sXS))
    a("s_xor_b32 s%d, s%d, 0x%x" % (sXL, sXS, 4 << 15))
    a("s_add_u32 s%d, s%d, 4096" % (sXL + 1, sXL))
    extras = []
    a("v_lshrrev_b32 v8, 2, v0")
    a("v_add_u32 v8, s%d, v8" % sNF)
    a("v_lshlrev_b32 v8, 12, v8")
    a("v_and_b32 v9, 3, v0")
    a("v_lshlrev_b32 v9, 4, v9")
    a("v_add_u32 v14, v8, v9")
    a("s_lshl_b32 s56, s%d, 1" % sMF)
    a("s_lshl_b32 s57, s%d, 12" % sW)
    a("s_add_u32 s57, s57, %d" % G2_ZB)
    for I in range(4):
        g = []
        if I == 0: g += [("s_mov_b32 m0, s57", None), ("s_nop 0", None)]
        else: g += [("v_add_u32 v14, 0x%x, v14" % (16 * 4096 - 1024), None)]
        g.append(("buffer_load_dwordx4 v14, s[%d:%d], s56 offen offset:%d lds" % (S_Z, S_Z + 3, I * 1024), "e"))
        extras.append(g)
    a("v_and_b32 v9, 15, v0")
    a("v_add_u32 v9, s%d, v9" % sMF)
    a("v_lshlrev_b32 v13, 2, v9")
    a("v_lshlrev_b32 v12, 11, v9")
    a("v_lshlrev_b32 v10, 3, v3")
    a("v_add_u32 v12, v12, v10")
    a("s_lshl_b32 s50, s%d, 1" % sNF)
    a("v_add_u32 v12, s50, v12")
    a("s_mov_b32 s53, 0x8000")
    QR = 96
    for sl in range(2):
        for nt in range(4):
            extras.append([("buffer_load_dwordx2 v[%d:%d], v12, s[%d:%d], %s offen offset:%d" % (QR + (sl * 4 + nt) * 2, QR + (sl * 4 + nt) * 2 + 1, S_Q, S_Q + 3, "0" if sl == 0 else "s53", nt * 32), "e")])
    extras.append([("buffer_load_dword v%d, v13, s[%d:%d], 0 offen" % (QR + 16, S_GT, S_GT + 3), "e")])
    extras.append([("buffer_load_dword v%d, v13, s[%d:%d], 0 offen offset:64" % (QR + 17, S_GT, S_GT + 3), "e")])
    a("v_lshrrev_b32 v8, 2, v0")
    a("v_and_b32 v8, 3, v8")
    a("v_lshlrev_b32 v9, 7, v8")
    a("v_lshrrev_b32 v10, 1, v3")
    a("v_lshlrev_b32 v10, 12, v10")
    a("v_add_u32 v9, v9, v10")
    a("v_and_b32 v11, 1, v3")
    a("v_lshlrev_b32 v10, 10, v11")
    a("v_add_u32 v9, v9, v10")
    a("v_and_b32 v10, 3, v0")
    a("v_lshlrev_b32 v10, 3, v10")
    a("v_add_u32 v9, v9, v10")
    a("v_add_u32 v9, s67, v9")
    a("v_lshrrev_b32 v10, 1, v8")
    a("v_lshlrev_b32 v11, 1, v11")
    a("v_or_b32 v10, v10, v11")
    for nt in range(4):
        a("v_xor_b32 v11, %d, v10" % nt)
        a("v_lshlrev_b32 v11, 5, v11")
        a("v_add_u32 v%d, v9, v11" % (20 + nt))
    a("v_lshlrev_b32 v9, 2, v3")
    a("v_add_u32 v9, v9, v8")
    a("v_lshlrev_b32 v9, 6, v9")
    a("v_and_b32 v10, 3, v0")
    a("v_lshlrev_b32 v10, 3, v10")
    a("v_add_u32 v9, v9, v10")
    a("v_add_u32 v30, s57, v9")
    a("v_and_b32 v9, 15, v0")
    a("v_and_b32 v10, 1, v3")
    a("v_lshlrev_b32 v10, 4, v10")
    a("v_add_u32 v9, v9, v10")
    a("v_add_u32 v9, s%d, v9" % sMF)
    a("v_lshlrev_b32 v9, 11, v9")
    a("v_lshrrev_b32 v10, 1, v3")
    a("v_lshlrev_b32 v10, 4, v10")
    a("v_add_u32 v9, v9, v10")
    a("s_lshl_b32 s50, s%d, 1" % sNF)
    a("v_add_u32 v15, s50, v9")
    a("v_add_u32 v18, s%d, v2" % sLB)
    a("v_xor_b32 v19, 0x%x, v18" % (WR * 8192))
    ACC = 128
    for i in range(128): a("v_mov_b32 v%d, 0" % (ACC + i))
    F = [128, 160]

    def reads(t, lss=(0, 1), par=None):
        fb = F[(t if par is None else par) & 1]
        w = []
        for ls in lss:
            for nt in range(4):
                for h in range(2):
                    d = fb + 4 * (ls * 4 + nt) + 2 * h
                    w.append("ds_read_b64_tr_b16 a[%d:%d], v%d offset:%d" % (d, d + 1, 20 + nt, (t % WR) * 8192 + ls * 2048 + h * 512))
        return w
    def cq(ls, rm, k): return ACC + ((ls * 2 + rm) * 8 + k) * 4
    def mfmas(t, lss=(0, 1)):
        fb = F[t & 1]
        xb = (t % XR) * 16
        m = []
        if "M" in dbg: return ["s_nop 0"] * (16 * len(lss))
        for ls in lss:
            for rm in (1, 0):
                for sl in range(2):
                    for nt in range(4):
                        c = cq(ls, rm, sl * 4 + nt)
                        n = ls * 4 + nt; i = rm * 2 + sl
                        m.append("v_mfma_f32_16x16x32_bf16 v[%d:%d], a[%d:%d], a[%d:%d], v[%d:%d]" % (
                            c, c + 3, fb + 4 * n, fb + 4 * n + 3, xb + 4 * i, xb + 4 * i + 3, c, c + 3))
        return m
    def soff(base, k): return (base + (k >> 1)) * 8192 + (k & 1) * 1024

    MK = 58
    a("s_mov_b32 s%d, 0xffff0000" % MK)
    G_ = QR + 16; OG = QR + 18
    QP = 64
    def rnd4l(R, T):
        return ["v_cvt_pk_bf16_f32 v%d, v%d, v%d" % (T, R, R + 1), "v_cvt_pk_bf16_f32 v%d, v%d, v%d" % (T + 1, R + 2, R + 3),
                "v_lshlrev_b32 v%d, 16, v%d" % (R, T), "v_and_b32 v%d, s%d, v%d" % (R + 1, MK, T),
                "v_lshlrev_b32 v%d, 16, v%d" % (R + 2, T + 1), "v_and_b32 v%d, s%d, v%d" % (R + 3, MK, T + 1)]
    ZRD = ["ds_read_b64_tr_b16 v[%d:%d], v30 offset:%d" % (QP + 4 * k + 2, QP + 4 * k + 3, (k & 3) * 1024 + (k >> 2) * 32) for k in range(8)]
    def precompute():
        r = []
        for sl in range(2):
            r.append("v_sub_f32 v%d, 1.0, v%d" % (OG + sl, G_ + sl))
            r.append("v_cvt_pk_bf16_f32 v%d, v%d, v%d" % (OG + sl, OG + sl, OG + sl))
            r.append("v_and_b32 v%d, s%d, v%d" % (OG + sl, MK, OG + sl))
        for k in range(8):
            sl = k >> 2
            Q = QP + 4 * k; Z = 124; T = 120
            qs = QR + 2 * k; zs = Q + 2
            r += ["v_lshlrev_b32 v%d, 16, v%d" % (Z, zs), "v_and_b32 v%d, s%d, v%d" % (Z + 1, MK, zs),
                  "v_lshlrev_b32 v%d, 16, v%d" % (Z + 2, zs + 1), "v_and_b32 v%d, s%d, v%d" % (Z + 3, MK, zs + 1)]
            r += ["v_lshlrev_b32 v%d, 16, v%d" % (Q, qs), "v_and_b32 v%d, s%d, v%d" % (Q + 1, MK, qs),
                  "v_lshlrev_b32 v%d, 16, v%d" % (Q + 2, qs + 1), "v_and_b32 v%d, s%d, v%d" % (Q + 3, MK, qs + 1)]
            for i in range(4): r.append("v_mul_f32 v%d, v%d, v%d" % (Q + i, Q + i, Z + i))
            r += rnd4l(Q, T)
            for i in range(4): r.append("v_mul_f32 v%d, v%d, v%d" % (Q + i, Q + i, G_ + sl))
            r += rnd4l(Q, T)
        return r
    PC = precompute()
    LSP = int(os.environ.get("G2LSP", "4"))
    T0 = NST - D
    H = T0 + D // 2
    DQ = []
    for t in range(T0, H): DQ += ldk(t)
    DQ += extras
    for t in range(H, NST): DQ += ldk(t)
    DS = int(os.environ.get("G2DS", str(NST - XR)))
    DN = int(os.environ.get("G2DN", "8"))
    PS0 = int(os.environ.get("G2PS0", "1")); PSN = int(os.environ.get("G2PSN", "2")); PSIG = int(os.environ.get("G2PSIG", "12")); PCHK = int(os.environ.get("G2PCHK", str(NST - 2)))
    RX = 32
    def sweep():
        return [("buffer_load_dwordx4 v[%d:%d], v2, s[%d:%d], s%d offen offset:%d sc1" % (RX + 4 * k, RX + 4 * k + 3, S_XB, S_XB + 3, sXL + (k >> 2), (k & 3) * 1024), "s") for k in range(8)]
    stamp(1)
    a("s_waitcnt vmcnt(%d)" % younger_than(("w", 0)))
    a("s_barrier")
    stamp(2)
    for i in reads(0, (0, 1) if T0 > 0 else (0,)): a(i)
    for t in range(NST):
        n = younger_than(("x", t))
        if t + 1 < NST: n = min(n, younger_than(("w", t + 1)))
        assert n <= 63, n
        if PB and t == PSIG: n = min(n, younger_than("p"))
        a("s_waitcnt vmcnt(%d) lgkmcnt(0)" % n)
        if "B" not in dbg: a("s_barrier")
        if rts and t == 7: a("s_memrealtime s[94:95]")
        if rts and t == T0 and "C" not in dbg: a("s_memrealtime s[96:97]")
        lss = (0, 1) if t < T0 else (0,)
        nm = 16 * len(lss)
        pl = []
        if t + 1 < NST:
            for n, g in enumerate(reads(t + 1, (0, 1) if t + 1 < T0 else (0,))): pl.append((n + (n >> 1), [(g, None)]))
        gl = mix(t)
        if PB and PS0 <= t < PS0 + 8 // PSN:
            for k in range((t - PS0) * PSN, (t - PS0 + 1) * PSN):
                gl = gl + [[("buffer_store_dwordx4 v[32:35], v2, s[%d:%d], s%d offen offset:%d sc1" % (S_XB, S_XB + 3, sXS + (k >> 2), (k & 3) * 1024), "p")]]
        if PB and t == PSIG:
            pl.append((0, [("s_cmp_lg_u32 s%d, 0" % sW, None), ("s_cbranch_scc1 G2_SIG", None), ("s_mov_b64 exec, 1", None),
                           (" buffer_atomic_or v38, v36, s[%d:%d], 0 offen sc1" % (S_DB, S_DB + 3), None), ("s_mov_b64 exec, -1", None), ("G2_SIG:", None)]))
        if PB and t == PCHK:
            gl = gl + [[("buffer_load_dword v39, v37, s[%d:%d], 0 offen sc1" % (S_DB, S_DB + 3), "f")]]
        if t >= DS:
            k = max(0, DN - len(gl)) if t < NST - 1 else len(DQ)
            gl = gl + DQ[:k]; DQ = DQ[k:]
        for n, g in enumerate(gl): pl.append(((n * nm) // max(8, len(gl)) + 1, g))
        if t == NST - 1:
            for k in range(8):
                c = cq(0, 1, k)
                pl.append((8 + k, [("ds_write_b128 v18, v[%d:%d] offset:%d" % (c, c + 3, soff(4, k)), None)]))
        for it in place([(m, None) for m in mfmas(t, lss)], pl): emit(*it)
    assert not DQ

    a("s_waitcnt lgkmcnt(0)")
    a("s_barrier")
    for k in range(8):
        c = cq(0, 1, k)
        a("ds_read_b128 v[%d:%d], v19 offset:%d" % (c, c + 3, soff(4, k)))
    for k in range(8):
        a("s_waitcnt lgkmcnt(%d)" % (7 - k))
        c = cq(0, 0, k); d = cq(0, 1, k)
        for r in range(4): a("v_add_f32 v%d, v%d, v%d" % (c + r, c + r, d + r))
        for r in range(4): a("v_min_u32 v%d, -2, v%d" % (c + r, c + r))
        emit("buffer_store_dwordx4 v[%d:%d], v2, s[%d:%d], s%d offen offset:%d sc1" % (c, c + 3, S_XB, S_XB + 3, sXS + (k >> 2), (k & 3) * 1024), "st")
    if PB and PCHK < 0:
        emit("buffer_load_dword v39, v37, s[%d:%d], 0 offen sc1" % (S_DB, S_DB + 3), "f")
    stamp(4)
    def fchk():
        a("s_waitcnt vmcnt(%d)" % younger_than("f"))
        a("s_mov_b32 s72, 0x8000")
        a.label("G2_FCHK")
        a("v_readfirstlane_b32 s50, v39")
        a("s_lshr_b32 s50, s50, s73")
        a("s_and_b32 s50, s50, 1")
        a("s_cbranch_scc1 G2_FOK")
        a("s_sub_u32 s72, s72, 1")
        a("s_cmp_eq_u32 s72, 0")
        a("s_cbranch_scc1 G2_FOK")
        a("s_sleep 4")
        a("buffer_load_dword v39, v37, s[%d:%d], 0 offen sc1" % (S_DB, S_DB + 3))
        a("s_waitcnt vmcnt(0)")
        a("s_branch G2_FCHK")
        a.label("G2_FOK")
    SW = int(os.environ.get("G2SW", str(NST - 2)))
    NPC = int(os.environ.get("G2NPC", "2"))
    if D:
        a("s_waitcnt vmcnt(%d)" % younger_than(("k", H - 1)))
        a("s_barrier")
        for i in reads(T0, (1,)): a(i)
    for t in range(T0, NST):
        if t == H - 1:
            a("s_waitcnt vmcnt(%d) lgkmcnt(0)" % younger_than(("k", NST - 1)))
            a("s_barrier")
        else:
            a("s_waitcnt lgkmcnt(0)")
        if PB and t == SW: fchk()
        pl = []
        if t + 1 < NST:
            for n, g in enumerate(reads(t + 1, (1,))): pl.append((n, [(g, None)]))
        if t == H - 1:
            for k, g in enumerate(ZRD): pl.append((8 + k, [(g, None)]))
        if t >= H:
            for k in range(16): pl.append((k, [(g, None) for g in PC[NPC * k:NPC * k + NPC]]))
            PC = PC[NPC * 16:]
        if t == SW:
            for k, g in enumerate(sweep()): pl.append((2 * k, [g]))
        if t == NST - 1:
            for k in range(8):
                c = cq(1, 1, k)
                pl.append((8 + k, [("ds_write_b128 v18, v[%d:%d] offset:%d" % (c, c + 3, soff(0, k)), None)]))
        for it in place([(m, None) for m in mfmas(t, (1,))], pl): emit(*it)
    stamp(3)
    NP1 = int(os.environ.get("G2NP1", "40"))
    for i in PC[:NP1]: a(i)
    PC = PC[NP1:]
    a("s_waitcnt lgkmcnt(0)")
    a("s_barrier")
    for k in range(8):
        c = cq(1, 1, k)
        a("ds_read_b128 v[%d:%d], v19 offset:%d" % (c, c + 3, soff(0, k)))
    if SW >= NST:
        if PB: fchk()
        for g in sweep(): emit(*g)
    for i in PC: a(i)
    a("s_waitcnt lgkmcnt(0)")
    for k in range(8):
        c = cq(1, 0, k); d = cq(1, 1, k)
        for r in range(4): a("v_add_f32 v%d, v%d, v%d" % (c + r, c + r, d + r))
    a("s_mov_b32 s72, 0x8000")
    a("s_branch G2_CHK")
    a.label("G2_POLL")
    a("s_sub_u32 s72, s72, 1")
    a("s_cmp_eq_u32 s72, 0")
    a("s_cbranch_scc1 G2_FIN")
    for g in sweep(): a(g[0])
    a.label("G2_CHK")
    a("s_waitcnt vmcnt(0)")
    a("v_max3_u32 v120, v%d, v%d, v%d" % (RX, RX + 1, RX + 2))
    a("v_max3_u32 v121, v%d, v%d, v%d" % (RX + 3, RX + 4, RX + 5))
    for i in range(13):
        d = 120 + (i & 1)
        a("v_max3_u32 v%d, v%d, v%d, v%d" % (d, d, RX + 6 + 2 * i, RX + 7 + 2 * i))
    a("v_max_u32 v120, v120, v121")
    a("v_cmp_eq_u32 vcc, -1, v120")
    a("s_nop 1")
    if "P" not in dbg: a("s_cbranch_vccnz G2_POLL")
    a.label("G2_FIN")
    if "C" in dbg:
        a("s_memrealtime s[94:95]")
        a("s_sub_u32 s96, 0x8000, s72")
    for nt in range(4):
        for sl in range(2):
            k = sl * 4 + nt
            B = cq(1, 0, k)
            T = 124; O = 96 + 4 * nt + 2 * sl
            for r in range(4): a("v_add_f32 v%d, v%d, v%d" % (B + r, B + r, RX + 4 * k + r))
            for i in rnd4l(B, T): a(i)
            for r in range(4): a("v_mul_f32 v%d, v%d, v%d" % (B + r, B + r, OG + sl))
            for i in rnd4l(B, T): a(i)
            for r in range(4): a("v_add_f32 v%d, v%d, v%d" % (B + r, B + r, QP + 4 * k + r))
            a("v_cvt_pk_bf16_f32 v%d, v%d, v%d" % (O, B, B + 1))
            a("v_cvt_pk_bf16_f32 v%d, v%d, v%d" % (O + 1, B + 2, B + 3))
        O = 96 + 4 * nt
        a("s_nop 1")
        a("v_permlane16_swap_b32 v%d, v%d" % (O, O + 2))
        a("v_permlane16_swap_b32 v%d, v%d" % (O + 1, O + 3))
        a("s_nop 0")
        a("buffer_store_dwordx4 v[%d:%d], v15, s[%d:%d], 0 offen offset:%d" % (O, O + 3, S_O, S_O + 3, nt * 32))

def poison(a):
    r = ["s_add_u32 s76, s72, 0x%x" % XB_OFF, "s_addc_u32 s77, s73, 0", "s_mov_b32 s78, 0x%x" % XB_BYTES, "s_mov_b32 s79, 0x00020000",
         "s_lshl_b32 s62, s2, 2", "s_add_u32 s62, s62, s40", "s_lshl_b32 s62, s62, 16", "v_lshlrev_b32 v248, 4, v0"]
    for i in range(4): r.append("v_mov_b32 v%d, -1" % (244 + i))
    for b in range(16):
        for k in range(4):
            r.append("buffer_store_dwordx4 v[244:247], v248, s[76:79], s62 offen offset:%d sc1" % (k * 1024))
        r.append("s_add_u32 s62, s62, 4096")
    return r
```

```python
from asmlib import *
from layout import G_PITCH, Z_OFF, Z_BYTES

import os
ROT = int(os.environ.get('ROT', '5'))
PD = int(os.environ.get('PD', '6'))
DS0 = int(os.environ.get('DS0', '1'))
DSP = int(os.environ.get('DSP', '4'))
H1_OFF = 0
H1_BYTES = 2048 * 3584 * 2

def gen_gemm1(a, name="g1_kernel", end_label="G1_END", stamps=False, dbg="", fuse=False, rts=False):
    PST = os.environ.get("PST", "") != ""
    def rt(r):
        if rts and not (PST and r in (90,)): a("s_memrealtime s[%d:%d]" % (r, r + 1))
    def prt(r):
        if rts and PST: a("s_memrealtime s[%d:%d]" % (r, r + 1))
    def stamp(i):
        if stamps:
            a("s_memtime s[%d:%d]" % (60 + 2 * i, 61 + 2 * i))
    stamp(0)
    S_X, S_WG, S_WU, S_H = 4, 8, 12, 16
    sKX, sKW, sCNT = 20, 21, 22
    sM0 = 32
    sW = 40
    sT = 41
    vXoff = 2
    vWoff = 10
    vXa = 14
    vWa = 18
    vT = 26
    F = [64, 128]

    a("s_load_dwordx2 s[24:25], s[0:1], 0")
    a("s_load_dwordx2 s[26:27], s[0:1], 56")
    a("s_load_dwordx2 s[28:29], s[0:1], 64")
    a("s_load_dwordx2 s[30:31], s[0:1], 104")
    if fuse: code_touch(a, 76, 45, 0, "g1_kernel", end_label="G1_PREP")
    a("s_and_b32 s41, s2, 7")
    a("s_lshr_b32 s42, s2, 3")
    if fuse: a("s_sub_u32 s42, s42, 4")
    a("s_and_b32 s43, s41, 1")
    a("s_lshl_b32 s43, s43, 2")
    a("s_and_b32 s44, s42, 3")
    a("s_add_u32 s43, s43, s44")
    a("s_lshr_b32 s44, s41, 1")
    a("s_mul_i32 s44, s44, 7")
    a("s_lshr_b32 s45, s42, 2")
    a("s_add_u32 s44, s44, s45")
    if "Z" in dbg:
        a("s_mov_b32 s43, 0")
        a("s_mov_b32 s44, 0")
    if "Y" in dbg:
        a("s_and_b32 s43, s43, 1")
        a("s_and_b32 s44, s44, 1")
    a("s_lshl_b32 s43, s43, 8")
    a("s_lshl_b32 s44, s44, 7")
    a("v_lshrrev_b32 v1, 6, v0")
    a("v_and_b32 v0, 63, v0")
    a("s_nop 0")
    a("v_readfirstlane_b32 s%d, v1" % sW)
    a("s_waitcnt lgkmcnt(0)")
    prt(86)
    srd(a, S_X, 24, 2048 * 1024 * 2)
    srd(a, S_WG, 26, 1024 * 3584 * 2)
    srd(a, S_WU, 28, 1024 * 3584 * 2)
    srd(a, S_H, 30, H1_BYTES)
    a("s_lshl_b32 s45, s%d, 13" % sW)
    a("s_lshl_b32 s46, s%d, 12" % sW)
    for b in range(2):
        a("s_add_u32 s%d, s45, 0x%x" % (sM0 + 4 * b + 0, (1 - b) * 65536))
        a("s_add_u32 s%d, s45, 0x%x" % (sM0 + 4 * b + 1, (1 - b) * 65536 + 4096))
        a("s_add_u32 s%d, s46, 0x%x" % (sM0 + 4 * b + 2, (1 - b) * 65536 + 32768))
        a("s_add_u32 s%d, s46, 0x%x" % (sM0 + 4 * b + 3, (1 - b) * 65536 + 49152))
    t0, t1, t2, t3 = vT, vT + 1, vT + 2, vT + 3
    a("v_lshrrev_b32 v%d, 3, v0" % t0)
    a("s_lshl_b32 s45, s%d, 6" % sW)
    a("s_add_u32 s45, s45, s43")
    a("v_add_u32 v%d, s45, v%d" % (t0, t0))
    a("v_lshlrev_b32 v%d, 11, v%d" % (t0, t0))
    a("v_and_b32 v%d, 7, v0" % t1)
    a("v_lshrrev_b32 v%d, 4, v0" % t2)
    a("v_xor_b32 v%d, v%d, v%d" % (t1, t1, t2))
    a("v_lshlrev_b32 v%d, 4, v%d" % (t1, t1))
    a("v_add_u32 v%d, v%d, v%d" % (t0, t0, t1))
    a("v_xor_b32 v%d, 64, v%d" % (t1, t0))
    for j in range(8):
        a("v_add_u32 v%d, 0x%x, v%d" % (vXoff + j, j * 16384 - (j & 3) * 1024, t0 if j % 2 == 0 else t1))
    a("s_lshl_b32 s45, s%d, 4" % sW)
    a("v_add_u32 v%d, s45, v%d" % (t0, t2))
    a("s_movk_i32 s46, 7168")
    a("v_mul_lo_u32 v%d, v%d, s46" % (t0, t0))
    a("s_lshl_b32 s45, s44, 1")
    a("v_add_u32 v%d, s45, v%d" % (t0, t0))
    a("v_and_b32 v%d, 15, v0" % t1)
    a("v_lshlrev_b32 v%d, 1, v%d" % (t3, t2))
    a("v_xor_b32 v%d, v%d, v%d" % (t1, t1, t3))
    a("v_lshlrev_b32 v%d, 4, v%d" % (t1, t1))
    a("v_add_u32 v%d, v%d, v%d" % (t0, t0, t1))
    a("v_xor_b32 v%d, 0x80, v%d" % (t1, t0))
    for j in range(4):
        a("v_add_u32 v%d, 0x%x, v%d" % (vWoff + j, j * 4 * 7168 - j * 1024, t0 if j < 2 else t1))
    if "P" in dbg:
        a("s_lshr_b32 s45, s42, 2")
        a("s_mul_i32 s45, s45, 40")
        a("v_add_u32 v%d, s45, v0" % t0)
        a("v_min_u32 v%d, 255, v%d" % (t0, t0))
        a("v_add_u32 v%d, s43, v%d" % (t0, t0))
        a("v_lshlrev_b32 v%d, 11, v%d" % (t0, t0))
        a("v_lshrrev_b32 v%d, 1, v0" % t1)
        a("v_and_b32 v%d, 15, v%d" % (t1, t1))
        a("v_lshlrev_b32 v%d, 2, v%d" % (t1, t1))
        a("s_and_b32 s45, s42, 3")
        a("v_add_u32 v%d, s45, v%d" % (t1, t1))
        a("v_mul_lo_u32 v%d, v%d, s46" % (t1, t1))
        a("v_and_b32 v%d, 1, v0" % t3)
        a("v_lshlrev_b32 v%d, 7, v%d" % (t3, t3))
        a("v_add_u32 v%d, v%d, v%d" % (t1, t1, t3))
        a("s_lshl_b32 s45, s44, 1")
        a("v_add_u32 v%d, s45, v%d" % (t1, t1))
        a("s_cmp_eq_u32 s%d, 1" % sW)
        a("s_cselect_b32 s52, s26, s24")
        a("s_cselect_b32 s53, s27, s25")
        a("s_cmp_eq_u32 s%d, 2" % sW)
        a("s_cselect_b32 s52, s28, s52")
        a("s_cselect_b32 s53, s29, s53")
        a("s_add_u32 s45, s%d, -1" % sW)
        a("s_mov_b32 s54, 0x%x" % (2048 * 1024 * 2))
        a("s_movk_i32 s57, 128")
        a("s_cmp_lt_u32 s45, 2")
        a("s_cselect_b32 s54, 0x%x, s54" % (1024 * 3584 * 2))
        a("s_mov_b32 s55, 0x00020000")
        a("s_cselect_b32 s57, 0x%x, s57" % (64 * 7168))
        a("s_cselect_b64 vcc, -1, 0")
        a("s_nop 1")
        a("v_cndmask_b32 v41, v%d, v%d, vcc" % (t0, t1))
        a("s_lshl_b32 s56, s57, 1")
    if "K" in dbg:
        a("s_mul_i32 s23, s42, %d" % ROT)
        a("s_and_b32 s23, s23, 15")
        a("s_lshl_b32 s%d, s23, 7" % sKX)
        a("s_mul_i32 s%d, s23, 0x%x" % (sKW, 64 * 7168))
    else:
        a("s_mov_b32 s%d, 0" % sKX)
        a("s_mov_b32 s%d, 0" % sKW)

    def dma(b):
        g = []
        for half in range(2):
            if "W" in dbg: break
            for jj in range(4):
                j = half * 4 + jj
                ins = []
                if jj == 0:
                    ins.append("s_mov_b32 m0, s%d" % (sM0 + 4 * b + half))
                    ins.append("s_nop 0")
                ins.append("buffer_load_dwordx4 v%d, s[%d:%d], s%d offen offset:%d lds" % (vXoff + j, S_X, S_X + 3, sKX, jj * 1024))
                g.append(ins)
        for gu in range(2):
            if "X" in dbg: break
            S = S_WG if gu == 0 else S_WU
            for j in range(4):
                ins = []
                if j == 0:
                    ins.append("s_mov_b32 m0, s%d" % (sM0 + 4 * b + 2 + gu))
                    ins.append("s_nop 0")
                ins.append("buffer_load_dwordx4 v%d, s[%d:%d], s%d offen offset:%d lds" % (vWoff + j, S, S + 3, sKW, j * 1024))
                g.append(ins)
        if "K" in dbg:
            g[-1].append("s_add_u32 s23, s23, 1")
            g[-1].append("s_and_b32 s23, s23, 15")
            g[-1].append("s_lshl_b32 s%d, s23, 7" % sKX)
            g[-1].append("s_mul_i32 s%d, s23, 0x%x" % (sKW, 64 * 7168))
        else:
            g[-1].append("s_add_u32 s%d, s%d, 128" % (sKX, sKX))
            g[-1].append("s_add_u32 s%d, s%d, 0x%x" % (sKW, sKW, 64 * 7168))
        return g

    import prep4, conv2
    dprep = fuse and conv2.TARGET == 16
    if dprep:
        prep4.prep4_issue(a, 60, 62, 100, 30, 64, 64, sW)
    prt(96)
    for g in dma(0):
        for i in g: a(i)
    for g in dma(1):
        for i in g: a(i)
    prt(90)
    def touch():
        return ["buffer_load_dword v42, v41, s[52:55], s56 offen", "s_add_u32 s56, s56, s57"]
    if "P" in dbg:
        for _ in range(PD - 2):
            for i in touch(): a(i)

    NCT = 0
    a("s_lshr_b32 s45, s%d, 1" % sW)
    a("s_and_b32 s46, s%d, 1" % sW)
    a("v_and_b32 v%d, 15, v0" % t0)
    a("s_lshl_b32 s47, s45, 7")
    a("v_add_u32 v%d, s47, v%d" % (t0, t0))
    a("v_lshlrev_b32 v%d, 7, v%d" % (t0, t0))
    a("v_lshrrev_b32 v%d, 1, v0" % t1)
    a("v_and_b32 v%d, 7, v%d" % (t1, t1))
    a("v_xor_b32 v%d, v%d, v%d" % (t1, t1, t2))
    a("v_lshlrev_b32 v%d, 4, v%d" % (t1, t1))
    a("v_add_u32 v%d, v%d, v%d" % (vXa + 2, t0, t1))
    a("v_xor_b32 v%d, 64, v%d" % (vXa + 3, vXa + 2))
    a("v_add_u32 v%d, 0x10000, v%d" % (vXa + 0, vXa + 2))
    a("v_add_u32 v%d, 0x10000, v%d" % (vXa + 1, vXa + 3))
    a("v_lshrrev_b32 v%d, 2, v0" % t0)
    a("v_and_b32 v%d, 3, v%d" % (t0, t0))
    a("v_lshlrev_b32 v%d, 3, v%d" % (t1, t2))
    a("v_add_u32 v%d, v%d, v%d" % (t1, t1, t0))
    a("v_lshlrev_b32 v%d, 8, v%d" % (t1, t1))
    a("v_and_b32 v%d, 3, v0" % t3)
    a("v_lshlrev_b32 v%d, 3, v%d" % (t3, t3))
    a("v_add_u32 v%d, v%d, v%d" % (t1, t1, t3))
    a("v_add_u32 v%d, 0x8000, v%d" % (t1, t1))
    a("v_and_b32 v%d, 1, v%d" % (t3, t2))
    a("v_lshlrev_b32 v%d, 2, v%d" % (t3, t3))
    a("v_or_b32 v%d, v%d, v%d" % (t0, t0, t3))
    a("s_lshl_b32 s47, s46, 2")
    for t in range(4):
        a("s_add_u32 s48, s47, %d" % t)
        a("v_xor_b32 v%d, s48, v%d" % (t3, t0))
        a("v_lshlrev_b32 v%d, 5, v%d" % (t3, t3))
        a("v_add_u32 v%d, v%d, v%d" % (vWa + 4 + t, t1, t3))
        a("v_add_u32 v%d, 0x10000, v%d" % (vWa + t, vWa + 4 + t))
    if fuse and not dprep:
        conv2.conv_ptrs(a)
    POIS = fuse and os.environ.get("G2", "x") in "wx" and os.environ.get("POIS", "b") == "g"
    from layout import XB_OFF, XB_BYTES
    PSTR = int(os.environ.get("PSTR", "1"))
    PSET = ["s_add_u32 s52, s30, 0x%x" % XB_OFF, "s_addc_u32 s53, s31, 0", "s_mov_b32 s54, 0x%x" % XB_BYTES, "s_mov_b32 s55, 0x00020000",
            "s_lshl_b32 s56, s2, 2", "s_add_u32 s56, s56, s%d" % sW, "s_sub_u32 s56, s56, 128", "s_lshl_b32 s56, s56, 10" if PSTR != 1 else "s_mul_i32 s56, s56, 9472", "v_lshlrev_b32 v52, 4, v0"]
    PSET += ["v_mov_b32 v%d, -1" % (48 + i) for i in range(4)]
    PST_ = ["buffer_store_dwordx4 v[48:51], v52, s[52:55], s56 offen sc1", "s_add_u32 s56, s56, 0x%x" % (PSTR * 1024)]
    NPO = 10 if POIS else 0
    POIL = fuse and os.environ.get("G2", "x") in "wx" and os.environ.get("POIS", "b") == "l"
    POIP = fuse and os.environ.get("G2", "x") in "wx" and os.environ.get("POIS", "b") in ("p", "q")
    if POIL or POIP:
        for i in PSET: a(i.replace("s52", "s80").replace("s53", "s81").replace("s54", "s82").replace("s55", "s83").replace("s56", "s84"))
    PSL = [i.replace("s[52:55]", "s[80:83]").replace("s56", "s84") for i in PST_]
    for i in range(256):
        a("v_accvgpr_write_b32 a%d, 0" % i)
        if POIP and os.environ["POIS"] == "p" and i % 24 == 8 and i < 240:
            for j in PSL: a(j)
            NCT += 1
    if POIP and os.environ["POIS"] == "q":
        for _ in range(10):
            for j in PSL: a(j)
            NCT += 1

    def reads(fs, b, s):
        fb = F[fs]
        r = []
        for i in range(8):
            r.append(["ds_read_b128 v[%d:%d], v%d offset:%d" % (fb + 4 * i, fb + 4 * i + 3, vXa + 2 * b + s, i * 2048)])
        w = []
        for gu in range(2):
            for t in range(4):
                for h in range(2):
                    d = fb + 32 + 4 * (gu * 4 + t) + 2 * h
                    w.append(["ds_read_b64_tr_b16 v[%d:%d], v%d offset:%d" % (d, d + 1, vWa + 4 * b + t, gu * 16384 + s * 8192 + h * 1024)])
        out = []
        for i in range(8):
            out.append(r[i]); out.append(w[2 * i]); out.append(w[2 * i + 1])
        return out

    def mfmas(fs):
        fb = F[fs]
        m = []
        if "M" in dbg: return m
        for i in range(8):
            for wt in range(8):
                c = (wt * 8 + i) * 4
                m.append("v_mfma_f32_16x16x32_bf16 a[%d:%d], v[%d:%d], v[%d:%d], a[%d:%d]" % (
                    c, c + 3, fb + 32 + 4 * wt, fb + 32 + 4 * wt + 3, fb + 4 * i, fb + 4 * i + 3, c, c + 3))
        return m

    stamp(1)
    if fuse and not dprep and os.environ.get("TLB"):
        a("s_waitcnt lgkmcnt(0)")
        a("s_lshl_b32 s80, s2, 2")
        a("s_add_u32 s80, s80, s%d" % sW)
        a("s_lshl_b32 s80, s80, 12")
        a("v_mov_b32 v45, 0")
        a("s_mov_b32 s79, 0x00020000")
        for P, nb, so in ((conv2.P_HK, 1024 * 2048 * 2, "s80"), (conv2.P_GW, 2048, "0"), (conv2.P_D, 2048, "0"), (conv2.P_DBG, 256, "0")):
            a("s_mov_b32 s76, s%d" % P)
            a("s_mov_b32 s77, s%d" % (P + 1))
            a("s_mov_b32 s78, 0x%x" % nb)
            a("buffer_load_dword v46, v45, s[76:79], %s offen%s" % (so, " sc1" if P == conv2.P_DBG else ""))
            NCT += 1
        a("s_add_u32 s76, s30, 0x%x" % Z_OFF)
        a("s_addc_u32 s77, s31, 0")
        a("s_mov_b32 s78, 0x%x" % Z_BYTES)
        a("buffer_load_dword v46, v45, s[76:79], s80 offen")
        NCT += 1
    if dprep:
        a("s_waitcnt vmcnt(%d)" % (32 + PD - 2))
        rt(96)
        prep4.prep4_compute(a, 64, 64, "A")
        conv2.conv_ptrs(a)
        rt(86)
    a("s_waitcnt vmcnt(%d)" % ((8 if ("X" in dbg or "W" in dbg) else 16) + (PD - 2 if "P" in dbg else 0) + (8 if dprep else 0) + NCT))
    prt(94)
    a("s_barrier")
    stamp(2)
    if rts and not dprep:
        rt(98)
        if not PST: a("s_memtime s[86:87]")
    for g in reads(0, 0, 0):
        for i in g: a(i)

    LST = os.environ.get("LST", "") != ""
    if LST:
        a("s_lshl_b32 s90, s%d, 8" % sW)
        a("s_add_u32 s90, s90, 150016")
        a("v_mov_b32 v44, s90")
        a("s_memtime s[90:91]")
    def lst():
        if LST:
            a("v_mov_b32 v43, s90")
            a("ds_write_b32 v44, v43")
            a("v_add_u32 v44, 4, v44")
            a("s_memtime s[90:91]")
    def stage(b, do_dma, do_next, first=False, preB=None, vmB=None, extraA=None, extraB=None, tailB=None, postW=None, plB=None, plA=None):
        a("s_waitcnt lgkmcnt(0)")
        lst()
        pa = [(2 * n, g) for n, g in enumerate(reads(1, b, 1) if "R" not in dbg else [])]
        if extraA: pa += [(1 + 4 * n, g) for n, g in enumerate(extraA)]
        if plA: pa += plA
        for i in place(mfmas(0), pa): a(i)
        a("s_waitcnt lgkmcnt(0)")
        lst()
        if preB: preB()
        if do_next:
            if "V" in dbg:
                pass
            elif vmB is not None:
                a("s_waitcnt vmcnt(%d)" % vmB)
            elif first == 1:
                a("s_waitcnt vmcnt(%d)" % (PD - 2 + 8))
            elif "P" in dbg:
                a("s_waitcnt vmcnt(%d)" % (1 if "2" not in dbg else 18))
            else:
                a("s_waitcnt vmcnt(%d)" % (0 if "2" not in dbg else (8 if ("X" in dbg or "W" in dbg) else 16)))
            if postW: postW()
            if LST:
                a("s_waitcnt lgkmcnt(0)")
                lst()
            if "B" not in dbg: a("s_barrier")
            if LST:
                a("s_waitcnt lgkmcnt(0)")
                lst()
            if first == 2:
                conv2.flag_srd(a)
                a("s_cmp_lg_u32 s%d, 0" % sW)
                a("s_cbranch_scc1 G1_P0")
                conv2.signal(a)
                a.label("G1_P0")
        pl = []
        if do_next and "R" not in dbg:
            for n, g in enumerate(reads(0, b ^ 1, 0)): pl.append((2 * n, g))
        if do_dma and "D" not in dbg:
            dl = dma(b)
            if "P" in dbg: dl[-1] = dl[-1] + touch()
            if tailB: dl[-1] = dl[-1] + tailB
            for n, g in enumerate(dl): pl.append((DS0 + DSP * n, g))
        if extraB: pl += [(1 + 4 * n, g) for n, g in enumerate(extraB)]
        if plB: pl += plB
        for i in place(mfmas(1), pl): a(i)

    def epilogue():
        vS = 2
        a("s_lshr_b32 s47, s43, 7")
        a("s_add_u32 s47, s47, s45")
        a("s_mul_i32 s47, s47, 112")
        a("s_lshr_b32 s48, s44, 5")
        a("s_add_u32 s47, s47, s48")
        a("s_lshl_b32 s48, s46, 1")
        a("s_add_u32 s47, s47, s48")
        a("s_lshl_b32 s47, s47, 13")
        a("v_and_b32 v%d, 15, v0" % t0)
        a("v_lshlrev_b32 v%d, 4, v%d" % (t0, t0))
        a("v_lshrrev_b32 v%d, 1, v%d" % (t1, t2))
        a("v_lshlrev_b32 v%d, 8, v%d" % (t1, t1))
        a("v_add_u32 v%d, v%d, v%d" % (t0, t0, t1))
        a("v_and_b32 v%d, 1, v%d" % (t1, t2))
        a("v_lshlrev_b32 v%d, 10, v%d" % (t1, t1))
        a("v_add_u32 v%d, v%d, v%d" % (t0, t0, t1))
        a("v_add_u32 v%d, s47, v%d" % (vS, t0))
        a("s_mov_b32 s56, 0")
        a("s_movk_i32 s57, 4096")
        a("s_movk_i32 s58, 8192")
        a("s_movk_i32 s59, 12288")
        import math
        C0 = -2.0 * math.sqrt(2.0 / math.pi) * math.log2(math.e)
        C1 = C0 * 0.044715
        import struct
        def f2u(x): return struct.unpack("<I", struct.pack("<f", x))[0]
        a("s_mov_b32 s50, 0x%x" % f2u(C0))
        a("s_mov_b32 s51, 0x%x" % f2u(C1))
        a("v_mov_b32 v3, s50")
        groups = []
        cnt = 0
        SC = os.environ.get("H1SC", " sc1")
        for ip in range(4):
            for t in range(4):
                G = 212; U = 220; T = 228; P = 236 + 4 * (cnt % 4)
                cnt += 1
                i = 2 * ip
                cg = (t * 8 + i) * 4
                cu = ((4 + t) * 8 + i) * 4
                e = []
                for r in range(8): e.append("v_accvgpr_read_b32 v%d, a%d" % (G + r, cg + r))
                for r in range(8): e.append("v_mul_f32 v%d, v%d, v%d" % (T + r, G + r, G + r))
                for r in range(8): e.append("v_fma_f32 v%d, v%d, s51, v3" % (T + r, T + r))
                for r in range(8): e.append("v_mul_f32 v%d, v%d, v%d" % (T + r, T + r, G + r))
                for r in range(8):
                    e.append("v_exp_f32 v%d, v%d" % (T + r, T + r))
                    e.append("v_accvgpr_read_b32 v%d, a%d" % (U + r, cu + r))
                for r in range(8): e.append("v_add_f32 v%d, 1.0, v%d" % (T + r, T + r))
                for r in range(8):
                    e.append("v_rcp_f32 v%d, v%d" % (T + r, T + r))
                    e.append("v_mul_f32 v%d, v%d, v%d" % (U + r, U + r, G + r))
                for r in range(8): e.append("v_mul_f32 v%d, v%d, v%d" % (U + r, U + r, T + r))
                for k in range(4): e.append("v_cvt_pk_bf16_f32 v%d, v%d, v%d" % (P + k, U + 2 * k, U + 2 * k + 1))
                e.append("s_nop 1")
                e.append("v_permlane16_swap_b32 v%d, v%d" % (P, P + 2))
                e.append("v_permlane16_swap_b32 v%d, v%d" % (P + 1, P + 3))
                e.append("s_nop 0")
                e.append("buffer_store_dwordx4 v[%d:%d], v%d, s[%d:%d], s%d offen offset:%d%s" % (P, P + 3, vS, S_H, S_H + 3, 56 + (i >> 2) + 2 * (t >> 1), (i & 3) * 1024 + (t & 1) * 512, SC))
                groups.append(e)
        return groups

    a("s_mov_b32 s%d, 0" % sCNT)
    if dprep:
        stage(0, True, True, first=1)
        stage(1, True, True, first=2)
        a("s_mov_b32 s%d, 1" % sCNT)
        rt(98)
    a.label("G1_LOOP")
    if POIL:
        stage(0, True, True, tailB=PSL, vmB=2)
        stage(1, True, True, tailB=PSL, vmB=2)
    else:
        stage(0, True, True)
        stage(1, True, True)
    a("s_add_u32 s%d, s%d, 1" % (sCNT, sCNT))
    a("s_cmp_lt_u32 s%d, %d" % (sCNT, 6 if fuse else 7))
    a("s_cbranch_scc1 G1_LOOP")
    if fuse:
        if not dprep: conv2.flag_srd(a)
        a("s_mov_b32 s84, 0")
        pi, _ = conv2.capture(a, conv2.poll_issue, a, 202)
        POIT = os.environ.get("G2", "x") in "wx" and os.environ.get("POIS", "b") == "t"
        if POIT:
            pi = pi + ["v_mov_b32 v203, 1", "v_mov_b32 v209, 32", "s_mov_b64 exec, 1", "buffer_atomic_add v203, v209, s[80:83], 0 offen sc0 sc1", "s_mov_b64 exec, -1"]
        pi = ["s_cmp_lg_u32 s%d, 0" % sW, "s_cbranch_scc1 G1_P1"] + pi + ["G1_P1:"]
        stage(0, True, True, tailB=conv2.touch_h() + conv2.gate_loads(), extraB=[pi], vmB=2 if POIL else None)
        def post1():
            conv2.poll_check(a, 202, 84)
        tk = None
        if POIT:
            tk = [(2, ["v_readfirstlane_b32 s62, v203", "s_lshl_b32 s63, s%d, 2" % sW, "s_add_u32 s63, s63, %d" % conv2.TKOFF]),
                  (4, ["v_mov_b32 v203, s62", "v_mov_b32 v210, s63"]), (6, ["ds_write_b32 v210, v203"])]
        stage(1, True, True, vmB=8, postW=post1, plB=tk)
        ces, DE = conv2.capture(a, conv2.conv_early, a)
        def chk2():
            a("s_cmp_lg_u32 s%d, 0" % sW)
            a("s_cbranch_scc1 G1_P4")
            a("s_cmp_lg_u32 s84, 0")
            a("s_cbranch_scc1 G1_P4")
            a.label("G1_P3")
            conv2.poll_issue(a, 202)
            a("s_waitcnt vmcnt(0)")
            conv2.poll_check(a, 202, 84)
            a("s_cmp_lg_u32 s84, 0")
            a("s_cbranch_scc1 G1_P4")
            a("s_sleep 16")
            a("s_branch G1_P3")
            a.label("G1_P4")
        GC = conv2.gate_compute()
        def spread(groups, lo, hi):
            tot = sum(len(g) for g in groups); r = []; c = 0
            for g in groups:
                r.append((lo + (c * (hi - lo)) // max(tot, 1), g)); c += len(g)
            return r
        n14 = 0; c = 0
        while c < 120: c += len(GC[n14]); n14 += 1
        stage(0, False, True, preB=chk2, extraB=DE[:12], extraA=[ces[i:i + 2] for i in range(0, len(ces), 2)], plB=spread(GC[:n14], 2, 64),
              plA=([(n, [i]) for n, i in enumerate(PSET)] + [(15 + 5 * n, PST_) for n in range(NPO)]) if POIS else None, vmB=1 + NPO)
        a("s_waitcnt lgkmcnt(0)")
        lst()
        mA = mfmas(0); mB = mfmas(1)
        A_ = [mA[8 * i:8 * i + 8] for i in range(8)]; B_ = [mB[8 * i:8 * i + 8] for i in range(8)]
        pl = [(n, g) for n, g in enumerate(reads(1, 1, 1))]
        pl += [(1 + 4 * n, g) for n, g in enumerate(DE[12:])]
        pl += spread(GC[n14:], 0, 32)
        for i in place(A_[0] + A_[1] + A_[2] + A_[3], pl): a(i)
        a("s_waitcnt lgkmcnt(0)")
        lst()
        es, groups = conv2.capture(a, epilogue)
        cs, _ = conv2.capture(a, conv2.conv_setup, a)
        EF = [i for g in groups for i in g]
        NE15 = int(os.environ.get("NE15", "200"))
        seq = B_[0] + B_[1] + A_[4] + A_[5] + B_[2] + B_[3] + A_[6] + A_[7] + B_[4] + B_[5] + B_[6] + B_[7]
        pl = spread([[i] for i in es + cs], 0, 20) + spread([[i] for i in EF[:NE15]], 20, 96)
        EF = EF[NE15:]
        for i in place(seq, pl): a(i)
        if LST:
            a("s_waitcnt lgkmcnt(0)")
            lst()
            a("s_lshl_b32 s90, s%d, 8" % sW)
            a("s_add_u32 s90, s90, 150016")
            a("v_lshlrev_b32 v44, 2, v0")
            a("v_add_u32 v43, s90, v44")
            a("s_waitcnt lgkmcnt(0)")
            a("ds_read_b32 v43, v43")
            a("s_add_u32 s76, s30, 0x6000000")
            a("s_addc_u32 s77, s31, 0")
            a("s_mov_b32 s78, 0x100000")
            a("s_mov_b32 s79, 0x00020000")
            a("s_lshl_b32 s90, s2, 2")
            a("s_add_u32 s90, s90, s%d" % sW)
            a("s_lshl_b32 s90, s90, 8")
            a("s_waitcnt lgkmcnt(0)")
            a("buffer_store_dword v43, v44, s[76:79], s90 offen")
            a("s_waitcnt vmcnt(0)")
            a("s_mul_i32 s%d, s%d, %d" % (conv2.T3, conv2.sD, G_PITCH))
        rt(88)
        if rts and not PST: a("s_memtime s[96:97]")
        a("s_barrier")
        rt(90)
        D = conv2.conv_issue(a)
    else:
        stage(0, False, True)
        stage(1, False, False)

    if fuse:
        return D, EF
    groups = epilogue()
    for e in groups:
        for i in e: a(i)

    if stamps:
        stamp(4)
        a("s_waitcnt vmcnt(0)")
        stamp(5)
        a("s_waitcnt lgkmcnt(0)")
        a("s_add_u32 s30, s30, 0x4000000")
        a("s_addc_u32 s31, s31, 0")
        srd(a, S_H, 30, 1 << 20)
        a("s_lshl_b32 s47, s2, 2")
        a("s_add_u32 s47, s47, s%d" % sW)
        a("s_lshl_b32 s47, s47, 5")
        for i in range(6):
            a("v_mov_b32 v%d, s%d" % (64 + i, 60 + 2 * i))
        a("v_mov_b32 v70, s47")
        a("v_cmp_eq_u32 vcc, 0, v0")
        a("s_and_saveexec_b64 s[48:49], vcc")
        a("buffer_store_dwordx4 v[64:67], v70, s[%d:%d], 0 offen" % (S_H, S_H + 3))
        a("buffer_store_dwordx2 v[68:69], v70, s[%d:%d], 0 offen offset:16" % (S_H, S_H + 3))
        a("s_mov_b64 exec, s[48:49]")
```

```python
from asmlib import *
from layout import *
from prep import ws_srd
import os

NST = 28
WR = int(os.environ.get("G2WR", "8"))
XR = int(os.environ.get("G2XR", "8"))
BLK = int(os.environ.get("G2BLK", "4"))
RJW = int(os.environ.get("G2RJW", "1"))
MAP = int(os.environ.get("G2MAP", "2"))
D = int(os.environ.get("G2D", "4"))
assert WR == 8 and D <= WR and D <= XR and D >= 2
G2_ZB = 2 * WR * 8192
G2_LDS = max(G2_ZB + 16384, 65536 + 16384)
if G2_ZB < 65536: G2_ZB = 65536

def gen_gemm2(a, dbg="", stamps=False, rts=False):
    def stamp(i):
        if rts and i in (1, 2, 3, 4):
            r = {1: 98, 2: 86, 3: 88, 4: 90}[i]
            a("s_memrealtime s[%d:%d]" % (r, r + 1))
    S_H, S_W, S_Z, S_Q, S_O, S_GT, S_XB = 4, 8, 12, 16, 20, 24, 60
    sW, sLB, sX, sWK = 40, 41, 42, 43
    sMF, sNF = 44, 45
    sMH, sKQ, sKH = 64, 65, 66
    sXS, sXL = 68, 70
    a("s_load_dwordx2 s[34:35], s[0:1], 104")
    a("s_load_dwordx2 s[30:31], s[0:1], 72")
    a("s_load_dwordx2 s[28:29], s[0:1], 0")
    a("s_load_dwordx2 s[32:33], s[0:1], 88")
    a("s_load_dwordx2 s[74:75], s[0:1], 96")
    code_touch(a, 76, 28, 0, "g2_kernel")
    a("v_lshrrev_b32 v1, 6, v0")
    a("v_and_b32 v0, 63, v0")
    a("s_and_b32 s46, s2, 7")
    a("v_readfirstlane_b32 s%d, v1" % sW)
    a("s_lshr_b32 s47, s2, 3")
    a("s_lshr_b32 s%d, s46, 2" % sKH)
    if MAP == 1:
        a("s_and_b32 s48, s46, 3")
        a("s_lshl_b32 s48, s48, 2")
        a("s_and_b32 s51, s47, 3")
        a("s_add_u32 s48, s48, s51")
        a("s_lshr_b32 s49, s47, 2")
        a("s_mov_b32 s50, s49")
        maxr = 7 + 3 * RJW
    else:
        a("s_and_b32 s48, s46, 1")
        a("s_lshl_b32 s48, s48, 3")
        a("s_and_b32 s51, s47, 7")
        a("s_add_u32 s48, s48, s51")
        a("s_and_b32 s49, s46, 2")
        a("s_lshl_b32 s49, s49, 1")
        a("s_lshr_b32 s50, s47, 3")
        a("s_add_u32 s49, s49, s50")
        maxr = 3 + 7 * RJW
    if "Z" in dbg:
        a("s_mov_b32 s48, 0")
        a("s_mov_b32 s49, 0")
    if "Y" in dbg:
        a("s_mov_b32 s48, 0")
    if "U" in dbg:
        a("s_mov_b32 s49, 0")
    a("v_lshlrev_b32 v2, 4, v0")
    a("v_lshrrev_b32 v3, 4, v0")
    a("s_and_b32 s%d, s%d, 1" % (sMH, sW))
    a("s_lshr_b32 s%d, s%d, 1" % (sKQ, sW))
    a("s_mul_i32 s52, s%d, 56" % sKH)
    a("s_mul_i32 s53, s%d, 28" % sKQ)
    a("s_add_u32 s52, s52, s53")
    a("s_mul_i32 s53, s48, 112")
    a("s_add_u32 s53, s53, s52")
    a("s_lshl_b32 s%d, s53, 13" % sX)
    a("s_lshl_b32 s%d, s52, 16" % sWK)
    if BLK:
        a("s_mul_i32 s51, s51, %d" % RJW)
        a("s_add_u32 s50, s50, s51")
        for _ in range(maxr // BLK):
            a("s_sub_u32 s51, s50, %d" % BLK)
            a("s_cmp_ge_u32 s50, %d" % BLK)
            a("s_cselect_b32 s50, s51, s50")
        a("s_mov_b32 s38, s50")
        a("s_mov_b32 s39, s50")
        a("s_mov_b32 s36, s%d" % sX)
        a("s_mov_b32 s37, s%d" % sWK)
        a("s_lshl_b32 s51, s50, 13")
        a("s_add_u32 s%d, s36, s51" % sX)
        a("s_lshl_b32 s51, s50, 16")
        a("s_add_u32 s%d, s37, s51" % sWK)
    def adv(t, sreg, sbase, sidx, sh):
        if not BLK:
            return [("s_add_u32 s%d, s%d, 0x%x" % (sreg, sreg, 1 << sh), None)]
        r = [("s_add_u32 s%d, s%d, 1" % (sidx, sidx), None),
             ("s_cmp_eq_u32 s%d, %d" % (sidx, BLK), None),
             ("s_cselect_b32 s%d, 0, s%d" % (sidx, sidx), None)]
        if t % BLK == BLK - 1:
            r.append(("s_add_u32 s%d, s%d, 0x%x" % (sbase, sbase, BLK << sh), None))
        r.append(("s_lshl_b32 s%d, s%d, %d" % (sreg, sidx, sh), None))
        r.append(("s_add_u32 s%d, s%d, s%d" % (sreg, sreg, sbase), None))
        return r
    a("s_mul_i32 s67, s%d, %d" % (sKQ, WR * 8192))
    a("s_lshl_b32 s50, s%d, 12" % sMH)
    a("s_add_u32 s%d, s67, s50" % sLB)
    a("s_lshl_b32 s51, s%d, 11" % sKQ)
    a("s_add_u32 s51, s51, s50")
    a("v_add_u32 v16, s51, v2")
    a("v_xor_b32 v17, 0x800, v16")
    a("s_lshl_b32 s49, s49, 7")
    a("s_lshl_b32 s48, s48, 7")
    a("v_lshrrev_b32 v8, 3, v0")
    a("s_lshl_b32 s50, s%d, 4" % sMH)
    a("v_add_u32 v8, s50, v8")
    a("v_lshlrev_b32 v8, 11, v8")
    a("s_lshl_b32 s50, s%d, 6" % sKH)
    a("s_add_u32 s50, s50, s49")
    a("s_lshl_b32 s50, s50, 1")
    a("v_add_u32 v8, s50, v8")
    a("v_and_b32 v9, 7, v0")
    a("v_and_b32 v10, 1, v3")
    a("v_lshlrev_b32 v10, 1, v10")
    a("v_xor_b32 v9, v9, v10")
    a("v_lshlrev_b32 v9, 4, v9")
    a("v_add_u32 v8, v8, v9")
    a("v_xor_b32 v9, 64, v8")
    a("v_xor_b32 v10, 0x80, v8")
    a("v_xor_b32 v11, 0x80, v9")
    for I in range(4):
        src = {0: 10, 1: 11, 2: 8, 3: 9}[I]
        off = (I & 1) * (8 * 2048 - 1024)
        a("v_add_u32 v%d, 0x%x, v%d" % (4 + I, off, src))
    a("s_waitcnt lgkmcnt(0)")
    ws_srd(a, S_H, 34, H1_OFF, H1_BYTES)
    srd(a, S_W, 30, 3584 * 1024 * 2)

    vm = []
    def emit(ins, tag=None):
        a(ins)
        if ins.startswith("buffer_"):
            vm.append(tag)
    def younger_than(tag):
        idx = max(i for i, x in enumerate(vm) if x == tag)
        return len(vm) - 1 - idx
    def ldx(t):
        g = []
        base = (t % XR) * 16
        for i in range(4):
            g.append([("buffer_load_dwordx4 a[%d:%d], v%d, s[%d:%d], s%d offen offset:%d" % (base + 4 * i, base + 4 * i + 3, 16 + (i >> 1), S_H, S_H + 3, sX, (i & 1) * 1024), ("x", t))])
        g[-1].extend(adv(t, sX, 36, 38, 13))
        return g
    def ldw(t):
        g = []
        for I in range(4 if t < NST - D else 2):
            ins = []
            if I == 0:
                if t == NST - D:
                    ins += [("s_mov_b32 s80, s%d" % sWK, None), ("s_mov_b32 s81, s37", None), ("s_mov_b32 s82, s39", None)]
                ins.append(("s_add_u32 m0, s%d, %d" % (sLB, (t % WR) * 8192), None))
                ins.append(("s_nop 0", None))
            if I == 2:
                ins.append(("s_add_u32 m0, s%d, %d" % (sLB, (t % WR) * 8192 + 2048), None))
                ins.append(("s_nop 0", None))
            ins.append(("buffer_load_dwordx4 v%d, s[%d:%d], s%d offen offset:%d lds" % (4 + I, S_W, S_W + 3, sWK, (I & 1) * 1024), ("w", t)))
            g.append(ins)
        g[-1].extend(adv(t, sWK, 37, 39, 16))
        return g
    def ldk(t):
        g = []
        for I in (2, 3):
            ins = []
            if I == 2:
                ins.append(("s_add_u32 m0, s%d, %d" % (sLB, (t % WR) * 8192 + 2048), None))
                ins.append(("s_nop 0", None))
            ins.append(("buffer_load_dwordx4 v%d, s[%d:%d], s80 offen offset:%d lds" % (4 + I, S_W, S_W + 3, (I & 1) * 1024), ("k", t)))
            g.append(ins)
        g[-1].extend(adv(t, 80, 81, 82, 16))
        return g
    PRO = int(os.environ.get("G2PRO", "99"))
    RMP = int(os.environ.get("G2RMP", "4"))
    nxt = {"w": 0, "x": 0}
    def mix(t, lim=None):
        g = []; n = 0
        lim = lim or RMP
        while n < lim:
            w, x = nxt["w"], nxt["x"]
            cw = w < NST and w <= max(t, -1) + WR and (t >= 0 or w < PRO)
            cx = x < NST and x <= max(t, -1) + XR - 1 and (t >= 0 or x < PRO)
            if cw and (w <= x + 1 or not cx): g += ldw(w); nxt["w"] += 1
            elif cx: g += ldx(x); nxt["x"] += 1
            else: break
            n += 1
        return g
    for g in mix(-1, 99):
        for it in g: emit(*it)
    a("s_lshl_b32 s50, s%d, 6" % sMH)
    a("s_add_u32 s%d, s48, s50" % sMF)
    a("s_lshl_b32 s50, s%d, 5" % sKQ)
    a("s_add_u32 s%d, s%d, s50" % (sMF, sMF))
    a("s_lshl_b32 s50, s%d, 6" % sKH)
    a("s_add_u32 s%d, s49, s50" % sNF)
    ws_srd(a, S_Z, 34, Z_OFF, Z_BYTES)
    srd(a, S_Q, 28, 2048 * 1024 * 2)
    srd(a, S_O, 32, 2048 * 1024 * 2)
    ws_srd(a, S_GT, 34, GT_OFF, GT_BYTES)
    ws_srd(a, S_XB, 34, XB_OFF, XB_BYTES)
    PB = os.environ.get("POIS", "b") == "b"
    S_DB = 76
    if PB:
        srd(a, S_DB, 74, 256)
        for i in range(4): a("v_mov_b32 v%d, -1" % (32 + i))
        a("s_lshr_b32 s50, s2, 2")
        a("s_lshl_b32 s50, s50, 2")
        a("v_mov_b32 v36, s50")
        a("v_xor_b32 v37, 4, v36")
        a("s_and_b32 s73, s2, 3")
        a("s_lshl_b32 s50, 1, s73")
        a("v_mov_b32 v38, s50")
    a("s_lshl_b32 s50, s2, 2")
    a("s_add_u32 s50, s50, s%d" % sW)
    a("s_lshl_b32 s%d, s50, 13" % sXS)
    a("s_add_u32 s%d, s%d, 4096" % (sXS + 1, sXS))
    a("s_xor_b32 s%d, s%d, 0x%x" % (sXL, sXS, 4 << 15))
    a("s_add_u32 s%d, s%d, 4096" % (sXL + 1, sXL))
    extras = []
    a("v_lshrrev_b32 v8, 2, v0")
    a("v_add_u32 v8, s%d, v8" % sNF)
    a("v_lshlrev_b32 v8, 12, v8")
    a("v_and_b32 v9, 3, v0")
    a("v_lshlrev_b32 v9, 4, v9")
    a("v_add_u32 v14, v8, v9")
    a("s_lshl_b32 s56, s%d, 1" % sMF)
    a("s_lshl_b32 s57, s%d, 12" % sW)
    a("s_add_u32 s57, s57, %d" % G2_ZB)
    for I in range(4):
        g = []
        if I == 0: g += [("s_mov_b32 m0, s57", None), ("s_nop 0", None)]
        else: g += [("v_add_u32 v14, 0x%x, v14" % (16 * 4096 - 1024), None)]
        g.append(("buffer_load_dwordx4 v14, s[%d:%d], s56 offen offset:%d lds" % (S_Z, S_Z + 3, I * 1024), "e"))
        extras.append(g)
    a("v_and_b32 v9, 15, v0")
    a("v_add_u32 v9, s%d, v9" % sMF)
    a("v_lshlrev_b32 v13, 2, v9")
    a("v_lshlrev_b32 v12, 11, v9")
    a("v_lshlrev_b32 v10, 3, v3")
    a("v_add_u32 v12, v12, v10")
    a("s_lshl_b32 s50, s%d, 1" % sNF)
    a("v_add_u32 v12, s50, v12")
    a("s_mov_b32 s53, 0x8000")
    QR = 96
    for sl in range(2):
        for nt in range(4):
            extras.append([("buffer_load_dwordx2 v[%d:%d], v12, s[%d:%d], %s offen offset:%d" % (QR + (sl * 4 + nt) * 2, QR + (sl * 4 + nt) * 2 + 1, S_Q, S_Q + 3, "0" if sl == 0 else "s53", nt * 32), "e")])
    extras.append([("buffer_load_dword v%d, v13, s[%d:%d], 0 offen" % (QR + 16, S_GT, S_GT + 3), "e")])
    extras.append([("buffer_load_dword v%d, v13, s[%d:%d], 0 offen offset:64" % (QR + 17, S_GT, S_GT + 3), "e")])
    a("v_lshrrev_b32 v8, 2, v0")
    a("v_and_b32 v8, 3, v8")
    a("v_lshlrev_b32 v9, 7, v8")
    a("v_lshrrev_b32 v10, 1, v3")
    a("v_lshlrev_b32 v10, 12, v10")
    a("v_add_u32 v9, v9, v10")
    a("v_and_b32 v11, 1, v3")
    a("v_lshlrev_b32 v10, 10, v11")
    a("v_add_u32 v9, v9, v10")
    a("v_and_b32 v10, 3, v0")
    a("v_lshlrev_b32 v10, 3, v10")
    a("v_add_u32 v9, v9, v10")
    a("v_add_u32 v9, s67, v9")
    a("v_lshrrev_b32 v10, 1, v8")
    a("v_lshlrev_b32 v11, 1, v11")
    a("v_or_b32 v10, v10, v11")
    for nt in range(4):
        a("v_xor_b32 v11, %d, v10" % nt)
        a("v_lshlrev_b32 v11, 5, v11")
        a("v_add_u32 v%d, v9, v11" % (20 + nt))
    a("v_lshlrev_b32 v9, 2, v3")
    a("v_add_u32 v9, v9, v8")
    a("v_lshlrev_b32 v9, 6, v9")
    a("v_and_b32 v10, 3, v0")
    a("v_lshlrev_b32 v10, 3, v10")
    a("v_add_u32 v9, v9, v10")
    a("v_add_u32 v30, s57, v9")
    a("v_and_b32 v9, 15, v0")
    a("v_and_b32 v10, 1, v3")
    a("v_lshlrev_b32 v10, 4, v10")
    a("v_add_u32 v9, v9, v10")
    a("v_add_u32 v9, s%d, v9" % sMF)
    a("v_lshlrev_b32 v9, 11, v9")
    a("v_lshrrev_b32 v10, 1, v3")
    a("v_lshlrev_b32 v10, 4, v10")
    a("v_add_u32 v9, v9, v10")
    a("s_lshl_b32 s50, s%d, 1" % sNF)
    a("v_add_u32 v15, s50, v9")
    a("v_add_u32 v18, s%d, v2" % sLB)
    a("v_xor_b32 v19, 0x%x, v18" % (WR * 8192))
    ACC = 128
    for i in range(128): a("v_mov_b32 v%d, 0" % (ACC + i))
    F = [192, 224]

    def reads(t, lss=(0, 1), par=None):
        fb = F[(t if par is None else par) & 1]
        w = []
        for ls in lss:
            for nt in range(4):
                for h in range(2):
                    d = fb + 4 * (ls * 4 + nt) + 2 * h
                    w.append("ds_read_b64_tr_b16 a[%d:%d], v%d offset:%d" % (d, d + 1, 20 + nt, (t % WR) * 8192 + ls * 2048 + h * 512))
        return w
    def cq(ls, rm, k): return ACC + ((ls * 2 + rm) * 8 + k) * 4
    def mfmas(t, lss=(0, 1)):
        fb = F[t & 1]
        xb = (t % XR) * 16
        m = []
        if "M" in dbg: return ["s_nop 0"] * (16 * len(lss))
        for ls in lss:
            for rm in (1, 0):
                for sl in range(2):
                    for nt in range(4):
                        c = cq(ls, rm, sl * 4 + nt)
                        n = ls * 4 + nt; i = rm * 2 + sl
                        m.append("v_mfma_f32_16x16x32_bf16 v[%d:%d], a[%d:%d], a[%d:%d], v[%d:%d]" % (
                            c, c + 3, fb + 4 * n, fb + 4 * n + 3, xb + 4 * i, xb + 4 * i + 3, c, c + 3))
        return m
    def soff(base, k): return (base + (k >> 1)) * 8192 + (k & 1) * 1024

    MK = 58
    a("s_mov_b32 s%d, 0xffff0000" % MK)
    G_ = QR + 16; OG = QR + 18
    QP = 64
    def rnd4l(R, T):
        return ["v_cvt_pk_bf16_f32 v%d, v%d, v%d" % (T, R, R + 1), "v_cvt_pk_bf16_f32 v%d, v%d, v%d" % (T + 1, R + 2, R + 3),
                "v_lshlrev_b32 v%d, 16, v%d" % (R, T), "v_and_b32 v%d, s%d, v%d" % (R + 1, MK, T),
                "v_lshlrev_b32 v%d, 16, v%d" % (R + 2, T + 1), "v_and_b32 v%d, s%d, v%d" % (R + 3, MK, T + 1)]
    ZRD = ["ds_read_b64_tr_b16 v[%d:%d], v30 offset:%d" % (QP + 4 * k + 2, QP + 4 * k + 3, (k & 3) * 1024 + (k >> 2) * 32) for k in range(8)]
    def precompute():
        r = []
        for sl in range(2):
            r.append("v_sub_f32 v%d, 1.0, v%d" % (OG + sl, G_ + sl))
            r.append("v_cvt_pk_bf16_f32 v%d, v%d, v%d" % (OG + sl, OG + sl, OG + sl))
            r.append("v_and_b32 v%d, s%d, v%d" % (OG + sl, MK, OG + sl))
        for k in range(8):
            sl = k >> 2
            Q = QP + 4 * k; Z = 124; T = 120
            qs = QR + 2 * k; zs = Q + 2
            r += ["v_lshlrev_b32 v%d, 16, v%d" % (Z, zs), "v_and_b32 v%d, s%d, v%d" % (Z + 1, MK, zs),
                  "v_lshlrev_b32 v%d, 16, v%d" % (Z + 2, zs + 1), "v_and_b32 v%d, s%d, v%d" % (Z + 3, MK, zs + 1)]
            r += ["v_lshlrev_b32 v%d, 16, v%d" % (Q, qs), "v_and_b32 v%d, s%d, v%d" % (Q + 1, MK, qs),
                  "v_lshlrev_b32 v%d, 16, v%d" % (Q + 2, qs + 1), "v_and_b32 v%d, s%d, v%d" % (Q + 3, MK, qs + 1)]
            for i in range(4): r.append("v_mul_f32 v%d, v%d, v%d" % (Q + i, Q + i, Z + i))
            r += rnd4l(Q, T)
            for i in range(4): r.append("v_mul_f32 v%d, v%d, v%d" % (Q + i, Q + i, G_ + sl))
            r += rnd4l(Q, T)
        return r
    PC = precompute()
    LSP = int(os.environ.get("G2LSP", "4"))
    T0 = NST - D
    H = T0 + D // 2
    DQ = []
    for t in range(T0, H): DQ += ldk(t)
    DQ += extras
    for t in range(H, NST): DQ += ldk(t)
    DS = int(os.environ.get("G2DS", str(NST - XR)))
    DN = int(os.environ.get("G2DN", "8"))
    PS0 = int(os.environ.get("G2PS0", "4")); PSN = int(os.environ.get("G2PSN", "1")); PSIG = int(os.environ.get("G2PSIG", "19")); PCHK = int(os.environ.get("G2PCHK", str(NST - 2)))
    RX = 32
    def sweep():
        return [("buffer_load_dwordx4 v[%d:%d], v2, s[%d:%d], s%d offen offset:%d sc1" % (RX + 4 * k, RX + 4 * k + 3, S_XB, S_XB + 3, sXL + (k >> 2), (k & 3) * 1024), "s") for k in range(8)]
    stamp(1)
    a("s_waitcnt vmcnt(%d)" % younger_than(("w", 0)))
    a("s_barrier")
    stamp(2)
    for i in reads(0, (0, 1) if T0 > 0 else (0,)): a(i)
    for t in range(NST):
        n = younger_than(("x", t))
        if t + 1 < NST: n = min(n, younger_than(("w", t + 1)))
        assert n <= 63, n
        if PB and t == PSIG: n = min(n, younger_than("p"))
        a("s_waitcnt vmcnt(%d) lgkmcnt(0)" % n)
        if "B" not in dbg: a("s_barrier")
        if rts and t == 7: a("s_memrealtime s[94:95]")
        if rts and t == T0 and "C" not in dbg: a("s_memrealtime s[96:97]")
        lss = (0, 1) if t < T0 else (0,)
        nm = 16 * len(lss)
        pl = []
        if t + 1 < NST:
            for n, g in enumerate(reads(t + 1, (0, 1) if t + 1 < T0 else (0,))): pl.append((n + (n >> 1), [(g, None)]))
        gl = mix(t)
        if PB and PS0 <= t < PS0 + 8 // PSN:
            for k in range((t - PS0) * PSN, (t - PS0 + 1) * PSN):
                gl = gl + [[("buffer_store_dwordx4 v[32:35], v2, s[%d:%d], s%d offen offset:%d sc1" % (S_XB, S_XB + 3, sXS + (k >> 2), (k & 3) * 1024), "p")]]
        if PB and t == PSIG:
            pl.append((0, [("s_cmp_lg_u32 s%d, 0" % sW, None), ("s_cbranch_scc1 G2_SIG", None), ("s_mov_b64 exec, 1", None),
                           (" buffer_atomic_or v38, v36, s[%d:%d], 0 offen sc1" % (S_DB, S_DB + 3), None), ("s_mov_b64 exec, -1", None), ("G2_SIG:", None)]))
        if PB and t == PCHK:
            gl = gl + [[("buffer_load_dword v39, v37, s[%d:%d], 0 offen sc1" % (S_DB, S_DB + 3), "f")]]
        if t >= DS:
            k = max(0, DN - len(gl)) if t < NST - 1 else len(DQ)
            gl = gl + DQ[:k]; DQ = DQ[k:]
        for n, g in enumerate(gl): pl.append(((n * nm) // max(8, len(gl)) + 1, g))
        if t == NST - 1:
            for k in range(8):
                c = cq(0, 1, k)
                pl.append((8 + k, [("ds_write_b128 v18, v[%d:%d] offset:%d" % (c, c + 3, soff(4, k)), None)]))
        for it in place([(m, None) for m in mfmas(t, lss)], pl): emit(*it)
    assert not DQ

    a("s_waitcnt lgkmcnt(0)")
    a("s_barrier")
    for k in range(8):
        c = cq(0, 1, k)
        a("ds_read_b128 v[%d:%d], v19 offset:%d" % (c, c + 3, soff(4, k)))
    for k in range(8):
        a("s_waitcnt lgkmcnt(%d)" % (7 - k))
        c = cq(0, 0, k); d = cq(0, 1, k)
        for r in range(4): a("v_add_f32 v%d, v%d, v%d" % (c + r, c + r, d + r))
        for r in range(4): a("v_min_u32 v%d, -2, v%d" % (c + r, c + r))
        emit("buffer_store_dwordx4 v[%d:%d], v2, s[%d:%d], s%d offen offset:%d sc1" % (c, c + 3, S_XB, S_XB + 3, sXS + (k >> 2), (k & 3) * 1024), "st")
    if PB and PCHK < 0:
        emit("buffer_load_dword v39, v37, s[%d:%d], 0 offen sc1" % (S_DB, S_DB + 3), "f")
    stamp(4)
    def fchk():
        a("s_waitcnt vmcnt(%d)" % younger_than("f"))
        a("s_mov_b32 s72, 0x8000")
        a.label("G2_FCHK")
        a("v_readfirstlane_b32 s50, v39")
        a("s_lshr_b32 s50, s50, s73")
        a("s_and_b32 s50, s50, 1")
        a("s_cbranch_scc1 G2_FOK")
        a("s_sub_u32 s72, s72, 1")
        a("s_cmp_eq_u32 s72, 0")
        a("s_cbranch_scc1 G2_FOK")
        a("s_sleep 4")
        a("buffer_load_dword v39, v37, s[%d:%d], 0 offen sc1" % (S_DB, S_DB + 3))
        a("s_waitcnt vmcnt(0)")
        a("s_branch G2_FCHK")
        a.label("G2_FOK")
    SW = int(os.environ.get("G2SW", str(NST - 2)))
    NPC = int(os.environ.get("G2NPC", "2"))
    if D:
        a("s_waitcnt vmcnt(%d)" % younger_than(("k", H - 1)))
        a("s_barrier")
        for i in reads(T0, (1,)): a(i)
    for t in range(T0, NST):
        if t == H - 1:
            a("s_waitcnt vmcnt(%d) lgkmcnt(0)" % younger_than(("k", NST - 1)))
            a("s_barrier")
        else:
            a("s_waitcnt lgkmcnt(0)")
        if PB and t == SW: fchk()
        pl = []
        if t + 1 < NST:
            for n, g in enumerate(reads(t + 1, (1,))): pl.append((n, [(g, None)]))
        if t == H - 1:
            for k, g in enumerate(ZRD): pl.append((8 + k, [(g, None)]))
        if t >= H:
            for k in range(16): pl.append((k, [(g, None) for g in PC[NPC * k:NPC * k + NPC]]))
            PC = PC[NPC * 16:]
        if t == SW:
            for k, g in enumerate(sweep()): pl.append((2 * k, [g]))
        if t == NST - 1:
            for k in range(8):
                c = cq(1, 1, k)
                pl.append((8 + k, [("ds_write_b128 v18, v[%d:%d] offset:%d" % (c, c + 3, soff(0, k)), None)]))
        for it in place([(m, None) for m in mfmas(t, (1,))], pl): emit(*it)
    stamp(3)
    NP1 = int(os.environ.get("G2NP1", "40"))
    for i in PC[:NP1]: a(i)
    PC = PC[NP1:]
    a("s_waitcnt lgkmcnt(0)")
    a("s_barrier")
    for k in range(8):
        c = cq(1, 1, k)
        a("ds_read_b128 v[%d:%d], v19 offset:%d" % (c, c + 3, soff(0, k)))
    if SW >= NST:
        if PB: fchk()
        for g in sweep(): emit(*g)
    for i in PC: a(i)
    a("s_waitcnt lgkmcnt(0)")
    for k in range(8):
        c = cq(1, 0, k); d = cq(1, 1, k)
        for r in range(4): a("v_add_f32 v%d, v%d, v%d" % (c + r, c + r, d + r))
    a("s_mov_b32 s72, 0x8000")
    a("s_branch G2_CHK")
    a.label("G2_POLL")
    a("s_sub_u32 s72, s72, 1")
    a("s_cmp_eq_u32 s72, 0")
    a("s_cbranch_scc1 G2_FIN")
    for g in sweep(): a(g[0])
    a.label("G2_CHK")
    a("s_waitcnt vmcnt(0)")
    a("v_max3_u32 v120, v%d, v%d, v%d" % (RX, RX + 1, RX + 2))
    a("v_max3_u32 v121, v%d, v%d, v%d" % (RX + 3, RX + 4, RX + 5))
    for i in range(13):
        d = 120 + (i & 1)
        a("v_max3_u32 v%d, v%d, v%d, v%d" % (d, d, RX + 6 + 2 * i, RX + 7 + 2 * i))
    a("v_max_u32 v120, v120, v121")
    a("v_cmp_eq_u32 vcc, -1, v120")
    a("s_nop 1")
    if "P" not in dbg: a("s_cbranch_vccnz G2_POLL")
    a.label("G2_FIN")
    if "C" in dbg:
        a("s_memrealtime s[94:95]")
        a("s_sub_u32 s96, 0x8000, s72")
    for nt in range(4):
        for sl in range(2):
            k = sl * 4 + nt
            B = cq(1, 0, k)
            T = 124; O = 96 + 4 * nt + 2 * sl
            for r in range(4): a("v_add_f32 v%d, v%d, v%d" % (B + r, B + r, RX + 4 * k + r))
            for i in rnd4l(B, T): a(i)
            for r in range(4): a("v_mul_f32 v%d, v%d, v%d" % (B + r, B + r, OG + sl))
            for i in rnd4l(B, T): a(i)
            for r in range(4): a("v_add_f32 v%d, v%d, v%d" % (B + r, B + r, QP + 4 * k + r))
            a("v_cvt_pk_bf16_f32 v%d, v%d, v%d" % (O, B, B + 1))
            a("v_cvt_pk_bf16_f32 v%d, v%d, v%d" % (O + 1, B + 2, B + 3))
        O = 96 + 4 * nt
        a("s_nop 1")
        a("v_permlane16_swap_b32 v%d, v%d" % (O, O + 2))
        a("v_permlane16_swap_b32 v%d, v%d" % (O + 1, O + 3))
        a("s_nop 0")
        a("buffer_store_dwordx4 v[%d:%d], v15, s[%d:%d], 0 offen offset:%d" % (O, O + 3, S_O, S_O + 3, nt * 32))

def poison(a):
    r = ["s_add_u32 s76, s72, 0x%x" % XB_OFF, "s_addc_u32 s77, s73, 0", "s_mov_b32 s78, 0x%x" % XB_BYTES, "s_mov_b32 s79, 0x00020000",
         "s_lshl_b32 s62, s2, 2", "s_add_u32 s62, s62, s40", "s_lshl_b32 s62, s62, 16", "v_lshlrev_b32 v248, 4, v0"]
    for i in range(4): r.append("v_mov_b32 v%d, -1" % (244 + i))
    for b in range(16):
        for k in range(4):
            r.append("buffer_store_dwordx4 v[244:247], v248, s[76:79], s62 offen offset:%d sc1" % (k * 1024))
        r.append("s_add_u32 s62, s62, 4096")
    return r
```

```python
from asmlib import *
from layout import *
from prep import ws_srd

UC = 5184
HC = 4480
WAVE_LDS = 4 * UC + 2 * HC
CONV_LDS = 4 * WAVE_LDS

P_HK, P_D, P_GW, P_DBG, P_WS, P_Q = 64, 66, 68, 70, 72, 74
P_WD = 100
S_G, S_H, S_Z, S_Q, S_GW, S_GT, S_F = 4, 8, 12, 32, 36, 52, 80
sW, sD, sLB, T0, T1, T2, sDV, T3, T4 = 40, 60, 61, 62, 63, 76, 78, 77, 79
sHB = 85
KV = 160
GL = 176
VL = 200
VSW = 201
VZ = 204
VT = 208
import os
GSC = ' sc1' if os.environ.get('INV', '') == '' else ''
TARGET = 16 if os.environ.get('DPREP') else 8

def conv_ptrs(a):
    a("s_load_dwordx2 s[%d:%d], s[0:1], 32" % (P_HK, P_HK + 1))
    a("s_load_dwordx2 s[%d:%d], s[0:1], 40" % (P_D, P_D + 1))
    a("s_load_dwordx2 s[%d:%d], s[0:1], 80" % (P_GW, P_GW + 1))
    a("s_load_dwordx2 s[%d:%d], s[0:1], 96" % (P_DBG, P_DBG + 1))
    a("s_load_dwordx2 s[%d:%d], s[0:1], 104" % (P_WS, P_WS + 1))
    a("s_load_dwordx2 s[%d:%d], s[0:1], 0" % (P_Q, P_Q + 1))
    a("s_load_dwordx2 s[%d:%d], s[0:1], 72" % (P_WD, P_WD + 1))

def flag_srd(a):
    srd(a, S_F, P_DBG, 256)

def poll_issue(a, vdst):
    a("s_lshr_b32 s%d, s2, %d" % (T0, 4 if TARGET == 16 else 6))
    a("s_lshl_b32 s%d, s%d, %d" % (T0, T0, 2 if TARGET == 16 else 6))
    a("v_mov_b32 v%d, s%d" % (VT, T0))
    a("buffer_load_dword v%d, v%d, s[%d:%d], 0 offen sc1" % (vdst, VT, S_F, S_F + 3))

def poll_check(a, vdst, sdst):
    a("v_readfirstlane_b32 s%d, v%d" % (sdst, vdst))
    a("s_cmp_ge_u32 s%d, %d" % (sdst, TARGET))
    a("s_cselect_b32 s%d, 1, 0" % sdst)

def signal(a):
    if TARGET == 16: a("s_and_b32 s%d, s2, 15" % T0)
    else: a("s_and_b32 s%d, s2, 3" % T0)
    a("s_lshl_b32 s%d, s%d, %d" % (T0, T0, 2 if TARGET == 16 else 6))
    a("v_mov_b32 v%d, s%d" % (VT, T0))
    a("v_mov_b32 v%d, 1" % (VT + 1))
    a("s_mov_b64 exec, 1")
    a("buffer_atomic_add v%d, v%d, s[%d:%d], 0 offen sc1" % (VT + 1, VT, S_F, S_F + 3))
    a("s_mov_b64 exec, -1")

UREG = 65536
TKOFF = 163328
def capture(a, fn, *args):
    keep = a.lines; a.lines = []
    r = fn(*args)
    l = [x.strip() for x in a.lines]; a.lines = keep
    return l, r

def conv_early(a):
    a("s_lshl_b32 s%d, s2, 2" % sD)
    a("s_add_u32 s%d, s%d, s%d" % (sD, sD, sW))
    a("s_mul_i32 s%d, s%d, %d" % (sLB, sW, 4 * UC))
    a("s_add_u32 s%d, s%d, %d" % (sLB, sLB, UREG))
    for i in range(4): a("v_mov_b32 v%d, 0" % (VZ + i))
    a("v_lshlrev_b32 v%d, 4, v0" % VL)
    a("v_add_u32 v%d, s%d, v%d" % (VT + 2, sLB, VL))
    ws_srd(a, S_G, P_WS, G_OFF, G_BYTES)
    a("v_lshrrev_b32 v%d, 4, v0" % VSW)
    a("v_and_b32 v%d, 1, v%d" % (VSW, VSW))
    a("v_lshlrev_b32 v%d, 1, v%d" % (VSW, VSW))
    a("v_xor_b32 v%d, v%d, v0" % (VSW, VSW))
    a("v_lshlrev_b32 v%d, 4, v%d" % (VSW, VSW))
    a("s_mul_i32 s%d, s%d, %d" % (T3, sD, G_PITCH))
    D = []
    for r in (3, 1, 2, 0):
        off = {3: 120, 1: 124, 2: 122, 0: 126}[r]
        for I in range(4):
            g = []
            if I == 0: g += ["s_add_u32 s%d, s%d, 0x%x" % (T4, T3, off), "s_add_u32 m0, s%d, %d" % (sLB, r * UC), "s_nop 0"]
            g.append("buffer_load_dwordx4 v%d, s[%d:%d], s%d offen offset:%d%s lds" % (VSW, S_G, S_G + 3, T4, I * 1024, GSC))
            if I == 3: g.append("ds_write_b128 v%d, v[%d:%d] offset:%d" % (VT + 2, VZ, VZ + 3, r * UC + 4112))
            D.append(g)
    g = ["s_mov_b64 exec, 1"]
    for r in range(4):
        off = {3: 120, 1: 124, 2: 122, 0: 126}[r]
        g.append("s_add_u32 s%d, s%d, 0x%x" % (T4, T3, off + 4096))
        g.append("s_add_u32 m0, s%d, %d" % (sLB, r * UC + 4096))
        g.append("s_nop 0")
        g.append("buffer_load_dwordx4 v%d, s[%d:%d], s%d offen%s lds" % (VSW, S_G, S_G + 3, T4, GSC))
    g.append("s_mov_b64 exec, -1")
    D.append(g)
    return D

GQ = 212
GWF = 236
GTM = 252
GA = 26
def touch_h():
    return ["s_lshl_b32 s%d, s2, 2" % sD, "s_add_u32 s%d, s%d, s%d" % (sD, sD, sW), "s_lshl_b32 s%d, s%d, 12" % (T0, sD),
         "s_mov_b32 s76, s%d" % P_HK, "s_mov_b32 s77, s%d" % (P_HK + 1), "s_mov_b32 s78, 0x%x" % (1024 * 2048 * 2), "s_mov_b32 s79, 0x00020000",
         "v_and_b32 v%d, 31, v0" % VT, "v_lshlrev_b32 v%d, 7, v%d" % (VT, VT),
         "buffer_load_dword v%d, v%d, s[76:79], s%d offen" % (VT + 1, VT, T0)]

def gate_loads():
    r = ["s_lshl_b32 s%d, s2, 2" % sD, "s_add_u32 s%d, s%d, s%d" % (sD, sD, sW), "s_lshl_b32 s%d, s%d, 12" % (T0, sD),
         "v_lshlrev_b32 v%d, 4, v0" % (GA + 1),
         "s_mov_b32 s76, s%d" % P_GW, "s_mov_b32 s77, s%d" % (P_GW + 1), "s_mov_b32 s78, 0x800", "s_mov_b32 s79, 0x00020000",
         "buffer_load_dwordx4 v[%d:%d], v%d, s[76:79], 0 offen" % (GQ, GQ + 3, GA + 1),
         "buffer_load_dwordx4 v[%d:%d], v%d, s[76:79], 0 offen offset:1024" % (GQ + 4, GQ + 7, GA + 1),
         "s_mov_b32 s76, s%d" % P_Q, "s_mov_b32 s77, s%d" % (P_Q + 1), "s_mov_b32 s78, 0x%x" % (2048 * 1024 * 2)]
    for i in range(4):
        r.append("buffer_load_dwordx4 v[%d:%d], v%d, s[76:79], s%d offen offset:%d" % (GQ + 8 + 4 * i, GQ + 11 + 4 * i, GA + 1, T0, 1024 * i))
    return r

def gate_compute():
    r = []
    for i in range(8):
        r.append("v_lshlrev_b32 v%d, 16, v%d" % (GWF + 2 * i, GQ + i))
        r.append("v_and_b32 v%d, 0xffff0000, v%d" % (GWF + 2 * i + 1, GQ + i))
    for rr in range(2):
        for i in range(8):
            src = GQ + 8 + 8 * rr + i
            t = GTM + 2 * (i & 1)
            r.append("v_lshlrev_b32 v%d, 16, v%d" % (t, src))
            r.append("v_and_b32 v%d, 0xffff0000, v%d" % (t + 1, src))
            r.append("v_mul_f32 v%d, v%d, v%d" % (t, t, GWF + 2 * i))
            r.append("v_mul_f32 v%d, v%d, v%d" % (t + 1, t + 1, GWF + 2 * i + 1))
            r.append("v_cvt_pk_bf16_f32 v%d, v%d, v%d" % (t, t, t + 1))
            r.append("v_lshlrev_b32 v%d, 16, v%d" % (t + 1, t))
            r.append("v_and_b32 v%d, 0xffff0000, v%d" % (t, t))
            if i == 0:
                r.append("v_add_f32 v%d, v%d, v%d" % (GA + rr, t, t + 1))
            else:
                r.append("v_add_f32 v%d, v%d, v%d" % (t, t, t + 1))
                r.append("v_add_f32 v%d, v%d, v%d" % (GA + rr, GA + rr, t))
    G = [[x] for x in r]
    for m in ("row_shr:1 row_mask:0xf bank_mask:0xf bound_ctrl:0", "row_shr:2 row_mask:0xf bank_mask:0xf bound_ctrl:0",
              "row_shr:4 row_mask:0xf bank_mask:0xf bound_ctrl:0", "row_shr:8 row_mask:0xf bank_mask:0xf bound_ctrl:0",
              "row_bcast:15 row_mask:0xa bank_mask:0xf", "row_bcast:31 row_mask:0xc bank_mask:0xf"):
        G.append(["s_nop 1"] + ["v_add_f32_dpp v%d, v%d, v%d %s" % (GA + rr, GA + rr, GA + rr, m) for rr in range(2)])
    for op in ("v_cvt_pk_bf16_f32 v%d, v%d, v%d", "v_lshlrev_b32 v%d, 16, v%d", "v_mul_f32 v%d, 0xbfb8aa3b, v%d", "v_exp_f32 v%d, v%d", "N",
               "v_add_f32 v%d, 1.0, v%d", "v_rcp_f32 v%d, v%d", "N", "v_cvt_pk_bf16_f32 v%d, v%d, v%d", "v_lshlrev_b32 v%d, 16, v%d"):
        if op == "N": G.append(["s_nop 0"]); continue
        G.append([op % ((GA + rr,) * op.count("%d")) for rr in range(2)])
    G.append(["s_lshl_b32 s%d, s%d, 3" % (T0, sD), "s_add_u32 s%d, s%d, 0x%x" % (S_GT, P_WS, GT_OFF), "s_addc_u32 s%d, s%d, 0" % (S_GT + 1, P_WS + 1),
              "s_mov_b32 s%d, 0x%x" % (S_GT + 2, GT_BYTES), "s_mov_b32 s%d, 0x00020000" % (S_GT + 3), "v_mov_b32 v%d, 0" % GTM])
    G.append(["s_mov_b32 exec_lo, 0", "s_mov_b32 exec_hi, 0x80000000",
              "buffer_store_dwordx2 v[%d:%d], v%d, s[%d:%d], s%d offen" % (GA, GA + 1, GTM, S_GT, S_GT + 3, T0), "s_mov_b64 exec, -1"])
    return G

VZA = 211
def conv_setup(a):
    a("s_mul_i32 s%d, s%d, %d" % (sHB, sW, 2 * HC))
    a("v_add_u32 v%d, s%d, v%d" % (VZA, sHB, VL))
    srd(a, S_H, P_HK, 1024 * 2048 * 2)
    ws_srd(a, S_Z, P_WS, Z_OFF, Z_BYTES)
    a("s_lshr_b32 s%d, s%d, 1" % (T1, sD))
    a("s_lshl_b32 s%d, s%d, 2" % (T1, T1))
    a("s_load_dword s%d, s[%d:%d], s%d" % (sDV, P_D, P_D + 1, T1))
    a("v_and_b32 v%d, 15, v0" % VT)
    a("v_lshrrev_b32 v%d, 4, v0" % (VT + 1))
    a("v_lshlrev_b32 v%d, 7, v%d" % (VT + 1, VT + 1))
    a("v_lshlrev_b32 v%d, 3, v%d" % (VT, VT))
    a("v_add_u32 v%d, v%d, v%d" % (VT, VT, VT + 1))
    a("v_sub_u32 v%d, 568, v%d" % (VT, VT))
    a("v_lshlrev_b32 v%d, 1, v%d" % (VT, VT))
    a("v_and_b32 v8, 15, v0")
    a("v_lshrrev_b32 v9, 4, v0")
    a("v_lshlrev_b32 v10, 7, v9")
    a("v_lshlrev_b32 v11, 3, v8")
    a("v_add_u32 v10, v10, v11")
    a("v_lshlrev_b32 v12, 1, v10")
    a("v_add_u32 v13, v8, v9")
    a("v_lshlrev_b32 v13, 4, v13")
    a("v_add_u32 v13, s%d, v13" % sHB)
    a("v_lshrrev_b32 v4, 2, v8")
    a("v_and_b32 v5, 3, v8")
    a("s_movk_i32 s%d, %d" % (T1, UC))
    a("v_mul_lo_u32 v5, v5, s%d" % T1)
    a("v_sub_u32 v6, 3, v4")
    a("v_lshlrev_b32 v6, 8, v6")
    a("v_add_u32 v5, v5, v6")
    a("v_add_u32 v5, s%d, v5" % sLB)
    a("v_and_b32 v6, 1, v4")
    a("v_lshlrev_b32 v6, 1, v6")
    a("v_xor_b32 v7, v9, v6")
    a("v_xor_b32 v6, 2, v7")
    a("v_lshlrev_b32 v6, 4, v6")
    a("v_lshlrev_b32 v7, 4, v7")
    a("v_add_u32 v14, v5, v6")
    a("v_add_u32 v15, v5, v7")
    a("s_mov_b32 s%d, 0xffff0000" % T2)

def conv_issue(a):
    a("s_mov_b64 exec, 0xffff")
    for ph in range(2):
        a("ds_write_b128 v%d, v[%d:%d] offset:%d" % (VZA, VZ, VZ + 3, ph * HC))
        a("ds_write_b128 v%d, v[%d:%d] offset:%d" % (VZA, VZ, VZ + 3, ph * HC + HC - 256))
    a("s_mov_b64 exec, -1")
    a("s_lshl_b32 s%d, s%d, 12" % (T0, sD))
    for i in range(32): a("v_mov_b32 v%d, 0" % (32 + i))
    a("s_waitcnt lgkmcnt(0)")
    D = []
    for ph in range(2):
        for I in range(4):
            g = []
            if I == 0: g += ["s_add_u32 m0, s%d, %d" % (sHB, ph * HC + (128 - 4 * ph) * 2), "s_nop 0"]
            g.append("buffer_load_dwordx4 v%d, s[%d:%d], s%d offen offset:%d lds" % (VL, S_H, S_H + 3, T0, I * 1024))
            D.append(g)
    for T in range(4):
        D.append(["buffer_load_dwordx4 v[%d:%d], v%d, s[%d:%d], s%d offen offset:%d%s" % (KV + 4 * T, KV + 4 * T + 3, VT, S_G, S_G + 3, T3, (3 - T) * 1024, GSC)])
    return D

WPF = 0
SPN = int(os.environ.get("SPN", "10"))
G1N = int(os.environ.get("G1N", "0"))
G1POS = int(os.environ.get("G1POS", "40"))
def wd_touch(spare, mall=False):
    n = SPN if spare else G1N
    if mall: n = 7
    if not n: return []
    S = S_GW
    r = ["s_mov_b32 s%d, s%d" % (S, P_WD), "s_mov_b32 s%d, s%d" % (S + 1, P_WD + 1), "s_mov_b32 s%d, 0x%x" % (S + 2, 3584 * 1024 * 2), "s_mov_b32 s%d, 0x00020000" % (S + 3),
         "v_lshrrev_b32 v138, 3, v0", "v_lshlrev_b32 v138, 11, v138", "v_and_b32 v139, 7, v0", "v_lshlrev_b32 v139, 7, v139", "v_add_u32 v138, v138, v139",
         "s_lshr_b32 s%d, s2, 3" % T0]
    G2W = os.environ.get("G2", "x") in "wx"
    G2MAP = int(os.environ.get("G2MAP", "2"))
    if spare and G2W:
        r = r[:-1]
        r += ["s_lshr_b32 s%d, s2, 1" % T0, "s_and_b32 s%d, s%d, 2" % (T0, T0), "s_lshr_b32 s%d, s2, 3" % T1, "s_and_b32 s%d, s%d, 1" % (T1, T1),
              "s_add_u32 s%d, s%d, s%d" % (T0, T0, T1), "s_mul_i32 s%d, s%d, 896" % (T0, T0), "s_lshl_b32 s%d, s%d, 3" % (T1, sW), "s_add_u32 s%d, s%d, s%d" % (T0, T0, T1)]
        if G2MAP == 1:
            if mall: r += ["s_and_b32 s%d, s2, 3" % T1, "s_mul_i32 s%d, s%d, 224" % (T1, T1), "s_add_u32 s%d, s%d, s%d" % (T0, T0, T1)]
            r += ["s_lshl_b32 s%d, s%d, 11" % (T0, T0), "s_and_b32 s%d, s2, 16" % T1, "s_lshl_b32 s%d, s%d, 6" % (T1, T1), "s_add_u32 s%d, s%d, s%d" % (T0, T0, T1)]
        else:
            if mall: r += ["s_and_b32 s%d, s2, 1" % T1, "s_mul_i32 s%d, s%d, 448" % (T1, T1), "s_add_u32 s%d, s%d, s%d" % (T0, T0, T1)]
            r += ["s_lshr_b32 s%d, s2, 4" % T1, "s_mul_i32 s%d, s%d, %d" % (T1, T1, 224 if mall else 32 * SPN), "s_add_u32 s%d, s%d, s%d" % (T0, T0, T1)]
            r += ["s_lshl_b32 s%d, s%d, 11" % (T0, T0), "s_and_b32 s%d, s2, 2" % T1, "s_lshl_b32 s%d, s%d, 9" % (T1, T1), "s_add_u32 s%d, s%d, s%d" % (T0, T0, T1)]
        step = 32
    else:
        if spare:
            r += ["s_mul_i32 s%d, s%d, 896" % (T0, T0), "s_lshl_b32 s%d, s%d, 3" % (T1, sW)]
            if mall:
                r += ["s_add_u32 s%d, s%d, s%d" % (T0, T0, T1), "s_and_b32 s%d, s2, 3" % T1, "s_mul_i32 s%d, s%d, 224" % (T1, T1)]
            step = 32
        else:
            per = -(-(896 - 32 * SPN) // 28)
            per = min(per, 8 * n)
            r += ["s_mul_i32 s%d, s%d, %d" % (T0, T0, per), "s_add_u32 s%d, s%d, %d" % (T0, T0, 32 * SPN - 4 * per), "s_mul_i32 s%d, s%d, 896" % (T1, sW)]
            step = 8
        r += ["s_add_u32 s%d, s%d, s%d" % (T0, T0, T1), "s_lshl_b32 s%d, s%d, 11" % (T0, T0),
             "s_and_b32 s%d, s2, 4" % T1, "s_lshl_b32 s%d, s%d, 8" % (T1, T1), "s_add_u32 s%d, s%d, s%d" % (T0, T0, T1)]
    for b in range(n):
        r.append("buffer_load_dword v139, v138, s[%d:%d], s%d offen" % (S, S + 3, T0))
        TG = os.environ.get("TG", "")
        if ("m" in TG and mall) or ("l" in TG and not mall):
            r.append("buffer_load_dword v139, v138, s[%d:%d], s%d offen offset:64" % (S, S + 3, T0))
        if ("M" in TG and mall) or ("L" in TG and not mall):
            for o in (32, 64, 96): r.append("buffer_load_dword v139, v138, s[%d:%d], s%d offen offset:%d" % (S, S + 3, T0, o))
        r.append("s_add_u32 s%d, s%d, 0x%x" % (T0, T0, step * 2048))
    return r

NE0 = int(os.environ.get("NE0", "2"))
DSP_ = int(os.environ.get("CDSP", "8"))
NPRE = int(os.environ.get("NPRE", "250"))
def conv_main(a, D, E=None, pre_extra=None):
    E = E or []
    vm = []
    def em(i):
        a(i)
        if i.startswith("buffer_"): vm.append(i)
    pre = E[:NPRE]; rest = E[NPRE:]
    ACC = 32
    FB = 64
    def reads(n):
        b = FB + (n % 3) * 24
        r = []
        for ph in range(2):
            r.append("ds_read_b128 v[%d:%d], v13 offset:%d" % (b + 4 * ph, b + 4 * ph + 3, ph * HC + 64 * n))
        m = n >> 2
        for T in range(4):
            if n <= 16 * T + 16:
                r.append("ds_read_b128 v[%d:%d], v%d offset:%d" % (b + 8 + 4 * T, b + 11 + 4 * T, 14 + (m & 1), 3072 - 1024 * T + 256 * m + 64 * (n & 3)))
        return r
    def mf(n):
        b = FB + (n % 3) * 24
        r = []
        for T in range(4):
            if n <= 16 * T + 16:
                for ph in range(2):
                    c = ACC + (T * 2 + ph) * 4
                    r.append("v_mfma_f32_16x16x32_bf16 v[%d:%d], v[%d:%d], v[%d:%d], v[%d:%d]" % (c, c + 3, b + 8 + 4 * T, b + 11 + 4 * T, b + 4 * ph, b + 4 * ph + 3, c, c + 3))
        return r
    NS = 65
    M = T2
    for i in place(pre, [(DSP_ * n, g) for n, g in enumerate(D)]): em(i)
    if pre_extra:
        a("s_waitcnt vmcnt(%d)" % len(vm))
        for i in pre_extra: em(i)
    last = max(k for k, i in enumerate(vm) if "load" in i)
    a("s_waitcnt vmcnt(%d)" % (len(vm) - 1 - last))
    for i in reads(0): a(i)
    for i in reads(1): a(i)

    nm_total = sum(len(mf(n)) for n in range(NS))
    units = []
    for i in rest:
        if i.startswith("v_pk_") and units: units[-1].append(i)
        else: units.append([i])
    rest = units
    done_m = 0; done_e = 0
    for n in range(NS):
        nxt = reads(n + 2) if n + 2 < NS else []
        n1 = len(reads(n + 1)) if n + 1 < NS else 0
        a("s_waitcnt lgkmcnt(%d)" % n1)
        if E and n == G1POS:
            for i in wd_touch(False): a(i)
        m = mf(n)
        pl = [(k, [x]) for k, x in enumerate(nxt)]
        for k in range(len(m)):
            done_m += 1
            tgt = (len(rest) * done_m + nm_total - 1) // nm_total
            pl.append((k, [i for u in rest[done_e:tgt] for i in u])); done_e = tgt
        for i in place(m, pl): a(i)
    assert done_e == len(rest)
    POIT = bool(E) and os.environ.get("G2", "x") in "wx" and os.environ.get("POIS", "b") == "t"
    if POIT:
        a("v_mov_b32 v100, %d" % TKOFF)
        a("ds_read_b32 v100, v100")
    a("s_and_b32 s%d, s%d, 1" % (T0, sD))
    a("s_lshl_b32 s%d, s%d, 16" % (T1, sDV))
    a("s_and_b32 s%d, s%d, 0xffff0000" % (sDV, sDV))
    a("s_cmp_eq_u32 s%d, 0" % T0)
    a("s_cselect_b32 s%d, s%d, s%d" % (sDV, T1, sDV))
    a("s_lshl_b32 s%d, s%d, 12" % (T0, sD))
    CPK = os.environ.get("CPK", "1") == "1"
    assert sDV % 2 == 0 and T4 == sDV + 1
    if CPK: a("s_mov_b32 s%d, s%d" % (T4, sDV))
    a("s_nop 7")
    for T in range(4):
        Y = 64; Kf = 72; O = 80 + 4 * T
        c = ACC + T * 8
        for p in range(4):
            a("v_cvt_pk_bf16_f32 v%d, v%d, v%d" % (96, c + 2 * p, c + 2 * p + 1))
            a("v_lshlrev_b32 v%d, 16, v96" % (Y + 2 * p))
            a("v_and_b32 v%d, s%d, v96" % (Y + 2 * p + 1, M))
        for p in range(4):
            src = KV + 4 * T + (3 - p)
            a("v_and_b32 v%d, s%d, v%d" % (Kf + 2 * p, M, src))
            a("v_lshlrev_b32 v%d, 16, v%d" % (Kf + 2 * p + 1, src))
        if CPK:
            for e in range(0, 8, 2): a("v_pk_mul_f32 v[%d:%d], v[%d:%d], s[%d:%d]" % (Kf + e, Kf + e + 1, Kf + e, Kf + e + 1, sDV, sDV + 1))
        else:
            for e in range(8):
                a("v_mul_f32 v%d, s%d, v%d" % (Kf + e, sDV, Kf + e))
        for p in range(4):
            a("v_cvt_pk_bf16_f32 v96, v%d, v%d" % (Kf + 2 * p, Kf + 2 * p + 1))
            a("v_lshlrev_b32 v%d, 16, v96" % (Kf + 2 * p))
            a("v_and_b32 v%d, s%d, v96" % (Kf + 2 * p + 1, M))
        if CPK:
            for e in range(0, 8, 2): a("v_pk_add_f32 v[%d:%d], v[%d:%d], v[%d:%d]" % (Y + e, Y + e + 1, Y + e, Y + e + 1, Kf + e, Kf + e + 1))
        else:
            for e in range(8):
                a("v_add_f32 v%d, v%d, v%d" % (Y + e, Y + e, Kf + e))
        for p in range(4):
            a("v_cvt_pk_bf16_f32 v%d, v%d, v%d" % (O + p, Y + 2 * p, Y + 2 * p + 1))
        a("buffer_store_dwordx4 v[%d:%d], v12, s[%d:%d], s%d offen offset:%d%s" % (O, O + 3, S_Z, S_Z + 3, T0, T * 1024, os.environ.get("ZSC", "")))
    if not E or G1POS < 0:
        for i in wd_touch(not E): a(i)
    POIE = os.environ.get("G2", "x") in "wx" and os.environ.get("POIS", "b") == "e"
    if POIE:
        PA, PB, PC = [int(x) for x in os.environ.get("PABC", "96,64,32").split(",")]
        assert 32 * PA + 32 * PB + 96 * PC >= 8192
        L = "G1" if E else "SP"
        if not E:
            a("s_mov_b32 s%d, %d" % (T0, PA // 4))
            a("s_mul_i32 s%d, s2, %d" % (T1, PA * 1024))
        else:
            a("s_lshr_b32 s%d, s2, 3" % T0)
            a("s_lshl_b32 s%d, s%d, 2" % (T0, T0))
            a("s_lshr_b32 s%d, s2, 1" % T1)
            a("s_and_b32 s%d, s%d, 3" % (T1, T1))
            a("s_add_u32 s%d, s%d, s%d" % (T1, T1, T0))
            a("s_mul_i32 s%d, s%d, %d" % (T1, T1, PC * 1024))
            a("s_add_u32 s%d, s%d, %d" % (T1, T1, (32 * PA + 32 * PB - 16 * PC) * 1024))
            a("s_and_b32 s%d, s2, 1" % T0)
            a("s_mul_i32 s%d, s%d, %d" % (T0, T0, PC // 4))
            a("s_mul_i32 s%d, s2, %d" % (T4, PB * 1024))
            a("s_add_u32 s%d, s%d, %d" % (T4, T4, ((32 * PA - 224 * PB) * 1024) & 0xffffffff))
            a("s_cmp_ge_u32 s2, 224")
            a("s_cselect_b32 s%d, %d, s%d" % (T0, PB // 4, T0))
            a("s_cselect_b32 s%d, s%d, s%d" % (T1, T4, T1))
            a("s_cmp_eq_u32 s%d, 0" % T0)
            a("s_cbranch_scc1 %s_PE1" % L)
        a("s_mul_i32 s%d, s%d, s%d" % (T4, T0, sW))
        a("s_lshl_b32 s%d, s%d, 10" % (T4, T4))
        a("s_add_u32 s%d, s%d, s%d" % (T1, T1, T4))
        ws_srd(a, S_Q, P_WS, XB_OFF, XB_BYTES)
        for i in range(4): a("v_mov_b32 v%d, -1" % (100 + i))
        a("v_lshlrev_b32 v104, 4, v0")
        a.label("%s_PE0" % L)
        a("buffer_store_dwordx4 v[100:103], v104, s[%d:%d], s%d offen sc1" % (S_Q, S_Q + 3, T1))
        a("s_add_u32 s%d, s%d, 1024" % (T1, T1))
        a("s_sub_u32 s%d, s%d, 1" % (T0, T0))
        a("s_cmp_lg_u32 s%d, 0" % T0)
        a("s_cbranch_scc1 %s_PE0" % L)
        a.label("%s_PE1" % L)
    if POIT:
        NCH = int(os.environ.get("PNCH", "128"))
        CH = XB_BYTES // NCH
        a("s_waitcnt lgkmcnt(0)")
        a("v_readfirstlane_b32 s%d, v100" % T0)
        a("s_cmp_ge_u32 s%d, %d" % (T0, NCH))
        a("s_cbranch_scc1 G1_NOPOIS")
        ws_srd(a, S_GW, P_WS, XB_OFF, XB_BYTES)
        a("s_mul_i32 s%d, s%d, %d" % (T0, T0, CH))
        a("s_mul_i32 s%d, s%d, %d" % (T1, sW, CH // 4))
        a("s_add_u32 s%d, s%d, s%d" % (T0, T0, T1))
        for i in range(4): a("v_mov_b32 v%d, -1" % (100 + i))
        a("v_lshlrev_b32 v104, 4, v0")
        n = CH // 4096
        for k in range(n):
            a("buffer_store_dwordx4 v[100:103], v104, s[%d:%d], s%d offen offset:%d sc1" % (S_GW, S_GW + 3, T0, (k & 3) * 1024))
            if (k & 3) == 3 and k + 1 < n: a("s_add_u32 s%d, s%d, 4096" % (T0, T0))
        a.label("G1_NOPOIS")
```

```python
from asmlib import *
from layout import G_PITCH, Z_OFF, Z_BYTES

import os
ROT = int(os.environ.get('ROT', '5'))
PD = int(os.environ.get('PD', '6'))
DS0 = int(os.environ.get('DS0', '1'))
DSP = int(os.environ.get('DSP', '4'))
H1_OFF = 0
H1_BYTES = 2048 * 3584 * 2

def gen_gemm1(a, name="g1_kernel", end_label="G1_END", stamps=False, dbg="", fuse=False, rts=False):
    PST = os.environ.get("PST", "") != ""
    def rt(r):
        if rts and not (PST and r in (90,)): a("s_memrealtime s[%d:%d]" % (r, r + 1))
    def prt(r):
        if rts and PST: a("s_memrealtime s[%d:%d]" % (r, r + 1))
    def stamp(i):
        if stamps:
            a("s_memtime s[%d:%d]" % (60 + 2 * i, 61 + 2 * i))
    stamp(0)
    S_X, S_WG, S_WU, S_H = 4, 8, 12, 16
    sKX, sKW, sCNT = 20, 21, 22
    sM0 = 32
    sW = 40
    sT = 41
    vXoff = 2
    vWoff = 10
    vXa = 14
    vWa = 18
    vT = 26
    F = [64, 128]

    a("s_load_dwordx2 s[24:25], s[0:1], 0")
    a("s_load_dwordx2 s[26:27], s[0:1], 56")
    a("s_load_dwordx2 s[28:29], s[0:1], 64")
    a("s_load_dwordx2 s[30:31], s[0:1], 104")
    if fuse: code_touch(a, 76, 45, 0, "g1_kernel", end_label="G1_PREP")
    a("s_and_b32 s41, s2, 7")
    a("s_lshr_b32 s42, s2, 3")
    if fuse: a("s_sub_u32 s42, s42, 4")
    a("s_and_b32 s43, s41, 1")
    a("s_lshl_b32 s43, s43, 2")
    a("s_and_b32 s44, s42, 3")
    a("s_add_u32 s43, s43, s44")
    a("s_lshr_b32 s44, s41, 1")
    a("s_mul_i32 s44, s44, 7")
    a("s_lshr_b32 s45, s42, 2")
    a("s_add_u32 s44, s44, s45")
    if "Z" in dbg:
        a("s_mov_b32 s43, 0")
        a("s_mov_b32 s44, 0")
    if "Y" in dbg:
        a("s_and_b32 s43, s43, 1")
        a("s_and_b32 s44, s44, 1")
    a("s_lshl_b32 s43, s43, 8")
    a("s_lshl_b32 s44, s44, 7")
    a("v_lshrrev_b32 v1, 6, v0")
    a("v_and_b32 v0, 63, v0")
    a("s_nop 0")
    a("v_readfirstlane_b32 s%d, v1" % sW)
    a("s_waitcnt lgkmcnt(0)")
    prt(86)
    srd(a, S_X, 24, 2048 * 1024 * 2)
    srd(a, S_WG, 26, 1024 * 3584 * 2)
    srd(a, S_WU, 28, 1024 * 3584 * 2)
    srd(a, S_H, 30, H1_BYTES)
    a("s_lshl_b32 s45, s%d, 13" % sW)
    a("s_lshl_b32 s46, s%d, 12" % sW)
    for b in range(2):
        a("s_add_u32 s%d, s45, 0x%x" % (sM0 + 4 * b + 0, (1 - b) * 65536))
        a("s_add_u32 s%d, s45, 0x%x" % (sM0 + 4 * b + 1, (1 - b) * 65536 + 4096))
        a("s_add_u32 s%d, s46, 0x%x" % (sM0 + 4 * b + 2, (1 - b) * 65536 + 32768))
        a("s_add_u32 s%d, s46, 0x%x" % (sM0 + 4 * b + 3, (1 - b) * 65536 + 49152))
    t0, t1, t2, t3 = vT, vT + 1, vT + 2, vT + 3
    a("v_lshrrev_b32 v%d, 3, v0" % t0)
    a("s_lshl_b32 s45, s%d, 6" % sW)
    a("s_add_u32 s45, s45, s43")
    a("v_add_u32 v%d, s45, v%d" % (t0, t0))
    a("v_lshlrev_b32 v%d, 11, v%d" % (t0, t0))
    a("v_and_b32 v%d, 7, v0" % t1)
    a("v_lshrrev_b32 v%d, 4, v0" % t2)
    a("v_xor_b32 v%d, v%d, v%d" % (t1, t1, t2))
    a("v_lshlrev_b32 v%d, 4, v%d" % (t1, t1))
    a("v_add_u32 v%d, v%d, v%d" % (t0, t0, t1))
    a("v_xor_b32 v%d, 64, v%d" % (t1, t0))
    for j in range(8):
        a("v_add_u32 v%d, 0x%x, v%d" % (vXoff + j, j * 16384 - (j & 3) * 1024, t0 if j % 2 == 0 else t1))
    a("s_lshl_b32 s45, s%d, 4" % sW)
    a("v_add_u32 v%d, s45, v%d" % (t0, t2))
    a("s_movk_i32 s46, 7168")
    a("v_mul_lo_u32 v%d, v%d, s46" % (t0, t0))
    a("s_lshl_b32 s45, s44, 1")
    a("v_add_u32 v%d, s45, v%d" % (t0, t0))
    a("v_and_b32 v%d, 15, v0" % t1)
    a("v_lshlrev_b32 v%d, 1, v%d" % (t3, t2))
    a("v_xor_b32 v%d, v%d, v%d" % (t1, t1, t3))
    a("v_lshlrev_b32 v%d, 4, v%d" % (t1, t1))
    a("v_add_u32 v%d, v%d, v%d" % (t0, t0, t1))
    a("v_xor_b32 v%d, 0x80, v%d" % (t1, t0))
    for j in range(4):
        a("v_add_u32 v%d, 0x%x, v%d" % (vWoff + j, j * 4 * 7168 - j * 1024, t0 if j < 2 else t1))
    if "P" in dbg:
        a("s_lshr_b32 s45, s42, 2")
        a("s_mul_i32 s45, s45, 40")
        TX = int(os.environ.get("TX", "0"))
        if TX:
            a("s_cmp_eq_u32 s%d, 3" % sW)
            a("s_cselect_b32 s47, 20, 0")
            a("s_add_u32 s45, s45, s47")
            a("v_min_u32 v%d, 19, v0" % t0)
            a("v_add_u32 v%d, s45, v%d" % (t0, t0))
        else:
            a("v_add_u32 v%d, s45, v0" % t0)
        a("v_min_u32 v%d, 255, v%d" % (t0, t0))
        a("v_add_u32 v%d, s43, v%d" % (t0, t0))
        a("v_lshlrev_b32 v%d, 11, v%d" % (t0, t0))
        a("v_lshrrev_b32 v%d, 1, v0" % t1)
        a("v_and_b32 v%d, 15, v%d" % (t1, t1))
        a("v_lshlrev_b32 v%d, 2, v%d" % (t1, t1))
        a("s_and_b32 s45, s42, 3")
        a("v_add_u32 v%d, s45, v%d" % (t1, t1))
        a("v_mul_lo_u32 v%d, v%d, s46" % (t1, t1))
        a("v_and_b32 v%d, 1, v0" % t3)
        a("v_lshlrev_b32 v%d, 7, v%d" % (t3, t3))
        a("v_add_u32 v%d, v%d, v%d" % (t1, t1, t3))
        a("s_lshl_b32 s45, s44, 1")
        a("v_add_u32 v%d, s45, v%d" % (t1, t1))
        a("s_cmp_eq_u32 s%d, 1" % sW)
        a("s_cselect_b32 s52, s26, s24")
        a("s_cselect_b32 s53, s27, s25")
        a("s_cmp_eq_u32 s%d, 2" % sW)
        a("s_cselect_b32 s52, s28, s52")
        a("s_cselect_b32 s53, s29, s53")
        a("s_add_u32 s45, s%d, -1" % sW)
        a("s_mov_b32 s54, 0x%x" % (2048 * 1024 * 2))
        a("s_movk_i32 s57, 128")
        a("s_cmp_lt_u32 s45, 2")
        a("s_cselect_b32 s54, 0x%x, s54" % (1024 * 3584 * 2))
        a("s_mov_b32 s55, 0x00020000")
        a("s_cselect_b32 s57, 0x%x, s57" % (64 * 7168))
        a("s_cselect_b64 vcc, -1, 0")
        a("s_nop 1")
        a("v_cndmask_b32 v41, v%d, v%d, vcc" % (t0, t1))
        a("s_lshl_b32 s56, s57, 1")
    if "K" in dbg:
        a("s_mul_i32 s23, s42, %d" % ROT)
        a("s_and_b32 s23, s23, 15")
        a("s_lshl_b32 s%d, s23, 7" % sKX)
        a("s_mul_i32 s%d, s23, 0x%x" % (sKW, 64 * 7168))
    else:
        a("s_mov_b32 s%d, 0" % sKX)
        a("s_mov_b32 s%d, 0" % sKW)

    def dma(b):
        g = []
        for half in range(2):
            if "W" in dbg: break
            for jj in range(4):
                j = half * 4 + jj
                ins = []
                if jj == 0:
                    ins.append("s_mov_b32 m0, s%d" % (sM0 + 4 * b + half))
                    ins.append("s_nop 0")
                ins.append("buffer_load_dwordx4 v%d, s[%d:%d], s%d offen offset:%d lds" % (vXoff + j, S_X, S_X + 3, sKX, jj * 1024))
                g.append(ins)
        for gu in range(2):
            if "X" in dbg: break
            S = S_WG if gu == 0 else S_WU
            for j in range(4):
                ins = []
                if j == 0:
                    ins.append("s_mov_b32 m0, s%d" % (sM0 + 4 * b + 2 + gu))
                    ins.append("s_nop 0")
                ins.append("buffer_load_dwordx4 v%d, s[%d:%d], s%d offen offset:%d lds" % (vWoff + j, S, S + 3, sKW, j * 1024))
                g.append(ins)
        if "K" in dbg:
            g[-1].append("s_add_u32 s23, s23, 1")
            g[-1].append("s_and_b32 s23, s23, 15")
            g[-1].append("s_lshl_b32 s%d, s23, 7" % sKX)
            g[-1].append("s_mul_i32 s%d, s23, 0x%x" % (sKW, 64 * 7168))
        else:
            g[-1].append("s_add_u32 s%d, s%d, 128" % (sKX, sKX))
            g[-1].append("s_add_u32 s%d, s%d, 0x%x" % (sKW, sKW, 64 * 7168))
        return g

    import prep4, conv2
    dprep = fuse and conv2.TARGET == 16
    if dprep:
        prep4.prep4_issue(a, 60, 62, 100, 30, 64, 64, sW)
    prt(96)
    for g in dma(0):
        for i in g: a(i)
    for g in dma(1):
        for i in g: a(i)
    prt(90)
    def touch():
        return ["buffer_load_dword v42, v41, s[52:55], s56 offen", "s_add_u32 s56, s56, s57"]
    if "P" in dbg:
        for _ in range(PD - 2):
            for i in touch(): a(i)

    NCT = 0
    a("s_lshr_b32 s45, s%d, 1" % sW)
    a("s_and_b32 s46, s%d, 1" % sW)
    a("v_and_b32 v%d, 15, v0" % t0)
    a("s_lshl_b32 s47, s45, 7")
    a("v_add_u32 v%d, s47, v%d" % (t0, t0))
    a("v_lshlrev_b32 v%d, 7, v%d" % (t0, t0))
    a("v_lshrrev_b32 v%d, 1, v0" % t1)
    a("v_and_b32 v%d, 7, v%d" % (t1, t1))
    a("v_xor_b32 v%d, v%d, v%d" % (t1, t1, t2))
    a("v_lshlrev_b32 v%d, 4, v%d" % (t1, t1))
    a("v_add_u32 v%d, v%d, v%d" % (vXa + 2, t0, t1))
    a("v_xor_b32 v%d, 64, v%d" % (vXa + 3, vXa + 2))
    a("v_add_u32 v%d, 0x10000, v%d" % (vXa + 0, vXa + 2))
    a("v_add_u32 v%d, 0x10000, v%d" % (vXa + 1, vXa + 3))
    a("v_lshrrev_b32 v%d, 2, v0" % t0)
    a("v_and_b32 v%d, 3, v%d" % (t0, t0))
    a("v_lshlrev_b32 v%d, 3, v%d" % (t1, t2))
    a("v_add_u32 v%d, v%d, v%d" % (t1, t1, t0))
    a("v_lshlrev_b32 v%d, 8, v%d" % (t1, t1))
    a("v_and_b32 v%d, 3, v0" % t3)
    a("v_lshlrev_b32 v%d, 3, v%d" % (t3, t3))
    a("v_add_u32 v%d, v%d, v%d" % (t1, t1, t3))
    a("v_add_u32 v%d, 0x8000, v%d" % (t1, t1))
    a("v_and_b32 v%d, 1, v%d" % (t3, t2))
    a("v_lshlrev_b32 v%d, 2, v%d" % (t3, t3))
    a("v_or_b32 v%d, v%d, v%d" % (t0, t0, t3))
    a("s_lshl_b32 s47, s46, 2")
    for t in range(4):
        a("s_add_u32 s48, s47, %d" % t)
        a("v_xor_b32 v%d, s48, v%d" % (t3, t0))
        a("v_lshlrev_b32 v%d, 5, v%d" % (t3, t3))
        a("v_add_u32 v%d, v%d, v%d" % (vWa + 4 + t, t1, t3))
        a("v_add_u32 v%d, 0x10000, v%d" % (vWa + t, vWa + 4 + t))
    if fuse and not dprep:
        conv2.conv_ptrs(a)
    POIS = fuse and os.environ.get("G2", "x") in "wx" and os.environ.get("POIS", "b") == "g"
    from layout import XB_OFF, XB_BYTES
    PSTR = int(os.environ.get("PSTR", "1"))
    PSET = ["s_add_u32 s52, s30, 0x%x" % XB_OFF, "s_addc_u32 s53, s31, 0", "s_mov_b32 s54, 0x%x" % XB_BYTES, "s_mov_b32 s55, 0x00020000",
            "s_lshl_b32 s56, s2, 2", "s_add_u32 s56, s56, s%d" % sW, "s_sub_u32 s56, s56, 128", "s_lshl_b32 s56, s56, 10" if PSTR != 1 else "s_mul_i32 s56, s56, 9472", "v_lshlrev_b32 v52, 4, v0"]
    PSET += ["v_mov_b32 v%d, -1" % (48 + i) for i in range(4)]
    PST_ = ["buffer_store_dwordx4 v[48:51], v52, s[52:55], s56 offen sc1", "s_add_u32 s56, s56, 0x%x" % (PSTR * 1024)]
    NPO = 10 if POIS else 0
    POIL = fuse and os.environ.get("G2", "x") in "wx" and os.environ.get("POIS", "b") == "l"
    POIP = fuse and os.environ.get("G2", "x") in "wx" and os.environ.get("POIS", "b") in ("p", "q")
    if POIL or POIP:
        for i in PSET: a(i.replace("s52", "s80").replace("s53", "s81").replace("s54", "s82").replace("s55", "s83").replace("s56", "s84"))
    PSL = [i.replace("s[52:55]", "s[80:83]").replace("s56", "s84") for i in PST_]
    for i in range(256):
        a("v_accvgpr_write_b32 a%d, 0" % i)
        if POIP and os.environ["POIS"] == "p" and i % 24 == 8 and i < 240:
            for j in PSL: a(j)
            NCT += 1
    if POIP and os.environ["POIS"] == "q":
        for _ in range(10):
            for j in PSL: a(j)
            NCT += 1

    def reads(fs, b, s):
        fb = F[fs]
        r = []
        for i in range(8):
            r.append(["ds_read_b128 v[%d:%d], v%d offset:%d" % (fb + 4 * i, fb + 4 * i + 3, vXa + 2 * b + s, i * 2048)])
        w = []
        for gu in range(2):
            for t in range(4):
                for h in range(2):
                    d = fb + 32 + 4 * (gu * 4 + t) + 2 * h
                    w.append(["ds_read_b64_tr_b16 v[%d:%d], v%d offset:%d" % (d, d + 1, vWa + 4 * b + t, gu * 16384 + s * 8192 + h * 1024)])
        out = []
        for i in range(8):
            out.append(r[i]); out.append(w[2 * i]); out.append(w[2 * i + 1])
        return out

    def mfmas(fs):
        fb = F[fs]
        m = []
        if "M" in dbg: return m
        for i in range(8):
            for wt in range(8):
                c = (wt * 8 + i) * 4
                m.append("v_mfma_f32_16x16x32_bf16 a[%d:%d], v[%d:%d], v[%d:%d], a[%d:%d]" % (
                    c, c + 3, fb + 32 + 4 * wt, fb + 32 + 4 * wt + 3, fb + 4 * i, fb + 4 * i + 3, c, c + 3))
        return m

    stamp(1)
    if fuse and not dprep and os.environ.get("TLB"):
        a("s_waitcnt lgkmcnt(0)")
        a("s_lshl_b32 s80, s2, 2")
        a("s_add_u32 s80, s80, s%d" % sW)
        a("s_lshl_b32 s80, s80, 12")
        a("v_mov_b32 v45, 0")
        a("s_mov_b32 s79, 0x00020000")
        for P, nb, so in ((conv2.P_HK, 1024 * 2048 * 2, "s80"), (conv2.P_GW, 2048, "0"), (conv2.P_D, 2048, "0"), (conv2.P_DBG, 256, "0")):
            a("s_mov_b32 s76, s%d" % P)
            a("s_mov_b32 s77, s%d" % (P + 1))
            a("s_mov_b32 s78, 0x%x" % nb)
            a("buffer_load_dword v46, v45, s[76:79], %s offen%s" % (so, " sc1" if P == conv2.P_DBG else ""))
            NCT += 1
        a("s_add_u32 s76, s30, 0x%x" % Z_OFF)
        a("s_addc_u32 s77, s31, 0")
        a("s_mov_b32 s78, 0x%x" % Z_BYTES)
        a("buffer_load_dword v46, v45, s[76:79], s80 offen")
        NCT += 1
    if dprep:
        a("s_waitcnt vmcnt(%d)" % (32 + PD - 2))
        rt(96)
        prep4.prep4_compute(a, 64, 64, "A")
        conv2.conv_ptrs(a)
        rt(86)
    a("s_waitcnt vmcnt(%d)" % ((8 if ("X" in dbg or "W" in dbg) else 16) + (PD - 2 if "P" in dbg else 0) + (8 if dprep else 0) + NCT))
    prt(94)
    a("s_barrier")
    stamp(2)
    if rts and not dprep:
        rt(98)
        if not PST: a("s_memtime s[86:87]")
    for g in reads(0, 0, 0):
        for i in g: a(i)

    LST = os.environ.get("LST", "") != ""
    if LST:
        a("s_lshl_b32 s90, s%d, 8" % sW)
        a("s_add_u32 s90, s90, 150016")
        a("v_mov_b32 v44, s90")
        a("s_memtime s[90:91]")
    def lst():
        if LST:
            a("v_mov_b32 v43, s90")
            a("ds_write_b32 v44, v43")
            a("v_add_u32 v44, 4, v44")
            a("s_memtime s[90:91]")
    def stage(b, do_dma, do_next, first=False, preB=None, vmB=None, extraA=None, extraB=None, tailB=None, postW=None, plB=None, plA=None):
        a("s_waitcnt lgkmcnt(0)")
        lst()
        pa = [(2 * n, g) for n, g in enumerate(reads(1, b, 1) if "R" not in dbg else [])]
        if extraA: pa += [(1 + 4 * n, g) for n, g in enumerate(extraA)]
        if plA: pa += plA
        for i in place(mfmas(0), pa): a(i)
        a("s_waitcnt lgkmcnt(0)")
        lst()
        if preB: preB()
        if do_next:
            if "V" in dbg:
                pass
            elif vmB is not None:
                a("s_waitcnt vmcnt(%d)" % vmB)
            elif first == 1:
                a("s_waitcnt vmcnt(%d)" % (PD - 2 + 8))
            elif "P" in dbg:
                a("s_waitcnt vmcnt(%d)" % (1 if "2" not in dbg else 18))
            else:
                a("s_waitcnt vmcnt(%d)" % (0 if "2" not in dbg else (8 if ("X" in dbg or "W" in dbg) else 16)))
            if postW: postW()
            if LST:
                a("s_waitcnt lgkmcnt(0)")
                lst()
            if "B" not in dbg: a("s_barrier")
            if LST:
                a("s_waitcnt lgkmcnt(0)")
                lst()
            if first == 2:
                conv2.flag_srd(a)
                a("s_cmp_lg_u32 s%d, 0" % sW)
                a("s_cbranch_scc1 G1_P0")
                conv2.signal(a)
                a.label("G1_P0")
        pl = []
        if do_next and "R" not in dbg:
            for n, g in enumerate(reads(0, b ^ 1, 0)): pl.append((2 * n, g))
        if do_dma and "D" not in dbg:
            dl = dma(b)
            if "P" in dbg: dl[-1] = dl[-1] + touch()
            if tailB: dl[-1] = dl[-1] + tailB
            for n, g in enumerate(dl): pl.append((DS0 + DSP * n, g))
        if extraB: pl += [(1 + 4 * n, g) for n, g in enumerate(extraB)]
        if plB: pl += plB
        for i in place(mfmas(1), pl): a(i)

    def epilogue():
        vS = 2
        a("s_lshr_b32 s47, s43, 7")
        a("s_add_u32 s47, s47, s45")
        a("s_mul_i32 s47, s47, 112")
        a("s_lshr_b32 s48, s44, 5")
        a("s_add_u32 s47, s47, s48")
        a("s_lshl_b32 s48, s46, 1")
        a("s_add_u32 s47, s47, s48")
        a("s_lshl_b32 s47, s47, 13")
        a("v_and_b32 v%d, 15, v0" % t0)
        a("v_lshlrev_b32 v%d, 4, v%d" % (t0, t0))
        a("v_lshrrev_b32 v%d, 1, v%d" % (t1, t2))
        a("v_lshlrev_b32 v%d, 8, v%d" % (t1, t1))
        a("v_add_u32 v%d, v%d, v%d" % (t0, t0, t1))
        a("v_and_b32 v%d, 1, v%d" % (t1, t2))
        a("v_lshlrev_b32 v%d, 10, v%d" % (t1, t1))
        a("v_add_u32 v%d, v%d, v%d" % (t0, t0, t1))
        a("v_add_u32 v%d, s47, v%d" % (vS, t0))
        a("s_mov_b32 s56, 0")
        a("s_movk_i32 s57, 4096")
        a("s_movk_i32 s58, 8192")
        a("s_movk_i32 s59, 12288")
        import math
        C0 = -2.0 * math.sqrt(2.0 / math.pi) * math.log2(math.e)
        C1 = C0 * 0.044715
        import struct
        def f2u(x): return struct.unpack("<I", struct.pack("<f", x))[0]
        a("s_mov_b32 s50, 0x%x" % f2u(C0))
        a("s_mov_b32 s51, 0x%x" % f2u(C1))
        a("v_mov_b32 v3, s50")
        groups = []
        cnt = 0
        SC = os.environ.get("H1SC", " sc1")
        for ip in range(4):
            for t in range(4):
                G = 212; U = 220; T = 228; P = 236 + 4 * (cnt % 4)
                cnt += 1
                i = 2 * ip
                cg = (t * 8 + i) * 4
                cu = ((4 + t) * 8 + i) * 4
                e = []
                for r in range(8): e.append("v_accvgpr_read_b32 v%d, a%d" % (G + r, cg + r))
                for r in range(8): e.append("v_mul_f32 v%d, v%d, v%d" % (T + r, G + r, G + r))
                for r in range(8): e.append("v_fma_f32 v%d, v%d, s51, v3" % (T + r, T + r))
                for r in range(8): e.append("v_mul_f32 v%d, v%d, v%d" % (T + r, T + r, G + r))
                for r in range(8):
                    e.append("v_exp_f32 v%d, v%d" % (T + r, T + r))
                    e.append("v_accvgpr_read_b32 v%d, a%d" % (U + r, cu + r))
                for r in range(8): e.append("v_add_f32 v%d, 1.0, v%d" % (T + r, T + r))
                for r in range(8):
                    e.append("v_rcp_f32 v%d, v%d" % (T + r, T + r))
                    e.append("v_mul_f32 v%d, v%d, v%d" % (U + r, U + r, G + r))
                for r in range(8): e.append("v_mul_f32 v%d, v%d, v%d" % (U + r, U + r, T + r))
                for k in range(4): e.append("v_cvt_pk_bf16_f32 v%d, v%d, v%d" % (P + k, U + 2 * k, U + 2 * k + 1))
                e.append("s_nop 1")
                e.append("v_permlane16_swap_b32 v%d, v%d" % (P, P + 2))
                e.append("v_permlane16_swap_b32 v%d, v%d" % (P + 1, P + 3))
                e.append("s_nop 0")
                e.append("buffer_store_dwordx4 v[%d:%d], v%d, s[%d:%d], s%d offen offset:%d%s" % (P, P + 3, vS, S_H, S_H + 3, 56 + (i >> 2) + 2 * (t >> 1), (i & 3) * 1024 + (t & 1) * 512, SC))
                groups.append(e)
        NSC = int(os.environ.get("NSC", "2"))
        if fuse and NSC < 16:
            a("s_mov_b32 s20, s51")
            a("s_mov_b32 s21, s51")
            a("s_mov_b32 s22, 1.0")
            a("s_mov_b32 s23, 1.0")
            a("v_mov_b32 v254, s50")
            a("v_mov_b32 v255, s50")
            gl = [(ip, t) for ip in range(4) for t in range(4)][NSC:]
            G = 212; U = 220
            TS = [136, 144, 152]; PS = [176, 184, 192]; OS = [236, 240, 244, 248]
            def pr(x): return "v[%d:%d]" % (x, x + 1)
            def rd(k):
                ip, t = gl[k]; i = 2 * ip
                cg = (t * 8 + i) * 4; cu = ((4 + t) * 8 + i) * 4
                return ["v_accvgpr_read_b32 v%d, a%d" % (G + r, cg + r) for r in range(8)] + ["v_accvgpr_read_b32 v%d, a%d" % (U + r, cu + r) for r in range(8)]
            def pk1(k):
                T = TS[k % 3]; Q = PS[k % 3]
                e = ["v_pk_mul_f32 %s, %s, %s" % (pr(T + r), pr(G + r), pr(G + r)) for r in range(0, 8, 2)]
                e += ["v_pk_fma_f32 %s, %s, s[20:21], v[254:255]" % (pr(T + r), pr(T + r)) for r in range(0, 8, 2)]
                e += ["v_pk_mul_f32 %s, %s, %s" % (pr(Q + r), pr(U + r), pr(G + r)) for r in range(0, 8, 2)]
                e += ["v_pk_mul_f32 %s, %s, %s" % (pr(T + r), pr(T + r), pr(G + r)) for r in range(0, 8, 2)]
                return e
            def ex(k): return ["v_exp_f32 v%d, v%d" % (TS[k % 3] + r, TS[k % 3] + r) for r in range(8)]
            def pk2(k): return ["v_pk_add_f32 %s, %s, s[22:23]" % (pr(TS[k % 3] + r), pr(TS[k % 3] + r)) for r in range(0, 8, 2)]
            def rc(k): return ["v_rcp_f32 v%d, v%d" % (TS[k % 3] + r, TS[k % 3] + r) for r in range(8)]
            def pk3(k): return ["v_pk_mul_f32 %s, %s, %s" % (pr(PS[k % 3] + r), pr(PS[k % 3] + r), pr(TS[k % 3] + r)) for r in range(0, 8, 2)]
            def st(k):
                ip, t = gl[k]; i = 2 * ip
                Q = PS[k % 3]; P = OS[k % 4]
                return (["v_cvt_pk_bf16_f32 v%d, v%d, v%d" % (P + j, Q + 2 * j, Q + 2 * j + 1) for j in range(4)],
                        ["v_permlane16_swap_b32 v%d, v%d" % (P, P + 2), "v_permlane16_swap_b32 v%d, v%d" % (P + 1, P + 3)],
                        ["buffer_store_dwordx4 v[%d:%d], v%d, s[%d:%d], s%d offen offset:%d%s" % (P, P + 3, vS, S_H, S_H + 3, 56 + (i >> 2) + 2 * (t >> 1), (i & 3) * 1024 + (t & 1) * 512, SC)])
            n = len(gl)
            stream = []
            for k in range(-1, n + 2):
                N = []
                c = p = b = []
                if 0 <= k - 2 < n: c, p, b = st(k - 2)
                r_ = rd(k + 1) if k + 1 < n else []
                e_ = ex(k) if 0 <= k < n else []
                q_ = rc(k - 1) if 0 <= k - 1 < n else []
                N += c
                tr = e_ + q_
                mix_ = []
                for j in range(max(len(tr), len(r_))):
                    if j < len(tr): mix_.append(tr[j])
                    if j < len(r_): mix_.append(r_[j])
                h = min(len(mix_), 6)
                N += mix_[:h]
                if p:
                    if h < 2: N.append("s_nop 1")
                    N += p
                N += mix_[h:h + 4]
                if b:
                    if len(mix_) < h + 1: N.append("s_nop 0")
                    N += b
                N += mix_[h + 4:]
                Pk = []
                if 0 <= k - 1 < n: Pk += pk3(k - 1)
                if 0 <= k < n: Pk += pk2(k)
                if k + 1 < n: Pk += pk1(k + 1)
                if Pk: N.append("s_nop 0")
                stream += N + Pk
            groups = groups[:NSC] + [stream]
        return groups

    a("s_mov_b32 s%d, 0" % sCNT)
    if dprep:
        stage(0, True, True, first=1)
        stage(1, True, True, first=2)
        a("s_mov_b32 s%d, 1" % sCNT)
        rt(98)
    a.label("G1_LOOP")
    if POIL:
        stage(0, True, True, tailB=PSL, vmB=2)
        stage(1, True, True, tailB=PSL, vmB=2)
    else:
        stage(0, True, True)
        stage(1, True, True)
    a("s_add_u32 s%d, s%d, 1" % (sCNT, sCNT))
    a("s_cmp_lt_u32 s%d, %d" % (sCNT, 6 if fuse else 7))
    a("s_cbranch_scc1 G1_LOOP")
    if fuse:
        if not dprep: conv2.flag_srd(a)
        a("s_mov_b32 s84, 0")
        pi, _ = conv2.capture(a, conv2.poll_issue, a, 202)
        POIT = os.environ.get("G2", "x") in "wx" and os.environ.get("POIS", "b") == "t"
        if POIT:
            pi = pi + ["v_mov_b32 v203, 1", "v_mov_b32 v209, 32", "s_mov_b64 exec, 1", "buffer_atomic_add v203, v209, s[80:83], 0 offen sc0 sc1", "s_mov_b64 exec, -1"]
        pi = ["s_cmp_lg_u32 s%d, 0" % sW, "s_cbranch_scc1 G1_P1"] + pi + ["G1_P1:"]
        stage(0, True, True, tailB=conv2.touch_h() + conv2.gate_loads(), extraB=[pi], vmB=2 if POIL else None)
        def post1():
            conv2.poll_check(a, 202, 84)
        tk = None
        if POIT:
            tk = [(2, ["v_readfirstlane_b32 s62, v203", "s_lshl_b32 s63, s%d, 2" % sW, "s_add_u32 s63, s63, %d" % conv2.TKOFF]),
                  (4, ["v_mov_b32 v203, s62", "v_mov_b32 v210, s63"]), (6, ["ds_write_b32 v210, v203"])]
        stage(1, True, True, vmB=8, postW=post1, plB=tk)
        ces, DE = conv2.capture(a, conv2.conv_early, a)
        def chk2():
            a("s_cmp_lg_u32 s%d, 0" % sW)
            a("s_cbranch_scc1 G1_P4")
            a("s_cmp_lg_u32 s84, 0")
            a("s_cbranch_scc1 G1_P4")
            a.label("G1_P3")
            conv2.poll_issue(a, 202)
            a("s_waitcnt vmcnt(0)")
            conv2.poll_check(a, 202, 84)
            a("s_cmp_lg_u32 s84, 0")
            a("s_cbranch_scc1 G1_P4")
            a("s_sleep 16")
            a("s_branch G1_P3")
            a.label("G1_P4")
        GC = conv2.gate_compute()
        def spread(groups, lo, hi):
            tot = sum(len(g) for g in groups); r = []; c = 0
            for g in groups:
                r.append((lo + (c * (hi - lo)) // max(tot, 1), g)); c += len(g)
            return r
        n14 = 0; c = 0
        while c < 120: c += len(GC[n14]); n14 += 1
        stage(0, False, True, preB=chk2, extraB=DE[:12], extraA=[ces[i:i + 2] for i in range(0, len(ces), 2)], plB=spread(GC[:n14], 2, 64),
              plA=([(n, [i]) for n, i in enumerate(PSET)] + [(15 + 5 * n, PST_) for n in range(NPO)]) if POIS else None, vmB=1 + NPO)
        a("s_waitcnt lgkmcnt(0)")
        lst()
        mA = mfmas(0); mB = mfmas(1)
        A_ = [mA[8 * i:8 * i + 8] for i in range(8)]; B_ = [mB[8 * i:8 * i + 8] for i in range(8)]
        pl = [(n, g) for n, g in enumerate(reads(1, 1, 1))]
        pl += [(1 + 4 * n, g) for n, g in enumerate(DE[12:])]
        pl += spread(GC[n14:], 0, 32)
        for i in place(A_[0] + A_[1] + A_[2] + A_[3], pl): a(i)
        a("s_waitcnt lgkmcnt(0)")
        lst()
        es, groups = conv2.capture(a, epilogue)
        cs, _ = conv2.capture(a, conv2.conv_setup, a)
        EF = [i for g in groups for i in g]
        NE15 = int(os.environ.get("NE15", "200"))
        if len(groups) < 16: NE15 = min(NE15, sum(len(g) for g in groups[:-1]))
        seq = B_[0] + B_[1] + A_[4] + A_[5] + B_[2] + B_[3] + A_[6] + A_[7] + B_[4] + B_[5] + B_[6] + B_[7]
        pl = spread([[i] for i in es + cs], 0, 20) + spread([[i] for i in EF[:NE15]], 20, 96)
        EF = EF[NE15:]
        for i in place(seq, pl): a(i)
        if LST:
            a("s_waitcnt lgkmcnt(0)")
            lst()
            a("s_lshl_b32 s90, s%d, 8" % sW)
            a("s_add_u32 s90, s90, 150016")
            a("v_lshlrev_b32 v44, 2, v0")
            a("v_add_u32 v43, s90, v44")
            a("s_waitcnt lgkmcnt(0)")
            a("ds_read_b32 v43, v43")
            a("s_add_u32 s76, s30, 0x6000000")
            a("s_addc_u32 s77, s31, 0")
            a("s_mov_b32 s78, 0x100000")
            a("s_mov_b32 s79, 0x00020000")
            a("s_lshl_b32 s90, s2, 2")
            a("s_add_u32 s90, s90, s%d" % sW)
            a("s_lshl_b32 s90, s90, 8")
            a("s_waitcnt lgkmcnt(0)")
            a("buffer_store_dword v43, v44, s[76:79], s90 offen")
            a("s_waitcnt vmcnt(0)")
            a("s_mul_i32 s%d, s%d, %d" % (conv2.T3, conv2.sD, G_PITCH))
        rt(88)
        if rts and not PST: a("s_memtime s[96:97]")
        a("s_barrier")
        rt(90)
        D = conv2.conv_issue(a)
    else:
        stage(0, False, True)
        stage(1, False, False)

    if fuse:
        return D, EF
    groups = epilogue()
    for e in groups:
        for i in e: a(i)

    if stamps:
        stamp(4)
        a("s_waitcnt vmcnt(0)")
        stamp(5)
        a("s_waitcnt lgkmcnt(0)")
        a("s_add_u32 s30, s30, 0x4000000")
        a("s_addc_u32 s31, s31, 0")
        srd(a, S_H, 30, 1 << 20)
        a("s_lshl_b32 s47, s2, 2")
        a("s_add_u32 s47, s47, s%d" % sW)
        a("s_lshl_b32 s47, s47, 5")
        for i in range(6):
            a("v_mov_b32 v%d, s%d" % (64 + i, 60 + 2 * i))
        a("v_mov_b32 v70, s47")
        a("v_cmp_eq_u32 vcc, 0, v0")
        a("s_and_saveexec_b64 s[48:49], vcc")
        a("buffer_store_dwordx4 v[64:67], v70, s[%d:%d], 0 offen" % (S_H, S_H + 3))
        a("buffer_store_dwordx2 v[68:69], v70, s[%d:%d], 0 offen offset:16" % (S_H, S_H + 3))
        a("s_mov_b64 exec, s[48:49]")
```

```python
from asmlib import *
from layout import *
from prep import ws_srd
import os

NST = 28
WR = int(os.environ.get("G2WR", "8"))
XR = int(os.environ.get("G2XR", "8"))
BLK = int(os.environ.get("G2BLK", "4"))
RJW = int(os.environ.get("G2RJW", "1"))
MAP = int(os.environ.get("G2MAP", "2"))
D = int(os.environ.get("G2D", "6"))
assert WR == 8 and D <= WR and D <= XR and D >= 2
G2_ZB = 2 * WR * 8192
G2_LDS = max(G2_ZB + 16384, 65536 + 16384)
if G2_ZB < 65536: G2_ZB = 65536

def gen_gemm2(a, dbg="", stamps=False, rts=False):
    def stamp(i):
        if rts and i in (1, 2, 3, 4):
            r = {1: 98, 2: 86, 3: 88, 4: 90}[i]
            a("s_memrealtime s[%d:%d]" % (r, r + 1))
    S_H, S_W, S_Z, S_Q, S_O, S_GT, S_XB = 4, 8, 12, 16, 20, 24, 60
    sW, sLB, sX, sWK = 40, 41, 42, 43
    sMF, sNF = 44, 45
    sMH, sKQ, sKH = 64, 65, 66
    sXS, sXL = 68, 70
    a("s_load_dwordx2 s[34:35], s[0:1], 104")
    a("s_load_dwordx2 s[30:31], s[0:1], 72")
    a("s_load_dwordx2 s[28:29], s[0:1], 0")
    a("s_load_dwordx2 s[32:33], s[0:1], 88")
    a("s_load_dwordx2 s[74:75], s[0:1], 96")
    code_touch(a, 76, 28, 0, "g2_kernel")
    a("v_lshrrev_b32 v1, 6, v0")
    a("v_and_b32 v0, 63, v0")
    a("s_and_b32 s46, s2, 7")
    a("v_readfirstlane_b32 s%d, v1" % sW)
    a("s_lshr_b32 s47, s2, 3")
    a("s_lshr_b32 s%d, s46, 2" % sKH)
    if MAP == 1:
        a("s_and_b32 s48, s46, 3")
        a("s_lshl_b32 s48, s48, 2")
        a("s_and_b32 s51, s47, 3")
        a("s_add_u32 s48, s48, s51")
        a("s_lshr_b32 s49, s47, 2")
        a("s_mov_b32 s50, s49")
        maxr = 7 + 3 * RJW
    else:
        a("s_and_b32 s48, s46, 1")
        a("s_lshl_b32 s48, s48, 3")
        a("s_and_b32 s51, s47, 7")
        a("s_add_u32 s48, s48, s51")
        a("s_and_b32 s49, s46, 2")
        a("s_lshl_b32 s49, s49, 1")
        a("s_lshr_b32 s50, s47, 3")
        a("s_add_u32 s49, s49, s50")
        maxr = 3 + 7 * RJW
    if "Z" in dbg:
        a("s_mov_b32 s48, 0")
        a("s_mov_b32 s49, 0")
    if "Y" in dbg:
        a("s_mov_b32 s48, 0")
    if "U" in dbg:
        a("s_mov_b32 s49, 0")
    a("v_lshlrev_b32 v2, 4, v0")
    a("v_lshrrev_b32 v3, 4, v0")
    a("s_and_b32 s%d, s%d, 1" % (sMH, sW))
    a("s_lshr_b32 s%d, s%d, 1" % (sKQ, sW))
    a("s_mul_i32 s52, s%d, 56" % sKH)
    a("s_mul_i32 s53, s%d, 28" % sKQ)
    a("s_add_u32 s52, s52, s53")
    a("s_mul_i32 s53, s48, 112")
    a("s_add_u32 s53, s53, s52")
    a("s_lshl_b32 s%d, s53, 13" % sX)
    a("s_lshl_b32 s%d, s52, 16" % sWK)
    if BLK:
        a("s_mul_i32 s51, s51, %d" % RJW)
        a("s_add_u32 s50, s50, s51")
        for _ in range(maxr // BLK):
            a("s_sub_u32 s51, s50, %d" % BLK)
            a("s_cmp_ge_u32 s50, %d" % BLK)
            a("s_cselect_b32 s50, s51, s50")
        a("s_mov_b32 s38, s50")
        a("s_mov_b32 s39, s50")
        a("s_mov_b32 s36, s%d" % sX)
        a("s_mov_b32 s37, s%d" % sWK)
        a("s_lshl_b32 s51, s50, 13")
        a("s_add_u32 s%d, s36, s51" % sX)
        a("s_lshl_b32 s51, s50, 16")
        a("s_add_u32 s%d, s37, s51" % sWK)
    def adv(t, sreg, sbase, sidx, sh):
        if not BLK:
            return [("s_add_u32 s%d, s%d, 0x%x" % (sreg, sreg, 1 << sh), None)]
        r = [("s_add_u32 s%d, s%d, 1" % (sidx, sidx), None),
             ("s_cmp_eq_u32 s%d, %d" % (sidx, BLK), None),
             ("s_cselect_b32 s%d, 0, s%d" % (sidx, sidx), None)]
        if t % BLK == BLK - 1:
            r.append(("s_add_u32 s%d, s%d, 0x%x" % (sbase, sbase, BLK << sh), None))
        r.append(("s_lshl_b32 s%d, s%d, %d" % (sreg, sidx, sh), None))
        r.append(("s_add_u32 s%d, s%d, s%d" % (sreg, sreg, sbase), None))
        return r
    a("s_mul_i32 s67, s%d, %d" % (sKQ, WR * 8192))
    a("s_lshl_b32 s50, s%d, 12" % sMH)
    a("s_add_u32 s%d, s67, s50" % sLB)
    a("s_lshl_b32 s51, s%d, 11" % sKQ)
    a("s_add_u32 s51, s51, s50")
    a("v_add_u32 v16, s51, v2")
    a("v_xor_b32 v17, 0x800, v16")
    a("s_lshl_b32 s49, s49, 7")
    a("s_lshl_b32 s48, s48, 7")
    a("v_lshrrev_b32 v8, 3, v0")
    a("s_lshl_b32 s50, s%d, 4" % sMH)
    a("v_add_u32 v8, s50, v8")
    a("v_lshlrev_b32 v8, 11, v8")
    a("s_lshl_b32 s50, s%d, 6" % sKH)
    a("s_add_u32 s50, s50, s49")
    a("s_lshl_b32 s50, s50, 1")
    a("v_add_u32 v8, s50, v8")
    a("v_and_b32 v9, 7, v0")
    a("v_and_b32 v10, 1, v3")
    a("v_lshlrev_b32 v10, 1, v10")
    a("v_xor_b32 v9, v9, v10")
    a("v_lshlrev_b32 v9, 4, v9")
    a("v_add_u32 v8, v8, v9")
    a("v_xor_b32 v9, 64, v8")
    a("v_xor_b32 v10, 0x80, v8")
    a("v_xor_b32 v11, 0x80, v9")
    for I in range(4):
        src = {0: 10, 1: 11, 2: 8, 3: 9}[I]
        off = (I & 1) * (8 * 2048 - 1024)
        a("v_add_u32 v%d, 0x%x, v%d" % (4 + I, off, src))
    a("s_waitcnt lgkmcnt(0)")
    ws_srd(a, S_H, 34, H1_OFF, H1_BYTES)
    srd(a, S_W, 30, 3584 * 1024 * 2)

    vm = []
    def emit(ins, tag=None):
        a(ins)
        if ins.startswith("buffer_"):
            vm.append(tag)
    def younger_than(tag):
        idx = max(i for i, x in enumerate(vm) if x == tag)
        return len(vm) - 1 - idx
    def ldx(t):
        g = []
        base = (t % XR) * 16
        for i in range(4):
            g.append([("buffer_load_dwordx4 a[%d:%d], v%d, s[%d:%d], s%d offen offset:%d" % (base + 4 * i, base + 4 * i + 3, 16 + (i >> 1), S_H, S_H + 3, sX, (i & 1) * 1024), ("x", t))])
        g[-1].extend(adv(t, sX, 36, 38, 13))
        return g
    def ldw(t):
        g = []
        for I in range(4 if t < NST - D else 2):
            ins = []
            if I == 0:
                if t == NST - D:
                    ins += [("s_mov_b32 s80, s%d" % sWK, None), ("s_mov_b32 s81, s37", None), ("s_mov_b32 s82, s39", None)]
                ins.append(("s_add_u32 m0, s%d, %d" % (sLB, (t % WR) * 8192), None))
                ins.append(("s_nop 0", None))
            if I == 2:
                ins.append(("s_add_u32 m0, s%d, %d" % (sLB, (t % WR) * 8192 + 2048), None))
                ins.append(("s_nop 0", None))
            ins.append(("buffer_load_dwordx4 v%d, s[%d:%d], s%d offen offset:%d lds" % (4 + I, S_W, S_W + 3, sWK, (I & 1) * 1024), ("w", t)))
            g.append(ins)
        g[-1].extend(adv(t, sWK, 37, 39, 16))
        return g
    def ldk(t):
        g = []
        for I in (2, 3):
            ins = []
            ins.append(("s_add_u32 m0, s%d, %d" % (sLB, (t % WR) * 8192 + 2048), None))
            ins.append(("s_nop 0", None))
            ins.append(("buffer_load_dwordx4 v%d, s[%d:%d], s80 offen offset:%d lds" % (4 + I, S_W, S_W + 3, (I & 1) * 1024), ("k", t)))
            g.append(ins)
        g[-1].extend(adv(t, 80, 81, 82, 16))
        return g
    PRO = int(os.environ.get("G2PRO", "2"))
    RMP = int(os.environ.get("G2RMP", "4"))
    nxt = {"w": 0, "x": 0}
    def mix(t, lim=None):
        g = []; n = 0
        lim = lim or RMP
        while n < lim:
            w, x = nxt["w"], nxt["x"]
            cw = w < NST and w <= max(t, -1) + WR and (t >= 0 or w < PRO)
            cx = x < NST and x <= max(t, -1) + XR - 1 and (t >= 0 or x < PRO)
            if cw and (w <= x + 1 or not cx): g += ldw(w); nxt["w"] += 1
            elif cx: g += ldx(x); nxt["x"] += 1
            else: break
            n += 1
        return g
    for g in mix(-1, 99):
        for it in g: emit(*it)
    a("s_lshl_b32 s50, s%d, 6" % sMH)
    a("s_add_u32 s%d, s48, s50" % sMF)
    a("s_lshl_b32 s50, s%d, 5" % sKQ)
    a("s_add_u32 s%d, s%d, s50" % (sMF, sMF))
    a("s_lshl_b32 s50, s%d, 6" % sKH)
    a("s_add_u32 s%d, s49, s50" % sNF)
    ws_srd(a, S_Z, 34, Z_OFF, Z_BYTES)
    srd(a, S_Q, 28, 2048 * 1024 * 2)
    srd(a, S_O, 32, 2048 * 1024 * 2)
    ws_srd(a, S_GT, 34, GT_OFF, GT_BYTES)
    ws_srd(a, S_XB, 34, XB_OFF, XB_BYTES)
    PB = os.environ.get("POIS", "b") == "b"
    S_DB = 76
    if PB:
        srd(a, S_DB, 74, 256)
        for i in range(4): a("v_mov_b32 v%d, -1" % (32 + i))
        a("s_lshr_b32 s50, s2, 2")
        a("s_lshl_b32 s50, s50, 2")
        a("v_mov_b32 v36, s50")
        a("v_xor_b32 v37, 4, v36")
        a("s_and_b32 s73, s2, 3")
        a("s_lshl_b32 s50, 1, s73")
        a("v_mov_b32 v38, s50")
    a("s_lshl_b32 s50, s2, 2")
    a("s_add_u32 s50, s50, s%d" % sW)
    a("s_lshl_b32 s%d, s50, 13" % sXS)
    a("s_add_u32 s%d, s%d, 4096" % (sXS + 1, sXS))
    a("s_xor_b32 s%d, s%d, 0x%x" % (sXL, sXS, 4 << 15))
    a("s_add_u32 s%d, s%d, 4096" % (sXL + 1, sXL))
    extras = []
    a("v_lshrrev_b32 v8, 2, v0")
    a("v_add_u32 v8, s%d, v8" % sNF)
    a("v_lshlrev_b32 v8, 12, v8")
    a("v_and_b32 v9, 3, v0")
    a("v_lshlrev_b32 v9, 4, v9")
    a("v_add_u32 v14, v8, v9")
    a("s_lshl_b32 s56, s%d, 1" % sMF)
    a("s_lshl_b32 s57, s%d, 12" % sW)
    a("s_add_u32 s57, s57, %d" % G2_ZB)
    for I in range(4):
        g = []
        if I == 0: g += [("s_mov_b32 m0, s57", None), ("s_nop 0", None)]
        else: g += [("s_mov_b32 m0, s57", None), ("v_add_u32 v14, 0x%x, v14" % (16 * 4096 - 1024), None)]
        g.append(("buffer_load_dwordx4 v14, s[%d:%d], s56 offen offset:%d lds" % (S_Z, S_Z + 3, I * 1024), "e"))
        extras.append(g)
    a("v_and_b32 v9, 15, v0")
    a("v_add_u32 v9, s%d, v9" % sMF)
    a("v_lshlrev_b32 v13, 2, v9")
    a("v_lshlrev_b32 v12, 11, v9")
    a("v_lshlrev_b32 v10, 3, v3")
    a("v_add_u32 v12, v12, v10")
    a("s_lshl_b32 s50, s%d, 1" % sNF)
    a("v_add_u32 v12, s50, v12")
    a("s_mov_b32 s53, 0x8000")
    QR = 96
    for sl in range(2):
        for nt in range(4):
            extras.append([("buffer_load_dwordx2 v[%d:%d], v12, s[%d:%d], %s offen offset:%d" % (QR + (sl * 4 + nt) * 2, QR + (sl * 4 + nt) * 2 + 1, S_Q, S_Q + 3, "0" if sl == 0 else "s53", nt * 32), "e")])
    extras.append([("buffer_load_dword v%d, v13, s[%d:%d], 0 offen" % (QR + 16, S_GT, S_GT + 3), "e")])
    extras.append([("buffer_load_dword v%d, v13, s[%d:%d], 0 offen offset:64" % (QR + 17, S_GT, S_GT + 3), "e")])
    a("v_lshrrev_b32 v8, 2, v0")
    a("v_and_b32 v8, 3, v8")
    a("v_lshlrev_b32 v9, 7, v8")
    a("v_lshrrev_b32 v10, 1, v3")
    a("v_lshlrev_b32 v10, 12, v10")
    a("v_add_u32 v9, v9, v10")
    a("v_and_b32 v11, 1, v3")
    a("v_lshlrev_b32 v10, 10, v11")
    a("v_add_u32 v9, v9, v10")
    a("v_and_b32 v10, 3, v0")
    a("v_lshlrev_b32 v10, 3, v10")
    a("v_add_u32 v9, v9, v10")
    a("v_add_u32 v9, s67, v9")
    a("v_lshrrev_b32 v10, 1, v8")
    a("v_lshlrev_b32 v11, 1, v11")
    a("v_or_b32 v10, v10, v11")
    for nt in range(4):
        a("v_xor_b32 v11, %d, v10" % nt)
        a("v_lshlrev_b32 v11, 5, v11")
        a("v_add_u32 v%d, v9, v11" % (20 + nt))
    a("v_lshlrev_b32 v9, 2, v3")
    a("v_add_u32 v9, v9, v8")
    a("v_lshlrev_b32 v9, 6, v9")
    a("v_and_b32 v10, 3, v0")
    a("v_lshlrev_b32 v10, 3, v10")
    a("v_add_u32 v9, v9, v10")
    a("v_add_u32 v30, s57, v9")
    a("v_and_b32 v9, 15, v0")
    a("v_and_b32 v10, 1, v3")
    a("v_lshlrev_b32 v10, 4, v10")
    a("v_add_u32 v9, v9, v10")
    a("v_add_u32 v9, s%d, v9" % sMF)
    a("v_lshlrev_b32 v9, 11, v9")
    a("v_lshrrev_b32 v10, 1, v3")
    a("v_lshlrev_b32 v10, 4, v10")
    a("v_add_u32 v9, v9, v10")
    a("s_lshl_b32 s50, s%d, 1" % sNF)
    a("v_add_u32 v15, s50, v9")
    a("v_add_u32 v18, s%d, v2" % sLB)
    a("v_xor_b32 v19, 0x%x, v18" % (WR * 8192))
    ACC = 128
    for i in range(128): a("v_mov_b32 v%d, 0" % (ACC + i))
    F = [192, 224]

    def reads(t, lss=(0, 1), par=None):
        fb = F[(t if par is None else par) & 1]
        w = []
        for ls in lss:
            for nt in range(4):
                for h in range(2):
                    d = fb + 4 * (ls * 4 + nt) + 2 * h
                    w.append("ds_read_b64_tr_b16 a[%d:%d], v%d offset:%d" % (d, d + 1, 20 + nt, (t % WR) * 8192 + ls * 2048 + h * 512))
        return w
    def cq(ls, rm, k): return ACC + ((ls * 2 + rm) * 8 + k) * 4
    def mfmas(t, lss=(0, 1)):
        fb = F[t & 1]
        xb = (t % XR) * 16
        m = []
        if "M" in dbg: return ["s_nop 0"] * (16 * len(lss))
        for ls in lss:
            for rm in (1, 0):
                for sl in range(2):
                    for nt in range(4):
                        c = cq(ls, rm, sl * 4 + nt)
                        n = ls * 4 + nt; i = rm * 2 + sl
                        m.append("v_mfma_f32_16x16x32_bf16 v[%d:%d], a[%d:%d], a[%d:%d], v[%d:%d]" % (
                            c, c + 3, fb + 4 * n, fb + 4 * n + 3, xb + 4 * i, xb + 4 * i + 3, c, c + 3))
        return m
    def soff(base, k): return (base + (k >> 1)) * 8192 + (k & 1) * 1024

    BPK = os.environ.get("BPK", "1") == "1"
    def add4(d, x, y):
        if BPK: return ["v_pk_add_f32 v[%d:%d], v[%d:%d], v[%d:%d]" % (d + r, d + r + 1, x + r, x + r + 1, y + r, y + r + 1) for r in (0, 2)]
        return ["v_add_f32 v%d, v%d, v%d" % (d + r, x + r, y + r) for r in range(4)]
    def mul4s(d, x, pair, hi):
        if BPK: return ["v_pk_mul_f32 v[%d:%d], v[%d:%d], v[%d:%d] op_sel:[0,%d] op_sel_hi:[1,%d]" % (d + r, d + r + 1, x + r, x + r + 1, pair, pair + 1, hi, hi) for r in (0, 2)]
        return ["v_mul_f32 v%d, v%d, v%d" % (d + r, x + r, pair + hi) for r in range(4)]
    MK = 58
    a("s_mov_b32 s%d, 0xffff0000" % MK)
    G_ = QR + 16; OG = QR + 18
    QP = 64
    def rnd4l(R, T):
        return ["v_cvt_pk_bf16_f32 v%d, v%d, v%d" % (T, R, R + 1), "v_cvt_pk_bf16_f32 v%d, v%d, v%d" % (T + 1, R + 2, R + 3),
                "v_lshlrev_b32 v%d, 16, v%d" % (R, T), "v_and_b32 v%d, s%d, v%d" % (R + 1, MK, T),
                "v_lshlrev_b32 v%d, 16, v%d" % (R + 2, T + 1), "v_and_b32 v%d, s%d, v%d" % (R + 3, MK, T + 1)]
    ZRD = ["ds_read_b64_tr_b16 v[%d:%d], v30 offset:%d" % (QP + 4 * k + 2, QP + 4 * k + 3, (k & 3) * 1024 + (k >> 2) * 32) for k in range(8)]
    PKK = int(os.environ.get("G2PKK", "3"))
    def precompute():
        r = []
        for sl in range(2):
            r.append("v_sub_f32 v%d, 1.0, v%d" % (OG + sl, G_ + sl))
            r.append("v_cvt_pk_bf16_f32 v%d, v%d, v%d" % (OG + sl, OG + sl, OG + sl))
            r.append("v_and_b32 v%d, s%d, v%d" % (OG + sl, MK, OG + sl))
        for k in range(8):
            sl = k >> 2
            Q = QP + 4 * k; Z = 124; T = 120
            qs = QR + 2 * k; zs = Q + 2
            r += ["v_lshlrev_b32 v%d, 16, v%d" % (Z, zs), "v_and_b32 v%d, s%d, v%d" % (Z + 1, MK, zs),
                  "v_lshlrev_b32 v%d, 16, v%d" % (Z + 2, zs + 1), "v_and_b32 v%d, s%d, v%d" % (Z + 3, MK, zs + 1)]
            r += ["v_lshlrev_b32 v%d, 16, v%d" % (Q, qs), "v_and_b32 v%d, s%d, v%d" % (Q + 1, MK, qs),
                  "v_lshlrev_b32 v%d, 16, v%d" % (Q + 2, qs + 1), "v_and_b32 v%d, s%d, v%d" % (Q + 3, MK, qs + 1)]
            if BPK and k >= PKK:
                for i in (0, 2): r.append("v_pk_mul_f32 v[%d:%d], v[%d:%d], v[%d:%d]" % (Q + i, Q + i + 1, Q + i, Q + i + 1, Z + i, Z + i + 1))
                r += rnd4l(Q, T)
                r += mul4s(Q, Q, G_, sl)
                r += rnd4l(Q, T)
                continue
            for i in range(4): r.append("v_mul_f32 v%d, v%d, v%d" % (Q + i, Q + i, Z + i))
            r += rnd4l(Q, T)
            for i in range(4): r.append("v_mul_f32 v%d, v%d, v%d" % (Q + i, Q + i, G_ + sl))
            r += rnd4l(Q, T)
        return r
    PC = precompute()
    LSP = int(os.environ.get("G2LSP", "4"))
    T0 = NST - D
    H = T0 + D // 2
    DQ = []
    XF = int(os.environ.get("G2XF", "0"))
    if XF: DQ += extras
    for t in range(T0, H): DQ += ldk(t)
    if not XF: DQ += extras
    for t in range(H, NST): DQ += ldk(t)
    DS = int(os.environ.get("G2DS", str(NST - XR)))
    DN = int(os.environ.get("G2DN", "12"))
    PS0 = int(os.environ.get("G2PS0", "4")); PSN = int(os.environ.get("G2PSN", "1")); PSIG = int(os.environ.get("G2PSIG", "19")); PCHK = int(os.environ.get("G2PCHK", str(NST - 2)))
    RX = 32
    def sweep():
        return [("buffer_load_dwordx4 v[%d:%d], v2, s[%d:%d], s%d offen offset:%d sc1" % (RX + 4 * k, RX + 4 * k + 3, S_XB, S_XB + 3, sXL + (k >> 2), (k & 3) * 1024), "s") for k in range(8)]
    stamp(1)
    a("s_waitcnt vmcnt(%d)" % younger_than(("w", 0)))
    a("s_barrier")
    stamp(2)
    for i in reads(0, (0, 1) if T0 > 0 else (0,)): a(i)
    for t in range(NST):
        n = younger_than(("x", t))
        if t + 1 < NST: n = min(n, younger_than(("w", t + 1)))
        assert n <= 63, n
        if PB and t == PSIG: n = min(n, younger_than("p"))
        a("s_waitcnt vmcnt(%d) lgkmcnt(0)" % n)
        if "B" not in dbg: a("s_barrier")
        if rts and t == 7: a("s_memrealtime s[94:95]")
        if rts and t == T0 and "C" not in dbg: a("s_memrealtime s[96:97]")
        lss = (0, 1) if t < T0 else (0,)
        nm = 16 * len(lss)
        pl = []
        if t + 1 < NST:
            for n, g in enumerate(reads(t + 1, (0, 1) if t + 1 < T0 else (0,))): pl.append((n + (n >> 1), [(g, None)]))
        gl = mix(t)
        if PB and PS0 <= t < PS0 + 8 // PSN:
            for k in range((t - PS0) * PSN, (t - PS0 + 1) * PSN):
                gl = gl + [[("buffer_store_dwordx4 v[32:35], v2, s[%d:%d], s%d offen offset:%d sc1" % (S_XB, S_XB + 3, sXS + (k >> 2), (k & 3) * 1024), "p")]]
        if PB and t == PSIG:
            pl.append((0, [("s_cmp_lg_u32 s%d, 0" % sW, None), ("s_cbranch_scc1 G2_SIG", None), ("s_mov_b64 exec, 1", None),
                           (" buffer_atomic_or v38, v36, s[%d:%d], 0 offen sc1" % (S_DB, S_DB + 3), None), ("s_mov_b64 exec, -1", None), ("G2_SIG:", None)]))
        if PB and t == PCHK:
            gl = gl + [[("buffer_load_dword v39, v37, s[%d:%d], 0 offen sc1" % (S_DB, S_DB + 3), "f")]]
        if t >= DS:
            k = max(0, DN - len(gl)) if t < NST - 1 else len(DQ)
            gl = gl + DQ[:k]; DQ = DQ[k:]
        for n, g in enumerate(gl): pl.append(((n * nm) // max(8, len(gl)) + 1, g))
        if t == NST - 1:
            for k in range(8):
                c = cq(0, 1, k)
                pl.append((8 + k, [("ds_write_b128 v18, v[%d:%d] offset:%d" % (c, c + 3, soff(4, k)), None)]))
        for it in place([(m, None) for m in mfmas(t, lss)], pl): emit(*it)
    assert not DQ

    a("s_waitcnt lgkmcnt(0)")
    a("s_barrier")
    for k in range(8):
        c = cq(0, 1, k)
        a("ds_read_b128 v[%d:%d], v19 offset:%d" % (c, c + 3, soff(4, k)))
    for k in range(8):
        a("s_waitcnt lgkmcnt(%d)" % (7 - k))
        c = cq(0, 0, k); d = cq(0, 1, k)
        for i in add4(c, c, d): a(i)
        for r in range(4): a("v_min_u32 v%d, -2, v%d" % (c + r, c + r))
        emit("buffer_store_dwordx4 v[%d:%d], v2, s[%d:%d], s%d offen offset:%d sc1" % (c, c + 3, S_XB, S_XB + 3, sXS + (k >> 2), (k & 3) * 1024), "st")
    if PB and PCHK < 0:
        emit("buffer_load_dword v39, v37, s[%d:%d], 0 offen sc1" % (S_DB, S_DB + 3), "f")
    stamp(4)
    def fchk():
        a("s_waitcnt vmcnt(%d)" % younger_than("f"))
        a("s_mov_b32 s72, 0x8000")
        a.label("G2_FCHK")
        a("v_readfirstlane_b32 s50, v39")
        a("s_lshr_b32 s50, s50, s73")
        a("s_and_b32 s50, s50, 1")
        a("s_cbranch_scc1 G2_FOK")
        a("s_sub_u32 s72, s72, 1")
        a("s_cmp_eq_u32 s72, 0")
        a("s_cbranch_scc1 G2_FOK")
        a("s_sleep 4")
        a("buffer_load_dword v39, v37, s[%d:%d], 0 offen sc1" % (S_DB, S_DB + 3))
        a("s_waitcnt vmcnt(0)")
        a("s_branch G2_FCHK")
        a.label("G2_FOK")
    SW = int(os.environ.get("G2SW", str(NST - 1)))
    NPC = int(os.environ.get("G2NPC", "2"))
    if D:
        a("s_waitcnt vmcnt(%d)" % younger_than(("k", H - 1)))
        a("s_barrier")
        for i in reads(T0, (1,)): a(i)
    for t in range(T0, NST):
        if t == H - 1:
            a("s_waitcnt vmcnt(%d) lgkmcnt(0)" % younger_than(("k", NST - 1)))
            a("s_barrier")
        else:
            a("s_waitcnt lgkmcnt(0)")
        if PB and t == SW: fchk()
        pl = []
        if t + 1 < NST:
            for n, g in enumerate(reads(t + 1, (1,))): pl.append((n, [(g, None)]))
        if t == (T0 if XF else H - 1):
            for k, g in enumerate(ZRD): pl.append((8 + k, [(g, None)]))
        if t >= (T0 + 1 if XF else H):
            for k in range(16): pl.append((k, [(g, None) for g in PC[NPC * k:NPC * k + NPC]]))
            PC = PC[NPC * 16:]
        if t == SW:
            for k, g in enumerate(sweep()): pl.append((2 * k, [g]))
        if t == NST - 1:
            for k in range(8):
                c = cq(1, 1, k)
                pl.append((8 + k, [("ds_write_b128 v18, v[%d:%d] offset:%d" % (c, c + 3, soff(0, k)), None)]))
        for it in place([(m, None) for m in mfmas(t, (1,))], pl): emit(*it)
    stamp(3)
    NP1 = int(os.environ.get("G2NP1", "40"))
    for i in PC[:NP1]: a(i)
    PC = PC[NP1:]
    a("s_waitcnt lgkmcnt(0)")
    a("s_barrier")
    for k in range(8):
        c = cq(1, 1, k)
        a("ds_read_b128 v[%d:%d], v19 offset:%d" % (c, c + 3, soff(0, k)))
    if SW >= NST:
        if PB: fchk()
        for g in sweep(): emit(*g)
    for i in PC: a(i)
    a("s_waitcnt lgkmcnt(0)")
    for k in range(8):
        c = cq(1, 0, k); d = cq(1, 1, k)
        for i in add4(c, c, d): a(i)
    a("s_mov_b32 s72, 0x8000")
    a("s_branch G2_CHK")
    a.label("G2_POLL")
    a("s_sub_u32 s72, s72, 1")
    a("s_cmp_eq_u32 s72, 0")
    a("s_cbranch_scc1 G2_FIN")
    for g in sweep(): a(g[0])
    a.label("G2_CHK")
    a("s_waitcnt vmcnt(0)")
    a("v_max3_u32 v120, v%d, v%d, v%d" % (RX, RX + 1, RX + 2))
    a("v_max3_u32 v121, v%d, v%d, v%d" % (RX + 3, RX + 4, RX + 5))
    for i in range(13):
        d = 120 + (i & 1)
        a("v_max3_u32 v%d, v%d, v%d, v%d" % (d, d, RX + 6 + 2 * i, RX + 7 + 2 * i))
    a("v_max_u32 v120, v120, v121")
    a("v_cmp_eq_u32 vcc, -1, v120")
    a("s_nop 1")
    if "P" not in dbg: a("s_cbranch_vccnz G2_POLL")
    a.label("G2_FIN")
    if "C" in dbg:
        a("s_memrealtime s[94:95]")
        a("s_sub_u32 s96, 0x8000, s72")
    for nt in range(4):
        for sl in range(2):
            k = sl * 4 + nt
            B = cq(1, 0, k)
            T = 124; O = 96 + 4 * nt + 2 * sl
            for i in add4(B, B, RX + 4 * k): a(i)
            for i in rnd4l(B, T): a(i)
            for i in mul4s(B, B, OG, sl): a(i)
            for i in rnd4l(B, T): a(i)
            for i in add4(B, B, QP + 4 * k): a(i)
            a("v_cvt_pk_bf16_f32 v%d, v%d, v%d" % (O, B, B + 1))
            a("v_cvt_pk_bf16_f32 v%d, v%d, v%d" % (O + 1, B + 2, B + 3))
        O = 96 + 4 * nt
        a("s_nop 1")
        a("v_permlane16_swap_b32 v%d, v%d" % (O, O + 2))
        a("v_permlane16_swap_b32 v%d, v%d" % (O + 1, O + 3))
        a("s_nop 0")
        a("buffer_store_dwordx4 v[%d:%d], v15, s[%d:%d], 0 offen offset:%d" % (O, O + 3, S_O, S_O + 3, nt * 32))

def poison(a):
    r = ["s_add_u32 s76, s72, 0x%x" % XB_OFF, "s_addc_u32 s77, s73, 0", "s_mov_b32 s78, 0x%x" % XB_BYTES, "s_mov_b32 s79, 0x00020000",
         "s_lshl_b32 s62, s2, 2", "s_add_u32 s62, s62, s40", "s_lshl_b32 s62, s62, 16", "v_lshlrev_b32 v248, 4, v0"]
    for i in range(4): r.append("v_mov_b32 v%d, -1" % (244 + i))
    for b in range(16):
        for k in range(4):
            r.append("buffer_store_dwordx4 v[244:247], v248, s[76:79], s62 offen offset:%d sc1" % (k * 1024))
        r.append("s_add_u32 s62, s62, 4096")
    return r
```

```python
from asmlib import *
from layout import G_PITCH, Z_OFF, Z_BYTES

import os
ROT = int(os.environ.get('ROT', '5'))
PD = int(os.environ.get('PD', '6'))
DS0 = int(os.environ.get('DS0', '1'))
DSP = int(os.environ.get('DSP', '4'))
H1_OFF = 0
H1_BYTES = 2048 * 3584 * 2

def gen_gemm1(a, name="g1_kernel", end_label="G1_END", stamps=False, dbg="", fuse=False, rts=False):
    PST = os.environ.get("PST", "") != ""
    def rt(r):
        if rts and not (PST and r in (90,)): a("s_memrealtime s[%d:%d]" % (r, r + 1))
    def prt(r):
        if rts and PST: a("s_memrealtime s[%d:%d]" % (r, r + 1))
    def stamp(i):
        if stamps:
            a("s_memtime s[%d:%d]" % (60 + 2 * i, 61 + 2 * i))
    stamp(0)
    S_X, S_WG, S_WU, S_H = 4, 8, 12, 16
    sKX, sKW, sCNT = 20, 21, 22
    sM0 = 32
    sW = 40
    sT = 41
    vXoff = 2
    vWoff = 10
    vXa = 14
    vWa = 18
    vT = 26
    F = [64, 128]

    a("s_load_dwordx2 s[24:25], s[0:1], 0")
    a("s_load_dwordx2 s[26:27], s[0:1], 56")
    a("s_load_dwordx2 s[28:29], s[0:1], 64")
    a("s_load_dwordx2 s[30:31], s[0:1], 104")
    if fuse: code_touch(a, 76, 45, 0, "g1_kernel", end_label="G1_PREP")
    a("s_and_b32 s41, s2, 7")
    a("s_lshr_b32 s42, s2, 3")
    if fuse: a("s_sub_u32 s42, s42, 4")
    a("s_and_b32 s43, s41, 1")
    a("s_lshl_b32 s43, s43, 2")
    a("s_and_b32 s44, s42, 3")
    a("s_add_u32 s43, s43, s44")
    a("s_lshr_b32 s44, s41, 1")
    a("s_mul_i32 s44, s44, 7")
    a("s_lshr_b32 s45, s42, 2")
    a("s_add_u32 s44, s44, s45")
    if "Z" in dbg:
        a("s_mov_b32 s43, 0")
        a("s_mov_b32 s44, 0")
    if "Y" in dbg:
        a("s_and_b32 s43, s43, 1")
        a("s_and_b32 s44, s44, 1")
    a("s_lshl_b32 s43, s43, 8")
    a("s_lshl_b32 s44, s44, 7")
    a("v_lshrrev_b32 v1, 6, v0")
    a("v_and_b32 v0, 63, v0")
    a("s_nop 0")
    a("v_readfirstlane_b32 s%d, v1" % sW)
    LATE = os.environ.get("LATE", "1") == "1"
    def srds():
        a("s_waitcnt lgkmcnt(0)")
        prt(86)
        srd(a, S_X, 24, 2048 * 1024 * 2)
        srd(a, S_WG, 26, 1024 * 3584 * 2)
        srd(a, S_WU, 28, 1024 * 3584 * 2)
        if not LATE: srd(a, S_H, 30, H1_BYTES)
    if not LATE: srds()
    a("s_lshl_b32 s45, s%d, 13" % sW)
    a("s_lshl_b32 s46, s%d, 12" % sW)
    for b in range(2):
        a("s_add_u32 s%d, s45, 0x%x" % (sM0 + 4 * b + 0, (1 - b) * 65536))
        a("s_add_u32 s%d, s45, 0x%x" % (sM0 + 4 * b + 1, (1 - b) * 65536 + 4096))
        a("s_add_u32 s%d, s46, 0x%x" % (sM0 + 4 * b + 2, (1 - b) * 65536 + 32768))
        a("s_add_u32 s%d, s46, 0x%x" % (sM0 + 4 * b + 3, (1 - b) * 65536 + 49152))
    t0, t1, t2, t3 = vT, vT + 1, vT + 2, vT + 3
    a("v_lshrrev_b32 v%d, 3, v0" % t0)
    a("s_lshl_b32 s45, s%d, 6" % sW)
    a("s_add_u32 s45, s45, s43")
    a("v_add_u32 v%d, s45, v%d" % (t0, t0))
    a("v_lshlrev_b32 v%d, 11, v%d" % (t0, t0))
    a("v_and_b32 v%d, 7, v0" % t1)
    a("v_lshrrev_b32 v%d, 4, v0" % t2)
    a("v_xor_b32 v%d, v%d, v%d" % (t1, t1, t2))
    a("v_lshlrev_b32 v%d, 4, v%d" % (t1, t1))
    a("v_add_u32 v%d, v%d, v%d" % (t0, t0, t1))
    a("v_xor_b32 v%d, 64, v%d" % (t1, t0))
    for j in range(8):
        a("v_add_u32 v%d, 0x%x, v%d" % (vXoff + j, j * 16384 - (j & 3) * 1024, t0 if j % 2 == 0 else t1))
    a("s_lshl_b32 s45, s%d, 4" % sW)
    a("v_add_u32 v%d, s45, v%d" % (t0, t2))
    a("s_movk_i32 s46, 7168")
    a("v_mul_lo_u32 v%d, v%d, s46" % (t0, t0))
    a("s_lshl_b32 s45, s44, 1")
    a("v_add_u32 v%d, s45, v%d" % (t0, t0))
    a("v_and_b32 v%d, 15, v0" % t1)
    a("v_lshlrev_b32 v%d, 1, v%d" % (t3, t2))
    a("v_xor_b32 v%d, v%d, v%d" % (t1, t1, t3))
    a("v_lshlrev_b32 v%d, 4, v%d" % (t1, t1))
    a("v_add_u32 v%d, v%d, v%d" % (t0, t0, t1))
    a("v_xor_b32 v%d, 0x80, v%d" % (t1, t0))
    for j in range(4):
        a("v_add_u32 v%d, 0x%x, v%d" % (vWoff + j, j * 4 * 7168 - j * 1024, t0 if j < 2 else t1))
    def touch_setup():
        a("s_lshr_b32 s45, s42, 2")
        a("s_mul_i32 s45, s45, 40")
        TX = int(os.environ.get("TX", "0"))
        if TX:
            a("s_cmp_eq_u32 s%d, 3" % sW)
            a("s_cselect_b32 s47, 20, 0")
            a("s_add_u32 s45, s45, s47")
            a("v_min_u32 v%d, 19, v0" % t0)
            a("v_add_u32 v%d, s45, v%d" % (t0, t0))
        else:
            a("v_add_u32 v%d, s45, v0" % t0)
        a("v_min_u32 v%d, 255, v%d" % (t0, t0))
        a("v_add_u32 v%d, s43, v%d" % (t0, t0))
        a("v_lshlrev_b32 v%d, 11, v%d" % (t0, t0))
        a("v_lshrrev_b32 v%d, 1, v0" % t1)
        a("v_and_b32 v%d, 15, v%d" % (t1, t1))
        a("v_lshlrev_b32 v%d, 2, v%d" % (t1, t1))
        a("s_and_b32 s45, s42, 3")
        a("v_add_u32 v%d, s45, v%d" % (t1, t1))
        a("v_mul_lo_u32 v%d, v%d, s46" % (t1, t1))
        a("v_and_b32 v%d, 1, v0" % t3)
        a("v_lshlrev_b32 v%d, 7, v%d" % (t3, t3))
        a("v_add_u32 v%d, v%d, v%d" % (t1, t1, t3))
        a("s_lshl_b32 s45, s44, 1")
        a("v_add_u32 v%d, s45, v%d" % (t1, t1))
        a("s_cmp_eq_u32 s%d, 1" % sW)
        a("s_cselect_b32 s52, s26, s24")
        a("s_cselect_b32 s53, s27, s25")
        a("s_cmp_eq_u32 s%d, 2" % sW)
        a("s_cselect_b32 s52, s28, s52")
        a("s_cselect_b32 s53, s29, s53")
        a("s_add_u32 s45, s%d, -1" % sW)
        a("s_mov_b32 s54, 0x%x" % (2048 * 1024 * 2))
        a("s_movk_i32 s57, 128")
        a("s_cmp_lt_u32 s45, 2")
        a("s_cselect_b32 s54, 0x%x, s54" % (1024 * 3584 * 2))
        a("s_mov_b32 s55, 0x00020000")
        a("s_cselect_b32 s57, 0x%x, s57" % (64 * 7168))
        a("s_cselect_b64 vcc, -1, 0")
        a("s_nop 1")
        a("v_cndmask_b32 v41, v%d, v%d, vcc" % (t0, t1))
        a("s_lshl_b32 s56, s57, 1")
    if "P" in dbg and not LATE: touch_setup()
    if "K" in dbg:
        a("s_mul_i32 s23, s42, %d" % ROT)
        a("s_and_b32 s23, s23, 15")
        a("s_lshl_b32 s%d, s23, 7" % sKX)
        a("s_mul_i32 s%d, s23, 0x%x" % (sKW, 64 * 7168))
    else:
        a("s_mov_b32 s%d, 0" % sKX)
        a("s_mov_b32 s%d, 0" % sKW)

    def dma(b):
        g = []
        for half in range(2):
            if "W" in dbg: break
            for jj in range(4):
                j = half * 4 + jj
                ins = []
                if jj == 0:
                    ins.append("s_mov_b32 m0, s%d" % (sM0 + 4 * b + half))
                    ins.append("s_nop 0")
                ins.append("buffer_load_dwordx4 v%d, s[%d:%d], s%d offen offset:%d lds" % (vXoff + j, S_X, S_X + 3, sKX, jj * 1024))
                g.append(ins)
        for gu in range(2):
            if "X" in dbg: break
            S = S_WG if gu == 0 else S_WU
            for j in range(4):
                ins = []
                if j == 0:
                    ins.append("s_mov_b32 m0, s%d" % (sM0 + 4 * b + 2 + gu))
                    ins.append("s_nop 0")
                ins.append("buffer_load_dwordx4 v%d, s[%d:%d], s%d offen offset:%d lds" % (vWoff + j, S, S + 3, sKW, j * 1024))
                g.append(ins)
        if "K" in dbg:
            g[-1].append("s_add_u32 s23, s23, 1")
            g[-1].append("s_and_b32 s23, s23, 15")
            g[-1].append("s_lshl_b32 s%d, s23, 7" % sKX)
            g[-1].append("s_mul_i32 s%d, s23, 0x%x" % (sKW, 64 * 7168))
        else:
            g[-1].append("s_add_u32 s%d, s%d, 128" % (sKX, sKX))
            g[-1].append("s_add_u32 s%d, s%d, 0x%x" % (sKW, sKW, 64 * 7168))
        return g

    import prep4, conv2
    dprep = fuse and conv2.TARGET == 16
    if dprep:
        prep4.prep4_issue(a, 60, 62, 100, 30, 64, 64, sW)
    if LATE: srds()
    prt(96)
    for g in dma(0):
        for i in g: a(i)
    for g in dma(1):
        for i in g: a(i)
    prt(90)
    if LATE:
        srd(a, S_H, 30, H1_BYTES)
        if "P" in dbg: touch_setup()
    def touch():
        return ["buffer_load_dword v42, v41, s[52:55], s56 offen", "s_add_u32 s56, s56, s57"]
    if "P" in dbg:
        for _ in range(PD - 2):
            for i in touch(): a(i)

    NCT = 0
    a("s_lshr_b32 s45, s%d, 1" % sW)
    a("s_and_b32 s46, s%d, 1" % sW)
    a("v_and_b32 v%d, 15, v0" % t0)
    a("s_lshl_b32 s47, s45, 7")
    a("v_add_u32 v%d, s47, v%d" % (t0, t0))
    a("v_lshlrev_b32 v%d, 7, v%d" % (t0, t0))
    a("v_lshrrev_b32 v%d, 1, v0" % t1)
    a("v_and_b32 v%d, 7, v%d" % (t1, t1))
    a("v_xor_b32 v%d, v%d, v%d" % (t1, t1, t2))
    a("v_lshlrev_b32 v%d, 4, v%d" % (t1, t1))
    a("v_add_u32 v%d, v%d, v%d" % (vXa + 2, t0, t1))
    a("v_xor_b32 v%d, 64, v%d" % (vXa + 3, vXa + 2))
    a("v_add_u32 v%d, 0x10000, v%d" % (vXa + 0, vXa + 2))
    a("v_add_u32 v%d, 0x10000, v%d" % (vXa + 1, vXa + 3))
    a("v_lshrrev_b32 v%d, 2, v0" % t0)
    a("v_and_b32 v%d, 3, v%d" % (t0, t0))
    a("v_lshlrev_b32 v%d, 3, v%d" % (t1, t2))
    a("v_add_u32 v%d, v%d, v%d" % (t1, t1, t0))
    a("v_lshlrev_b32 v%d, 8, v%d" % (t1, t1))
    a("v_and_b32 v%d, 3, v0" % t3)
    a("v_lshlrev_b32 v%d, 3, v%d" % (t3, t3))
    a("v_add_u32 v%d, v%d, v%d" % (t1, t1, t3))
    a("v_add_u32 v%d, 0x8000, v%d" % (t1, t1))
    a("v_and_b32 v%d, 1, v%d" % (t3, t2))
    a("v_lshlrev_b32 v%d, 2, v%d" % (t3, t3))
    a("v_or_b32 v%d, v%d, v%d" % (t0, t0, t3))
    a("s_lshl_b32 s47, s46, 2")
    for t in range(4):
        a("s_add_u32 s48, s47, %d" % t)
        a("v_xor_b32 v%d, s48, v%d" % (t3, t0))
        a("v_lshlrev_b32 v%d, 5, v%d" % (t3, t3))
        a("v_add_u32 v%d, v%d, v%d" % (vWa + 4 + t, t1, t3))
        a("v_add_u32 v%d, 0x10000, v%d" % (vWa + t, vWa + 4 + t))
    if fuse and not dprep:
        conv2.conv_ptrs(a)
    POIS = fuse and os.environ.get("G2", "x") in "wx" and os.environ.get("POIS", "b") == "g"
    from layout import XB_OFF, XB_BYTES
    PSTR = int(os.environ.get("PSTR", "1"))
    PSET = ["s_add_u32 s52, s30, 0x%x" % XB_OFF, "s_addc_u32 s53, s31, 0", "s_mov_b32 s54, 0x%x" % XB_BYTES, "s_mov_b32 s55, 0x00020000",
            "s_lshl_b32 s56, s2, 2", "s_add_u32 s56, s56, s%d" % sW, "s_sub_u32 s56, s56, 128", "s_lshl_b32 s56, s56, 10" if PSTR != 1 else "s_mul_i32 s56, s56, 9472", "v_lshlrev_b32 v52, 4, v0"]
    PSET += ["v_mov_b32 v%d, -1" % (48 + i) for i in range(4)]
    PST_ = ["buffer_store_dwordx4 v[48:51], v52, s[52:55], s56 offen sc1", "s_add_u32 s56, s56, 0x%x" % (PSTR * 1024)]
    NPO = 10 if POIS else 0
    POIL = fuse and os.environ.get("G2", "x") in "wx" and os.environ.get("POIS", "b") == "l"
    POIP = fuse and os.environ.get("G2", "x") in "wx" and os.environ.get("POIS", "b") in ("p", "q")
    if POIL or POIP:
        for i in PSET: a(i.replace("s52", "s80").replace("s53", "s81").replace("s54", "s82").replace("s55", "s83").replace("s56", "s84"))
    PSL = [i.replace("s[52:55]", "s[80:83]").replace("s56", "s84") for i in PST_]
    for i in range(256):
        a("v_accvgpr_write_b32 a%d, 0" % i)
        if POIP and os.environ["POIS"] == "p" and i % 24 == 8 and i < 240:
            for j in PSL: a(j)
            NCT += 1
    if POIP and os.environ["POIS"] == "q":
        for _ in range(10):
            for j in PSL: a(j)
            NCT += 1

    def reads(fs, b, s):
        fb = F[fs]
        r = []
        for i in range(8):
            r.append(["ds_read_b128 v[%d:%d], v%d offset:%d" % (fb + 4 * i, fb + 4 * i + 3, vXa + 2 * b + s, i * 2048)])
        w = []
        for gu in range(2):
            for t in range(4):
                for h in range(2):
                    d = fb + 32 + 4 * (gu * 4 + t) + 2 * h
                    w.append(["ds_read_b64_tr_b16 v[%d:%d], v%d offset:%d" % (d, d + 1, vWa + 4 * b + t, gu * 16384 + s * 8192 + h * 1024)])
        out = []
        for i in range(8):
            out.append(r[i]); out.append(w[2 * i]); out.append(w[2 * i + 1])
        return out

    def mfmas(fs):
        fb = F[fs]
        m = []
        if "M" in dbg: return m
        for i in range(8):
            for wt in range(8):
                c = (wt * 8 + i) * 4
                m.append("v_mfma_f32_16x16x32_bf16 a[%d:%d], v[%d:%d], v[%d:%d], a[%d:%d]" % (
                    c, c + 3, fb + 32 + 4 * wt, fb + 32 + 4 * wt + 3, fb + 4 * i, fb + 4 * i + 3, c, c + 3))
        return m

    stamp(1)
    if fuse and not dprep and os.environ.get("TLB"):
        a("s_waitcnt lgkmcnt(0)")
        a("s_lshl_b32 s80, s2, 2")
        a("s_add_u32 s80, s80, s%d" % sW)
        a("s_lshl_b32 s80, s80, 12")
        a("v_mov_b32 v45, 0")
        a("s_mov_b32 s79, 0x00020000")
        for P, nb, so in ((conv2.P_HK, 1024 * 2048 * 2, "s80"), (conv2.P_GW, 2048, "0"), (conv2.P_D, 2048, "0"), (conv2.P_DBG, 256, "0")):
            a("s_mov_b32 s76, s%d" % P)
            a("s_mov_b32 s77, s%d" % (P + 1))
            a("s_mov_b32 s78, 0x%x" % nb)
            a("buffer_load_dword v46, v45, s[76:79], %s offen%s" % (so, " sc1" if P == conv2.P_DBG else ""))
            NCT += 1
        a("s_add_u32 s76, s30, 0x%x" % Z_OFF)
        a("s_addc_u32 s77, s31, 0")
        a("s_mov_b32 s78, 0x%x" % Z_BYTES)
        a("buffer_load_dword v46, v45, s[76:79], s80 offen")
        NCT += 1
    if dprep:
        a("s_waitcnt vmcnt(%d)" % (32 + PD - 2))
        rt(96)
        prep4.prep4_compute(a, 64, 64, "A")
        conv2.conv_ptrs(a)
        rt(86)
    a("s_waitcnt vmcnt(%d)" % ((8 if ("X" in dbg or "W" in dbg) else 16) + (PD - 2 if "P" in dbg else 0) + (8 if dprep else 0) + NCT))
    prt(94)
    a("s_barrier")
    stamp(2)
    if rts and not dprep:
        rt(98)
        if not PST: a("s_memtime s[86:87]")
    for g in reads(0, 0, 0):
        for i in g: a(i)

    LST = os.environ.get("LST", "") != ""
    if LST:
        a("s_lshl_b32 s90, s%d, 8" % sW)
        a("s_add_u32 s90, s90, 150016")
        a("v_mov_b32 v44, s90")
        a("s_memtime s[90:91]")
    def lst():
        if LST:
            a("v_mov_b32 v43, s90")
            a("ds_write_b32 v44, v43")
            a("v_add_u32 v44, 4, v44")
            a("s_memtime s[90:91]")
    def stage(b, do_dma, do_next, first=False, preB=None, vmB=None, extraA=None, extraB=None, tailB=None, postW=None, plB=None, plA=None):
        a("s_waitcnt lgkmcnt(0)")
        lst()
        pa = [(2 * n, g) for n, g in enumerate(reads(1, b, 1) if "R" not in dbg else [])]
        if extraA: pa += [(1 + 4 * n, g) for n, g in enumerate(extraA)]
        if plA: pa += plA
        for i in place(mfmas(0), pa): a(i)
        a("s_waitcnt lgkmcnt(0)")
        lst()
        if preB: preB()
        if do_next:
            if "V" in dbg:
                pass
            elif vmB is not None:
                a("s_waitcnt vmcnt(%d)" % vmB)
            elif first == 1:
                a("s_waitcnt vmcnt(%d)" % (PD - 2 + 8))
            elif "P" in dbg:
                a("s_waitcnt vmcnt(%d)" % (1 if "2" not in dbg else 18))
            else:
                a("s_waitcnt vmcnt(%d)" % (0 if "2" not in dbg else (8 if ("X" in dbg or "W" in dbg) else 16)))
            if postW: postW()
            if LST:
                a("s_waitcnt lgkmcnt(0)")
                lst()
            if "B" not in dbg: a("s_barrier")
            if LST:
                a("s_waitcnt lgkmcnt(0)")
                lst()
            if first == 2:
                conv2.flag_srd(a)
                a("s_cmp_lg_u32 s%d, 0" % sW)
                a("s_cbranch_scc1 G1_P0")
                conv2.signal(a)
                a.label("G1_P0")
        pl = []
        if do_next and "R" not in dbg:
            for n, g in enumerate(reads(0, b ^ 1, 0)): pl.append((2 * n, g))
        if do_dma and "D" not in dbg:
            dl = dma(b)
            if "P" in dbg: dl[-1] = dl[-1] + touch()
            if tailB: dl[-1] = dl[-1] + tailB
            for n, g in enumerate(dl): pl.append((DS0 + DSP * n, g))
        if extraB: pl += [(1 + 4 * n, g) for n, g in enumerate(extraB)]
        if plB: pl += plB
        for i in place(mfmas(1), pl): a(i)

    def epilogue():
        vS = 2
        a("s_lshr_b32 s47, s43, 7")
        a("s_add_u32 s47, s47, s45")
        a("s_mul_i32 s47, s47, 112")
        a("s_lshr_b32 s48, s44, 5")
        a("s_add_u32 s47, s47, s48")
        a("s_lshl_b32 s48, s46, 1")
        a("s_add_u32 s47, s47, s48")
        a("s_lshl_b32 s47, s47, 13")
        a("v_and_b32 v%d, 15, v0" % t0)
        a("v_lshlrev_b32 v%d, 4, v%d" % (t0, t0))
        a("v_lshrrev_b32 v%d, 1, v%d" % (t1, t2))
        a("v_lshlrev_b32 v%d, 8, v%d" % (t1, t1))
        a("v_add_u32 v%d, v%d, v%d" % (t0, t0, t1))
        a("v_and_b32 v%d, 1, v%d" % (t1, t2))
        a("v_lshlrev_b32 v%d, 10, v%d" % (t1, t1))
        a("v_add_u32 v%d, v%d, v%d" % (t0, t0, t1))
        a("v_add_u32 v%d, s47, v%d" % (vS, t0))
        a("s_mov_b32 s56, 0")
        a("s_movk_i32 s57, 4096")
        a("s_movk_i32 s58, 8192")
        a("s_movk_i32 s59, 12288")
        import math
        C0 = -2.0 * math.sqrt(2.0 / math.pi) * math.log2(math.e)
        C1 = C0 * 0.044715
        import struct
        def f2u(x): return struct.unpack("<I", struct.pack("<f", x))[0]
        a("s_mov_b32 s50, 0x%x" % f2u(C0))
        a("s_mov_b32 s51, 0x%x" % f2u(C1))
        a("v_mov_b32 v3, s50")
        groups = []
        cnt = 0
        SC = os.environ.get("H1SC", " sc1")
        for ip in range(4):
            for t in range(4):
                G = 212; U = 220; T = 228; P = 236 + 4 * (cnt % 4)
                cnt += 1
                i = 2 * ip
                cg = (t * 8 + i) * 4
                cu = ((4 + t) * 8 + i) * 4
                e = []
                for r in range(8): e.append("v_accvgpr_read_b32 v%d, a%d" % (G + r, cg + r))
                for r in range(8): e.append("v_mul_f32 v%d, v%d, v%d" % (T + r, G + r, G + r))
                for r in range(8): e.append("v_fma_f32 v%d, v%d, s51, v3" % (T + r, T + r))
                for r in range(8): e.append("v_mul_f32 v%d, v%d, v%d" % (T + r, T + r, G + r))
                for r in range(8):
                    e.append("v_exp_f32 v%d, v%d" % (T + r, T + r))
                    e.append("v_accvgpr_read_b32 v%d, a%d" % (U + r, cu + r))
                for r in range(8): e.append("v_add_f32 v%d, 1.0, v%d" % (T + r, T + r))
                for r in range(8):
                    e.append("v_rcp_f32 v%d, v%d" % (T + r, T + r))
                    e.append("v_mul_f32 v%d, v%d, v%d" % (U + r, U + r, G + r))
                for r in range(8): e.append("v_mul_f32 v%d, v%d, v%d" % (U + r, U + r, T + r))
                for k in range(4): e.append("v_cvt_pk_bf16_f32 v%d, v%d, v%d" % (P + k, U + 2 * k, U + 2 * k + 1))
                e.append("s_nop 1")
                e.append("v_permlane16_swap_b32 v%d, v%d" % (P, P + 2))
                e.append("v_permlane16_swap_b32 v%d, v%d" % (P + 1, P + 3))
                e.append("s_nop 0")
                e.append("buffer_store_dwordx4 v[%d:%d], v%d, s[%d:%d], s%d offen offset:%d%s" % (P, P + 3, vS, S_H, S_H + 3, 56 + (i >> 2) + 2 * (t >> 1), (i & 3) * 1024 + (t & 1) * 512, SC))
                groups.append(e)
        NSC = int(os.environ.get("NSC", "3"))
        if fuse and NSC < 16:
            a("s_mov_b32 s20, s51")
            a("s_mov_b32 s21, s51")
            a("s_mov_b32 s22, 1.0")
            a("s_mov_b32 s23, 1.0")
            a("v_mov_b32 v254, s50")
            a("v_mov_b32 v255, s50")
            gl = [(ip, t) for ip in range(4) for t in range(4)][NSC:]
            G = 212; U = 220
            TS = [136, 144, 152]; PS = [176, 184, 192]; OS = [236, 240, 244, 248]
            def pr(x): return "v[%d:%d]" % (x, x + 1)
            def rd(k):
                ip, t = gl[k]; i = 2 * ip
                cg = (t * 8 + i) * 4; cu = ((4 + t) * 8 + i) * 4
                return ["v_accvgpr_read_b32 v%d, a%d" % (G + r, cg + r) for r in range(8)] + ["v_accvgpr_read_b32 v%d, a%d" % (U + r, cu + r) for r in range(8)]
            def pk1(k):
                T = TS[k % 3]; Q = PS[k % 3]
                e = ["v_pk_mul_f32 %s, %s, %s" % (pr(T + r), pr(G + r), pr(G + r)) for r in range(0, 8, 2)]
                e += ["v_pk_fma_f32 %s, %s, s[20:21], v[254:255]" % (pr(T + r), pr(T + r)) for r in range(0, 8, 2)]
                e += ["v_pk_mul_f32 %s, %s, %s" % (pr(Q + r), pr(U + r), pr(G + r)) for r in range(0, 8, 2)]
                e += ["v_pk_mul_f32 %s, %s, %s" % (pr(T + r), pr(T + r), pr(G + r)) for r in range(0, 8, 2)]
                return e
            def ex(k): return ["v_exp_f32 v%d, v%d" % (TS[k % 3] + r, TS[k % 3] + r) for r in range(8)]
            def pk2(k): return ["v_pk_add_f32 %s, %s, s[22:23]" % (pr(TS[k % 3] + r), pr(TS[k % 3] + r)) for r in range(0, 8, 2)]
            def rc(k): return ["v_rcp_f32 v%d, v%d" % (TS[k % 3] + r, TS[k % 3] + r) for r in range(8)]
            def pk3(k): return ["v_pk_mul_f32 %s, %s, %s" % (pr(PS[k % 3] + r), pr(PS[k % 3] + r), pr(TS[k % 3] + r)) for r in range(0, 8, 2)]
            def st(k):
                ip, t = gl[k]; i = 2 * ip
                Q = PS[k % 3]; P = OS[k % 4]
                return (["v_cvt_pk_bf16_f32 v%d, v%d, v%d" % (P + j, Q + 2 * j, Q + 2 * j + 1) for j in range(4)],
                        ["v_permlane16_swap_b32 v%d, v%d" % (P, P + 2), "v_permlane16_swap_b32 v%d, v%d" % (P + 1, P + 3)],
                        ["buffer_store_dwordx4 v[%d:%d], v%d, s[%d:%d], s%d offen offset:%d%s" % (P, P + 3, vS, S_H, S_H + 3, 56 + (i >> 2) + 2 * (t >> 1), (i & 3) * 1024 + (t & 1) * 512, SC)])
            n = len(gl)
            stream = []
            for k in range(-1, n + 2):
                N = []
                c = p = b = []
                if 0 <= k - 2 < n: c, p, b = st(k - 2)
                r_ = rd(k + 1) if k + 1 < n else []
                e_ = ex(k) if 0 <= k < n else []
                q_ = rc(k - 1) if 0 <= k - 1 < n else []
                N += c
                tr = e_ + q_
                mix_ = []
                for j in range(max(len(tr), len(r_))):
                    if j < len(tr): mix_.append(tr[j])
                    if j < len(r_): mix_.append(r_[j])
                h = min(len(mix_), 6)
                N += mix_[:h]
                if p:
                    if h < 2: N.append("s_nop 1")
                    N += p
                N += mix_[h:h + 4]
                if b:
                    if len(mix_) < h + 1: N.append("s_nop 0")
                    N += b
                N += mix_[h + 4:]
                Pk = []
                if 0 <= k - 1 < n: Pk += pk3(k - 1)
                if 0 <= k < n: Pk += pk2(k)
                if k + 1 < n: Pk += pk1(k + 1)
                if Pk: N.append("s_nop 0")
                stream += N + Pk
            groups = groups[:NSC] + [stream]
        return groups

    a("s_mov_b32 s%d, 0" % sCNT)
    if dprep:
        stage(0, True, True, first=1)
        stage(1, True, True, first=2)
        a("s_mov_b32 s%d, 1" % sCNT)
        rt(98)
    a.label("G1_LOOP")
    if POIL:
        stage(0, True, True, tailB=PSL, vmB=2)
        stage(1, True, True, tailB=PSL, vmB=2)
    else:
        stage(0, True, True)
        stage(1, True, True)
    a("s_add_u32 s%d, s%d, 1" % (sCNT, sCNT))
    a("s_cmp_lt_u32 s%d, %d" % (sCNT, 6 if fuse else 7))
    a("s_cbranch_scc1 G1_LOOP")
    if fuse:
        if not dprep: conv2.flag_srd(a)
        a("s_mov_b32 s84, 0")
        pi, _ = conv2.capture(a, conv2.poll_issue, a, 202)
        POIT = os.environ.get("G2", "x") in "wx" and os.environ.get("POIS", "b") == "t"
        if POIT:
            pi = pi + ["v_mov_b32 v203, 1", "v_mov_b32 v209, 32", "s_mov_b64 exec, 1", "buffer_atomic_add v203, v209, s[80:83], 0 offen sc0 sc1", "s_mov_b64 exec, -1"]
        pi = ["s_cmp_lg_u32 s%d, 0" % sW, "s_cbranch_scc1 G1_P1"] + pi + ["G1_P1:"]
        stage(0, True, True, tailB=conv2.touch_h() + conv2.gate_loads(), extraB=[pi], vmB=2 if POIL else None)
        def post1():
            conv2.poll_check(a, 202, 84)
        tk = None
        if POIT:
            tk = [(2, ["v_readfirstlane_b32 s62, v203", "s_lshl_b32 s63, s%d, 2" % sW, "s_add_u32 s63, s63, %d" % conv2.TKOFF]),
                  (4, ["v_mov_b32 v203, s62", "v_mov_b32 v210, s63"]), (6, ["ds_write_b32 v210, v203"])]
        stage(1, True, True, vmB=8, postW=post1, plB=tk)
        ces, DE = conv2.capture(a, conv2.conv_early, a)
        def chk2():
            a("s_cmp_lg_u32 s%d, 0" % sW)
            a("s_cbranch_scc1 G1_P4")
            a("s_cmp_lg_u32 s84, 0")
            a("s_cbranch_scc1 G1_P4")
            a.label("G1_P3")
            conv2.poll_issue(a, 202)
            a("s_waitcnt vmcnt(0)")
            conv2.poll_check(a, 202, 84)
            a("s_cmp_lg_u32 s84, 0")
            a("s_cbranch_scc1 G1_P4")
            a("s_sleep 16")
            a("s_branch G1_P3")
            a.label("G1_P4")
        GC = conv2.gate_compute()
        def spread(groups, lo, hi):
            tot = sum(len(g) for g in groups); r = []; c = 0
            for g in groups:
                r.append((lo + (c * (hi - lo)) // max(tot, 1), g)); c += len(g)
            return r
        n14 = 0; c = 0
        while c < 120: c += len(GC[n14]); n14 += 1
        stage(0, False, True, preB=chk2, extraB=DE[:12], extraA=[ces[i:i + 2] for i in range(0, len(ces), 2)], plB=spread(GC[:n14], 2, 64),
              plA=([(n, [i]) for n, i in enumerate(PSET)] + [(15 + 5 * n, PST_) for n in range(NPO)]) if POIS else None, vmB=1 + NPO)
        a("s_waitcnt lgkmcnt(0)")
        lst()
        mA = mfmas(0); mB = mfmas(1)
        A_ = [mA[8 * i:8 * i + 8] for i in range(8)]; B_ = [mB[8 * i:8 * i + 8] for i in range(8)]
        pl = [(n, g) for n, g in enumerate(reads(1, 1, 1))]
        pl += [(1 + 4 * n, g) for n, g in enumerate(DE[12:])]
        pl += spread(GC[n14:], 0, 32)
        for i in place(A_[0] + A_[1] + A_[2] + A_[3], pl): a(i)
        a("s_waitcnt lgkmcnt(0)")
        lst()
        es, groups = conv2.capture(a, epilogue)
        cs, _ = conv2.capture(a, conv2.conv_setup, a)
        EF = [i for g in groups for i in g]
        NE15 = int(os.environ.get("NE15", "291"))
        if len(groups) < 16: NE15 = min(NE15, sum(len(g) for g in groups[:-1]))
        seq = B_[0] + B_[1] + A_[4] + A_[5] + B_[2] + B_[3] + A_[6] + A_[7] + B_[4] + B_[5] + B_[6] + B_[7]
        pl = spread([[i] for i in es + cs], 0, 20) + spread([[i] for i in EF[:NE15]], 20, 96)
        EF = EF[NE15:]
        for i in place(seq, pl): a(i)
        if LST:
            a("s_waitcnt lgkmcnt(0)")
            lst()
            a("s_lshl_b32 s90, s%d, 8" % sW)
            a("s_add_u32 s90, s90, 150016")
            a("v_lshlrev_b32 v44, 2, v0")
            a("v_add_u32 v43, s90, v44")
            a("s_waitcnt lgkmcnt(0)")
            a("ds_read_b32 v43, v43")
            a("s_add_u32 s76, s30, 0x6000000")
            a("s_addc_u32 s77, s31, 0")
            a("s_mov_b32 s78, 0x100000")
            a("s_mov_b32 s79, 0x00020000")
            a("s_lshl_b32 s90, s2, 2")
            a("s_add_u32 s90, s90, s%d" % sW)
            a("s_lshl_b32 s90, s90, 8")
            a("s_waitcnt lgkmcnt(0)")
            a("buffer_store_dword v43, v44, s[76:79], s90 offen")
            a("s_waitcnt vmcnt(0)")
            a("s_mul_i32 s%d, s%d, %d" % (conv2.T3, conv2.sD, G_PITCH))
        rt(88)
        if rts and not PST: a("s_memtime s[96:97]")
        a("s_barrier")
        rt(90)
        D = conv2.conv_issue(a)
    else:
        stage(0, False, True)
        stage(1, False, False)

    if fuse:
        return D, EF
    groups = epilogue()
    for e in groups:
        for i in e: a(i)

    if stamps:
        stamp(4)
        a("s_waitcnt vmcnt(0)")
        stamp(5)
        a("s_waitcnt lgkmcnt(0)")
        a("s_add_u32 s30, s30, 0x4000000")
        a("s_addc_u32 s31, s31, 0")
        srd(a, S_H, 30, 1 << 20)
        a("s_lshl_b32 s47, s2, 2")
        a("s_add_u32 s47, s47, s%d" % sW)
        a("s_lshl_b32 s47, s47, 5")
        for i in range(6):
            a("v_mov_b32 v%d, s%d" % (64 + i, 60 + 2 * i))
        a("v_mov_b32 v70, s47")
        a("v_cmp_eq_u32 vcc, 0, v0")
        a("s_and_saveexec_b64 s[48:49], vcc")
        a("buffer_store_dwordx4 v[64:67], v70, s[%d:%d], 0 offen" % (S_H, S_H + 3))
        a("buffer_store_dwordx2 v[68:69], v70, s[%d:%d], 0 offen offset:16" % (S_H, S_H + 3))
        a("s_mov_b64 exec, s[48:49]")
```

```python
from asmlib import *
from layout import *
from prep import ws_srd

UC = 5184
HC = 4480
WAVE_LDS = 4 * UC + 2 * HC
CONV_LDS = 4 * WAVE_LDS

P_HK, P_D, P_GW, P_DBG, P_WS, P_Q = 64, 66, 68, 70, 72, 74
P_WD = 100
S_G, S_H, S_Z, S_Q, S_GW, S_GT, S_F = 4, 8, 12, 32, 36, 52, 80
sW, sD, sLB, T0, T1, T2, sDV, T3, T4 = 40, 60, 61, 62, 63, 76, 78, 77, 79
sHB = 85
KV = 160
GL = 176
VL = 200
VSW = 201
VZ = 204
VT = 208
import os
GSC = ' sc1' if os.environ.get('INV', '') == '' else ''
TARGET = 16 if os.environ.get('DPREP') else 8

def conv_ptrs(a):
    a("s_load_dwordx2 s[%d:%d], s[0:1], 32" % (P_HK, P_HK + 1))
    a("s_load_dwordx2 s[%d:%d], s[0:1], 40" % (P_D, P_D + 1))
    a("s_load_dwordx2 s[%d:%d], s[0:1], 80" % (P_GW, P_GW + 1))
    a("s_load_dwordx2 s[%d:%d], s[0:1], 96" % (P_DBG, P_DBG + 1))
    a("s_load_dwordx2 s[%d:%d], s[0:1], 104" % (P_WS, P_WS + 1))
    a("s_load_dwordx2 s[%d:%d], s[0:1], 0" % (P_Q, P_Q + 1))
    a("s_load_dwordx2 s[%d:%d], s[0:1], 72" % (P_WD, P_WD + 1))

def flag_srd(a):
    srd(a, S_F, P_DBG, 256)

def poll_issue(a, vdst):
    a("s_lshr_b32 s%d, s2, %d" % (T0, 4 if TARGET == 16 else 6))
    a("s_lshl_b32 s%d, s%d, %d" % (T0, T0, 2 if TARGET == 16 else 6))
    a("v_mov_b32 v%d, s%d" % (VT, T0))
    a("buffer_load_dword v%d, v%d, s[%d:%d], 0 offen sc1" % (vdst, VT, S_F, S_F + 3))

def poll_check(a, vdst, sdst):
    a("v_readfirstlane_b32 s%d, v%d" % (sdst, vdst))
    a("s_cmp_ge_u32 s%d, %d" % (sdst, TARGET))
    a("s_cselect_b32 s%d, 1, 0" % sdst)

def signal(a):
    if TARGET == 16: a("s_and_b32 s%d, s2, 15" % T0)
    else: a("s_and_b32 s%d, s2, 3" % T0)
    a("s_lshl_b32 s%d, s%d, %d" % (T0, T0, 2 if TARGET == 16 else 6))
    a("v_mov_b32 v%d, s%d" % (VT, T0))
    a("v_mov_b32 v%d, 1" % (VT + 1))
    a("s_mov_b64 exec, 1")
    a("buffer_atomic_add v%d, v%d, s[%d:%d], 0 offen sc1" % (VT + 1, VT, S_F, S_F + 3))
    a("s_mov_b64 exec, -1")

UREG = 65536
TKOFF = 163328
def capture(a, fn, *args):
    keep = a.lines; a.lines = []
    r = fn(*args)
    l = [x.strip() for x in a.lines]; a.lines = keep
    return l, r

def conv_early(a):
    a("s_lshl_b32 s%d, s2, 2" % sD)
    a("s_add_u32 s%d, s%d, s%d" % (sD, sD, sW))
    a("s_mul_i32 s%d, s%d, %d" % (sLB, sW, 4 * UC))
    a("s_add_u32 s%d, s%d, %d" % (sLB, sLB, UREG))
    for i in range(4): a("v_mov_b32 v%d, 0" % (VZ + i))
    a("v_lshlrev_b32 v%d, 4, v0" % VL)
    a("v_add_u32 v%d, s%d, v%d" % (VT + 2, sLB, VL))
    ws_srd(a, S_G, P_WS, G_OFF, G_BYTES)
    a("v_lshrrev_b32 v%d, 4, v0" % VSW)
    a("v_and_b32 v%d, 1, v%d" % (VSW, VSW))
    a("v_lshlrev_b32 v%d, 1, v%d" % (VSW, VSW))
    a("v_xor_b32 v%d, v%d, v0" % (VSW, VSW))
    a("v_lshlrev_b32 v%d, 4, v%d" % (VSW, VSW))
    a("s_mul_i32 s%d, s%d, %d" % (T3, sD, G_PITCH))
    D = []
    for r in (3, 1, 2, 0):
        off = {3: 120, 1: 124, 2: 122, 0: 126}[r]
        for I in range(4):
            g = []
            if I == 0: g += ["s_add_u32 s%d, s%d, 0x%x" % (T4, T3, off), "s_add_u32 m0, s%d, %d" % (sLB, r * UC), "s_nop 0"]
            g.append("buffer_load_dwordx4 v%d, s[%d:%d], s%d offen offset:%d%s lds" % (VSW, S_G, S_G + 3, T4, I * 1024, GSC))
            if I == 3: g.append("ds_write_b128 v%d, v[%d:%d] offset:%d" % (VT + 2, VZ, VZ + 3, r * UC + 4112))
            D.append(g)
    g = ["s_mov_b64 exec, 1"]
    for r in range(4):
        off = {3: 120, 1: 124, 2: 122, 0: 126}[r]
        g.append("s_add_u32 s%d, s%d, 0x%x" % (T4, T3, off + 4096))
        g.append("s_add_u32 m0, s%d, %d" % (sLB, r * UC + 4096))
        g.append("s_nop 0")
        g.append("buffer_load_dwordx4 v%d, s[%d:%d], s%d offen%s lds" % (VSW, S_G, S_G + 3, T4, GSC))
    g.append("s_mov_b64 exec, -1")
    D.append(g)
    return D

GQ = 212
GWF = 236
GTM = 252
GA = 26
def touch_h():
    return ["s_lshl_b32 s%d, s2, 2" % sD, "s_add_u32 s%d, s%d, s%d" % (sD, sD, sW), "s_lshl_b32 s%d, s%d, 12" % (T0, sD),
         "s_mov_b32 s76, s%d" % P_HK, "s_mov_b32 s77, s%d" % (P_HK + 1), "s_mov_b32 s78, 0x%x" % (1024 * 2048 * 2), "s_mov_b32 s79, 0x00020000",
         "v_and_b32 v%d, 31, v0" % VT, "v_lshlrev_b32 v%d, 7, v%d" % (VT, VT),
         "buffer_load_dword v%d, v%d, s[76:79], s%d offen" % (VT + 1, VT, T0)]

def gate_loads():
    r = ["s_lshl_b32 s%d, s2, 2" % sD, "s_add_u32 s%d, s%d, s%d" % (sD, sD, sW), "s_lshl_b32 s%d, s%d, 12" % (T0, sD),
         "v_lshlrev_b32 v%d, 4, v0" % (GA + 1),
         "s_mov_b32 s76, s%d" % P_GW, "s_mov_b32 s77, s%d" % (P_GW + 1), "s_mov_b32 s78, 0x800", "s_mov_b32 s79, 0x00020000",
         "buffer_load_dwordx4 v[%d:%d], v%d, s[76:79], 0 offen" % (GQ, GQ + 3, GA + 1),
         "buffer_load_dwordx4 v[%d:%d], v%d, s[76:79], 0 offen offset:1024" % (GQ + 4, GQ + 7, GA + 1),
         "s_mov_b32 s76, s%d" % P_Q, "s_mov_b32 s77, s%d" % (P_Q + 1), "s_mov_b32 s78, 0x%x" % (2048 * 1024 * 2)]
    for i in range(4):
        r.append("buffer_load_dwordx4 v[%d:%d], v%d, s[76:79], s%d offen offset:%d" % (GQ + 8 + 4 * i, GQ + 11 + 4 * i, GA + 1, T0, 1024 * i))
    return r

def gate_compute():
    r = []
    for i in range(8):
        r.append("v_lshlrev_b32 v%d, 16, v%d" % (GWF + 2 * i, GQ + i))
        r.append("v_and_b32 v%d, 0xffff0000, v%d" % (GWF + 2 * i + 1, GQ + i))
    for rr in range(2):
        for i in range(8):
            src = GQ + 8 + 8 * rr + i
            t = GTM + 2 * (i & 1)
            r.append("v_lshlrev_b32 v%d, 16, v%d" % (t, src))
            r.append("v_and_b32 v%d, 0xffff0000, v%d" % (t + 1, src))
            r.append("v_mul_f32 v%d, v%d, v%d" % (t, t, GWF + 2 * i))
            r.append("v_mul_f32 v%d, v%d, v%d" % (t + 1, t + 1, GWF + 2 * i + 1))
            r.append("v_cvt_pk_bf16_f32 v%d, v%d, v%d" % (t, t, t + 1))
            r.append("v_lshlrev_b32 v%d, 16, v%d" % (t + 1, t))
            r.append("v_and_b32 v%d, 0xffff0000, v%d" % (t, t))
            if i == 0:
                r.append("v_add_f32 v%d, v%d, v%d" % (GA + rr, t, t + 1))
            else:
                r.append("v_add_f32 v%d, v%d, v%d" % (t, t, t + 1))
                r.append("v_add_f32 v%d, v%d, v%d" % (GA + rr, GA + rr, t))
    G = [[x] for x in r]
    for m in ("row_shr:1 row_mask:0xf bank_mask:0xf bound_ctrl:0", "row_shr:2 row_mask:0xf bank_mask:0xf bound_ctrl:0",
              "row_shr:4 row_mask:0xf bank_mask:0xf bound_ctrl:0", "row_shr:8 row_mask:0xf bank_mask:0xf bound_ctrl:0",
              "row_bcast:15 row_mask:0xa bank_mask:0xf", "row_bcast:31 row_mask:0xc bank_mask:0xf"):
        G.append(["s_nop 1"] + ["v_add_f32_dpp v%d, v%d, v%d %s" % (GA + rr, GA + rr, GA + rr, m) for rr in range(2)])
    for op in ("v_cvt_pk_bf16_f32 v%d, v%d, v%d", "v_lshlrev_b32 v%d, 16, v%d", "v_mul_f32 v%d, 0xbfb8aa3b, v%d", "v_exp_f32 v%d, v%d", "N",
               "v_add_f32 v%d, 1.0, v%d", "v_rcp_f32 v%d, v%d", "N", "v_cvt_pk_bf16_f32 v%d, v%d, v%d", "v_lshlrev_b32 v%d, 16, v%d"):
        if op == "N": G.append(["s_nop 0"]); continue
        G.append([op % ((GA + rr,) * op.count("%d")) for rr in range(2)])
    G.append(["s_lshl_b32 s%d, s%d, 3" % (T0, sD), "s_add_u32 s%d, s%d, 0x%x" % (S_GT, P_WS, GT_OFF), "s_addc_u32 s%d, s%d, 0" % (S_GT + 1, P_WS + 1),
              "s_mov_b32 s%d, 0x%x" % (S_GT + 2, GT_BYTES), "s_mov_b32 s%d, 0x00020000" % (S_GT + 3), "v_mov_b32 v%d, 0" % GTM])
    G.append(["s_mov_b32 exec_lo, 0", "s_mov_b32 exec_hi, 0x80000000",
              "buffer_store_dwordx2 v[%d:%d], v%d, s[%d:%d], s%d offen" % (GA, GA + 1, GTM, S_GT, S_GT + 3, T0), "s_mov_b64 exec, -1"])
    return G

VZA = 211
def conv_setup(a):
    a("s_mul_i32 s%d, s%d, %d" % (sHB, sW, 2 * HC))
    a("v_add_u32 v%d, s%d, v%d" % (VZA, sHB, VL))
    srd(a, S_H, P_HK, 1024 * 2048 * 2)
    ws_srd(a, S_Z, P_WS, Z_OFF, Z_BYTES)
    a("s_lshr_b32 s%d, s%d, 1" % (T1, sD))
    a("s_lshl_b32 s%d, s%d, 2" % (T1, T1))
    a("s_load_dword s%d, s[%d:%d], s%d" % (sDV, P_D, P_D + 1, T1))
    a("v_and_b32 v%d, 15, v0" % VT)
    a("v_lshrrev_b32 v%d, 4, v0" % (VT + 1))
    a("v_lshlrev_b32 v%d, 7, v%d" % (VT + 1, VT + 1))
    a("v_lshlrev_b32 v%d, 3, v%d" % (VT, VT))
    a("v_add_u32 v%d, v%d, v%d" % (VT, VT, VT + 1))
    a("v_sub_u32 v%d, 568, v%d" % (VT, VT))
    a("v_lshlrev_b32 v%d, 1, v%d" % (VT, VT))
    a("v_and_b32 v8, 15, v0")
    a("v_lshrrev_b32 v9, 4, v0")
    a("v_lshlrev_b32 v10, 7, v9")
    a("v_lshlrev_b32 v11, 3, v8")
    a("v_add_u32 v10, v10, v11")
    a("v_lshlrev_b32 v12, 1, v10")
    a("v_add_u32 v13, v8, v9")
    a("v_lshlrev_b32 v13, 4, v13")
    a("v_add_u32 v13, s%d, v13" % sHB)
    a("v_lshrrev_b32 v4, 2, v8")
    a("v_and_b32 v5, 3, v8")
    a("s_movk_i32 s%d, %d" % (T1, UC))
    a("v_mul_lo_u32 v5, v5, s%d" % T1)
    a("v_sub_u32 v6, 3, v4")
    a("v_lshlrev_b32 v6, 8, v6")
    a("v_add_u32 v5, v5, v6")
    a("v_add_u32 v5, s%d, v5" % sLB)
    a("v_and_b32 v6, 1, v4")
    a("v_lshlrev_b32 v6, 1, v6")
    a("v_xor_b32 v7, v9, v6")
    a("v_xor_b32 v6, 2, v7")
    a("v_lshlrev_b32 v6, 4, v6")
    a("v_lshlrev_b32 v7, 4, v7")
    a("v_add_u32 v14, v5, v6")
    a("v_add_u32 v15, v5, v7")
    a("s_mov_b32 s%d, 0xffff0000" % T2)

def conv_issue(a):
    a("s_mov_b64 exec, 0xffff")
    for ph in range(2):
        a("ds_write_b128 v%d, v[%d:%d] offset:%d" % (VZA, VZ, VZ + 3, ph * HC))
        a("ds_write_b128 v%d, v[%d:%d] offset:%d" % (VZA, VZ, VZ + 3, ph * HC + HC - 256))
    a("s_mov_b64 exec, -1")
    a("s_lshl_b32 s%d, s%d, 12" % (T0, sD))
    for i in range(32): a("v_mov_b32 v%d, 0" % (32 + i))
    a("s_waitcnt lgkmcnt(0)")
    D = []
    for ph in range(2):
        for I in range(4):
            g = []
            if I == 0: g += ["s_add_u32 m0, s%d, %d" % (sHB, ph * HC + (128 - 4 * ph) * 2), "s_nop 0"]
            g.append("buffer_load_dwordx4 v%d, s[%d:%d], s%d offen offset:%d lds" % (VL, S_H, S_H + 3, T0, I * 1024))
            D.append(g)
    for T in range(4):
        D.append(["buffer_load_dwordx4 v[%d:%d], v%d, s[%d:%d], s%d offen offset:%d%s" % (KV + 4 * T, KV + 4 * T + 3, VT, S_G, S_G + 3, T3, (3 - T) * 1024, GSC)])
    return D

WPF = 0
SPN = int(os.environ.get("SPN", "10"))
G1N = int(os.environ.get("G1N", "0"))
G1POS = int(os.environ.get("G1POS", "40"))
def wd_touch(spare, mall=False):
    n = SPN if spare else G1N
    if mall: n = 7
    if not n: return []
    S = S_GW
    r = ["s_mov_b32 s%d, s%d" % (S, P_WD), "s_mov_b32 s%d, s%d" % (S + 1, P_WD + 1), "s_mov_b32 s%d, 0x%x" % (S + 2, 3584 * 1024 * 2), "s_mov_b32 s%d, 0x00020000" % (S + 3),
         "v_lshrrev_b32 v138, 3, v0", "v_lshlrev_b32 v138, 11, v138", "v_and_b32 v139, 7, v0", "v_lshlrev_b32 v139, 7, v139", "v_add_u32 v138, v138, v139",
         "s_lshr_b32 s%d, s2, 3" % T0]
    G2W = os.environ.get("G2", "x") in "wx"
    G2MAP = int(os.environ.get("G2MAP", "2"))
    if spare and G2W:
        r = r[:-1]
        r += ["s_lshr_b32 s%d, s2, 1" % T0, "s_and_b32 s%d, s%d, 2" % (T0, T0), "s_lshr_b32 s%d, s2, 3" % T1, "s_and_b32 s%d, s%d, 1" % (T1, T1),
              "s_add_u32 s%d, s%d, s%d" % (T0, T0, T1), "s_mul_i32 s%d, s%d, 896" % (T0, T0), "s_lshl_b32 s%d, s%d, 3" % (T1, sW), "s_add_u32 s%d, s%d, s%d" % (T0, T0, T1)]
        if G2MAP == 1:
            if mall: r += ["s_and_b32 s%d, s2, 3" % T1, "s_mul_i32 s%d, s%d, 224" % (T1, T1), "s_add_u32 s%d, s%d, s%d" % (T0, T0, T1)]
            r += ["s_lshl_b32 s%d, s%d, 11" % (T0, T0), "s_and_b32 s%d, s2, 16" % T1, "s_lshl_b32 s%d, s%d, 6" % (T1, T1), "s_add_u32 s%d, s%d, s%d" % (T0, T0, T1)]
        else:
            if mall: r += ["s_and_b32 s%d, s2, 1" % T1, "s_mul_i32 s%d, s%d, 448" % (T1, T1), "s_add_u32 s%d, s%d, s%d" % (T0, T0, T1)]
            r += ["s_lshr_b32 s%d, s2, 4" % T1, "s_mul_i32 s%d, s%d, %d" % (T1, T1, 224 if mall else 32 * SPN), "s_add_u32 s%d, s%d, s%d" % (T0, T0, T1)]
            r += ["s_lshl_b32 s%d, s%d, 11" % (T0, T0), "s_and_b32 s%d, s2, 2" % T1, "s_lshl_b32 s%d, s%d, 9" % (T1, T1), "s_add_u32 s%d, s%d, s%d" % (T0, T0, T1)]
        step = 32
    else:
        if spare:
            r += ["s_mul_i32 s%d, s%d, 896" % (T0, T0), "s_lshl_b32 s%d, s%d, 3" % (T1, sW)]
            if mall:
                r += ["s_add_u32 s%d, s%d, s%d" % (T0, T0, T1), "s_and_b32 s%d, s2, 3" % T1, "s_mul_i32 s%d, s%d, 224" % (T1, T1)]
            step = 32
        else:
            per = -(-(896 - 32 * SPN) // 28)
            per = min(per, 8 * n)
            r += ["s_mul_i32 s%d, s%d, %d" % (T0, T0, per), "s_add_u32 s%d, s%d, %d" % (T0, T0, 32 * SPN - 4 * per), "s_mul_i32 s%d, s%d, 896" % (T1, sW)]
            step = 8
        r += ["s_add_u32 s%d, s%d, s%d" % (T0, T0, T1), "s_lshl_b32 s%d, s%d, 11" % (T0, T0),
             "s_and_b32 s%d, s2, 4" % T1, "s_lshl_b32 s%d, s%d, 8" % (T1, T1), "s_add_u32 s%d, s%d, s%d" % (T0, T0, T1)]
    for b in range(n):
        r.append("buffer_load_dword v139, v138, s[%d:%d], s%d offen" % (S, S + 3, T0))
        TG = os.environ.get("TG", "")
        if ("m" in TG and mall) or ("l" in TG and not mall):
            r.append("buffer_load_dword v139, v138, s[%d:%d], s%d offen offset:64" % (S, S + 3, T0))
        if ("M" in TG and mall) or ("L" in TG and not mall):
            for o in (32, 64, 96): r.append("buffer_load_dword v139, v138, s[%d:%d], s%d offen offset:%d" % (S, S + 3, T0, o))
        r.append("s_add_u32 s%d, s%d, 0x%x" % (T0, T0, step * 2048))
    return r

NE0 = int(os.environ.get("NE0", "2"))
DSP_ = int(os.environ.get("CDSP", "8"))
NPRE = int(os.environ.get("NPRE", "250"))
def conv_main(a, D, E=None, pre_extra=None):
    E = E or []
    vm = []
    def em(i):
        a(i)
        if i.startswith("buffer_"): vm.append(i)
    pre = E[:NPRE]; rest = E[NPRE:]
    ACC = 32
    FB = 64
    def reads(n):
        b = FB + (n % 3) * 24
        r = []
        for ph in range(2):
            r.append("ds_read_b128 v[%d:%d], v13 offset:%d" % (b + 4 * ph, b + 4 * ph + 3, ph * HC + 64 * n))
        m = n >> 2
        for T in range(4):
            if n <= 16 * T + 16:
                r.append("ds_read_b128 v[%d:%d], v%d offset:%d" % (b + 8 + 4 * T, b + 11 + 4 * T, 14 + (m & 1), 3072 - 1024 * T + 256 * m + 64 * (n & 3)))
        return r
    def mf(n):
        b = FB + (n % 3) * 24
        r = []
        for T in range(4):
            if n <= 16 * T + 16:
                for ph in range(2):
                    c = ACC + (T * 2 + ph) * 4
                    r.append("v_mfma_f32_16x16x32_bf16 v[%d:%d], v[%d:%d], v[%d:%d], v[%d:%d]" % (c, c + 3, b + 8 + 4 * T, b + 11 + 4 * T, b + 4 * ph, b + 4 * ph + 3, c, c + 3))
        return r
    NS = 65
    M = T2
    for i in place(pre, [(DSP_ * n, g) for n, g in enumerate(D)]): em(i)
    if pre_extra:
        a("s_waitcnt vmcnt(%d)" % len(vm))
        for i in pre_extra: em(i)
    last = max(k for k, i in enumerate(vm) if "load" in i)
    a("s_waitcnt vmcnt(%d)" % (len(vm) - 1 - last))
    SPREP = int(os.environ.get("SPREP", "0")) if not E else 0
    if SPREP:
        a("s_mov_b32 s84, 0")
        a.label("SPREP_L")
    for i in reads(0): a(i)
    for i in reads(1): a(i)

    nm_total = sum(len(mf(n)) for n in range(NS))
    units = []
    for i in rest:
        if i.startswith("v_pk_") and units: units[-1].append(i)
        else: units.append([i])
    rest = units
    done_m = 0; done_e = 0
    for n in range(NS):
        nxt = reads(n + 2) if n + 2 < NS else []
        n1 = len(reads(n + 1)) if n + 1 < NS else 0
        a("s_waitcnt lgkmcnt(%d)" % n1)
        if E and n == G1POS:
            for i in wd_touch(False): a(i)
        m = mf(n)
        pl = [(k, [x]) for k, x in enumerate(nxt)]
        for k in range(len(m)):
            done_m += 1
            tgt = (len(rest) * done_m + nm_total - 1) // nm_total
            pl.append((k, [i for u in rest[done_e:tgt] for i in u])); done_e = tgt
        for i in place(m, pl): a(i)
    assert done_e == len(rest)
    if SPREP:
        a("s_add_u32 s84, s84, 1")
        a("s_cmp_lt_u32 s84, %d" % SPREP)
        a("s_cbranch_scc1 SPREP_L")
    POIT = bool(E) and os.environ.get("G2", "x") in "wx" and os.environ.get("POIS", "b") == "t"
    if POIT:
        a("v_mov_b32 v100, %d" % TKOFF)
        a("ds_read_b32 v100, v100")
    a("s_and_b32 s%d, s%d, 1" % (T0, sD))
    a("s_lshl_b32 s%d, s%d, 16" % (T1, sDV))
    a("s_and_b32 s%d, s%d, 0xffff0000" % (sDV, sDV))
    a("s_cmp_eq_u32 s%d, 0" % T0)
    a("s_cselect_b32 s%d, s%d, s%d" % (sDV, T1, sDV))
    a("s_lshl_b32 s%d, s%d, 12" % (T0, sD))
    CPK = os.environ.get("CPK", "1") == "1"
    assert sDV % 2 == 0 and T4 == sDV + 1
    if CPK: a("s_mov_b32 s%d, s%d" % (T4, sDV))
    a("s_nop 7")
    for T in range(4):
        Y = 64; Kf = 72; O = 80 + 4 * T
        c = ACC + T * 8
        for p in range(4):
            a("v_cvt_pk_bf16_f32 v%d, v%d, v%d" % (96, c + 2 * p, c + 2 * p + 1))
            a("v_lshlrev_b32 v%d, 16, v96" % (Y + 2 * p))
            a("v_and_b32 v%d, s%d, v96" % (Y + 2 * p + 1, M))
        for p in range(4):
            src = KV + 4 * T + (3 - p)
            a("v_and_b32 v%d, s%d, v%d" % (Kf + 2 * p, M, src))
            a("v_lshlrev_b32 v%d, 16, v%d" % (Kf + 2 * p + 1, src))
        if CPK:
            for e in range(0, 8, 2): a("v_pk_mul_f32 v[%d:%d], v[%d:%d], s[%d:%d]" % (Kf + e, Kf + e + 1, Kf + e, Kf + e + 1, sDV, sDV + 1))
        else:
            for e in range(8):
                a("v_mul_f32 v%d, s%d, v%d" % (Kf + e, sDV, Kf + e))
        for p in range(4):
            a("v_cvt_pk_bf16_f32 v96, v%d, v%d" % (Kf + 2 * p, Kf + 2 * p + 1))
            a("v_lshlrev_b32 v%d, 16, v96" % (Kf + 2 * p))
            a("v_and_b32 v%d, s%d, v96" % (Kf + 2 * p + 1, M))
        if CPK:
            for e in range(0, 8, 2): a("v_pk_add_f32 v[%d:%d], v[%d:%d], v[%d:%d]" % (Y + e, Y + e + 1, Y + e, Y + e + 1, Kf + e, Kf + e + 1))
        else:
            for e in range(8):
                a("v_add_f32 v%d, v%d, v%d" % (Y + e, Y + e, Kf + e))
        for p in range(4):
            a("v_cvt_pk_bf16_f32 v%d, v%d, v%d" % (O + p, Y + 2 * p, Y + 2 * p + 1))
        a("buffer_store_dwordx4 v[%d:%d], v12, s[%d:%d], s%d offen offset:%d%s" % (O, O + 3, S_Z, S_Z + 3, T0, T * 1024, os.environ.get("ZSC", "")))
    if not E or G1POS < 0:
        for i in wd_touch(not E): a(i)
    POIE = os.environ.get("G2", "x") in "wx" and os.environ.get("POIS", "b") == "e"
    if POIE:
        PA, PB, PC = [int(x) for x in os.environ.get("PABC", "96,64,32").split(",")]
        assert 32 * PA + 32 * PB + 96 * PC >= 8192
        L = "G1" if E else "SP"
        if not E:
            a("s_mov_b32 s%d, %d" % (T0, PA // 4))
            a("s_mul_i32 s%d, s2, %d" % (T1, PA * 1024))
        else:
            a("s_lshr_b32 s%d, s2, 3" % T0)
            a("s_lshl_b32 s%d, s%d, 2" % (T0, T0))
            a("s_lshr_b32 s%d, s2, 1" % T1)
            a("s_and_b32 s%d, s%d, 3" % (T1, T1))
            a("s_add_u32 s%d, s%d, s%d" % (T1, T1, T0))
            a("s_mul_i32 s%d, s%d, %d" % (T1, T1, PC * 1024))
            a("s_add_u32 s%d, s%d, %d" % (T1, T1, (32 * PA + 32 * PB - 16 * PC) * 1024))
            a("s_and_b32 s%d, s2, 1" % T0)
            a("s_mul_i32 s%d, s%d, %d" % (T0, T0, PC // 4))
            a("s_mul_i32 s%d, s2, %d" % (T4, PB * 1024))
            a("s_add_u32 s%d, s%d, %d" % (T4, T4, ((32 * PA - 224 * PB) * 1024) & 0xffffffff))
            a("s_cmp_ge_u32 s2, 224")
            a("s_cselect_b32 s%d, %d, s%d" % (T0, PB // 4, T0))
            a("s_cselect_b32 s%d, s%d, s%d" % (T1, T4, T1))
            a("s_cmp_eq_u32 s%d, 0" % T0)
            a("s_cbranch_scc1 %s_PE1" % L)
        a("s_mul_i32 s%d, s%d, s%d" % (T4, T0, sW))
        a("s_lshl_b32 s%d, s%d, 10" % (T4, T4))
        a("s_add_u32 s%d, s%d, s%d" % (T1, T1, T4))
        ws_srd(a, S_Q, P_WS, XB_OFF, XB_BYTES)
        for i in range(4): a("v_mov_b32 v%d, -1" % (100 + i))
        a("v_lshlrev_b32 v104, 4, v0")
        a.label("%s_PE0" % L)
        a("buffer_store_dwordx4 v[100:103], v104, s[%d:%d], s%d offen sc1" % (S_Q, S_Q + 3, T1))
        a("s_add_u32 s%d, s%d, 1024" % (T1, T1))
        a("s_sub_u32 s%d, s%d, 1" % (T0, T0))
        a("s_cmp_lg_u32 s%d, 0" % T0)
        a("s_cbranch_scc1 %s_PE0" % L)
        a.label("%s_PE1" % L)
    if POIT:
        NCH = int(os.environ.get("PNCH", "128"))
        CH = XB_BYTES // NCH
        a("s_waitcnt lgkmcnt(0)")
        a("v_readfirstlane_b32 s%d, v100" % T0)
        a("s_cmp_ge_u32 s%d, %d" % (T0, NCH))
        a("s_cbranch_scc1 G1_NOPOIS")
        ws_srd(a, S_GW, P_WS, XB_OFF, XB_BYTES)
        a("s_mul_i32 s%d, s%d, %d" % (T0, T0, CH))
        a("s_mul_i32 s%d, s%d, %d" % (T1, sW, CH // 4))
        a("s_add_u32 s%d, s%d, s%d" % (T0, T0, T1))
        for i in range(4): a("v_mov_b32 v%d, -1" % (100 + i))
        a("v_lshlrev_b32 v104, 4, v0")
        n = CH // 4096
        for k in range(n):
            a("buffer_store_dwordx4 v[100:103], v104, s[%d:%d], s%d offen offset:%d sc1" % (S_GW, S_GW + 3, T0, (k & 3) * 1024))
            if (k & 3) == 3 and k + 1 < n: a("s_add_u32 s%d, s%d, 4096" % (T0, T0))
        a.label("G1_NOPOIS")
```

```python
from asmlib import *
from layout import *
from prep import ws_srd

UC = 4928
HC = 4480
WAVE_LDS = 4 * UC + 2 * HC
CONV_LDS = 4 * WAVE_LDS

P_HK, P_D, P_GW, P_DBG, P_WS, P_Q = 64, 66, 68, 70, 72, 74
P_WD = 100
S_G, S_H, S_Z, S_Q, S_GW, S_GT, S_F = 4, 8, 12, 32, 36, 52, 80
sW, sD, sLB, T0, T1, T2, sDV, T3, T4 = 40, 60, 61, 62, 63, 76, 78, 77, 79
sHB = 85
KV = 160
GL = 176
VL = 200
VSW = 201
VZ = 204
VT = 208
import os
GSC = ' sc1' if os.environ.get('INV', '') == '' else ''
TARGET = 16 if os.environ.get('DPREP') else 8

def conv_ptrs(a):
    a("s_load_dwordx2 s[%d:%d], s[0:1], 32" % (P_HK, P_HK + 1))
    a("s_load_dwordx2 s[%d:%d], s[0:1], 40" % (P_D, P_D + 1))
    a("s_load_dwordx2 s[%d:%d], s[0:1], 80" % (P_GW, P_GW + 1))
    a("s_load_dwordx2 s[%d:%d], s[0:1], 96" % (P_DBG, P_DBG + 1))
    a("s_load_dwordx2 s[%d:%d], s[0:1], 104" % (P_WS, P_WS + 1))
    a("s_load_dwordx2 s[%d:%d], s[0:1], 0" % (P_Q, P_Q + 1))
    a("s_load_dwordx2 s[%d:%d], s[0:1], 72" % (P_WD, P_WD + 1))

def flag_srd(a):
    srd(a, S_F, P_DBG, 256)

VEX = 203
def poll_issue(a, vdst):
    a("s_lshr_b32 s%d, s2, 6" % T0)
    a("s_lshl_b32 s%d, s%d, 4" % (T0, T0))
    a("v_lshlrev_b32 v%d, 2, v0" % VT)
    a("v_mov_b32 v%d, 0xf00" % VEX)
    a("v_mov_b32 v%d, 0xf08" % (VT + 1))
    a("v_cmp_eq_u32 vcc, s%d, v0" % T0)
    a("buffer_load_dword v%d, v%d, s[%d:%d], 0 offen sc1" % (vdst, VT, S_F, S_F + 3))
    a("v_cndmask_b32 v%d, v%d, v%d, vcc" % (VEX, VEX, VT + 1))

def poll_check(a, vdst, sdst):
    a("v_and_b32 v%d, v%d, v%d" % (vdst, VEX, vdst))
    a("v_cmp_eq_u32 vcc, v%d, v%d" % (vdst, VEX))
    a("s_nop 1")
    a("s_and_b32 s%d, vcc_lo, vcc_hi" % sdst)
    a("s_cmp_eq_u32 s%d, -1" % sdst)
    a("s_cselect_b32 s%d, 1, 0" % sdst)

def signal(a):
    a("s_and_b32 s%d, s2, 3" % T0)
    a("s_lshl_b32 s%d, 0x100, s%d" % (T1, T0))
    a("s_lshl_b32 s%d, s%d, 6" % (T0, T0))
    a("v_mov_b32 v%d, s%d" % (VT + 1, T1))
    a("s_lshr_b32 s%d, s2, 2" % T1)
    a("s_lshl_b32 s%d, s%d, 2" % (T1, T1))
    a("v_mov_b32 v%d, s%d" % (VT, T1))
    a("s_mov_b64 exec, 1")
    a("v_mov_b32 v%d, s%d" % (VT, T0))
    a("v_mov_b32 v%d, 1" % (VT + 1))
    a("s_mov_b64 exec, 3")
    a("buffer_atomic_add v%d, v%d, s[%d:%d], 0 offen sc1" % (VT + 1, VT, S_F, S_F + 3))
    a("s_mov_b64 exec, -1")

def clear_flag(a, sd, wsreg, st, vt, lab, wavecond):
    import gemm2f
    for i in wavecond: a(i)
    a("s_cbranch_scc1 %s" % lab)
    ws_srd(a, sd, wsreg, FL_OFF, FL_BYTES)
    for i in gemm2f.own_flag_off(vt, st, st + 1): a(i)
    a("v_mov_b32 v%d, 0" % (vt + 1))
    a("s_mov_b64 exec, 7")
    a("buffer_store_dword v%d, v%d, s[%d:%d], 0 offen sc1 ; pad" % (vt + 1, vt, sd, sd + 3))
    a("s_mov_b64 exec, -1")
    a.label(lab)

def cleared_sig():
    return ["s_mov_b32 s%d, s%d" % (S_F, P_DBG), "s_mov_b32 s%d, s%d" % (S_F + 1, P_DBG + 1), "s_mov_b32 s%d, 0x100" % (S_F + 2), "s_mov_b32 s%d, 0x00020000" % (S_F + 3),
            "s_and_b32 s%d, s2, 3" % T0, "s_lshl_b32 s%d, 0x100, s%d" % (T0, T0), "v_mov_b32 v49, s%d" % T0,
            "s_lshr_b32 s%d, s2, 2" % T0, "s_lshl_b32 s%d, s%d, 2" % (T0, T0), "v_mov_b32 v48, s%d" % T0,
            "s_mov_b64 exec, 1", "buffer_atomic_or v49, v48, s[%d:%d], 0 offen sc1" % (S_F, S_F + 3), "s_mov_b64 exec, -1"]

UREG = 65536
TKOFF = 163328
def capture(a, fn, *args):
    keep = a.lines; a.lines = []
    r = fn(*args)
    l = [x.strip() for x in a.lines]; a.lines = keep
    return l, r

def conv_early(a):
    a("s_lshl_b32 s%d, s2, 2" % sD)
    a("s_add_u32 s%d, s%d, s%d" % (sD, sD, sW))
    a("s_mul_i32 s%d, s%d, %d" % (sLB, sW, 4 * UC))
    a("s_add_u32 s%d, s%d, %d" % (sLB, sLB, UREG))
    for i in range(4): a("v_mov_b32 v%d, 0" % (VZ + i))
    a("v_lshlrev_b32 v%d, 4, v0" % VL)
    a("v_add_u32 v%d, s%d, v%d" % (VT + 2, sLB, VL))
    ws_srd(a, S_G, P_WS, G_OFF, G_BYTES)
    a("v_lshrrev_b32 v%d, 4, v0" % VSW)
    a("v_and_b32 v%d, 1, v%d" % (VSW, VSW))
    a("v_lshlrev_b32 v%d, 1, v%d" % (VSW, VSW))
    a("v_xor_b32 v%d, v%d, v0" % (VSW, VSW))
    a("v_lshlrev_b32 v%d, 4, v%d" % (VSW, VSW))
    a("s_mul_i32 s%d, s%d, %d" % (T3, sD, G_PITCH))
    D = []
    for r in (3, 1, 2, 0):
        off = {3: 120, 1: 124, 2: 122, 0: 126}[r]
        for I in range(4):
            g = []
            if I == 0: g += ["s_add_u32 s%d, s%d, 0x%x" % (T4, T3, off), "s_add_u32 m0, s%d, %d" % (sLB, r * UC), "s_nop 0"]
            g.append("buffer_load_dwordx4 v%d, s[%d:%d], s%d offen offset:%d%s lds" % (VSW, S_G, S_G + 3, T4, I * 1024, GSC))
            if I == 3: g += ["s_mov_b32 exec_hi, 0x7ffff", "ds_write_b128 v%d, v[%d:%d] offset:%d" % (VT + 2, VZ, VZ + 3, r * UC + 4112), "s_mov_b32 exec_hi, -1"]
            D.append(g)
    g = ["s_mov_b64 exec, 1"]
    for r in range(4):
        off = {3: 120, 1: 124, 2: 122, 0: 126}[r]
        g.append("s_add_u32 s%d, s%d, 0x%x" % (T4, T3, off + 4096))
        g.append("s_add_u32 m0, s%d, %d" % (sLB, r * UC + 4096))
        g.append("s_nop 0")
        g.append("buffer_load_dwordx4 v%d, s[%d:%d], s%d offen%s lds" % (VSW, S_G, S_G + 3, T4, GSC))
    g.append("s_mov_b64 exec, -1")
    D.append(g)
    return D

GQ = 212
GWF = 236
GTM = 252
GA = 26
def touch_h():
    return ["s_lshl_b32 s%d, s2, 2" % sD, "s_add_u32 s%d, s%d, s%d" % (sD, sD, sW), "s_lshl_b32 s%d, s%d, 12" % (T0, sD),
         "s_mov_b32 s76, s%d" % P_HK, "s_mov_b32 s77, s%d" % (P_HK + 1), "s_mov_b32 s78, 0x%x" % (1024 * 2048 * 2), "s_mov_b32 s79, 0x00020000",
         "v_and_b32 v%d, 31, v0" % VT, "v_lshlrev_b32 v%d, 7, v%d" % (VT, VT),
         "buffer_load_dword v%d, v%d, s[76:79], s%d offen" % (VT + 1, VT, T0)]

def gate_loads():
    r = ["s_lshl_b32 s%d, s2, 2" % sD, "s_add_u32 s%d, s%d, s%d" % (sD, sD, sW), "s_lshl_b32 s%d, s%d, 12" % (T0, sD),
         "v_lshlrev_b32 v%d, 4, v0" % (GA + 1),
         "s_mov_b32 s76, s%d" % P_GW, "s_mov_b32 s77, s%d" % (P_GW + 1), "s_mov_b32 s78, 0x800", "s_mov_b32 s79, 0x00020000",
         "buffer_load_dwordx4 v[%d:%d], v%d, s[76:79], 0 offen" % (GQ, GQ + 3, GA + 1),
         "buffer_load_dwordx4 v[%d:%d], v%d, s[76:79], 0 offen offset:1024" % (GQ + 4, GQ + 7, GA + 1),
         "s_mov_b32 s76, s%d" % P_Q, "s_mov_b32 s77, s%d" % (P_Q + 1), "s_mov_b32 s78, 0x%x" % (2048 * 1024 * 2)]
    for i in range(4):
        r.append("buffer_load_dwordx4 v[%d:%d], v%d, s[76:79], s%d offen offset:%d" % (GQ + 8 + 4 * i, GQ + 11 + 4 * i, GA + 1, T0, 1024 * i))
    return r

def gate_compute():
    r = []
    for i in range(8):
        r.append("v_lshlrev_b32 v%d, 16, v%d" % (GWF + 2 * i, GQ + i))
        r.append("v_and_b32 v%d, 0xffff0000, v%d" % (GWF + 2 * i + 1, GQ + i))
    for rr in range(2):
        for i in range(8):
            src = GQ + 8 + 8 * rr + i
            t = GTM + 2 * (i & 1)
            r.append("v_lshlrev_b32 v%d, 16, v%d" % (t, src))
            r.append("v_and_b32 v%d, 0xffff0000, v%d" % (t + 1, src))
            r.append("v_mul_f32 v%d, v%d, v%d" % (t, t, GWF + 2 * i))
            r.append("v_mul_f32 v%d, v%d, v%d" % (t + 1, t + 1, GWF + 2 * i + 1))
            r.append("v_cvt_pk_bf16_f32 v%d, v%d, v%d" % (t, t, t + 1))
            r.append("v_lshlrev_b32 v%d, 16, v%d" % (t + 1, t))
            r.append("v_and_b32 v%d, 0xffff0000, v%d" % (t, t))
            if i == 0:
                r.append("v_add_f32 v%d, v%d, v%d" % (GA + rr, t, t + 1))
            else:
                r.append("v_add_f32 v%d, v%d, v%d" % (t, t, t + 1))
                r.append("v_add_f32 v%d, v%d, v%d" % (GA + rr, GA + rr, t))
    G = [[x] for x in r]
    for m in ("row_shr:1 row_mask:0xf bank_mask:0xf bound_ctrl:0", "row_shr:2 row_mask:0xf bank_mask:0xf bound_ctrl:0",
              "row_shr:4 row_mask:0xf bank_mask:0xf bound_ctrl:0", "row_shr:8 row_mask:0xf bank_mask:0xf bound_ctrl:0",
              "row_bcast:15 row_mask:0xa bank_mask:0xf", "row_bcast:31 row_mask:0xc bank_mask:0xf"):
        G.append(["s_nop 1"] + ["v_add_f32_dpp v%d, v%d, v%d %s" % (GA + rr, GA + rr, GA + rr, m) for rr in range(2)])
    for op in ("v_cvt_pk_bf16_f32 v%d, v%d, v%d", "v_lshlrev_b32 v%d, 16, v%d", "v_mul_f32 v%d, 0xbfb8aa3b, v%d", "v_exp_f32 v%d, v%d", "N",
               "v_add_f32 v%d, 1.0, v%d", "v_rcp_f32 v%d, v%d", "N", "v_cvt_pk_bf16_f32 v%d, v%d, v%d", "v_lshlrev_b32 v%d, 16, v%d"):
        if op == "N": G.append(["s_nop 0"]); continue
        G.append([op % ((GA + rr,) * op.count("%d")) for rr in range(2)])
    G.append(["s_lshl_b32 s%d, s%d, 3" % (T0, sD), "s_add_u32 s%d, s%d, 0x%x" % (S_GT, P_WS, GT_OFF), "s_addc_u32 s%d, s%d, 0" % (S_GT + 1, P_WS + 1),
              "s_mov_b32 s%d, 0x%x" % (S_GT + 2, GT_BYTES), "s_mov_b32 s%d, 0x00020000" % (S_GT + 3), "v_mov_b32 v%d, 0" % GTM])
    G.append(["s_mov_b32 exec_lo, 0", "s_mov_b32 exec_hi, 0x80000000",
              "buffer_store_dwordx2 v[%d:%d], v%d, s[%d:%d], s%d offen sc1" % (GA, GA + 1, GTM, S_GT, S_GT + 3, T0), "s_mov_b64 exec, -1"])
    return G

VZA = 211
def conv_setup(a):
    a("s_mul_i32 s%d, s%d, %d" % (sHB, sW, 2 * HC))
    a("v_add_u32 v%d, s%d, v%d" % (VZA, sHB, VL))
    srd(a, S_H, P_HK, 1024 * 2048 * 2)
    ws_srd(a, S_Z, P_WS, Z_OFF, Z_BYTES)
    a("s_lshr_b32 s%d, s%d, 1" % (T1, sD))
    a("s_lshl_b32 s%d, s%d, 2" % (T1, T1))
    a("s_load_dword s%d, s[%d:%d], s%d" % (sDV, P_D, P_D + 1, T1))
    a("s_load_dwordx2 s[68:69], s[0:1], 88")
    a("v_and_b32 v%d, 15, v0" % VT)
    a("v_lshrrev_b32 v%d, 4, v0" % (VT + 1))
    a("v_lshlrev_b32 v%d, 7, v%d" % (VT + 1, VT + 1))
    a("v_lshlrev_b32 v%d, 3, v%d" % (VT, VT))
    a("v_add_u32 v%d, v%d, v%d" % (VT, VT, VT + 1))
    a("v_sub_u32 v%d, 568, v%d" % (VT, VT))
    a("v_lshlrev_b32 v%d, 1, v%d" % (VT, VT))
    a("v_and_b32 v8, 15, v0")
    a("v_lshrrev_b32 v9, 4, v0")
    a("v_lshlrev_b32 v10, 7, v9")
    a("v_lshlrev_b32 v11, 3, v8")
    a("v_add_u32 v10, v10, v11")
    a("v_lshlrev_b32 v12, 1, v10")
    a("v_add_u32 v13, v8, v9")
    a("v_lshlrev_b32 v13, 4, v13")
    a("v_add_u32 v13, s%d, v13" % sHB)
    a("v_lshrrev_b32 v4, 2, v8")
    a("v_and_b32 v5, 3, v8")
    a("s_movk_i32 s%d, %d" % (T1, UC))
    a("v_mul_lo_u32 v5, v5, s%d" % T1)
    a("v_sub_u32 v6, 3, v4")
    a("v_lshlrev_b32 v6, 8, v6")
    a("v_add_u32 v5, v5, v6")
    a("v_add_u32 v5, s%d, v5" % sLB)
    a("v_and_b32 v6, 1, v4")
    a("v_lshlrev_b32 v6, 1, v6")
    a("v_xor_b32 v7, v9, v6")
    a("v_xor_b32 v6, 2, v7")
    a("v_lshlrev_b32 v6, 4, v6")
    a("v_lshlrev_b32 v7, 4, v7")
    a("v_add_u32 v14, v5, v6")
    a("v_add_u32 v15, v5, v7")
    a("s_mov_b32 s%d, 0xffff0000" % T2)

def conv_issue(a):
    a("s_mov_b64 exec, 0xffff")
    for ph in range(2):
        a("ds_write_b128 v%d, v[%d:%d] offset:%d" % (VZA, VZ, VZ + 3, ph * HC))
        a("ds_write_b128 v%d, v[%d:%d] offset:%d" % (VZA, VZ, VZ + 3, ph * HC + HC - 256))
    a("s_mov_b64 exec, -1")
    a("s_lshl_b32 s%d, s%d, 12" % (T0, sD))
    for i in range(32): a("v_mov_b32 v%d, 0" % (32 + i))
    a("s_waitcnt lgkmcnt(0)")
    D = []
    for ph in range(2):
        for I in range(4):
            g = []
            if I == 0: g += ["s_add_u32 m0, s%d, %d" % (sHB, ph * HC + (128 - 4 * ph) * 2), "s_nop 0"]
            g.append("buffer_load_dwordx4 v%d, s[%d:%d], s%d offen offset:%d lds" % (VL, S_H, S_H + 3, T0, I * 1024))
            D.append(g)
    for T in range(4):
        D.append(["buffer_load_dwordx4 v[%d:%d], v%d, s[%d:%d], s%d offen offset:%d%s" % (KV + 4 * T, KV + 4 * T + 3, VT, S_G, S_G + 3, T3, (3 - T) * 1024, GSC)])
    return D

WPF = 0
SPN = int(os.environ.get("SPN", "10"))
G1N = int(os.environ.get("G1N", "0"))
G1POS = int(os.environ.get("G1POS", "40"))
def wd_touch(spare, mall=False):
    n = SPN if spare else G1N
    if mall: n = 7
    if not n: return []
    S = S_GW
    r = ["s_mov_b32 s%d, s%d" % (S, P_WD), "s_mov_b32 s%d, s%d" % (S + 1, P_WD + 1), "s_mov_b32 s%d, 0x%x" % (S + 2, 3584 * 1024 * 2), "s_mov_b32 s%d, 0x00020000" % (S + 3),
         "v_lshrrev_b32 v138, 3, v0", "v_lshlrev_b32 v138, 11, v138", "v_and_b32 v139, 7, v0", "v_lshlrev_b32 v139, 7, v139", "v_add_u32 v138, v138, v139",
         "s_lshr_b32 s%d, s2, 3" % T0]
    G2W = os.environ.get("G2", "x") in "wx"
    G2MAP = int(os.environ.get("G2MAP", "2"))
    if spare and G2W:
        r = r[:-1]
        r += ["s_lshr_b32 s%d, s2, 1" % T0, "s_and_b32 s%d, s%d, 2" % (T0, T0), "s_lshr_b32 s%d, s2, 3" % T1, "s_and_b32 s%d, s%d, 1" % (T1, T1),
              "s_add_u32 s%d, s%d, s%d" % (T0, T0, T1), "s_mul_i32 s%d, s%d, 896" % (T0, T0), "s_lshl_b32 s%d, s%d, 3" % (T1, sW), "s_add_u32 s%d, s%d, s%d" % (T0, T0, T1)]
        if G2MAP == 1:
            if mall: r += ["s_and_b32 s%d, s2, 3" % T1, "s_mul_i32 s%d, s%d, 224" % (T1, T1), "s_add_u32 s%d, s%d, s%d" % (T0, T0, T1)]
            r += ["s_lshl_b32 s%d, s%d, 11" % (T0, T0), "s_and_b32 s%d, s2, 16" % T1, "s_lshl_b32 s%d, s%d, 6" % (T1, T1), "s_add_u32 s%d, s%d, s%d" % (T0, T0, T1)]
        else:
            if mall: r += ["s_and_b32 s%d, s2, 1" % T1, "s_mul_i32 s%d, s%d, 448" % (T1, T1), "s_add_u32 s%d, s%d, s%d" % (T0, T0, T1)]
            r += ["s_lshr_b32 s%d, s2, 4" % T1, "s_mul_i32 s%d, s%d, %d" % (T1, T1, 224 if mall else 32 * SPN), "s_add_u32 s%d, s%d, s%d" % (T0, T0, T1)]
            r += ["s_lshl_b32 s%d, s%d, 11" % (T0, T0), "s_and_b32 s%d, s2, 2" % T1, "s_lshl_b32 s%d, s%d, 9" % (T1, T1), "s_add_u32 s%d, s%d, s%d" % (T0, T0, T1)]
        step = 32
    else:
        if spare:
            r += ["s_mul_i32 s%d, s%d, 896" % (T0, T0), "s_lshl_b32 s%d, s%d, 3" % (T1, sW)]
            if mall:
                r += ["s_add_u32 s%d, s%d, s%d" % (T0, T0, T1), "s_and_b32 s%d, s2, 3" % T1, "s_mul_i32 s%d, s%d, 224" % (T1, T1)]
            step = 32
        else:
            per = -(-(896 - 32 * SPN) // 28)
            per = min(per, 8 * n)
            r += ["s_mul_i32 s%d, s%d, %d" % (T0, T0, per), "s_add_u32 s%d, s%d, %d" % (T0, T0, 32 * SPN - 4 * per), "s_mul_i32 s%d, s%d, 896" % (T1, sW)]
            step = 8
        r += ["s_add_u32 s%d, s%d, s%d" % (T0, T0, T1), "s_lshl_b32 s%d, s%d, 11" % (T0, T0),
             "s_and_b32 s%d, s2, 4" % T1, "s_lshl_b32 s%d, s%d, 8" % (T1, T1), "s_add_u32 s%d, s%d, s%d" % (T0, T0, T1)]
    for b in range(n):
        r.append("buffer_load_dword v139, v138, s[%d:%d], s%d offen" % (S, S + 3, T0))
        TG = os.environ.get("TG", "")
        if ("m" in TG and mall) or ("l" in TG and not mall):
            r.append("buffer_load_dword v139, v138, s[%d:%d], s%d offen offset:64" % (S, S + 3, T0))
        if ("M" in TG and mall) or ("L" in TG and not mall):
            for o in (32, 64, 96): r.append("buffer_load_dword v139, v138, s[%d:%d], s%d offen offset:%d" % (S, S + 3, T0, o))
        r.append("s_add_u32 s%d, s%d, 0x%x" % (T0, T0, step * 2048))
    return r


DSP_ = int(os.environ.get("CDSP", "8"))
def conv_pre(a, D, E=None, pre_extra=None):
    import gemm2f as B, re
    E = E or []
    vm = []
    def em(i):
        a(i)
        if i.startswith("buffer_"): vm.append(i)
    WD = [[i for i, _ in g] for t in range(B.NW0) for g in B.ldw(t)]
    WS = [[[i for i, _ in g] for g in B.ldws(t)] for t in range(B.NW0, B.NW0 + B.NWS)]
    pl = [(DSP_ * n, g) for n, g in enumerate(D)]
    WSP = int(os.environ.get("WSP", "12"))
    if E:
        p = DSP_ * len(D)
        lastrd = {}
        for k, i in enumerate(E):
            m = re.match(r"v_accvgpr_read_b32 v\d+, a(\d+)", i)
            if m: lastrd[int(m.group(1))] = k
        for g in WD:
            pl.append((p, g)); p += WSP
        for st in WS:
            for g in st:
                r = int(re.search(r"a\[(\d+):", g[0]).group(1))
                need = max([lastrd.get(r + k, -1) for k in range(4)]) + 2
                p = max(p, need)
                while p + 1 < len(E) and (E[p + 1].startswith("v_pk_") or E[p].startswith("s_nop") or E[p + 1].startswith("v_permlane")): p += 1
                pl.append((p, g)); p += WSP
        assert p < len(E) + WSP, (p, len(E))
    for i in place(E, pl): em(i)
    if pre_extra:
        a("s_waitcnt vmcnt(%d)" % len(vm))
        for i in pre_extra: em(i)
    if not E:
        for g in WD + [g for st in WS for g in st]:
            for i in g: em(i)
    dl = [i for g in D for i in g if i.startswith("buffer_")][-1]
    last = max(k for k, i in enumerate(vm) if i == dl)
    a("s_waitcnt vmcnt(%d)" % min(63, len(vm) - 1 - last))

def conv_fused(a, rts=False):
    import gemm2f as B
    ACC = 32
    NS = 65
    NSW = 33
    def fb(n): return 64 + (n % 3) * 24 if n < NSW else 176 + (n % 5) * 16
    def ureg(n, T): return fb(n) + 8 + 4 * T if n < NSW else fb(n) + 8 + 4 * (T - 2)
    def reads(n):
        b = fb(n)
        r = []
        for ph in range(2):
            r.append("ds_read_b128 v[%d:%d], v13 offset:%d" % (b + 4 * ph, b + 4 * ph + 3, ph * HC + 64 * n))
        m = n >> 2
        for T in range(4):
            if n <= 16 * T + 16:
                u = ureg(n, T)
                r.append("ds_read_b128 v[%d:%d], v%d offset:%d" % (u, u + 3, 14 + (m & 1), 3072 - 1024 * T + 256 * m + 64 * (n & 3)))
        return r
    def mf(n):
        b = fb(n)
        r = []
        for T in range(4):
            if n <= 16 * T + 16:
                u = ureg(n, T)
                for ph in range(2):
                    c = ACC + (T * 2 + ph) * 4
                    r.append("v_mfma_f32_16x16x32_bf16 v[%d:%d], v[%d:%d], v[%d:%d], v[%d:%d]" % (c, c + 3, u, u + 3, b + 4 * ph, b + 4 * ph + 3, c, c + 3))
        return r
    issue = {}
    for n in range(2, NS):
        issue.setdefault(n - (2 if n < NSW else 4), []).append(n)
    order = [0] * len(reads(0)) + [1] * len(reads(1))
    steps = []
    for n in range(NS):
        w = len(order) - 1 - max(i for i, x in enumerate(order) if x == n)
        rd = []
        for k in sorted(issue.get(n, [])):
            rd += reads(k); order += [k] * len(reads(k))
        steps.append((min(w, 15), mf(n), rd))
    def glue(L):
        out = []
        for i in L:
            if i.startswith("s_addc") and out: out[-1].append(i)
            else: out.append([i])
        return out
    mpos = [0]
    for n in range(NS): mpos.append(mpos[-1] + len(steps[n][1]))
    def spread(fill, n0, n1):
        nm = mpos[n1] - mpos[n0]
        return [(mpos[n0] + (k * nm) // len(fill), g) for k, g in enumerate(fill)]
    def T_(g): return [(i, None) for i in g]
    def emit(vm, it):
        i, tag = it
        if i.endswith(":"): a.raw(i)
        else: a(i)
        if i.startswith("buffer_"): vm.append(tag)
    def yt(vm, tag): return len(vm) - 1 - max(i for i, x in enumerate(vm) if x == tag)
    def seg2(vm, n0, n1, placed, events={}):
        for n in range(n0, n1):
            if n in events: events[n]()
            w, m, rd = steps[n]
            a("s_waitcnt lgkmcnt(%d)" % w)
            pl = [((k * len(m)) // max(len(rd), 1), [(x, None)]) for k, x in enumerate(rd)]
            for p, g in placed:
                if mpos[n] <= p < mpos[n + 1]: pl.append((p - mpos[n], g))
            for it in place(T_(m), pl): emit(vm, it)
    M = T2
    assert sDV % 2 == 0 and T4 == sDV + 1
    CE0 = [["s_and_b32 s%d, s%d, 1" % (T0, sD), "s_lshl_b32 s%d, s%d, 16" % (T1, sDV), "s_and_b32 s%d, s%d, 0xffff0000" % (sDV, sDV),
           "s_cmp_eq_u32 s%d, 0" % T0, "s_cselect_b32 s%d, s%d, s%d" % (sDV, T1, sDV), "s_lshl_b32 s%d, s%d, 12" % (T0, sD), "s_mov_b32 s%d, s%d" % (T4, sDV)]]
    def cep(T, pk):
        Y = 136; Kf = 144; O = 152; t = 156
        c = ACC + T * 8
        e = []
        for p in range(4):
            src = KV + 4 * T + (3 - p)
            e.append("v_and_b32 v%d, s%d, v%d" % (Kf + 2 * p, M, src))
            e.append("v_lshlrev_b32 v%d, 16, v%d" % (Kf + 2 * p + 1, src))
        if pk: e += ["v_pk_mul_f32 v[%d:%d], v[%d:%d], s[%d:%d]" % (Kf + k, Kf + k + 1, Kf + k, Kf + k + 1, sDV, sDV + 1) for k in range(0, 8, 2)]
        else: e += ["v_mul_f32 v%d, s%d, v%d" % (Kf + k, sDV, Kf + k) for k in range(8)]
        for p in range(4):
            e.append("v_cvt_pk_bf16_f32 v%d, v%d, v%d" % (t, Kf + 2 * p, Kf + 2 * p + 1))
            e.append("v_lshlrev_b32 v%d, 16, v%d" % (Kf + 2 * p, t))
            e.append("v_and_b32 v%d, s%d, v%d" % (Kf + 2 * p + 1, M, t))
        e1 = e; e = []
        for p in range(4):
            e.append("v_cvt_pk_bf16_f32 v%d, v%d, v%d" % (t, c + 2 * p, c + 2 * p + 1))
            e.append("v_lshlrev_b32 v%d, 16, v%d" % (Y + 2 * p, t))
            e.append("v_and_b32 v%d, s%d, v%d" % (Y + 2 * p + 1, M, t))
        if pk: e += ["v_pk_add_f32 v[%d:%d], v[%d:%d], v[%d:%d]" % (Y + k, Y + k + 1, Y + k, Y + k + 1, Kf + k, Kf + k + 1) for k in range(0, 8, 2)]
        else: e += ["v_add_f32 v%d, v%d, v%d" % (Y + k, Y + k, Kf + k) for k in range(8)]
        for p in range(4):
            e.append("v_cvt_pk_bf16_f32 v%d, v%d, v%d" % (O + p, Y + 2 * p, Y + 2 * p + 1))
        st = ("buffer_store_dwordx4 v[%d:%d], v12, s[%d:%d], s%d offen offset:%d sc1" % (O, O + 3, S_Z, S_Z + 3, T0, T * 1024), "z")
        return [[(i, None)] for i in e1], [[(i, None)] for i in e] + [[st]]
    NA = int(os.environ.get("CNA", "5"))
    NB = int(os.environ.get("CNB", "14"))
    NH = int(os.environ.get("CNH", "6"))
    NWE = int(os.environ.get("CNWE", "12"))
    PCS = [int(x) for x in os.environ.get("CPC", "14,17,20,24,28,32,37,43,50,58").split(",")]
    LAG = int(os.environ.get("CLAG", "3"))
    assert 2 <= NH and NB <= PCS[0] and NWE <= PCS[0]
    P0, P1, P2 = B.setup()
    G = lambda L: [T_(g) for g in glue(L)]
    XL = [g for t in range(8) for g in B.ldx(t)]
    if rts: a("s_memrealtime s[86:87]")
    for i in reads(0): a(i)
    for i in reads(1): a(i)
    CST = rts and os.environ.get("CST")
    vm = [("w", t) for t in range(B.NW0 + B.NWS) for _ in range(4)]
    nv0 = len(vm)
    def evH():
        a("s_waitcnt vmcnt(%d)" % (len(vm) - nv0))
        a("s_barrier")
        if CST: a("s_memrealtime s[98:99]")
    base = spread(G(P0), 0, 2) + spread(G(P1), 2, NA) + spread(G(P2), NA, NB)
    base += [(mpos[NH], T_(B.flag_store(0, "CV_HF", 159))), (mpos[NB], T_(CE0[0]))]
    for T in range(3):
        e1, e2 = cep(T, False)
        base += spread(e1 + e2, 16 * T + 18, 16 * T + 30)
    e1, e2 = cep(3, False)
    base += spread(e1, 62, 65) if False else []
    fast = []
    events = {NH: evH}
    PR = [157, 158, 3, 2]
    PR = [157, 158, 3, 159]
    def mk(j):
        def ev():
            if j >= LAG:
                a("s_waitcnt vmcnt(%d)" % yt(vm, ("poll", j - LAG)))
                if CST and j == LAG: a("s_memrealtime s[88:89]")
                for i in B.mupd(PR[(j - LAG) % 4]): a(i)
                a("s_and_b32 s50, s%d, 3" % B.sMASK)
                a("s_cmp_eq_u32 s50, 3")
                a("s_cbranch_scc1 CV_F%d" % j)
                fast.append((j, list(vm)))
            if j + LAG < len(PCS): emit(vm, (B.poll(PR[j % 4]), ("poll", j)))
        return ev
    for j, n in enumerate(PCS): events[n] = mk(j)
    seg2(vm, 0, NS, base, events)
    vms = [vm]
    keep = a.lines; a.lines = []
    for j, v in fast:
        a.label("CV_F%d" % j)
        a("s_mov_b32 s%d, 2" % B.sISS)
        if rts: a("s_memrealtime s[90:91]")
        n0 = PCS[j]
        seg2(v, n0, NS, base + spread(XL, n0, NS))
        a("s_branch CV_CK")
        vms.append(v)
    fastl = a.lines; a.lines = keep
    a.label("CV_CK")
    if CST: a("s_memrealtime s[96:97]")
    a("s_barrier")
    def emit_all(it):
        i, tag = it
        a(i)
        if i.startswith("buffer_"):
            for v in vms: v.append(tag)
    emit_all((B.POLL, "pa"))
    DW = [(i, None) for t in range(B.NW0, min(6, B.NW0 + B.NWS)) for i in B.dump(t)]
    e1, e2 = cep(3, True)
    ep = [i for g in e1 + e2 for i in g]
    for it in place(ep, [(1 + 3 * n, [x]) for n, x in enumerate(DW)]): emit_all(it)
    a("s_cmp_eq_u32 s%d, 2" % B.sISS)
    a("s_cbranch_scc1 CV_B")
    a("s_waitcnt vmcnt(1)")
    for i in B.MUPD: a(i)
    a("s_and_b32 s50, s%d, 3" % B.sMASK)
    a("s_cmp_eq_u32 s50, 3")
    a("s_cbranch_scc0 CV_SP")
    a.label("CV_SOK")
    if rts: a("s_memrealtime s[90:91]")
    for g in XL:
        for it in g: emit(vm, it)
    a("s_branch CV_B")
    B.spin(a, "CV_SP", 3, "CV_SOK")
    a.lines += fastl
    a.label("CV_B")
    return vms
```

```python
from asmlib import *
from layout import G_PITCH, Z_OFF, Z_BYTES

import os
ROT = int(os.environ.get('ROT', '5'))
PD = int(os.environ.get('PD', '6'))
DS0 = int(os.environ.get('DS0', '1'))
DSP = int(os.environ.get('DSP', '4'))
H1_OFF = 0
H1_BYTES = 2048 * 3584 * 2

def gen_gemm1(a, name="g1_kernel", end_label="G1_END", stamps=False, dbg="", fuse=False, rts=False):
    PST = os.environ.get("PST", "") != ""
    def rt(r):
        if rts and not (PST and r in (90,)): a("s_memrealtime s[%d:%d]" % (r, r + 1))
    def prt(r):
        if rts and PST: a("s_memrealtime s[%d:%d]" % (r, r + 1))
    def stamp(i):
        if stamps:
            a("s_memtime s[%d:%d]" % (60 + 2 * i, 61 + 2 * i))
    stamp(0)
    S_X, S_WG, S_WU, S_H = 4, 8, 12, 16
    sKX, sKW, sCNT = 20, 21, 22
    sM0 = 32
    sW = 40
    sT = 41
    vXoff = 2
    vWoff = 10
    vXa = 14
    vWa = 18
    vT = 26
    F = [64, 128]

    a("s_load_dwordx2 s[24:25], s[0:1], 0")
    a("s_load_dwordx2 s[26:27], s[0:1], 56")
    a("s_load_dwordx2 s[28:29], s[0:1], 64")
    a("s_load_dwordx2 s[30:31], s[0:1], 104")
    if fuse: code_touch(a, 76, 45, 0, "g1_kernel", end_label="G1_PREP")
    a("s_and_b32 s41, s2, 7")
    a("s_lshr_b32 s42, s2, 3")
    if fuse: a("s_sub_u32 s42, s42, 4")
    a("s_and_b32 s43, s41, 1")
    a("s_lshl_b32 s43, s43, 2")
    a("s_and_b32 s44, s42, 3")
    a("s_add_u32 s43, s43, s44")
    a("s_lshr_b32 s44, s41, 1")
    a("s_mul_i32 s44, s44, 7")
    a("s_lshr_b32 s45, s42, 2")
    a("s_add_u32 s44, s44, s45")
    if "Z" in dbg:
        a("s_mov_b32 s43, 0")
        a("s_mov_b32 s44, 0")
    if "Y" in dbg:
        a("s_and_b32 s43, s43, 1")
        a("s_and_b32 s44, s44, 1")
    a("s_lshl_b32 s43, s43, 8")
    a("s_lshl_b32 s44, s44, 7")
    a("v_lshrrev_b32 v1, 6, v0")
    a("v_and_b32 v0, 63, v0")
    a("s_nop 0")
    a("v_readfirstlane_b32 s%d, v1" % sW)
    LATE = os.environ.get("LATE", "1") == "1"
    def srds():
        a("s_waitcnt lgkmcnt(0)")
        prt(86)
        srd(a, S_X, 24, 2048 * 1024 * 2)
        srd(a, S_WG, 26, 1024 * 3584 * 2)
        srd(a, S_WU, 28, 1024 * 3584 * 2)
        if not LATE: srd(a, S_H, 30, H1_BYTES)
    if not LATE: srds()
    a("s_lshl_b32 s45, s%d, 13" % sW)
    a("s_lshl_b32 s46, s%d, 12" % sW)
    for b in range(2):
        a("s_add_u32 s%d, s45, 0x%x" % (sM0 + 4 * b + 0, (1 - b) * 65536))
        a("s_add_u32 s%d, s45, 0x%x" % (sM0 + 4 * b + 1, (1 - b) * 65536 + 4096))
        a("s_add_u32 s%d, s46, 0x%x" % (sM0 + 4 * b + 2, (1 - b) * 65536 + 32768))
        a("s_add_u32 s%d, s46, 0x%x" % (sM0 + 4 * b + 3, (1 - b) * 65536 + 49152))
    t0, t1, t2, t3 = vT, vT + 1, vT + 2, vT + 3
    a("v_lshrrev_b32 v%d, 3, v0" % t0)
    a("s_lshl_b32 s45, s%d, 6" % sW)
    a("s_add_u32 s45, s45, s43")
    a("v_add_u32 v%d, s45, v%d" % (t0, t0))
    a("v_lshlrev_b32 v%d, 11, v%d" % (t0, t0))
    a("v_and_b32 v%d, 7, v0" % t1)
    a("v_lshrrev_b32 v%d, 4, v0" % t2)
    a("v_xor_b32 v%d, v%d, v%d" % (t1, t1, t2))
    a("v_lshlrev_b32 v%d, 4, v%d" % (t1, t1))
    a("v_add_u32 v%d, v%d, v%d" % (t0, t0, t1))
    a("v_xor_b32 v%d, 64, v%d" % (t1, t0))
    for j in range(8):
        a("v_add_u32 v%d, 0x%x, v%d" % (vXoff + j, j * 16384 - (j & 3) * 1024, t0 if j % 2 == 0 else t1))
    a("s_lshl_b32 s45, s%d, 4" % sW)
    a("v_add_u32 v%d, s45, v%d" % (t0, t2))
    a("s_movk_i32 s46, 7168")
    a("v_mul_lo_u32 v%d, v%d, s46" % (t0, t0))
    a("s_lshl_b32 s45, s44, 1")
    a("v_add_u32 v%d, s45, v%d" % (t0, t0))
    a("v_and_b32 v%d, 15, v0" % t1)
    a("v_lshlrev_b32 v%d, 1, v%d" % (t3, t2))
    a("v_xor_b32 v%d, v%d, v%d" % (t1, t1, t3))
    a("v_lshlrev_b32 v%d, 4, v%d" % (t1, t1))
    a("v_add_u32 v%d, v%d, v%d" % (t0, t0, t1))
    a("v_xor_b32 v%d, 0x80, v%d" % (t1, t0))
    for j in range(4):
        a("v_add_u32 v%d, 0x%x, v%d" % (vWoff + j, j * 4 * 7168 - j * 1024, t0 if j < 2 else t1))
    def touch_setup():
        a("s_lshr_b32 s45, s42, 2")
        a("s_mul_i32 s45, s45, 40")
        TX = int(os.environ.get("TX", "0"))
        if TX:
            a("s_cmp_eq_u32 s%d, 3" % sW)
            a("s_cselect_b32 s47, 20, 0")
            a("s_add_u32 s45, s45, s47")
            a("v_min_u32 v%d, 19, v0" % t0)
            a("v_add_u32 v%d, s45, v%d" % (t0, t0))
        else:
            a("v_add_u32 v%d, s45, v0" % t0)
        a("v_min_u32 v%d, 255, v%d" % (t0, t0))
        a("v_add_u32 v%d, s43, v%d" % (t0, t0))
        a("v_lshlrev_b32 v%d, 11, v%d" % (t0, t0))
        a("v_lshrrev_b32 v%d, 1, v0" % t1)
        a("v_and_b32 v%d, 15, v%d" % (t1, t1))
        a("v_lshlrev_b32 v%d, 2, v%d" % (t1, t1))
        a("s_and_b32 s45, s42, 3")
        a("v_add_u32 v%d, s45, v%d" % (t1, t1))
        a("v_mul_lo_u32 v%d, v%d, s46" % (t1, t1))
        a("v_and_b32 v%d, 1, v0" % t3)
        a("v_lshlrev_b32 v%d, 7, v%d" % (t3, t3))
        a("v_add_u32 v%d, v%d, v%d" % (t1, t1, t3))
        a("s_lshl_b32 s45, s44, 1")
        a("v_add_u32 v%d, s45, v%d" % (t1, t1))
        a("s_cmp_eq_u32 s%d, 1" % sW)
        a("s_cselect_b32 s52, s26, s24")
        a("s_cselect_b32 s53, s27, s25")
        a("s_cmp_eq_u32 s%d, 2" % sW)
        a("s_cselect_b32 s52, s28, s52")
        a("s_cselect_b32 s53, s29, s53")
        a("s_add_u32 s45, s%d, -1" % sW)
        a("s_mov_b32 s54, 0x%x" % (2048 * 1024 * 2))
        a("s_movk_i32 s57, 128")
        a("s_cmp_lt_u32 s45, 2")
        a("s_cselect_b32 s54, 0x%x, s54" % (1024 * 3584 * 2))
        a("s_mov_b32 s55, 0x00020000")
        a("s_cselect_b32 s57, 0x%x, s57" % (64 * 7168))
        a("s_cselect_b64 vcc, -1, 0")
        a("s_nop 1")
        a("v_cndmask_b32 v41, v%d, v%d, vcc" % (t0, t1))
        a("s_lshl_b32 s56, s57, 1")
    if "P" in dbg and not LATE: touch_setup()
    if "K" in dbg:
        a("s_mul_i32 s23, s42, %d" % ROT)
        a("s_and_b32 s23, s23, 15")
        a("s_lshl_b32 s%d, s23, 7" % sKX)
        a("s_mul_i32 s%d, s23, 0x%x" % (sKW, 64 * 7168))
    else:
        a("s_mov_b32 s%d, 0" % sKX)
        a("s_mov_b32 s%d, 0" % sKW)

    def dma(b):
        g = []
        for half in range(2):
            if "W" in dbg: break
            for jj in range(4):
                j = half * 4 + jj
                ins = []
                if jj == 0:
                    ins.append("s_mov_b32 m0, s%d" % (sM0 + 4 * b + half))
                    ins.append("s_nop 0")
                ins.append("buffer_load_dwordx4 v%d, s[%d:%d], s%d offen offset:%d lds" % (vXoff + j, S_X, S_X + 3, sKX, jj * 1024))
                g.append(ins)
        for gu in range(2):
            if "X" in dbg: break
            S = S_WG if gu == 0 else S_WU
            for j in range(4):
                ins = []
                if j == 0:
                    ins.append("s_mov_b32 m0, s%d" % (sM0 + 4 * b + 2 + gu))
                    ins.append("s_nop 0")
                ins.append("buffer_load_dwordx4 v%d, s[%d:%d], s%d offen offset:%d lds" % (vWoff + j, S, S + 3, sKW, j * 1024))
                g.append(ins)
        if "K" in dbg:
            g[-1].append("s_add_u32 s23, s23, 1")
            g[-1].append("s_and_b32 s23, s23, 15")
            g[-1].append("s_lshl_b32 s%d, s23, 7" % sKX)
            g[-1].append("s_mul_i32 s%d, s23, 0x%x" % (sKW, 64 * 7168))
        else:
            g[-1].append("s_add_u32 s%d, s%d, 128" % (sKX, sKX))
            g[-1].append("s_add_u32 s%d, s%d, 0x%x" % (sKW, sKW, 64 * 7168))
        return g

    import prep4, conv2
    dprep = fuse and conv2.TARGET == 16
    if dprep:
        prep4.prep4_issue(a, 60, 62, 100, 30, 64, 64, sW)
    if LATE: srds()
    prt(96)
    for g in dma(0):
        for i in g: a(i)
    for g in dma(1):
        for i in g: a(i)
    prt(90)
    if LATE:
        srd(a, S_H, 30, H1_BYTES)
        if "P" in dbg: touch_setup()
    def touch():
        return ["buffer_load_dword v42, v41, s[52:55], s56 offen", "s_add_u32 s56, s56, s57"]
    if "P" in dbg:
        for _ in range(PD - 2):
            for i in touch(): a(i)

    NCT = 0
    conv2.clear_flag(a, 76, 30, 47, 47, "G1_CLR", ["s_cmp_lg_u32 s%d, 0" % sW])
    a("s_cmp_eq_u32 s%d, 0" % sW)
    a("s_cselect_b32 s49, 1, -1")
    a("s_lshr_b32 s45, s%d, 1" % sW)
    a("s_and_b32 s46, s%d, 1" % sW)
    a("v_and_b32 v%d, 15, v0" % t0)
    a("s_lshl_b32 s47, s45, 7")
    a("v_add_u32 v%d, s47, v%d" % (t0, t0))
    a("v_lshlrev_b32 v%d, 7, v%d" % (t0, t0))
    a("v_lshrrev_b32 v%d, 1, v0" % t1)
    a("v_and_b32 v%d, 7, v%d" % (t1, t1))
    a("v_xor_b32 v%d, v%d, v%d" % (t1, t1, t2))
    a("v_lshlrev_b32 v%d, 4, v%d" % (t1, t1))
    a("v_add_u32 v%d, v%d, v%d" % (vXa + 2, t0, t1))
    a("v_xor_b32 v%d, 64, v%d" % (vXa + 3, vXa + 2))
    a("v_add_u32 v%d, 0x10000, v%d" % (vXa + 0, vXa + 2))
    a("v_add_u32 v%d, 0x10000, v%d" % (vXa + 1, vXa + 3))
    a("v_lshrrev_b32 v%d, 2, v0" % t0)
    a("v_and_b32 v%d, 3, v%d" % (t0, t0))
    a("v_lshlrev_b32 v%d, 3, v%d" % (t1, t2))
    a("v_add_u32 v%d, v%d, v%d" % (t1, t1, t0))
    a("v_lshlrev_b32 v%d, 8, v%d" % (t1, t1))
    a("v_and_b32 v%d, 3, v0" % t3)
    a("v_lshlrev_b32 v%d, 3, v%d" % (t3, t3))
    a("v_add_u32 v%d, v%d, v%d" % (t1, t1, t3))
    a("v_add_u32 v%d, 0x8000, v%d" % (t1, t1))
    a("v_and_b32 v%d, 1, v%d" % (t3, t2))
    a("v_lshlrev_b32 v%d, 2, v%d" % (t3, t3))
    a("v_or_b32 v%d, v%d, v%d" % (t0, t0, t3))
    a("s_lshl_b32 s47, s46, 2")
    for t in range(4):
        a("s_add_u32 s48, s47, %d" % t)
        a("v_xor_b32 v%d, s48, v%d" % (t3, t0))
        a("v_lshlrev_b32 v%d, 5, v%d" % (t3, t3))
        a("v_add_u32 v%d, v%d, v%d" % (vWa + 4 + t, t1, t3))
        a("v_add_u32 v%d, 0x10000, v%d" % (vWa + t, vWa + 4 + t))
    if fuse and not dprep:
        conv2.conv_ptrs(a)
    POIS = fuse and os.environ.get("G2", "x") in "wx" and os.environ.get("POIS", "b") == "g"
    from layout import XB_OFF, XB_BYTES
    PSTR = int(os.environ.get("PSTR", "1"))
    PSET = ["s_add_u32 s52, s30, 0x%x" % XB_OFF, "s_addc_u32 s53, s31, 0", "s_mov_b32 s54, 0x%x" % XB_BYTES, "s_mov_b32 s55, 0x00020000",
            "s_lshl_b32 s56, s2, 2", "s_add_u32 s56, s56, s%d" % sW, "s_sub_u32 s56, s56, 128", "s_lshl_b32 s56, s56, 10" if PSTR != 1 else "s_mul_i32 s56, s56, 9472", "v_lshlrev_b32 v52, 4, v0"]
    PSET += ["v_mov_b32 v%d, -1" % (48 + i) for i in range(4)]
    PST_ = ["buffer_store_dwordx4 v[48:51], v52, s[52:55], s56 offen sc1", "s_add_u32 s56, s56, 0x%x" % (PSTR * 1024)]
    NPO = 10 if POIS else 0
    POIL = fuse and os.environ.get("G2", "x") in "wx" and os.environ.get("POIS", "b") == "l"
    POIP = fuse and os.environ.get("G2", "x") in "wx" and os.environ.get("POIS", "b") in ("p", "q")
    if POIL or POIP:
        for i in PSET: a(i.replace("s52", "s80").replace("s53", "s81").replace("s54", "s82").replace("s55", "s83").replace("s56", "s84"))
    PSL = [i.replace("s[52:55]", "s[80:83]").replace("s56", "s84") for i in PST_]
    for i in range(256):
        a("v_accvgpr_write_b32 a%d, 0" % i)
        if POIP and os.environ["POIS"] == "p" and i % 24 == 8 and i < 240:
            for j in PSL: a(j)
            NCT += 1
    if POIP and os.environ["POIS"] == "q":
        for _ in range(10):
            for j in PSL: a(j)
            NCT += 1

    def reads(fs, b, s):
        fb = F[fs]
        r = []
        for i in range(8):
            r.append(["ds_read_b128 v[%d:%d], v%d offset:%d" % (fb + 4 * i, fb + 4 * i + 3, vXa + 2 * b + s, i * 2048)])
        w = []
        for gu in range(2):
            for t in range(4):
                for h in range(2):
                    d = fb + 32 + 4 * (gu * 4 + t) + 2 * h
                    w.append(["ds_read_b64_tr_b16 v[%d:%d], v%d offset:%d" % (d, d + 1, vWa + 4 * b + t, gu * 16384 + s * 8192 + h * 1024)])
        out = []
        for i in range(8):
            out.append(r[i]); out.append(w[2 * i]); out.append(w[2 * i + 1])
        return out

    def mfmas(fs):
        fb = F[fs]
        m = []
        if "M" in dbg: return m
        for i in range(8):
            for wt in range(8):
                c = (wt * 8 + i) * 4
                m.append("v_mfma_f32_16x16x32_bf16 a[%d:%d], v[%d:%d], v[%d:%d], a[%d:%d]" % (
                    c, c + 3, fb + 32 + 4 * wt, fb + 32 + 4 * wt + 3, fb + 4 * i, fb + 4 * i + 3, c, c + 3))
        return m

    stamp(1)
    if fuse and not dprep and os.environ.get("TLB"):
        a("s_waitcnt lgkmcnt(0)")
        a("s_lshl_b32 s80, s2, 2")
        a("s_add_u32 s80, s80, s%d" % sW)
        a("s_lshl_b32 s80, s80, 12")
        a("v_mov_b32 v45, 0")
        a("s_mov_b32 s79, 0x00020000")
        for P, nb, so in ((conv2.P_HK, 1024 * 2048 * 2, "s80"), (conv2.P_GW, 2048, "0"), (conv2.P_D, 2048, "0"), (conv2.P_DBG, 256, "0")):
            a("s_mov_b32 s76, s%d" % P)
            a("s_mov_b32 s77, s%d" % (P + 1))
            a("s_mov_b32 s78, 0x%x" % nb)
            a("buffer_load_dword v46, v45, s[76:79], %s offen%s" % (so, " sc1" if P == conv2.P_DBG else ""))
            NCT += 1
        a("s_add_u32 s76, s30, 0x%x" % Z_OFF)
        a("s_addc_u32 s77, s31, 0")
        a("s_mov_b32 s78, 0x%x" % Z_BYTES)
        a("buffer_load_dword v46, v45, s[76:79], s80 offen")
        NCT += 1
    if dprep:
        a("s_waitcnt vmcnt(%d)" % (32 + PD - 2))
        rt(96)
        prep4.prep4_compute(a, 64, 64, "A")
        conv2.conv_ptrs(a)
        rt(86)
    a("s_waitcnt vmcnt(%d)" % ((8 if ("X" in dbg or "W" in dbg) else 16) + (PD - 2 if "P" in dbg else 0) + (8 if dprep else 0) + NCT))
    prt(94)
    a("s_barrier")
    stamp(2)
    if rts and not dprep:
        rt(98)
    for g in reads(0, 0, 0):
        for i in g: a(i)

    LST = os.environ.get("LST", "") != ""
    if LST:
        a("s_lshl_b32 s90, s%d, 8" % sW)
        a("s_add_u32 s90, s90, 150016")
        a("v_mov_b32 v44, s90")
        a("s_memtime s[90:91]")
    def lst():
        if LST:
            a("v_mov_b32 v43, s90")
            a("ds_write_b32 v44, v43")
            a("v_add_u32 v44, 4, v44")
            a("s_memtime s[90:91]")
    def stage(b, do_dma, do_next, first=False, preB=None, vmB=None, extraA=None, extraB=None, tailB=None, postW=None, plB=None, plA=None):
        a("s_waitcnt lgkmcnt(0)")
        lst()
        pa = [(2 * n, g) for n, g in enumerate(reads(1, b, 1) if "R" not in dbg else [])]
        if extraA: pa += [(1 + 4 * n, g) for n, g in enumerate(extraA)]
        if plA: pa += plA
        for i in place(mfmas(0), pa): a(i)
        a("s_waitcnt lgkmcnt(0)")
        lst()
        if preB: preB()
        if do_next:
            if "V" in dbg:
                pass
            elif vmB is not None:
                a("s_waitcnt vmcnt(%d)" % vmB)
            elif first == 1:
                a("s_waitcnt vmcnt(%d)" % (PD - 2 + 8))
            elif "P" in dbg:
                a("s_waitcnt vmcnt(%d)" % (1 if "2" not in dbg else 18))
            else:
                a("s_waitcnt vmcnt(%d)" % (0 if "2" not in dbg else (8 if ("X" in dbg or "W" in dbg) else 16)))
            if postW: postW()
            if LST:
                a("s_waitcnt lgkmcnt(0)")
                lst()
            if "B" not in dbg: a("s_barrier")
            if LST:
                a("s_waitcnt lgkmcnt(0)")
                lst()
            if first == 2:
                conv2.flag_srd(a)
                a("s_cmp_lg_u32 s%d, 0" % sW)
                a("s_cbranch_scc1 G1_P0")
                conv2.signal(a)
                a.label("G1_P0")
        pl = []
        if do_next and "R" not in dbg:
            for n, g in enumerate(reads(0, b ^ 1, 0)): pl.append((2 * n, g))
        if do_dma and "D" not in dbg:
            dl = dma(b)
            if "P" in dbg: dl[-1] = dl[-1] + touch()
            if tailB: dl[-1] = dl[-1] + tailB
            for n, g in enumerate(dl): pl.append((DS0 + DSP * n, g))
        if extraB: pl += [(1 + 4 * n, g) for n, g in enumerate(extraB)]
        if plB: pl += plB
        for i in place(mfmas(1), pl): a(i)

    def epilogue():
        vS = 2
        a("s_lshr_b32 s47, s43, 7")
        a("s_add_u32 s47, s47, s45")
        a("s_mul_i32 s47, s47, 112")
        a("s_lshr_b32 s48, s44, 5")
        a("s_add_u32 s47, s47, s48")
        a("s_lshl_b32 s48, s46, 1")
        a("s_add_u32 s47, s47, s48")
        a("s_lshl_b32 s47, s47, 13")
        a("v_and_b32 v%d, 15, v0" % t0)
        a("v_lshlrev_b32 v%d, 4, v%d" % (t0, t0))
        a("v_lshrrev_b32 v%d, 1, v%d" % (t1, t2))
        a("v_lshlrev_b32 v%d, 8, v%d" % (t1, t1))
        a("v_add_u32 v%d, v%d, v%d" % (t0, t0, t1))
        a("v_and_b32 v%d, 1, v%d" % (t1, t2))
        a("v_lshlrev_b32 v%d, 10, v%d" % (t1, t1))
        a("v_add_u32 v%d, v%d, v%d" % (t0, t0, t1))
        a("v_add_u32 v%d, s47, v%d" % (vS, t0))
        a("s_mov_b32 s56, 0")
        a("s_movk_i32 s57, 4096")
        a("s_movk_i32 s58, 8192")
        a("s_movk_i32 s59, 12288")
        import math
        C0 = -2.0 * math.sqrt(2.0 / math.pi) * math.log2(math.e)
        C1 = C0 * 0.044715
        import struct
        def f2u(x): return struct.unpack("<I", struct.pack("<f", x))[0]
        a("s_mov_b32 s50, 0x%x" % f2u(C0))
        a("s_mov_b32 s51, 0x%x" % f2u(C1))
        a("v_mov_b32 v3, s50")
        groups = []
        cnt = 0
        SC = os.environ.get("H1SC", " sc1")
        for ip in range(4):
            for t in range(4):
                G = 212; U = 220; T = 228; P = 236 + 4 * (cnt % 4)
                cnt += 1
                i = 2 * ip
                cg = (t * 8 + i) * 4
                cu = ((4 + t) * 8 + i) * 4
                e = []
                for r in range(8): e.append("v_accvgpr_read_b32 v%d, a%d" % (G + r, cg + r))
                for r in range(8): e.append("v_mul_f32 v%d, v%d, v%d" % (T + r, G + r, G + r))
                for r in range(8): e.append("v_fma_f32 v%d, v%d, s51, v3" % (T + r, T + r))
                for r in range(8): e.append("v_mul_f32 v%d, v%d, v%d" % (T + r, T + r, G + r))
                for r in range(8):
                    e.append("v_exp_f32 v%d, v%d" % (T + r, T + r))
                    e.append("v_accvgpr_read_b32 v%d, a%d" % (U + r, cu + r))
                for r in range(8): e.append("v_add_f32 v%d, 1.0, v%d" % (T + r, T + r))
                for r in range(8):
                    e.append("v_rcp_f32 v%d, v%d" % (T + r, T + r))
                    e.append("v_mul_f32 v%d, v%d, v%d" % (U + r, U + r, G + r))
                for r in range(8): e.append("v_mul_f32 v%d, v%d, v%d" % (U + r, U + r, T + r))
                for k in range(4): e.append("v_cvt_pk_bf16_f32 v%d, v%d, v%d" % (P + k, U + 2 * k, U + 2 * k + 1))
                e.append("s_nop 1")
                e.append("v_permlane16_swap_b32 v%d, v%d" % (P, P + 2))
                e.append("v_permlane16_swap_b32 v%d, v%d" % (P + 1, P + 3))
                e.append("s_nop 0")
                e.append("buffer_store_dwordx4 v[%d:%d], v%d, s[%d:%d], s%d offen offset:%d%s" % (P, P + 3, vS, S_H, S_H + 3, 56 + (i >> 2) + 2 * (t >> 1), (i & 3) * 1024 + (t & 1) * 512, SC))
                groups.append(e)
        NSC = int(os.environ.get("NSC", "3"))
        if fuse and NSC < 16:
            a("s_mov_b32 s20, s51")
            a("s_mov_b32 s21, s51")
            a("s_mov_b32 s22, 1.0")
            a("s_mov_b32 s23, 1.0")
            a("v_mov_b32 v254, s50")
            a("v_mov_b32 v255, s50")
            gl = [(ip, t) for ip in range(4) for t in range(4)][NSC:]
            G = 212; U = 220
            TS = [136, 144, 152]; PS = [176, 184, 192]; OS = [236, 240, 244, 248]
            def pr(x): return "v[%d:%d]" % (x, x + 1)
            def rd(k):
                ip, t = gl[k]; i = 2 * ip
                cg = (t * 8 + i) * 4; cu = ((4 + t) * 8 + i) * 4
                return ["v_accvgpr_read_b32 v%d, a%d" % (G + r, cg + r) for r in range(8)] + ["v_accvgpr_read_b32 v%d, a%d" % (U + r, cu + r) for r in range(8)]
            def pk1(k):
                T = TS[k % 3]; Q = PS[k % 3]
                e = ["v_pk_mul_f32 %s, %s, %s" % (pr(T + r), pr(G + r), pr(G + r)) for r in range(0, 8, 2)]
                e += ["v_pk_fma_f32 %s, %s, s[20:21], v[254:255]" % (pr(T + r), pr(T + r)) for r in range(0, 8, 2)]
                e += ["v_pk_mul_f32 %s, %s, %s" % (pr(Q + r), pr(U + r), pr(G + r)) for r in range(0, 8, 2)]
                e += ["v_pk_mul_f32 %s, %s, %s" % (pr(T + r), pr(T + r), pr(G + r)) for r in range(0, 8, 2)]
                return e
            def ex(k): return ["v_exp_f32 v%d, v%d" % (TS[k % 3] + r, TS[k % 3] + r) for r in range(8)]
            def pk2(k): return ["v_pk_add_f32 %s, %s, s[22:23]" % (pr(TS[k % 3] + r), pr(TS[k % 3] + r)) for r in range(0, 8, 2)]
            def rc(k): return ["v_rcp_f32 v%d, v%d" % (TS[k % 3] + r, TS[k % 3] + r) for r in range(8)]
            def pk3(k): return ["v_pk_mul_f32 %s, %s, %s" % (pr(PS[k % 3] + r), pr(PS[k % 3] + r), pr(TS[k % 3] + r)) for r in range(0, 8, 2)]
            def st(k):
                ip, t = gl[k]; i = 2 * ip
                Q = PS[k % 3]; P = OS[k % 4]
                return (["v_cvt_pk_bf16_f32 v%d, v%d, v%d" % (P + j, Q + 2 * j, Q + 2 * j + 1) for j in range(4)],
                        ["v_permlane16_swap_b32 v%d, v%d" % (P, P + 2), "v_permlane16_swap_b32 v%d, v%d" % (P + 1, P + 3)],
                        ["buffer_store_dwordx4 v[%d:%d], v%d, s[%d:%d], s%d offen offset:%d%s" % (P, P + 3, vS, S_H, S_H + 3, 56 + (i >> 2) + 2 * (t >> 1), (i & 3) * 1024 + (t & 1) * 512, SC)])
            n = len(gl)
            stream = []
            for k in range(-1, n + 2):
                N = []
                c = p = b = []
                if 0 <= k - 2 < n: c, p, b = st(k - 2)
                r_ = rd(k + 1) if k + 1 < n else []
                e_ = ex(k) if 0 <= k < n else []
                q_ = rc(k - 1) if 0 <= k - 1 < n else []
                N += c
                tr = e_ + q_
                mix_ = []
                for j in range(max(len(tr), len(r_))):
                    if j < len(tr): mix_.append(tr[j])
                    if j < len(r_): mix_.append(r_[j])
                h = min(len(mix_), 6)
                N += mix_[:h]
                if p:
                    if h < 2: N.append("s_nop 1")
                    N += p
                N += mix_[h:h + 4]
                if b:
                    if len(mix_) < h + 1: N.append("s_nop 0")
                    N += b
                N += mix_[h + 4:]
                Pk = []
                if 0 <= k - 1 < n: Pk += pk3(k - 1)
                if 0 <= k < n: Pk += pk2(k)
                if k + 1 < n: Pk += pk1(k + 1)
                if Pk: N.append("s_nop 0")
                stream += N + Pk
            groups = groups[:NSC] + [stream]
        return groups

    a("s_mov_b32 s%d, 0" % sCNT)
    if dprep:
        stage(0, True, True, first=1)
        stage(1, True, True, first=2)
        a("s_mov_b32 s%d, 1" % sCNT)
        rt(98)
    a.label("G1_LOOP")
    if POIL:
        stage(0, True, True, tailB=PSL, vmB=2)
        stage(1, True, True, tailB=PSL, vmB=2)
    else:
        def csig():
            a("s_cmp_lg_u32 s%d, s49" % sCNT)
            a("s_cbranch_scc1 G1_CS")
            for i in conv2.cleared_sig(): a(i)
            a.label("G1_CS")
        stage(0, True, True, postW=csig)
        stage(1, True, True)
    a("s_add_u32 s%d, s%d, 1" % (sCNT, sCNT))
    a("s_cmp_lt_u32 s%d, %d" % (sCNT, 6 if fuse else 7))
    a("s_cbranch_scc1 G1_LOOP")
    if fuse:
        if not dprep: conv2.flag_srd(a)
        a("s_mov_b32 s84, 0")
        pi, _ = conv2.capture(a, conv2.poll_issue, a, 202)
        POIT = os.environ.get("G2", "x") in "wx" and os.environ.get("POIS", "b") == "t"
        if POIT:
            pi = pi + ["v_mov_b32 v203, 1", "v_mov_b32 v209, 32", "s_mov_b64 exec, 1", "buffer_atomic_add v203, v209, s[80:83], 0 offen sc0 sc1", "s_mov_b64 exec, -1"]
        pi = ["s_cmp_lg_u32 s%d, 0" % sW, "s_cbranch_scc1 G1_P1"] + pi + ["G1_P1:"]
        stage(0, True, True, tailB=conv2.touch_h() + conv2.gate_loads(), extraB=[pi], vmB=2 if POIL else None)
        def post1():
            conv2.poll_check(a, 202, 84)
        tk = None
        if POIT:
            tk = [(2, ["v_readfirstlane_b32 s62, v203", "s_lshl_b32 s63, s%d, 2" % sW, "s_add_u32 s63, s63, %d" % conv2.TKOFF]),
                  (4, ["v_mov_b32 v203, s62", "v_mov_b32 v210, s63"]), (6, ["ds_write_b32 v210, v203"])]
        import gemm2f
        sw_ = gemm2f.setup_w([47, 48, 58, 59, 62, 63], [43, 44, 45, 46])
        stage(1, True, True, vmB=8, postW=post1, plB=tk, plA=[(1 + (62 * n) // len(sw_), [i]) for n, i in enumerate(sw_)])
        ces, DE = conv2.capture(a, conv2.conv_early, a)
        def chk2():
            a("s_cmp_lg_u32 s%d, 0" % sW)
            a("s_cbranch_scc1 G1_P4")
            a("s_cmp_lg_u32 s84, 0")
            a("s_cbranch_scc1 G1_P4")
            a("s_movk_i32 s49, 0x4000")
            a.label("G1_P3")
            conv2.poll_issue(a, 202)
            a("s_waitcnt vmcnt(0)")
            conv2.poll_check(a, 202, 84)
            a("s_cmp_lg_u32 s84, 0")
            a("s_cbranch_scc1 G1_P4")
            a("s_sub_u32 s49, s49, 1")
            a("s_cmp_eq_u32 s49, 0")
            a("s_cbranch_scc1 G1_P4")
            a("s_sleep 16")
            a("s_branch G1_P3")
            a.label("G1_P4")
        GC = conv2.gate_compute()
        def spread(groups, lo, hi):
            tot = sum(len(g) for g in groups); r = []; c = 0
            for g in groups:
                r.append((lo + (c * (hi - lo)) // max(tot, 1), g)); c += len(g)
            return r
        n14 = 0; c = 0
        while c < 120: c += len(GC[n14]); n14 += 1
        stage(0, False, True, preB=chk2, extraB=DE[:12], extraA=[ces[i:i + 2] for i in range(0, len(ces), 2)], plB=spread(GC[:n14], 2, 64),
              plA=([(n, [i]) for n, i in enumerate(PSET)] + [(15 + 5 * n, PST_) for n in range(NPO)]) if POIS else None, vmB=1 + NPO)
        a("s_waitcnt lgkmcnt(0)")
        lst()
        mA = mfmas(0); mB = mfmas(1)
        A_ = [mA[8 * i:8 * i + 8] for i in range(8)]; B_ = [mB[8 * i:8 * i + 8] for i in range(8)]
        pl = [(n, g) for n, g in enumerate(reads(1, 1, 1))]
        pl += [(1 + 4 * n, g) for n, g in enumerate(DE[12:])]
        pl += spread(GC[n14:], 0, 32)
        for i in place(A_[0] + A_[1] + A_[2] + A_[3], pl): a(i)
        a("s_waitcnt lgkmcnt(0)")
        lst()
        es, groups = conv2.capture(a, epilogue)
        cs, _ = conv2.capture(a, conv2.conv_setup, a)
        EF = [i for g in groups for i in g]
        NE15 = int(os.environ.get("NE15", "291"))
        if len(groups) < 16: NE15 = min(NE15, sum(len(g) for g in groups[:-1]))
        seq = B_[0] + B_[1] + A_[4] + A_[5] + B_[2] + B_[3] + A_[6] + A_[7] + B_[4] + B_[5] + B_[6] + B_[7]
        pl = spread([[i] for i in es + cs], 0, 20) + spread([[i] for i in EF[:NE15]], 20, 96)
        EF = EF[NE15:]
        for i in place(seq, pl): a(i)
        if LST:
            a("s_waitcnt lgkmcnt(0)")
            lst()
            a("s_lshl_b32 s90, s%d, 8" % sW)
            a("s_add_u32 s90, s90, 150016")
            a("v_lshlrev_b32 v44, 2, v0")
            a("v_add_u32 v43, s90, v44")
            a("s_waitcnt lgkmcnt(0)")
            a("ds_read_b32 v43, v43")
            a("s_add_u32 s76, s30, 0x6000000")
            a("s_addc_u32 s77, s31, 0")
            a("s_mov_b32 s78, 0x100000")
            a("s_mov_b32 s79, 0x00020000")
            a("s_lshl_b32 s90, s2, 2")
            a("s_add_u32 s90, s90, s%d" % sW)
            a("s_lshl_b32 s90, s90, 8")
            a("s_waitcnt lgkmcnt(0)")
            a("buffer_store_dword v43, v44, s[76:79], s90 offen")
            a("s_waitcnt vmcnt(0)")
            a("s_mul_i32 s%d, s%d, %d" % (conv2.T3, conv2.sD, G_PITCH))
        rt(88)
        a("s_barrier")
        D = conv2.conv_issue(a)
    else:
        stage(0, False, True)
        stage(1, False, False)

    if fuse:
        return D, EF
    groups = epilogue()
    for e in groups:
        for i in e: a(i)

    if stamps:
        stamp(4)
        a("s_waitcnt vmcnt(0)")
        stamp(5)
        a("s_waitcnt lgkmcnt(0)")
        a("s_add_u32 s30, s30, 0x4000000")
        a("s_addc_u32 s31, s31, 0")
        srd(a, S_H, 30, 1 << 20)
        a("s_lshl_b32 s47, s2, 2")
        a("s_add_u32 s47, s47, s%d" % sW)
        a("s_lshl_b32 s47, s47, 5")
        for i in range(6):
            a("v_mov_b32 v%d, s%d" % (64 + i, 60 + 2 * i))
        a("v_mov_b32 v70, s47")
        a("v_cmp_eq_u32 vcc, 0, v0")
        a("s_and_saveexec_b64 s[48:49], vcc")
        a("buffer_store_dwordx4 v[64:67], v70, s[%d:%d], 0 offen" % (S_H, S_H + 3))
        a("buffer_store_dwordx2 v[68:69], v70, s[%d:%d], 0 offen offset:16" % (S_H, S_H + 3))
        a("s_mov_b64 exec, s[48:49]")
```

```python
from asmlib import *
from layout import *
import os

NST = 28
WR = 8
XR = 8
BLK = 4
D = int(os.environ.get("G2D", "6"))
NX0 = 8
NW0 = 2
NWS = int(os.environ.get("NWS", "8"))
def wreg(t): return 192 + 16 * (t - 2) if t < 6 else 128 + 16 * (t - 6)
def ph(r):
    q = r >> 2
    g = (q - 48) >> 2 if q >= 48 else (4 + ((q - 32) >> 2) if q >= 32 else 8 + (q >> 2))
    m = q & 3
    wt = (g & 3) + 4 * (m >> 1); i = 2 * (g >> 2) + (m & 1)
    return (wt * 8 + i) * 4 + (r & 3)
def aq(r, n=4): return "a[%d:%d]" % (ph(r), ph(r) + n - 1)
R1 = 98304
ZB = 65536
def slot(t): return ((t + 6) % WR) * 8192

P_OUT, P_DBG, P_WS, P_Q, P_WD = 68, 70, 72, 74, 100
S_H, S_W, S_Z, S_Q, S_O, S_GT, S_XB, S_FL, S_DB = 16, 24, 12, 4, 20, 8, 36, 32, 80
sW, sX, sMF, sNF = 40, 42, 44, 45
sWK, sWB, sWI, sLB = 28, 29, 30, 31
sXB, sXI = 43, 41
VW = [1, 29, 30, 31]
sISS, sMASK = 46, 47
sXL, sZS, sZM, MK, sSP, sBI = 54, 56, 57, 58, 59, 61
sMH, sKQ, sKH, sKB = 64, 65, 66, 67
sXS = 68
sK0, sK1, sK2 = 77, 84, 85
vPO, vPD = 4, 3
vQO, vGO, vZO, vOO = 24, 25, 26, 27
vDO, vDP, vZR = 28, 5, 6
vFO = 7

def L_ws(d, off, nb):
    return ["s_add_u32 s%d, s%d, 0x%x" % (d, P_WS, off), "s_addc_u32 s%d, s%d, 0" % (d + 1, P_WS + 1),
            "s_mov_b32 s%d, 0x%x" % (d + 2, nb), "s_mov_b32 s%d, 0x00020000" % (d + 3)]
def L_srd(d, base, nb):
    return ["s_mov_b32 s%d, s%d" % (d, base), "s_mov_b32 s%d, s%d" % (d + 1, base + 1),
            "s_mov_b32 s%d, 0x%x" % (d + 2, nb), "s_mov_b32 s%d, 0x00020000" % (d + 3)]

def own_flag_off(vd, s0, s1):
    return ["s_lshr_b32 s%d, s2, 3" % s1, "s_mul_i32 s%d, s%d, %d" % (s0, s1, FL_STR), "s_and_b32 s3, s2, 7", "s_lshl_b32 s3, s3, 2", "s_add_u32 s%d, s%d, s3" % (s0, s0),
            "s_add_u32 s%d, s%d, 0x%x" % (s0, s0, PF_REL), "v_mov_b32 v%d, s%d" % (vd, s0),
            "s_sub_u32 s%d, s%d, 4" % (s1, s1), "s_and_b32 s%d, s%d, 3" % (s0, s1), "s_add_u32 s%d, s%d, s3" % (s0, s0), "s_mul_i32 s%d, s%d, %d" % (s0, s0, FL_STR),
            "s_and_b32 s%d, s%d, 28" % (s1, s1), "s_add_u32 s%d, s%d, s%d" % (s0, s0, s1), "v_writelane_b32 v%d, s%d, 0" % (vd, s0),
            "s_lshr_b32 s%d, s2, 4" % s1, "s_mul_i32 s%d, s%d, %d" % (s0, s1, FL_STR), "s_and_b32 s3, s2, 15", "s_lshl_b32 s3, s3, 2", "s_add_u32 s%d, s%d, s3" % (s0, s0),
            "s_add_u32 s%d, s%d, 0x%x" % (s0, s0, ZF_REL), "v_writelane_b32 v%d, s%d, 1" % (vd, s0)]

def setup_w(T, V):
    A_ = []; a = A_.append
    x, j, kh, u, mh, n0 = T
    a("s_and_b32 s%d, s2, 7" % x)
    a("s_lshr_b32 s%d, s2, 3" % j)
    a("s_lshr_b32 s%d, s%d, 2" % (kh, x))
    a("s_and_b32 s%d, s%d, 2" % (n0, x))
    a("s_lshl_b32 s%d, s%d, 1" % (n0, n0))
    a("s_lshr_b32 s%d, s%d, 3" % (u, j))
    a("s_add_u32 s%d, s%d, s%d" % (n0, n0, u))
    a("s_add_u32 s%d, s%d, s%d" % (sWI, u, j))
    a("s_and_b32 s%d, s%d, 3" % (sWI, sWI))
    a("s_lshr_b32 s%d, s%d, 1" % (x, sW))
    a("s_mul_i32 s%d, s%d, 56" % (u, kh))
    a("s_mul_i32 s%d, s%d, 28" % (j, x))
    a("s_add_u32 s%d, s%d, s%d" % (u, u, j))
    a("s_lshl_b32 s%d, s%d, 16" % (sWB, u))
    a("s_lshl_b32 s%d, s%d, 16" % (u, sWI))
    a("s_add_u32 s%d, s%d, s%d" % (sWK, sWB, u))
    a("s_and_b32 s%d, s%d, 1" % (mh, sW))
    a("s_mul_i32 s%d, s%d, %d" % (sLB, x, R1))
    a("s_lshl_b32 s%d, s%d, 12" % (u, mh))
    a("s_add_u32 s%d, s%d, s%d" % (sLB, sLB, u))
    a("s_lshl_b32 s%d, s%d, 7" % (n0, n0))
    v8, v9, v10, v11 = V
    a("v_lshrrev_b32 v%d, 3, v0" % v8)
    a("s_lshl_b32 s%d, s%d, 4" % (u, mh))
    a("v_add_u32 v%d, s%d, v%d" % (v8, u, v8))
    a("v_lshlrev_b32 v%d, 11, v%d" % (v8, v8))
    a("s_lshl_b32 s%d, s%d, 6" % (u, kh))
    a("s_add_u32 s%d, s%d, s%d" % (u, u, n0))
    a("s_lshl_b32 s%d, s%d, 1" % (u, u))
    a("v_add_u32 v%d, s%d, v%d" % (v8, u, v8))
    a("v_and_b32 v%d, 7, v0" % v9)
    a("v_lshrrev_b32 v%d, 3, v0" % v10)
    a("v_and_b32 v%d, 2, v%d" % (v10, v10))
    a("v_xor_b32 v%d, v%d, v%d" % (v9, v9, v10))
    a("v_lshlrev_b32 v%d, 4, v%d" % (v9, v9))
    a("v_add_u32 v%d, v%d, v%d" % (VW[2], v8, v9))
    a("v_xor_b32 v%d, 64, v%d" % (v9, VW[2]))
    a("v_xor_b32 v%d, 0x80, v%d" % (VW[0], VW[2]))
    a("v_xor_b32 v%d, 0x80, v%d" % (v11, v9))
    a("v_add_u32 v%d, 0x%x, v%d" % (VW[1], 8 * 2048 - 1024, v11))
    a("v_add_u32 v%d, 0x%x, v%d" % (VW[3], 8 * 2048 - 1024, v9))
    A_ += L_srd(S_W, P_WD, 3584 * 1024 * 2)
    return A_

def setup():
    A_ = []; a = A_.append
    A_ += L_ws(S_FL, FL_OFF, FL_BYTES)
    A_ += own_flag_off(vFO, 50, 51)
    P0 = A_
    A_ = []; a = A_.append
    a("s_and_b32 s46, s2, 7")
    a("s_lshr_b32 s47, s2, 3")
    a("s_lshr_b32 s%d, s46, 2" % sKH)
    a("s_and_b32 s48, s46, 1")
    a("s_lshl_b32 s48, s48, 3")
    a("s_and_b32 s51, s47, 7")
    a("s_add_u32 s48, s48, s51")
    a("s_and_b32 s49, s46, 2")
    a("s_lshl_b32 s49, s49, 1")
    a("s_lshr_b32 s50, s47, 3")
    a("s_add_u32 s49, s49, s50")
    a("v_lshlrev_b32 v2, 4, v0")
    a("v_lshrrev_b32 v3, 4, v0")
    a("s_and_b32 s%d, s%d, 1" % (sMH, sW))
    a("s_lshr_b32 s%d, s%d, 1" % (sKQ, sW))
    a("s_mul_i32 s52, s%d, 56" % sKH)
    a("s_mul_i32 s53, s%d, 28" % sKQ)
    a("s_add_u32 s52, s52, s53")
    a("s_mul_i32 s53, s48, 112")
    a("s_add_u32 s53, s53, s52")
    a("s_lshl_b32 s%d, s53, 13" % sXB)
    a("s_add_u32 s50, s50, s51")
    a("s_and_b32 s%d, s50, 3" % sXI)
    a("s_lshl_b32 s51, s%d, 13" % sXI)
    a("s_add_u32 s%d, s%d, s51" % (sX, sXB))
    a("s_mul_i32 s%d, s%d, %d" % (sKB, sKQ, R1))
    a("s_lshl_b32 s50, s%d, 12" % sMH)
    a("s_lshl_b32 s51, s%d, 11" % sKQ)
    a("s_add_u32 s51, s51, s50")
    a("v_add_u32 v16, s51, v2")
    a("v_xor_b32 v17, 0x800, v16")
    a("s_lshl_b32 s50, s%d, 1" % sKH)
    a("s_add_u32 s50, s50, s%d" % sKQ)
    a("s_lshl_b32 s50, s50, 3")
    a("s_lshr_b32 s51, s48, 1")
    a("s_add_u32 s50, s50, s51")
    a("s_mul_i32 s50, s50, %d" % FL_STR)
    a("v_and_b32 v%d, 7, v0" % vPO)
    a("v_lshlrev_b32 v%d, 2, v%d" % (vPO, vPO))
    a("v_add_u32 v%d, s50, v%d" % (vPO, vPO))
    a("s_lshl_b32 s49, s49, 7")
    a("s_lshl_b32 s48, s48, 7")
    P1 = A_
    A_ = []; a = A_.append
    A_ += L_ws(S_H, H1_OFF, H1_BYTES)
    a("s_lshl_b32 s50, s%d, 6" % sMH)
    a("s_add_u32 s%d, s48, s50" % sMF)
    a("s_lshl_b32 s50, s%d, 5" % sKQ)
    a("s_add_u32 s%d, s%d, s50" % (sMF, sMF))
    a("s_lshl_b32 s50, s%d, 6" % sKH)
    a("s_add_u32 s%d, s49, s50" % sNF)
    A_ += L_srd(S_Q, P_Q, 2048 * 1024 * 2)
    A_ += L_srd(S_O, P_OUT, 2048 * 1024 * 2)
    A_ += L_ws(S_GT, GT_OFF, GT_BYTES)
    A_ += L_ws(S_XB, XB_OFF, XB_BYTES)
    a("s_lshr_b32 s50, s2, 3")
    a("s_mul_i32 s50, s50, %d" % FL_STR)
    a("s_and_b32 s51, s2, 7")
    a("s_xor_b32 s51, s51, 4")
    a("s_lshl_b32 s51, s51, 2")
    a("s_add_u32 s50, s50, s51")
    a("s_add_u32 s50, s50, 0x%x" % PF_REL)
    a("v_mov_b32 v%d, s50" % vDP)
    a("s_lshr_b32 s50, s%d, 6" % sNF)
    a("s_lshr_b32 s51, s48, 7")
    a("s_sub_u32 s51, s51, s50")
    a("s_mul_i32 s50, s50, %d" % FL_STR)
    a("s_mul_i32 s51, s51, %d" % FL_STR)
    a("s_add_u32 s50, s50, 0x%x" % ZF_REL)
    a("v_and_b32 v8, 1, v3")
    a("v_mul_lo_u32 v8, v8, s51")
    a("v_and_b32 v9, 15, v0")
    a("v_lshlrev_b32 v9, 2, v9")
    a("v_add_u32 v8, v8, v9")
    a("v_add_u32 v%d, s50, v8" % vDO)
    a("s_lshl_b32 s50, s2, 2")
    a("s_add_u32 s50, s50, s%d" % sW)
    a("s_lshl_b32 s%d, s50, 13" % sXS)
    a("s_add_u32 s%d, s%d, 4096" % (sXS + 1, sXS))
    a("s_xor_b32 s%d, s%d, 0x%x" % (sXL, sXS, 4 << 15))
    a("s_add_u32 s%d, s%d, 4096" % (sXL + 1, sXL))
    a("v_lshrrev_b32 v8, 2, v0")
    a("v_add_u32 v8, s%d, v8" % sNF)
    a("v_lshlrev_b32 v8, 12, v8")
    a("v_and_b32 v9, 3, v0")
    a("v_lshlrev_b32 v9, 4, v9")
    a("v_add_u32 v%d, v8, v9" % vZO)
    a("s_lshl_b32 s%d, s%d, 1" % (sZS, sMF))
    a("s_lshl_b32 s%d, s%d, 12" % (sZM, sW))
    a("s_add_u32 s%d, s%d, %d" % (sZM, sZM, ZB))
    a("v_and_b32 v9, 15, v0")
    a("v_add_u32 v9, s%d, v9" % sMF)
    a("v_lshlrev_b32 v%d, 2, v9" % vGO)
    a("v_lshlrev_b32 v%d, 11, v9" % vQO)
    a("v_lshlrev_b32 v10, 3, v3")
    a("v_add_u32 v%d, v%d, v10" % (vQO, vQO))
    a("s_lshl_b32 s50, s%d, 1" % sNF)
    a("v_add_u32 v%d, s50, v%d" % (vQO, vQO))
    a("s_mov_b32 s53, 0x8000")
    a("v_lshrrev_b32 v8, 2, v0")
    a("v_and_b32 v8, 3, v8")
    a("v_lshlrev_b32 v9, 7, v8")
    a("v_lshrrev_b32 v10, 1, v3")
    a("v_lshlrev_b32 v10, 12, v10")
    a("v_add_u32 v9, v9, v10")
    a("v_and_b32 v11, 1, v3")
    a("v_lshlrev_b32 v10, 10, v11")
    a("v_add_u32 v9, v9, v10")
    a("v_and_b32 v10, 3, v0")
    a("v_lshlrev_b32 v10, 3, v10")
    a("v_add_u32 v9, v9, v10")
    a("v_add_u32 v9, s%d, v9" % sKB)
    a("v_lshrrev_b32 v10, 1, v8")
    a("v_lshlrev_b32 v11, 1, v11")
    a("v_or_b32 v10, v10, v11")
    for nt in range(4):
        a("v_xor_b32 v11, %d, v10" % nt)
        a("v_lshlrev_b32 v11, 5, v11")
        a("v_add_u32 v%d, v9, v11" % (20 + nt))
    a("v_lshlrev_b32 v9, 2, v3")
    a("v_add_u32 v9, v9, v8")
    a("v_lshlrev_b32 v9, 6, v9")
    a("v_and_b32 v10, 3, v0")
    a("v_lshlrev_b32 v10, 3, v10")
    a("v_add_u32 v9, v9, v10")
    a("v_add_u32 v%d, s%d, v9" % (vZR, sZM))
    a("v_and_b32 v9, 15, v0")
    a("v_and_b32 v10, 1, v3")
    a("v_lshlrev_b32 v10, 4, v10")
    a("v_add_u32 v9, v9, v10")
    a("v_add_u32 v9, s%d, v9" % sMF)
    a("v_lshlrev_b32 v9, 11, v9")
    a("v_lshrrev_b32 v10, 1, v3")
    a("v_lshlrev_b32 v10, 4, v10")
    a("v_add_u32 v9, v9, v10")
    a("s_lshl_b32 s50, s%d, 1" % sNF)
    a("v_add_u32 v%d, s50, v9" % vOO)
    a("v_add_u32 v18, s%d, v2" % sLB)
    a("s_sub_u32 s50, %d, s%d" % (R1, sKB))
    a("s_lshl_b32 s51, s%d, 12" % sMH)
    a("s_add_u32 s50, s50, s51")
    a("v_add_u32 v19, s50, v2")
    a("s_mov_b32 s%d, 0xffff0000" % MK)
    a("s_mov_b32 s%d, 0" % sISS)
    a("s_mov_b32 s%d, 0" % sMASK)
    a("s_mov_b32 s%d, 0x8000" % sSP)
    return P0, P1, A_

def adv(t, sreg, sbase, sidx, sh):
    r = [("s_add_u32 s%d, s%d, 1" % (sidx, sidx), None),
         ("s_and_b32 s%d, s%d, %d" % (sidx, sidx, BLK - 1), None)]
    if t % BLK == BLK - 1:
        r.append(("s_add_u32 s%d, s%d, 0x%x" % (sbase, sbase, BLK << sh), None))
    r.append(("s_lshl_b32 s%d, s%d, %d" % (sreg, sidx, sh), None))
    r.append(("s_add_u32 s%d, s%d, s%d" % (sreg, sreg, sbase), None))
    return r
XSC = os.environ.get("XSC", " sc1")
def ldx(t):
    g = []
    base = (t % XR) * 16
    for i in range(4):
        g.append([("buffer_load_dwordx4 %s, v%d, s[%d:%d], s%d offen offset:%d%s" % (aq(base + 4 * i), 16 + (i >> 1), S_H, S_H + 3, sX, (i & 1) * 1024, XSC), ("x", t))])
    g[-1].extend(adv(t, sX, sXB, sXI, 13))
    return g
def ldw(t):
    g = []
    for I in range(4 if t < NST - D else 2):
        ins = []
        if I == 0:
            if t == NST - D:
                ins += [("s_mov_b32 s%d, s%d" % (sK0, sWK), None), ("s_mov_b32 s%d, s%d" % (sK1, sWB), None), ("s_mov_b32 s%d, s%d" % (sK2, sWI), None)]
            ins.append(("s_add_u32 m0, s%d, %d" % (sLB, slot(t)), None))
            ins.append(("s_nop 0", None))
        if I == 2:
            ins.append(("s_add_u32 m0, s%d, %d" % (sLB, slot(t) + 2048), None))
            ins.append(("s_nop 0", None))
        ins.append(("buffer_load_dwordx4 v%d, s[%d:%d], s%d offen offset:%d lds" % (VW[I], S_W, S_W + 3, sWK, (I & 1) * 1024), ("w", t)))
        g.append(ins)
    g[-1].extend(adv(t, sWK, sWB, sWI, 16))
    return g
def ldws(t):
    g = []
    for I in range(4):
        r = wreg(t) + 4 * I
        g.append([("buffer_load_dwordx4 %s, v%d, s[%d:%d], s%d offen offset:%d" % (aq(r), VW[I], S_W, S_W + 3, sWK, (I & 1) * 1024), ("w", t))])
    g[-1].extend(adv(t, sWK, sWB, sWI, 16))
    return g
def dump(t):
    return ["ds_write_b128 v18, %s offset:%d" % (aq(wreg(t) + 4 * I), slot(t) + I * 1024) for I in range(4)]
def ldk(t):
    g = []
    for I in (2, 3):
        ins = []
        ins.append(("s_add_u32 m0, s%d, %d" % (sLB, slot(t) + 2048), None))
        ins.append(("s_nop 0", None))
        ins.append(("buffer_load_dwordx4 v%d, s[%d:%d], s%d offen offset:%d lds" % (VW[I], S_W, S_W + 3, sK0, (I & 1) * 1024), ("k", t)))
        g.append(ins)
    g[-1].extend(adv(t, sK0, sK1, sK2, 16))
    return g
def poll(r): return "buffer_load_dword v%d, v%d, s[%d:%d], 0 offen sc1" % (r, vPO, S_FL, S_FL + 3)
def mupd(r): return ["v_cmp_ne_u32 vcc, 0, v%d" % r, "s_nop 0", "s_or_b32 s%d, s%d, vcc_lo" % (sMASK, sMASK)]
POLL = "buffer_load_dword v%d, v%d, s[%d:%d], 0 offen sc1" % (vPD, vPO, S_FL, S_FL + 3)
MUPD = ["v_cmp_ne_u32 vcc, 0, v%d" % vPD, "s_nop 0", "s_or_b32 s%d, s%d, vcc_lo" % (sMASK, sMASK)]
def flag_store(k, lab, vd=10):
    return ["s_cmp_lg_u32 s%d, 0" % sW, "s_cbranch_scc1 %s" % lab, "v_mov_b32 v%d, 1" % vd, "s_mov_b64 exec, %d" % (1 << k),
            " buffer_store_dword v%d, v%d, s[%d:%d], 0 offen sc1" % (vd, vFO, S_FL, S_FL + 3), "s_mov_b64 exec, -1", "%s:" % lab]
def spin(a, name, mask, back):
    a.label(name)
    a(POLL)
    a("s_waitcnt vmcnt(0)")
    for i in MUPD: a(i)
    a("s_and_b32 s50, s%d, 0x%x" % (sMASK, mask))
    a("s_cmp_eq_u32 s50, 0x%x" % mask)
    a("s_cbranch_scc1 %s" % back)
    a("s_sub_u32 s%d, s%d, 1" % (sSP, sSP))
    a("s_cmp_lt_i32 s%d, 1" % sSP)
    a("s_cbranch_scc1 %s" % back)
    a("s_sleep 2")
    a("s_branch %s" % name)

def gen_main(a, vms, rts=False, dbg=""):
    def stamp(r):
        if rts: a("s_memrealtime s[%d:%d]" % (r, r + 1))
    def emit(ins, tag=None):
        if ins.endswith(":"): a.raw(ins)
        else: a(ins)
        if ins.startswith("buffer_"):
            for vm in vms: vm.append(tag)
    def younger_than(tag):
        return min(len(vm) - 1 - max(i for i, x in enumerate(vm) if x == tag) for vm in vms)
    OOL = []
    RMP = int(os.environ.get("G2RMP", "4"))
    nxt = {"w": NW0 + NWS, "x": NX0}
    def mix(t):
        g = []; n = 0
        while n < RMP:
            w, x = nxt["w"], nxt["x"]
            cw = w < NST and w <= t + WR
            cx = x < NST and x <= t + XR - 1
            if cw and (w <= x + 1 or not cx): g += ldw(w); nxt["w"] += 1
            elif cx:
                l = ldx(x)
                if x % BLK == 0:
                    b = x // BLK
                    l[0] = [("s_bitcmp1_b32 s%d, %d" % (sMASK, b), None), ("s_cbranch_scc0 G2_SP%d" % b, None), ("G2_OK%d:" % b, None)] + l[0]
                    OOL.append(("G2_SP%d" % b, 1 << b, "G2_OK%d" % b))
                g += l; nxt["x"] += 1
            else: break
            n += 1
        return g
    extras = []
    for I in range(4):
        g = []
        if I == 0: g += [("s_mov_b32 m0, s%d" % sZM, None), ("s_nop 0", None)]
        else: g += [("s_mov_b32 m0, s%d" % sZM, None), ("v_add_u32 v%d, 0x%x, v%d" % (vZO, 16 * 4096 - 1024, vZO), None)]
        g.append(("buffer_load_dwordx4 v%d, s[%d:%d], s%d offen offset:%d sc1 lds" % (vZO, S_Z, S_Z + 3, sZS, I * 1024), "e"))
        extras.append(g)
    QR = 96
    for sl in range(2):
        for nt in range(4):
            extras.append([("buffer_load_dwordx2 v[%d:%d], v%d, s[%d:%d], %s offen offset:%d" % (QR + (sl * 4 + nt) * 2, QR + (sl * 4 + nt) * 2 + 1, vQO, S_Q, S_Q + 3, "0" if sl == 0 else "s53", nt * 32), "e")])
    extras.append([("buffer_load_dword v%d, v%d, s[%d:%d], 0 offen sc1" % (QR + 16, vGO, S_GT, S_GT + 3), "e")])
    extras.append([("buffer_load_dword v%d, v%d, s[%d:%d], 0 offen offset:64 sc1" % (QR + 17, vGO, S_GT, S_GT + 3), "e")])
    ACC = 128
    F = [192, 224]

    def reads(t, lss=(0, 1)):
        fb = F[t & 1]
        w = []
        for ls in lss:
            for nt in range(4):
                for h in range(2):
                    d = fb + 4 * (ls * 4 + nt) + 2 * h
                    w.append("ds_read_b64_tr_b16 %s, v%d offset:%d" % (aq(d, 2), 20 + nt, slot(t) + ls * 2048 + h * 512))
        return w
    def cq(ls, rm, k): return ACC + ((ls * 2 + rm) * 8 + k) * 4
    def mfmas(t, lss=(0, 1)):
        fb = F[t & 1]
        xb = (t % XR) * 16
        m = []
        for ls in lss:
            for rm in (1, 0):
                for sl in range(2):
                    for nt in range(4):
                        c = cq(ls, rm, sl * 4 + nt)
                        n = ls * 4 + nt; i = rm * 2 + sl
                        m.append("v_mfma_f32_16x16x32_bf16 v[%d:%d], %s, %s, %s" % (
                            c, c + 3, aq(fb + 4 * n), aq(xb + 4 * i), "0" if t == 0 else "v[%d:%d]" % (c, c + 3)))
        return m
    def soff(base, k): return slot(base + (k >> 1)) + (k & 1) * 1024

    def add4(d, x, y):
        return ["v_pk_add_f32 v[%d:%d], v[%d:%d], v[%d:%d]" % (d + r, d + r + 1, x + r, x + r + 1, y + r, y + r + 1) for r in (0, 2)]
    def mul4s(d, x, pair, hi):
        return ["v_pk_mul_f32 v[%d:%d], v[%d:%d], v[%d:%d] op_sel:[0,%d] op_sel_hi:[1,%d]" % (d + r, d + r + 1, x + r, x + r + 1, pair, pair + 1, hi, hi) for r in (0, 2)]
    G_ = QR + 16; OG = QR + 18
    QP = 64
    def rnd4l(R, T):
        return ["v_cvt_pk_bf16_f32 v%d, v%d, v%d" % (T, R, R + 1), "v_cvt_pk_bf16_f32 v%d, v%d, v%d" % (T + 1, R + 2, R + 3),
                "v_lshlrev_b32 v%d, 16, v%d" % (R, T), "v_and_b32 v%d, s%d, v%d" % (R + 1, MK, T),
                "v_lshlrev_b32 v%d, 16, v%d" % (R + 2, T + 1), "v_and_b32 v%d, s%d, v%d" % (R + 3, MK, T + 1)]
    ZRD = ["ds_read_b64_tr_b16 v[%d:%d], v%d offset:%d" % (QP + 4 * k + 2, QP + 4 * k + 3, vZR, (k & 3) * 1024 + (k >> 2) * 32) for k in range(8)]
    PKK = int(os.environ.get("G2PKK", "3"))
    def precompute():
        r = []
        for sl in range(2):
            r.append("v_sub_f32 v%d, 1.0, v%d" % (OG + sl, G_ + sl))
            r.append("v_cvt_pk_bf16_f32 v%d, v%d, v%d" % (OG + sl, OG + sl, OG + sl))
            r.append("v_and_b32 v%d, s%d, v%d" % (OG + sl, MK, OG + sl))
        for k in range(8):
            sl = k >> 2
            Q = QP + 4 * k; Z = 124; T = 120
            qs = QR + 2 * k; zs = Q + 2
            r += ["v_lshlrev_b32 v%d, 16, v%d" % (Z, zs), "v_and_b32 v%d, s%d, v%d" % (Z + 1, MK, zs),
                  "v_lshlrev_b32 v%d, 16, v%d" % (Z + 2, zs + 1), "v_and_b32 v%d, s%d, v%d" % (Z + 3, MK, zs + 1)]
            r += ["v_lshlrev_b32 v%d, 16, v%d" % (Q, qs), "v_and_b32 v%d, s%d, v%d" % (Q + 1, MK, qs),
                  "v_lshlrev_b32 v%d, 16, v%d" % (Q + 2, qs + 1), "v_and_b32 v%d, s%d, v%d" % (Q + 3, MK, qs + 1)]
            if k >= PKK:
                for i in (0, 2): r.append("v_pk_mul_f32 v[%d:%d], v[%d:%d], v[%d:%d]" % (Q + i, Q + i + 1, Q + i, Q + i + 1, Z + i, Z + i + 1))
                r += rnd4l(Q, T)
                r += mul4s(Q, Q, G_, sl)
                r += rnd4l(Q, T)
                continue
            for i in range(4): r.append("v_mul_f32 v%d, v%d, v%d" % (Q + i, Q + i, Z + i))
            r += rnd4l(Q, T)
            for i in range(4): r.append("v_mul_f32 v%d, v%d, v%d" % (Q + i, Q + i, G_ + sl))
            r += rnd4l(Q, T)
        return r
    PC = precompute()
    T0 = NST - D
    H = T0 + D // 2
    DQ = []
    for t in range(T0, H): DQ += ldk(t)
    ZCHK = [("ZCHK", None)]
    DQ += [ZCHK + extras[0]] + extras[1:]
    for t in range(H, NST): DQ += ldk(t)
    DS = int(os.environ.get("G2DS", str(NST - XR)))
    DN = int(os.environ.get("G2DN", "12"))
    PS0 = int(os.environ.get("G2PS0", "4")); PSIG = int(os.environ.get("G2PSIG", "19")); PCHK = int(os.environ.get("G2PCHK", str(NST - 2)))
    ZP = int(os.environ.get("G2ZP", "12"))
    PLAST = int(os.environ.get("G2PLAST", "10"))
    RX = 32
    ZF = 40
    ZLD = "buffer_load_dword v%d, v%d, s[%d:%d], 0 offen sc1" % (ZF, vDO, S_FL, S_FL + 3)
    ZCK = ["v_cmp_eq_u32 vcc, 0, v%d" % ZF, "s_nop 1"]
    def sweep():
        return [("buffer_load_dwordx4 v[%d:%d], v2, s[%d:%d], s%d offen offset:%d sc1" % (RX + 4 * k, RX + 4 * k + 3, S_XB, S_XB + 3, sXL + (k >> 2), (k & 3) * 1024), "s") for k in range(8)]
    for i in range(4): a("v_mov_b32 v%d, -1" % (32 + i))
    if os.environ.get("XT") == "1":
        a("s_and_b32 s50, s%d, 0x7f" % sMASK)
        a("s_cmp_eq_u32 s50, 0x7f")
        a("s_cbranch_scc0 G2_XTS")
        a.label("G2_XTO")
        OOL.append(("G2_XTS", 0x7f, "G2_XTO"))
        a("s_lshr_b32 s50, s2, 6")
        a("s_lshl_b32 s50, s50, 1")
        a("s_add_u32 s50, s50, s%d" % sMH)
        a("s_mul_i32 s50, s50, 20480")
        a("s_add_u32 s50, s50, s%d" % sXB)
        a("v_lshlrev_b32 v41, 7, v0")
        for k in range(3):
            if k == 2: a("s_mov_b64 exec, 0xffffffff")
            emit("buffer_load_dword v42, v41, s[%d:%d], s50 offen sc1" % (S_H, S_H + 3), "xt")
            a("s_add_u32 s50, s50, 8192")
        a("s_mov_b64 exec, -1")
    for i in reads(0, (0, 1)): a(i)
    pend_poll = "pa"; zdone = False
    cur_n = [0]
    def emit2(ins, tag=None):
        if ins == "ZCHK":
            n = min(63, younger_than("zf"))
            a("s_waitcnt vmcnt(%d)" % n)
            a.label("G2_ZC")
            for i in ZCK: a(i)
            a("s_cbranch_vccnz G2_ZSP")
            a.label("G2_ZOK")
            return
        emit(ins, tag)
    for t in range(NST):
        n = younger_than(("x", t))
        if t + 1 < NST: n = min(n, younger_than(("w", t + 1)))
        assert n <= 63, n
        if t == PSIG: n = min(n, younger_than("p"))
        LOG = os.environ.get("BLOG")
        if LOG: a("s_memtime s[86:87]")
        a("s_waitcnt vmcnt(%d) lgkmcnt(0)" % n)
        if LOG:
            a("v_writelane_b32 v44, s86, %d" % (2 * t))
            if t: a("v_writelane_b32 v44, s88, %d" % (2 * t - 1))
        a("s_barrier")
        if LOG: a("s_memtime s[88:89]")
        if t == 0: stamp(94)
        if os.environ.get("BST"):
            if t == 4: stamp(98)
            if t == 12: stamp(88)
            if t == T0: stamp(86)
            if os.environ["BST"] == "2":
                if t == 4: a("s_memtime s[90:91]")
                if t == 12: a("s_memtime s[94:95]")
                if t == T0: a("s_memtime s[96:97]")
        lss = (0, 1) if t < T0 else (0,)
        nm = 16 * len(lss)
        pl = []
        def done(tag): return all(len(vm) - 1 - max(i for i, x in enumerate(vm) if x == tag) >= n for vm in vms)
        if pend_poll is not None and done(pend_poll):
            pl.append((0, [(i, None) for i in MUPD])); pend_poll = None
        if not zdone and done("z"):
            zdone = True
            pl.append((0, [(i, None) for i in flag_store(1, "G2_ZF")]))
        if pend_poll is None and t <= PLAST:
            pend_poll = ("pl", t)
            pl.append((0, [(POLL, pend_poll)]))
        if t + 1 < NST:
            for n_, g in enumerate(reads(t + 1, (0, 1) if t + 1 < T0 else (0,))): pl.append((n_ + (n_ >> 1), [(g, None)]))
        gl = mix(t)
        for w in range(6, NW0 + NWS):
            if max(0, w - WR) == t: gl = gl + [[(i, None)] for i in dump(w)]
        if PS0 <= t < PS0 + 8:
            k = t - PS0
            gl = gl + [[("buffer_store_dwordx4 v[32:35], v2, s[%d:%d], s%d offen offset:%d sc1" % (S_XB, S_XB + 3, sXS + (k >> 2), (k & 3) * 1024), "p")]]
        if t == PSIG:
            pl.append((0, [(i, None) for i in flag_store(2, "G2_SIG")]))
        if t == ZP: gl = gl + [[(ZLD, "zf")]]
        if t == PCHK:
            gl = gl + [[("buffer_load_dword v39, v%d, s[%d:%d], 0 offen sc1" % (vDP, S_FL, S_FL + 3), "f")]]
        if t >= DS:
            k = max(0, DN - len(gl)) if t < NST - 1 else len(DQ)
            gl = gl + DQ[:k]; DQ = DQ[k:]
        for n_, g in enumerate(gl): pl.append(((n_ * nm) // max(8, len(gl)) + 1, g))
        if t == NST - 1:
            for k in range(8):
                c = cq(0, 1, k)
                pl.append((8 + k, [("ds_write_b128 v18, v[%d:%d] offset:%d" % (c, c + 3, soff(4, k)), None)]))
        for it in place([(m, None) for m in mfmas(t, lss)], pl): emit2(*it)
    assert not DQ and zdone and pend_poll is None

    if os.environ.get("BLOG"):
        a("s_add_u32 s92, s%d, 0x6000000" % P_WS)
        a("s_addc_u32 s93, s%d, 0" % (P_WS + 1))
        a("s_mov_b32 s94, 0x100000")
        a("s_mov_b32 s95, 0x00020000")
        a("s_lshl_b32 s90, s2, 2")
        a("s_add_u32 s90, s90, s%d" % sW)
        a("s_lshl_b32 s90, s90, 8")
        a("v_lshlrev_b32 v45, 2, v0")
        a(" buffer_store_dword v44, v45, s[92:95], s90 offen")
    a("s_waitcnt lgkmcnt(0)")
    a("s_barrier")
    for k in range(8):
        c = cq(0, 1, k)
        a("ds_read_b128 v[%d:%d], v19 offset:%d" % (c, c + 3, soff(4, k)))
    for k in range(8):
        a("s_waitcnt lgkmcnt(%d)" % (7 - k))
        c = cq(0, 0, k); d = cq(0, 1, k)
        for i in add4(c, c, d): a(i)
        for r in range(4): a("v_min_u32 v%d, -2, v%d" % (c + r, c + r))
        emit("buffer_store_dwordx4 v[%d:%d], v2, s[%d:%d], s%d offen offset:%d sc1" % (c, c + 3, S_XB, S_XB + 3, sXS + (k >> 2), (k & 3) * 1024), "st")
    def fchk():
        a("s_waitcnt vmcnt(%d)" % younger_than("f"))
        a.label("G2_FCHK")
        a("v_readfirstlane_b32 s50, v39")
        a("s_cmp_lg_u32 s50, 0")
        a("s_cbranch_scc1 G2_FOK")
        a("s_sub_u32 s%d, s%d, 1" % (sSP, sSP))
        a("s_cmp_lt_i32 s%d, 1" % sSP)
        a("s_cbranch_scc1 G2_FOK")
        a("s_sleep 4")
        a("buffer_load_dword v39, v%d, s[%d:%d], 0 offen sc1" % (vDP, S_FL, S_FL + 3))
        a("s_waitcnt vmcnt(0)")
        a("s_branch G2_FCHK")
        a.label("G2_FOK")
    SW = int(os.environ.get("G2SW", str(NST - 1)))
    NPC = int(os.environ.get("G2NPC", "2"))
    a("s_waitcnt vmcnt(%d)" % younger_than(("k", H - 1)))
    a("s_barrier")
    for i in reads(T0, (1,)): a(i)
    for t in range(T0, NST):
        if t == H - 1:
            a("s_waitcnt vmcnt(%d) lgkmcnt(0)" % younger_than(("k", NST - 1)))
            a("s_barrier")
        else:
            a("s_waitcnt lgkmcnt(0)")
        if t == SW: fchk()
        pl = []
        if t + 1 < NST:
            for n, g in enumerate(reads(t + 1, (1,))): pl.append((n, [(g, None)]))
        if t == H - 1:
            for k, g in enumerate(ZRD): pl.append((8 + k, [(g, None)]))
        if t >= H:
            for k in range(16): pl.append((k, [(g, None) for g in PC[NPC * k:NPC * k + NPC]]))
            PC = PC[NPC * 16:]
        if t == SW:
            for k, g in enumerate(sweep()): pl.append((2 * k, [g]))
        if t == NST - 1:
            for k in range(8):
                c = cq(1, 1, k)
                pl.append((8 + k, [("ds_write_b128 v18, v[%d:%d] offset:%d" % (c, c + 3, soff(0, k)), None)]))
        for it in place([(m, None) for m in mfmas(t, (1,))], pl): emit(*it)
    if not os.environ.get("CST") and os.environ.get("BST") != "2": stamp(96)
    NP1 = int(os.environ.get("G2NP1", "40"))
    for i in PC[:NP1]: a(i)
    PC = PC[NP1:]
    a("s_waitcnt lgkmcnt(0)")
    a("s_barrier")
    for k in range(8):
        c = cq(1, 1, k)
        a("ds_read_b128 v[%d:%d], v19 offset:%d" % (c, c + 3, soff(0, k)))
    for i in PC: a(i)
    a("s_waitcnt lgkmcnt(0)")
    for k in range(8):
        c = cq(1, 0, k); d = cq(1, 1, k)
        for i in add4(c, c, d): a(i)
    a("s_mov_b32 s%d, 0x8000" % sSP)
    a("s_branch G2_CHK")
    for nm_, mask, back in OOL: spin(a, nm_, mask, back)
    a.label("G2_ZSP")
    a("s_sub_u32 s%d, s%d, 1" % (sSP, sSP))
    a("s_cmp_lt_i32 s%d, 1" % sSP)
    a("s_cbranch_scc1 G2_ZOK")
    a("s_sleep 2")
    a(ZLD)
    a("s_waitcnt vmcnt(0)")
    a("s_branch G2_ZC")
    a.label("G2_POLL")
    a("s_sub_u32 s%d, s%d, 1" % (sSP, sSP))
    a("s_cmp_lt_i32 s%d, 1" % sSP)
    a("s_cbranch_scc1 G2_FIN")
    for g in sweep(): a(g[0])
    a.label("G2_CHK")
    a("s_waitcnt vmcnt(0)")
    a("v_max3_u32 v120, v%d, v%d, v%d" % (RX, RX + 1, RX + 2))
    a("v_max3_u32 v121, v%d, v%d, v%d" % (RX + 3, RX + 4, RX + 5))
    for i in range(13):
        d = 120 + (i & 1)
        a("v_max3_u32 v%d, v%d, v%d, v%d" % (d, d, RX + 6 + 2 * i, RX + 7 + 2 * i))
    a("v_max_u32 v120, v120, v121")
    a("v_cmp_eq_u32 vcc, -1, v120")
    a("s_nop 1")
    a("s_cbranch_vccnz G2_POLL")
    a.label("G2_FIN")
    for nt in range(4):
        for sl in range(2):
            k = sl * 4 + nt
            B = cq(1, 0, k)
            T = 124; O = 96 + 4 * nt + 2 * sl
            for i in add4(B, B, RX + 4 * k): a(i)
            for i in rnd4l(B, T): a(i)
            for i in mul4s(B, B, OG, sl): a(i)
            for i in rnd4l(B, T): a(i)
            for i in add4(B, B, QP + 4 * k): a(i)
            a("v_cvt_pk_bf16_f32 v%d, v%d, v%d" % (O, B, B + 1))
            a("v_cvt_pk_bf16_f32 v%d, v%d, v%d" % (O + 1, B + 2, B + 3))
        O = 96 + 4 * nt
        a("s_nop 1")
        a("v_permlane16_swap_b32 v%d, v%d" % (O, O + 2))
        a("v_permlane16_swap_b32 v%d, v%d" % (O + 1, O + 3))
        a("s_nop 0")
        a("buffer_store_dwordx4 v[%d:%d], v%d, s[%d:%d], 0 offen offset:%d" % (O, O + 3, vOO, S_O, S_O + 3, nt * 32))
```

```python
H1_OFF = 0
H1_BYTES = 2048 * 3584 * 2
G_OFF = 16 << 20
G_PITCH = 4224
G1_REL = 1024 * G_PITCH
G_BYTES = 1024 * G_PITCH
Z_OFF = 28 << 20
Z_BYTES = 1024 * 2048 * 2
GT_OFF = 33 << 20
GT_BYTES = 2048 * 4
XB_OFF = 36 << 20
XB_BYTES = 256 * 4 * 8192
FL_OFF = 35 << 20
FL_BYTES = 0x60000
FL_STR = 4352
HF_REL, ZF_REL, PF_REL = 0, 0x24000, 0x36000
```

```python
import os
from asmlib import *
from layout import *
from prep import ws_srd

def gen_prep6(a, wgp_sreg, stamps=False):
    S_K, S_V, S_SH, S_G = 4, 8, 12, 16
    def stamp(i):
        if stamps: a("s_memtime s[%d:%d]" % (60 + 2 * i, 61 + 2 * i))
    a("s_load_dwordx2 s[20:21], s[0:1], 8")
    a("s_load_dwordx2 s[22:23], s[0:1], 16")
    a("s_load_dwordx2 s[24:25], s[0:1], 24")
    a("s_load_dwordx2 s[26:27], s[0:1], 104")
    code_touch(a, 48, 252, 0, "G1_PREP", end_label="G1_END")
    a("s_and_b32 s30, s%d, 3" % wgp_sreg)
    a("s_lshl_b32 s30, s30, 8")
    a("s_lshr_b32 s29, s%d, 2" % wgp_sreg)
    a("s_lshl_b32 s31, s29, 8")
    a("v_and_b32 v1, 7, v0")
    a("v_lshrrev_b32 v2, 3, v0")
    a("v_lshlrev_b32 v3, 3, v1")
    a("v_add_u32 v3, s30, v3")
    a("v_lshlrev_b32 v4, 3, v2")
    a("v_add_u32 v4, s31, v4")
    a("v_add_u32 v5, -4, v4")
    a("v_lshlrev_b32 v5, 11, v5")
    a("v_lshlrev_b32 v6, 1, v3")
    a("v_add_u32 v5, v5, v6")
    a("v_add_u32 v6, 0x1000, v5")
    a("v_add_u32 v7, 0x2000, v5")
    a("v_lshlrev_b32 v8, 3, v3")
    a("s_movk_i32 s28, %d" % G_PITCH)
    a("v_and_b32 v1, 63, v0")
    a("v_lshrrev_b32 v9, 3, v1")
    a("v_lshlrev_b32 v11, 2, v9")
    a("v_lshlrev_b32 v9, 3, v9")
    a("v_add_u32 v9, s30, v9")
    a("v_mul_lo_u32 v9, v9, s28")
    a("v_and_b32 v10, 7, v0")
    a("v_lshlrev_b32 v2, 4, v10")
    a("v_add_u32 v9, v9, v2")
    a("v_lshrrev_b32 v2, 6, v0")
    a("v_lshlrev_b32 v2, 7, v2")
    a("s_lshl_b32 s28, s31, 1")
    a("s_sub_u32 s28, 0x1000, s28")
    a("v_sub_u32 v2, s28, v2")
    a("v_xor_b32 v3, 7, v10")
    a("v_add_u32 v10, v9, v2")
    a("v_lshlrev_b32 v3, 5, v3")
    a("v_add_u32 v3, v3, v11")
    a("s_waitcnt lgkmcnt(0)")
    stamp(0)
    srd(a, S_K, 20, 2048 * 1024 * 2)
    srd(a, S_V, 22, 2048 * 1024 * 2)
    srd(a, S_SH, 24, 1024 * 4 * 2)
    ws_srd(a, S_G, 26, G_OFF, G_BYTES)
    import conv2
    a("v_lshrrev_b32 v250, 6, v0")
    a("s_nop 0")
    a("v_readfirstlane_b32 s52, v250")
    conv2.clear_flag(a, 48, 26, 53, 250, "SP_CLR", ["s_cmp_lg_u32 s52, 0"])
    a("s_mov_b32 s28, 0xffff0000")
    for i in range(4): a("s_movk_i32 s%d, %d" % (32 + i, 4096 * i))
    for e in range(8): a("s_mov_b32 s%d, 0x%x" % (40 + e, e * G_PITCH))
    SH = 12; NB = 76
    BUF = [28, 28 + NB]
    KT = 180
    R = 202
    W = 218
    VT = 226
    O = 232
    ZQ = 248
    def shl(it, rf, d):
        for r in range(4):
            a("buffer_load_dwordx4 %s[%d:%d], v8, s[%d:%d], 0 offen offset:%d" % (rf, d + 4 * r, d + 3 + 4 * r, S_SH, S_SH + 3, 16 * r + 512 * it))
    def loads(base, rf="v"):
        def ld(dst, S, row):
            if row < 2: v, so, off = 5, "0", row * 2048
            elif row < 4: v, so, off = 6, "0", (row - 2) * 2048
            else: v, so, off = 7, "s%d" % (32 + (row - 4) // 2), ((row - 4) & 1) * 2048
            a("buffer_load_dwordx4 %s[%d:%d], v%d, s[%d:%d], %s offen offset:%d" % (rf, dst, dst + 3, v, S, S + 3, so, off))
        for r in range(11): ld(base + 4 * r, S_K, r + 1)
        for r in range(8): ld(base + 44 + 4 * r, S_V, r + 4)
        for v in (5, 6, 7): a("v_add_u32 v%d, 128, v%d" % (v, v))
    NL = 19
    pend = []
    def flush():
        if pend:
            a("s_waitcnt lgkmcnt(0)")
            for i in pend: a(i)
            pend.clear()
    def compute(base):
        for p in range(4):
            for c in range(2):
                e = 2 * p + c
                a("v_lshlrev_b32 v%d, 16, v%d" % (W + 0 + c, SH + 2 * e))
                a("v_and_b32 v%d, s28, v%d" % (W + 2 + c, SH + 2 * e))
                a("v_lshlrev_b32 v%d, 16, v%d" % (W + 4 + c, SH + 2 * e + 1))
                a("v_and_b32 v%d, s28, v%d" % (W + 6 + c, SH + 2 * e + 1))
            for r in range(11):
                a("v_lshlrev_b32 v%d, 16, v%d" % (KT + 2 * r, base + 4 * r + p))
                a("v_and_b32 v%d, s28, v%d" % (KT + 2 * r + 1, base + 4 * r + p))
            flush()
            for j in range(8):
                a("v_pk_mul_f32 v[%d:%d], v[%d:%d], v[%d:%d]" % (R + 2 * j, R + 2 * j + 1, KT + 2 * j, KT + 2 * j + 1, W + 6, W + 7))
            for t in range(1, 4):
                for j in range(8):
                    a("v_pk_fma_f32 v[%d:%d], v[%d:%d], v[%d:%d], v[%d:%d]" % (R + 2 * j, R + 2 * j + 1, KT + 2 * (j + t), KT + 2 * (j + t) + 1, W + 2 * (3 - t), W + 2 * (3 - t) + 1, R + 2 * j, R + 2 * j + 1))
            for j in range(8):
                t = VT + 2 * (j & 1)
                a("v_lshlrev_b32 v%d, 16, v%d" % (t, base + 44 + 4 * j + p))
                a("v_and_b32 v%d, s28, v%d" % (t + 1, base + 44 + 4 * j + p))
                a("v_pk_mul_f32 v[%d:%d], v[%d:%d], v[%d:%d]" % (R + 2 * j, R + 2 * j + 1, R + 2 * j, R + 2 * j + 1, t, t + 1))
            ob = O + 8 * (p & 1)
            for c in range(2):
                e = 2 * p + c
                o0 = ob + 4 * c
                for i in range(4):
                    a("v_cvt_pk_bf16_f32 v%d, v%d, v%d" % (o0 + i, R + 2 * (7 - 2 * i) + c, R + 2 * (6 - 2 * i) + c))
                for i in range(4):
                    a("ds_bpermute_b32 v%d, v3, v%d" % (o0 + i, o0 + i))
                pend.append("buffer_store_dwordx4 v[%d:%d], v10, s[%d:%d], s%d offen sc1" % (o0, o0 + 3, S_G, S_G + 3, 40 + e))
        pend.append("v_add_u32 v10, 0x%x, v10" % (64 * G_PITCH))
    def getsh(it):
        for i in range(16): a("v_accvgpr_read_b32 v%d, a%d" % (SH + i, 160 + 16 * (it - 1) + i))
    def capture(fn, *args):
        keep = a.lines; a.lines = []
        fn(*args)
        r = a.lines; a.lines = keep
        return r
    def merged(cl, ll):
        out = []; li = 0
        step = max(1, len(cl) // (len(ll) + 1))
        for n, c in enumerate(cl):
            out.append(c)
            if li < len(ll) and (n + 1) % step == 0:
                out.append(ll[li]); li += 1
        out.extend(ll[li:])
        return out
    start = len(a.lines)
    def younger(marker):
        idx = max(i for i, l in enumerate(a.lines) if l == marker)
        return sum(1 for l in a.lines[idx + 1:] if l.strip().startswith("buffer_"))
    def mark(name):
        a.lines.append("    ; " + name); return "    ; " + name
    shl(0, "v", SH)
    loads(BUF[0]); m0 = mark("L0")
    for it in range(1, 4): shl(it, "a", 160 + 16 * (it - 1))
    loads(BUF[1]); m1 = mark("L1")
    a("s_cmp_lg_u32 s29, 7")
    a("s_cbranch_scc1 PREP6_NP")
    for i in range(4): a("v_mov_b32 v%d, 0" % (ZQ + i))
    a("v_lshrrev_b32 v1, 6, v0")
    a("s_mov_b32 s36, 0x%x" % (64 * G_PITCH))
    a("v_mul_lo_u32 v1, v1, s36")
    a("v_add_u32 v9, v9, v1")
    keep = len(a.lines)
    for e in range(8):
        a("buffer_store_dwordx4 v[%d:%d], v9, s[%d:%d], s%d offen sc1 ; pad" % (ZQ, ZQ + 3, S_G, S_G + 3, 40 + e))
    a.label("PREP6_NP")
    def younger(marker):
        idx = max(i for i, l in enumerate(a.lines) if l == marker)
        return sum(1 for l in a.lines[idx + 1:] if l.strip().startswith("buffer_") and "; pad" not in l)
    stamp(1)
    a("s_waitcnt vmcnt(%d)" % younger(m0))
    stamp(2)
    l2 = capture(loads, 0, "a") + ["    ; L2"]
    c0 = capture(compute, BUF[0])
    a.lines.extend(merged(c0, l2))
    stamp(3)
    a("s_waitcnt vmcnt(%d)" % younger(m1))
    getsh(1)
    l3 = capture(loads, NB, "a") + ["    ; L3"]
    c1 = capture(compute, BUF[1])
    a.lines.extend(merged(c1, l3))
    stamp(4)
    a("s_waitcnt vmcnt(%d)" % younger("    ; L2"))
    stamp(5)
    getsh(2)
    for i in range(NB): a("v_accvgpr_read_b32 v%d, a%d" % (BUF[0] + i, i))
    compute(BUF[0])
    a("s_waitcnt vmcnt(%d)" % younger("    ; L3"))
    getsh(3)
    for i in range(NB): a("v_accvgpr_read_b32 v%d, a%d" % (BUF[1] + i, NB + i))
    compute(BUF[1])
    flush()
    stamp(6)
    if stamps:
        a("s_waitcnt vmcnt(0)")
        stamp(7)
        a("s_waitcnt lgkmcnt(0)")
        ws_srd(a, 4, 26, 0x4000000, 1 << 20)
        a("s_lshl_b32 s47, s2, 5")
        for i in range(8):
            a("v_mov_b32 v%d, s%d" % (64 + i, 60 + 2 * i))
        a("v_mov_b32 v72, s47")
        a("s_mov_b64 exec, 1")
        a("buffer_store_dwordx4 v[64:67], v72, s[4:7], 0 offen")
        a("buffer_store_dwordx4 v[68:71], v72, s[4:7], 0 offen offset:16")
        a("s_mov_b64 exec, -1")
```

```python
import sys, os
os.environ.setdefault("PD", "4")
from asmlib import *
from prep import *
import conv2
from gemm1 import *
import gemm2f
import prep6
ST = os.environ.get("STAMPS", "") != ""
KN = "gated_mix__ssm_conv_h3__geglu_ffn__prompt_kernel"
a = A()
hdr = open("gated_mix__ssm_conv_h3__geglu_ffn__prompt.s.ref").read().split("\n")
for l in hdr:
    if l.startswith("; Override") : break
    a.raw(l)
if os.environ.get("LIST"): a.raw("; @launch kernel=%s grid=(256,1,1) block=(256,1,1) lds=163840" % KN)
else: a.raw("; @launch grid=(256,1,1) block=(256,1,1) lds=163840")
a.raw('.amdgcn_target "amdgcn-amd-amdhsa--gfx950"')
a.raw(".text")
def rt_end():
    if ST:
        a("s_waitcnt vmcnt(0) lgkmcnt(0)")
        a("s_memrealtime s[20:21]")
        a("s_load_dwordx2 s[22:23], s[0:1], 104")
        a("s_waitcnt lgkmcnt(0)")
        a("s_add_u32 s24, s22, 0x5000000")
        a("s_addc_u32 s25, s23, 0")
        a("s_mov_b32 s26, 0x10000")
        a("s_mov_b32 s27, 0x00020000")
        a("s_mov_b64 exec, 1")
        for i, r in enumerate((92, 98, 88, 86, 90, 94, 96, 20)):
            a("v_mov_b32 v%d, s%d" % (4 + i, r))
        a("s_lshl_b32 s22, s2, 2")
        a("s_add_u32 s22, s22, s40")
        a("s_lshl_b32 s22, s22, 5")
        a("v_mov_b32 v12, s22")
        a("buffer_store_dwordx4 v[4:7], v12, s[24:27], 0 offen")
        a("buffer_store_dwordx4 v[8:11], v12, s[24:27], 0 offen offset:16")
kernel_header(a, KN)
a.label("g1_kernel")
a("s_cmp_ge_u32 s2, 256")
a("s_cbranch_scc1 G_END")
if os.environ.get("BADMAP"):
    a("s_lshr_b32 s3, s2, 3")
    a("s_add_u32 s3, s3, s2")
    a("s_and_b32 s3, s3, 7")
    a("s_and_b32 s2, s2, 0xf8")
    a("s_or_b32 s2, s2, s3")
if ST: a("s_memrealtime s[92:93]")
a("s_cmp_lt_u32 s2, 32")
a("s_cbranch_scc1 G1_PREP")
D, E = gen_gemm1(a, dbg="P", fuse=True, rts=ST)
conv2.conv_pre(a, D, E)
a.label("CV_COMMON")
vms = conv2.conv_fused(a, ST)
a.label("g2_code")
gemm2f.gen_main(a, vms, rts=ST)
rt_end()
a.label("G_END")
a("s_endpgm")
a.label("G1_PREP")
prep6.gen_prep6(a, 2, False)
a("v_lshrrev_b32 v1, 6, v0")
a("v_and_b32 v0, 63, v0")
a("s_nop 0")
a("v_readfirstlane_b32 s40, v1")
conv2.conv_ptrs(a)
a("s_waitcnt vmcnt(0) lgkmcnt(0)")
conv2.flag_srd(a)
if ST: a("s_memrealtime s[98:99]")
a("s_lshl_b32 s84, s40, 6")
a("v_add_u32 v252, s84, v0")
code_touch(a, 48, 252, 252, "CV_COMMON", n=2, end_label="G1_PREP")
a("s_barrier")
a("s_cmp_eq_u32 s40, 0")
a("s_cbranch_scc1 PREP_M1")
for i in conv2.wd_touch(True, True): a(i)
a.label("PREP_M1")
a("s_cmp_lg_u32 s40, 0")
a("s_cbranch_scc1 PREP_P4")
conv2.signal(a)
for i in conv2.wd_touch(True, True): a(i)
a("s_mov_b32 s85, 0x4000")
a.label("PREP_P3")
conv2.poll_issue(a, 210)
a("s_waitcnt vmcnt(0)")
conv2.poll_check(a, 210, 84)
a("s_cmp_lg_u32 s84, 0")
a("s_cbranch_scc1 PREP_P4")
a("s_sub_u32 s85, s85, 1")
a("s_cmp_eq_u32 s85, 0")
a("s_cbranch_scc1 PREP_P4")
a("s_sleep 16")
a("s_branch PREP_P3")
a.label("PREP_P4")
a("s_barrier")
if ST: a("s_memrealtime s[88:89]")
for i in conv2.gate_loads(): a(i)
for g in conv2.conv_early(a):
    for i in g: a(i)
conv2.conv_setup(a)
for i in gemm2f.setup_w([47, 48, 58, 59, 62, 63], [43, 44, 45, 46]): a(i)
D = conv2.conv_issue(a)
conv2.conv_pre(a, D, None, [i for g in conv2.gate_compute() for i in g])
for i in conv2.wd_touch(True): a(i)
a("s_branch CV_COMMON")
a.label("G1_END")
a.label("CODE_END")
a.raw('.section .rodata,"a"')
a.raw(kernel_desc(KN, 512, 102, 256))
open(sys.argv[1], "w").write(a.text())
```

```python
from asmlib import *
from layout import *
from prep import ws_srd

UC = 4928
HC = 4480
WAVE_LDS = 4 * UC + 2 * HC
CONV_LDS = 4 * WAVE_LDS

P_HK, P_D, P_GW, P_DBG, P_WS, P_Q = 64, 66, 68, 70, 72, 74
P_WD = 100
S_G, S_H, S_Z, S_Q, S_GW, S_GT, S_F = 4, 8, 12, 32, 36, 52, 80
sW, sD, sLB, T0, T1, T2, sDV, T3, T4 = 40, 60, 61, 62, 63, 76, 78, 77, 79
sHB = 85
KV = 160
GL = 176
VL = 200
VSW = 201
VZ = 204
VT = 208
import os
GSC = ' sc1' if os.environ.get('INV', '') == '' else ''
TARGET = 16 if os.environ.get('DPREP') else 8

def conv_ptrs(a):
    a("s_load_dwordx2 s[%d:%d], s[0:1], 32" % (P_HK, P_HK + 1))
    a("s_load_dwordx2 s[%d:%d], s[0:1], 40" % (P_D, P_D + 1))
    a("s_load_dwordx2 s[%d:%d], s[0:1], 80" % (P_GW, P_GW + 1))
    a("s_load_dwordx2 s[%d:%d], s[0:1], 96" % (P_DBG, P_DBG + 1))
    a("s_load_dwordx2 s[%d:%d], s[0:1], 104" % (P_WS, P_WS + 1))
    a("s_load_dwordx2 s[%d:%d], s[0:1], 0" % (P_Q, P_Q + 1))
    a("s_load_dwordx2 s[%d:%d], s[0:1], 72" % (P_WD, P_WD + 1))

def flag_srd(a):
    srd(a, S_F, P_DBG, 256)

def poll_issue(a, vdst):
    a("v_and_b32 v%d, 3, v0" % VT)
    a("v_lshlrev_b32 v%d, 6, v%d" % (VT, VT))
    a("buffer_load_dword v%d, v%d, s[%d:%d], 0 offen sc1" % (vdst, VT, S_F, S_F + 3))

def poll_check(a, vdst, sdst):
    a("v_cmp_eq_u32 vcc, 8, v%d" % vdst)
    a("s_nop 1")
    a("s_and_b32 s%d, vcc_lo, vcc_hi" % sdst)
    a("s_cmp_eq_u32 s%d, -1" % sdst)
    a("s_cselect_b32 s%d, 1, 0" % sdst)

def signal(a):
    a("s_and_b32 s%d, s2, 3" % T0)
    a("s_lshl_b32 s%d, s%d, 6" % (T0, T0))
    a("v_mov_b32 v%d, 1" % (VT + 1))
    a("s_mov_b64 exec, 1")
    a("buffer_atomic_add v%d, off, s[%d:%d], s%d sc1" % (VT + 1, S_F, S_F + 3, T0))
    a("s_mov_b64 exec, -1")

def clear_flag(a, sd, wsreg, st, vt, lab, wavecond):
    for i in wavecond: a(i)
    a("s_cbranch_scc1 %s" % lab)
    ws_srd(a, sd, wsreg, FL_OFF, FL_BYTES)
    a("s_lshl_b32 s%d, s2, %d" % (st, FSL + 3))
    a("v_lshrrev_b32 v%d, 3, v0" % vt)
    a("v_lshlrev_b32 v%d, 8, v%d" % (vt, vt))
    a("v_and_b32 v%d, 7, v0" % (vt + 1))
    a("v_add_lshl_u32 v%d, v%d, v%d, %d" % (vt, vt, vt + 1, FSL))
    a("v_mov_b32 v%d, 0" % (vt + 1))
    a("s_mov_b64 exec, 0xffffff")
    a("buffer_store_dword v%d, v%d, s[%d:%d], s%d offen sc1 ; pad" % (vt + 1, vt, sd, sd + 3, st))
    a("s_mov_b64 exec, -1")
    a.label(lab)

UREG = 65536
TKOFF = 163328
def capture(a, fn, *args):
    keep = a.lines; a.lines = []
    r = fn(*args)
    l = [x.strip() for x in a.lines]; a.lines = keep
    return l, r

def conv_early(a):
    a("s_lshl_b32 s%d, s2, 2" % sD)
    a("s_add_u32 s%d, s%d, s%d" % (sD, sD, sW))
    a("s_mul_i32 s%d, s%d, %d" % (sLB, sW, 4 * UC))
    a("s_add_u32 s%d, s%d, %d" % (sLB, sLB, UREG))
    for i in range(4): a("v_mov_b32 v%d, 0" % (VZ + i))
    a("v_lshlrev_b32 v%d, 4, v0" % VL)
    a("v_add_u32 v%d, s%d, v%d" % (VT + 2, sLB, VL))
    ws_srd(a, S_G, P_WS, G_OFF, G_BYTES)
    a("v_lshrrev_b32 v%d, 4, v0" % VSW)
    a("v_and_b32 v%d, 1, v%d" % (VSW, VSW))
    a("v_lshlrev_b32 v%d, 1, v%d" % (VSW, VSW))
    a("v_xor_b32 v%d, v%d, v0" % (VSW, VSW))
    a("v_lshlrev_b32 v%d, 4, v%d" % (VSW, VSW))
    a("s_mul_i32 s%d, s%d, %d" % (T3, sD, G_PITCH))
    D = []
    for r in (3, 1, 2, 0):
        off = {3: 120, 1: 124, 2: 122, 0: 126}[r]
        for I in range(4):
            g = []
            if I == 0: g += ["s_add_u32 s%d, s%d, 0x%x" % (T4, T3, off), "s_add_u32 m0, s%d, %d" % (sLB, r * UC), "s_nop 0"]
            g.append("buffer_load_dwordx4 v%d, s[%d:%d], s%d offen offset:%d%s lds" % (VSW, S_G, S_G + 3, T4, I * 1024, GSC))
            if I == 3: g += ["s_mov_b32 exec_hi, 0x7ffff", "ds_write_b128 v%d, v[%d:%d] offset:%d" % (VT + 2, VZ, VZ + 3, r * UC + 4112), "s_mov_b32 exec_hi, -1"]
            D.append(g)
    g = ["s_mov_b64 exec, 1"]
    for r in range(4):
        off = {3: 120, 1: 124, 2: 122, 0: 126}[r]
        g.append("s_add_u32 s%d, s%d, 0x%x" % (T4, T3, off + 4096))
        g.append("s_add_u32 m0, s%d, %d" % (sLB, r * UC + 4096))
        g.append("s_nop 0")
        g.append("buffer_load_dwordx4 v%d, s[%d:%d], s%d offen%s lds" % (VSW, S_G, S_G + 3, T4, GSC))
    g.append("s_mov_b64 exec, -1")
    D.append(g)
    return D

GQ = 212
GWF = 236
GTM = 252
GA = 26
def touch_h():
    return ["s_lshl_b32 s%d, s2, 2" % sD, "s_add_u32 s%d, s%d, s%d" % (sD, sD, sW), "s_lshl_b32 s%d, s%d, 12" % (T0, sD),
         "s_mov_b32 s76, s%d" % P_HK, "s_mov_b32 s77, s%d" % (P_HK + 1), "s_mov_b32 s78, 0x%x" % (1024 * 2048 * 2), "s_mov_b32 s79, 0x00020000",
         "v_and_b32 v%d, 31, v0" % VT, "v_lshlrev_b32 v%d, 7, v%d" % (VT, VT),
         "buffer_load_dword v%d, v%d, s[76:79], s%d offen" % (VT + 1, VT, T0)]

def gate_loads():
    r = ["s_lshl_b32 s%d, s2, 2" % sD, "s_add_u32 s%d, s%d, s%d" % (sD, sD, sW), "s_lshl_b32 s%d, s%d, 12" % (T0, sD),
         "v_lshlrev_b32 v%d, 4, v0" % (GA + 1),
         "s_mov_b32 s76, s%d" % P_GW, "s_mov_b32 s77, s%d" % (P_GW + 1), "s_mov_b32 s78, 0x800", "s_mov_b32 s79, 0x00020000",
         "buffer_load_dwordx4 v[%d:%d], v%d, s[76:79], 0 offen" % (GQ, GQ + 3, GA + 1),
         "buffer_load_dwordx4 v[%d:%d], v%d, s[76:79], 0 offen offset:1024" % (GQ + 4, GQ + 7, GA + 1),
         "s_mov_b32 s76, s%d" % P_Q, "s_mov_b32 s77, s%d" % (P_Q + 1), "s_mov_b32 s78, 0x%x" % (2048 * 1024 * 2)]
    for i in range(4):
        r.append("buffer_load_dwordx4 v[%d:%d], v%d, s[76:79], s%d offen offset:%d" % (GQ + 8 + 4 * i, GQ + 11 + 4 * i, GA + 1, T0, 1024 * i))
    return r

def gate_compute():
    r = []
    for i in range(8):
        r.append("v_lshlrev_b32 v%d, 16, v%d" % (GWF + 2 * i, GQ + i))
        r.append("v_and_b32 v%d, 0xffff0000, v%d" % (GWF + 2 * i + 1, GQ + i))
    for rr in range(2):
        for i in range(8):
            src = GQ + 8 + 8 * rr + i
            t = GTM + 2 * (i & 1)
            r.append("v_lshlrev_b32 v%d, 16, v%d" % (t, src))
            r.append("v_and_b32 v%d, 0xffff0000, v%d" % (t + 1, src))
            r.append("v_mul_f32 v%d, v%d, v%d" % (t, t, GWF + 2 * i))
            r.append("v_mul_f32 v%d, v%d, v%d" % (t + 1, t + 1, GWF + 2 * i + 1))
            r.append("v_cvt_pk_bf16_f32 v%d, v%d, v%d" % (t, t, t + 1))
            r.append("v_lshlrev_b32 v%d, 16, v%d" % (t + 1, t))
            r.append("v_and_b32 v%d, 0xffff0000, v%d" % (t, t))
            if i == 0:
                r.append("v_add_f32 v%d, v%d, v%d" % (GA + rr, t, t + 1))
            else:
                r.append("v_add_f32 v%d, v%d, v%d" % (t, t, t + 1))
                r.append("v_add_f32 v%d, v%d, v%d" % (GA + rr, GA + rr, t))
    G = [[x] for x in r]
    for m in ("row_shr:1 row_mask:0xf bank_mask:0xf bound_ctrl:0", "row_shr:2 row_mask:0xf bank_mask:0xf bound_ctrl:0",
              "row_shr:4 row_mask:0xf bank_mask:0xf bound_ctrl:0", "row_shr:8 row_mask:0xf bank_mask:0xf bound_ctrl:0",
              "row_bcast:15 row_mask:0xa bank_mask:0xf", "row_bcast:31 row_mask:0xc bank_mask:0xf"):
        G.append(["s_nop 1"] + ["v_add_f32_dpp v%d, v%d, v%d %s" % (GA + rr, GA + rr, GA + rr, m) for rr in range(2)])
    for op in ("v_cvt_pk_bf16_f32 v%d, v%d, v%d", "v_lshlrev_b32 v%d, 16, v%d", "v_mul_f32 v%d, 0xbfb8aa3b, v%d", "v_exp_f32 v%d, v%d", "N",
               "v_add_f32 v%d, 1.0, v%d", "v_rcp_f32 v%d, v%d", "N", "v_cvt_pk_bf16_f32 v%d, v%d, v%d", "v_lshlrev_b32 v%d, 16, v%d"):
        if op == "N": G.append(["s_nop 0"]); continue
        G.append([op % ((GA + rr,) * op.count("%d")) for rr in range(2)])
    G.append(["s_lshl_b32 s%d, s%d, 3" % (T0, sD), "s_add_u32 s%d, s%d, 0x%x" % (S_GT, P_WS, GT_OFF), "s_addc_u32 s%d, s%d, 0" % (S_GT + 1, P_WS + 1),
              "s_mov_b32 s%d, 0x%x" % (S_GT + 2, GT_BYTES), "s_mov_b32 s%d, 0x00020000" % (S_GT + 3), "v_mov_b32 v%d, 0" % GTM])
    G.append(["s_mov_b32 exec_lo, 0", "s_mov_b32 exec_hi, 0x80000000",
              "buffer_store_dwordx2 v[%d:%d], v%d, s[%d:%d], s%d offen sc1" % (GA, GA + 1, GTM, S_GT, S_GT + 3, T0), "s_mov_b64 exec, -1"])
    return G

def gate_spare(a):
    RAW = 64; PZ = 80
    a("s_lshl_b32 s48, s2, 2")
    a("s_add_u32 s48, s48, s%d" % sW)
    a("s_lshl_b32 s49, s48, 15")
    a("s_lshl_b32 s50, s48, 13")
    a("s_lshl_b32 s51, s48, 6")
    a("v_lshlrev_b32 v%d, 4, v0" % (GA + 2))
    srd(a, 76, P_GW, 0x800)
    a("buffer_load_dwordx4 v[%d:%d], v%d, s[76:79], 0 offen" % (GQ, GQ + 3, GA + 2))
    a("buffer_load_dwordx4 v[%d:%d], v%d, s[76:79], 0 offen offset:1024" % (GQ + 4, GQ + 7, GA + 2))
    srd(a, 76, P_Q, 2048 * 1024 * 2)
    a("s_lshl_b32 s48, s%d, 15" % sW)
    a("v_add_u32 v%d, s48, v%d" % (GA + 3, GA + 2))
    for k in range(8):
        a("s_add_u32 m0, s48, %d" % (4096 * k))
        a("s_nop 0")
        for i in range(4): a("buffer_load_dwordx4 v%d, s[76:79], s49 offen offset:%d lds" % (GA + 2, 1024 * i))
        a("s_add_u32 s49, s49, 4096")
    ws_srd(a, 44, P_WS, XB_OFF, XB_BYTES)
    ws_srd(a, S_GT, P_WS, GT_OFF, GT_BYTES)
    for i in range(4): a("v_mov_b32 v%d, -1" % (PZ + i))
    G = gate_compute()[:-2]
    a("s_waitcnt vmcnt(32)")
    for g in G[:16]:
        for i in g: a(i)
    G = G[16:]
    WT = wd_touch(True, True, 1)
    for i in WT[:-2]: a(i)
    a("s_mov_b32 s48, 8")
    a.label("SP_GL")
    a("s_waitcnt vmcnt(21)")
    for i in range(4): a("ds_read_b128 v[%d:%d], v%d offset:%d" % (GQ + 8 + 4 * i, GQ + 11 + 4 * i, GA + 3, 1024 * i))
    a("v_add_u32 v%d, 0x1000, v%d" % (GA + 3, GA + 3))
    for i in WT[-2:]: a(i)
    a("buffer_store_dwordx4 v[%d:%d], v%d, s[44:47], s50 offen sc1" % (PZ, PZ + 3, GA + 2))
    a("s_add_u32 s50, s50, 1024")
    a("s_waitcnt lgkmcnt(0)")
    for g in G:
        for i in g: a(i)
    a("s_mov_b32 exec_lo, 0")
    a("s_mov_b32 exec_hi, 0x80000000")
    a("buffer_store_dwordx2 v[%d:%d], off, s[%d:%d], s51 sc1" % (GA, GA + 1, S_GT, S_GT + 3))
    a("s_mov_b64 exec, -1")
    a("s_add_u32 s51, s51, 8")
    a("s_sub_u32 s48, s48, 1")
    a("s_cmp_lg_u32 s48, 0")
    a("s_cbranch_scc1 SP_GL")

def aux_flag(a):
    ws_srd(a, 44, P_WS, FL_OFF, FL_BYTES)
    a("s_lshl_b32 s48, s2, %d" % FSL)
    a("s_add_u32 s48, s48, 0x%x" % PF_REL)
    a("v_mov_b32 v%d, 1" % GA)
    a("s_mov_b64 exec, 1")
    a("buffer_store_dword v%d, off, s[44:47], s48 sc1" % GA)
    a("s_mov_b64 exec, -1")

VZA = 211
def conv_setup(a):
    a("s_mul_i32 s%d, s%d, %d" % (sHB, sW, 2 * HC))
    a("v_add_u32 v%d, s%d, v%d" % (VZA, sHB, VL))
    srd(a, S_H, P_HK, 1024 * 2048 * 2)
    ws_srd(a, S_Z, P_WS, Z_OFF, Z_BYTES)
    a("s_lshr_b32 s%d, s%d, 1" % (T1, sD))
    a("s_lshl_b32 s%d, s%d, 2" % (T1, T1))
    a("s_load_dword s%d, s[%d:%d], s%d" % (sDV, P_D, P_D + 1, T1))
    a("s_load_dwordx2 s[68:69], s[0:1], 88")
    a("v_and_b32 v%d, 15, v0" % VT)
    a("v_lshrrev_b32 v%d, 4, v0" % (VT + 1))
    a("v_lshlrev_b32 v%d, 7, v%d" % (VT + 1, VT + 1))
    a("v_lshlrev_b32 v%d, 3, v%d" % (VT, VT))
    a("v_add_u32 v%d, v%d, v%d" % (VT, VT, VT + 1))
    a("v_sub_u32 v%d, 568, v%d" % (VT, VT))
    a("v_lshlrev_b32 v%d, 1, v%d" % (VT, VT))
    a("v_and_b32 v8, 15, v0")
    a("v_lshrrev_b32 v9, 4, v0")
    a("v_lshlrev_b32 v10, 7, v9")
    a("v_lshlrev_b32 v11, 3, v8")
    a("v_add_u32 v10, v10, v11")
    a("v_lshlrev_b32 v12, 1, v10")
    a("v_add_u32 v13, v8, v9")
    a("v_lshlrev_b32 v13, 4, v13")
    a("v_add_u32 v13, s%d, v13" % sHB)
    a("v_lshrrev_b32 v4, 2, v8")
    a("v_and_b32 v5, 3, v8")
    a("s_movk_i32 s%d, %d" % (T1, UC))
    a("v_mul_lo_u32 v5, v5, s%d" % T1)
    a("v_sub_u32 v6, 3, v4")
    a("v_lshlrev_b32 v6, 8, v6")
    a("v_add_u32 v5, v5, v6")
    a("v_add_u32 v5, s%d, v5" % sLB)
    a("v_and_b32 v6, 1, v4")
    a("v_lshlrev_b32 v6, 1, v6")
    a("v_xor_b32 v7, v9, v6")
    a("v_xor_b32 v6, 2, v7")
    a("v_lshlrev_b32 v6, 4, v6")
    a("v_lshlrev_b32 v7, 4, v7")
    a("v_add_u32 v14, v5, v6")
    a("v_add_u32 v15, v5, v7")
    a("s_mov_b32 s%d, 0xffff0000" % T2)

def conv_issue(a):
    a("s_mov_b64 exec, 0xffff")
    for ph in range(2):
        a("ds_write_b128 v%d, v[%d:%d] offset:%d" % (VZA, VZ, VZ + 3, ph * HC))
        a("ds_write_b128 v%d, v[%d:%d] offset:%d" % (VZA, VZ, VZ + 3, ph * HC + HC - 256))
    a("s_mov_b64 exec, -1")
    a("s_lshl_b32 s%d, s%d, 12" % (T0, sD))
    for i in range(32): a("v_mov_b32 v%d, 0" % (32 + i))
    a("s_waitcnt lgkmcnt(0)")
    D = []
    for ph in range(2):
        for I in range(4):
            g = []
            if I == 0: g += ["s_add_u32 m0, s%d, %d" % (sHB, ph * HC + (128 - 4 * ph) * 2), "s_nop 0"]
            g.append("buffer_load_dwordx4 v%d, s[%d:%d], s%d offen offset:%d lds" % (VL, S_H, S_H + 3, T0, I * 1024))
            D.append(g)
    for T in range(4):
        D.append(["buffer_load_dwordx4 v[%d:%d], v%d, s[%d:%d], s%d offen offset:%d%s" % (KV + 4 * T, KV + 4 * T + 3, VT, S_G, S_G + 3, T3, (3 - T) * 1024, GSC)])
    return D

WPF = 0
SPN = int(os.environ.get("SPN", "10"))
G1N = int(os.environ.get("G1N", "0"))
G1POS = int(os.environ.get("G1POS", "40"))
def wd_touch(spare, mall=False, nn=None):
    n = SPN if spare else G1N
    if mall: n = 7
    if nn: n = nn
    if not n: return []
    S = S_GW
    r = ["s_mov_b32 s%d, s%d" % (S, P_WD), "s_mov_b32 s%d, s%d" % (S + 1, P_WD + 1), "s_mov_b32 s%d, 0x%x" % (S + 2, 3584 * 1024 * 2), "s_mov_b32 s%d, 0x00020000" % (S + 3),
         "v_lshrrev_b32 v138, 3, v0", "v_lshlrev_b32 v138, 11, v138", "v_and_b32 v139, 7, v0", "v_lshlrev_b32 v139, 7, v139", "v_add_u32 v138, v138, v139",
         "s_lshr_b32 s%d, s2, 3" % T0]
    G2W = os.environ.get("G2", "x") in "wx"
    G2MAP = int(os.environ.get("G2MAP", "2"))
    if spare and G2W:
        r = r[:-1]
        r += ["s_lshr_b32 s%d, s2, 1" % T0, "s_and_b32 s%d, s%d, 2" % (T0, T0), "s_lshr_b32 s%d, s2, 3" % T1, "s_and_b32 s%d, s%d, 1" % (T1, T1),
              "s_add_u32 s%d, s%d, s%d" % (T0, T0, T1), "s_mul_i32 s%d, s%d, 896" % (T0, T0), "s_lshl_b32 s%d, s%d, 3" % (T1, sW), "s_add_u32 s%d, s%d, s%d" % (T0, T0, T1)]
        if G2MAP == 1:
            if mall: r += ["s_and_b32 s%d, s2, 3" % T1, "s_mul_i32 s%d, s%d, 224" % (T1, T1), "s_add_u32 s%d, s%d, s%d" % (T0, T0, T1)]
            r += ["s_lshl_b32 s%d, s%d, 11" % (T0, T0), "s_and_b32 s%d, s2, 16" % T1, "s_lshl_b32 s%d, s%d, 6" % (T1, T1), "s_add_u32 s%d, s%d, s%d" % (T0, T0, T1)]
        else:
            if mall: r += ["s_and_b32 s%d, s2, 1" % T1, "s_mul_i32 s%d, s%d, 448" % (T1, T1), "s_add_u32 s%d, s%d, s%d" % (T0, T0, T1)]
            r += ["s_lshr_b32 s%d, s2, 4" % T1, "s_mul_i32 s%d, s%d, %d" % (T1, T1, 224 if mall else 32 * SPN), "s_add_u32 s%d, s%d, s%d" % (T0, T0, T1)]
            r += ["s_lshl_b32 s%d, s%d, 11" % (T0, T0), "s_and_b32 s%d, s2, 2" % T1, "s_lshl_b32 s%d, s%d, 9" % (T1, T1), "s_add_u32 s%d, s%d, s%d" % (T0, T0, T1)]
        step = 32
    else:
        if spare:
            r += ["s_mul_i32 s%d, s%d, 896" % (T0, T0), "s_lshl_b32 s%d, s%d, 3" % (T1, sW)]
            if mall:
                r += ["s_add_u32 s%d, s%d, s%d" % (T0, T0, T1), "s_and_b32 s%d, s2, 3" % T1, "s_mul_i32 s%d, s%d, 224" % (T1, T1)]
            step = 32
        else:
            per = -(-(896 - 32 * SPN) // 28)
            per = min(per, 8 * n)
            r += ["s_mul_i32 s%d, s%d, %d" % (T0, T0, per), "s_add_u32 s%d, s%d, %d" % (T0, T0, 32 * SPN - 4 * per), "s_mul_i32 s%d, s%d, 896" % (T1, sW)]
            step = 8
        r += ["s_add_u32 s%d, s%d, s%d" % (T0, T0, T1), "s_lshl_b32 s%d, s%d, 11" % (T0, T0),
             "s_and_b32 s%d, s2, 4" % T1, "s_lshl_b32 s%d, s%d, 8" % (T1, T1), "s_add_u32 s%d, s%d, s%d" % (T0, T0, T1)]
    for b in range(n):
        r.append("buffer_load_dword v139, v138, s[%d:%d], s%d offen" % (S, S + 3, T0))
        TG = os.environ.get("TG", "")
        if ("m" in TG and mall) or ("l" in TG and not mall):
            r.append("buffer_load_dword v139, v138, s[%d:%d], s%d offen offset:64" % (S, S + 3, T0))
        if ("M" in TG and mall) or ("L" in TG and not mall):
            for o in (32, 64, 96): r.append("buffer_load_dword v139, v138, s[%d:%d], s%d offen offset:%d" % (S, S + 3, T0, o))
        r.append("s_add_u32 s%d, s%d, 0x%x" % (T0, T0, step * 2048))
    return r


DSP_ = int(os.environ.get("CDSP", "8"))
def conv_pre(a, D, E=None, pre_extra=None):
    import gemm2f as B, re
    E = E or []
    vm = []
    def em(i):
        a(i)
        if i.startswith("buffer_"): vm.append(i)
    WD = [[i for i, _ in g] for t in range(B.NW0) for g in B.ldw(t)]
    WS = [[[i for i, _ in g] for g in B.ldws(t)] for t in range(B.NW0, B.NW0 + B.NWS)]
    if QE == 2: WS.append(B.ldq())
    pl = [(DSP_ * n, g) for n, g in enumerate(D)]
    WSP = int(os.environ.get("WSP", "16"))
    if E:
        p = DSP_ * len(D)
        lastrd = {}
        for k, i in enumerate(E):
            m = re.match(r"v_accvgpr_read_b32 v\d+, a(\d+)", i)
            if m: lastrd[int(m.group(1))] = k
        for g in WD:
            pl.append((p, g)); p += WSP
        for st in WS:
            for g in st:
                r = int(re.search(r"a\[(\d+):", g[0]).group(1))
                need = max([lastrd.get(r + k, -1) for k in range(4)]) + 2
                p = max(p, need)
                while p + 1 < len(E) and (E[p + 1].startswith("v_pk_") or E[p].startswith("s_nop") or E[p + 1].startswith("v_permlane")): p += 1
                pl.append((p, g)); p += WSP
        assert p < len(E) + WSP, (p, len(E))
    for i in place(E, pl): em(i)
    if pre_extra:
        a("s_waitcnt vmcnt(%d)" % len(vm))
        for i in pre_extra: em(i)
    if not E:
        for g in WD + [g for st in WS for g in st]:
            for i in g: em(i)
    dl = [i for g in D for i in g if i.startswith("buffer_")][-1]
    last = max(k for k, i in enumerate(vm) if i == dl)
    a("s_waitcnt vmcnt(%d)" % min(63, len(vm) - 1 - last))

def conv_fused(a, rts=False):
    import gemm2f as B
    ACC = 32
    NS = 65
    NSW = 33
    def fb(n): return 64 + (n % 3) * 24 if n < NSW else 176 + (n % 5) * 16
    def ureg(n, T): return fb(n) + 8 + 4 * T if n < NSW else fb(n) + 8 + 4 * (T - 2)
    def reads(n):
        b = fb(n)
        r = []
        for ph in range(2):
            r.append("ds_read_b128 v[%d:%d], v13 offset:%d" % (b + 4 * ph, b + 4 * ph + 3, ph * HC + 64 * n))
        m = n >> 2
        for T in range(4):
            if n <= 16 * T + 16:
                u = ureg(n, T)
                r.append("ds_read_b128 v[%d:%d], v%d offset:%d" % (u, u + 3, 14 + (m & 1), 3072 - 1024 * T + 256 * m + 64 * (n & 3)))
        return r
    def mf(n):
        b = fb(n)
        r = []
        for T in range(4):
            if n <= 16 * T + 16:
                u = ureg(n, T)
                for ph in range(2):
                    c = ACC + (T * 2 + ph) * 4
                    r.append("v_mfma_f32_16x16x32_bf16 v[%d:%d], v[%d:%d], v[%d:%d], v[%d:%d]" % (c, c + 3, u, u + 3, b + 4 * ph, b + 4 * ph + 3, c, c + 3))
        return r
    issue = {}
    for n in range(2, NS):
        issue.setdefault(n - (2 if n < NSW else 4), []).append(n)
    order = [0] * len(reads(0)) + [1] * len(reads(1))
    steps = []
    for n in range(NS):
        w = len(order) - 1 - max(i for i, x in enumerate(order) if x == n)
        rd = []
        for k in sorted(issue.get(n, [])):
            rd += reads(k); order += [k] * len(reads(k))
        steps.append((min(w, 15), mf(n), rd))
    def glue(L):
        out = []
        for i in L:
            if i.startswith("s_addc") and out: out[-1].append(i)
            else: out.append([i])
        return out
    mpos = [0]
    for n in range(NS): mpos.append(mpos[-1] + len(steps[n][1]))
    def spread(fill, n0, n1):
        nm = mpos[n1] - mpos[n0]
        return [(mpos[n0] + (k * nm) // len(fill), g) for k, g in enumerate(fill)]
    def T_(g): return [(i, None) for i in g]
    def emit(vm, it):
        i, tag = it
        if i.endswith(":"): a.raw(i)
        else: a(i)
        if i.startswith("buffer_"): vm.append(tag)
    def yt(vm, tag): return len(vm) - 1 - max(i for i, x in enumerate(vm) if x == tag)
    def seg2(vm, n0, n1, placed, events={}):
        for n in range(n0, n1):
            if n in events: events[n]()
            w, m, rd = steps[n]
            a("s_waitcnt lgkmcnt(%d)" % w)
            pl = [((k * len(m)) // max(len(rd), 1), [(x, None)]) for k, x in enumerate(rd)]
            for p, g in placed:
                if mpos[n] <= p < mpos[n + 1]: pl.append((p - mpos[n], g))
            for it in place(T_(m), pl): emit(vm, it)
    M = T2
    assert sDV % 2 == 0 and T4 == sDV + 1
    CE0 = [["s_and_b32 s%d, s%d, 1" % (T0, sD), "s_lshl_b32 s%d, s%d, 16" % (T1, sDV), "s_and_b32 s%d, s%d, 0xffff0000" % (sDV, sDV),
           "s_cmp_eq_u32 s%d, 0" % T0, "s_cselect_b32 s%d, s%d, s%d" % (sDV, T1, sDV), "s_lshl_b32 s%d, s%d, 12" % (T0, sD), "s_mov_b32 s%d, s%d" % (T4, sDV)]]
    def cep(T, pk):
        Y = 136; Kf = 144; O = 152; t = 156
        c = ACC + T * 8
        e = []
        for p in range(4):
            src = KV + 4 * T + (3 - p)
            e.append("v_and_b32 v%d, s%d, v%d" % (Kf + 2 * p, M, src))
            e.append("v_lshlrev_b32 v%d, 16, v%d" % (Kf + 2 * p + 1, src))
        if pk: e += ["v_pk_mul_f32 v[%d:%d], v[%d:%d], s[%d:%d]" % (Kf + k, Kf + k + 1, Kf + k, Kf + k + 1, sDV, sDV + 1) for k in range(0, 8, 2)]
        else: e += ["v_mul_f32 v%d, s%d, v%d" % (Kf + k, sDV, Kf + k) for k in range(8)]
        for p in range(4):
            e.append("v_cvt_pk_bf16_f32 v%d, v%d, v%d" % (t, Kf + 2 * p, Kf + 2 * p + 1))
            e.append("v_lshlrev_b32 v%d, 16, v%d" % (Kf + 2 * p, t))
            e.append("v_and_b32 v%d, s%d, v%d" % (Kf + 2 * p + 1, M, t))
        e1 = e; e = []
        for p in range(4):
            e.append("v_cvt_pk_bf16_f32 v%d, v%d, v%d" % (t, c + 2 * p, c + 2 * p + 1))
            e.append("v_lshlrev_b32 v%d, 16, v%d" % (Y + 2 * p, t))
            e.append("v_and_b32 v%d, s%d, v%d" % (Y + 2 * p + 1, M, t))
        if pk: e += ["v_pk_add_f32 v[%d:%d], v[%d:%d], v[%d:%d]" % (Y + k, Y + k + 1, Y + k, Y + k + 1, Kf + k, Kf + k + 1) for k in range(0, 8, 2)]
        else: e += ["v_add_f32 v%d, v%d, v%d" % (Y + k, Y + k, Kf + k) for k in range(8)]
        for p in range(4):
            e.append("v_cvt_pk_bf16_f32 v%d, v%d, v%d" % (O + p, Y + 2 * p, Y + 2 * p + 1))
        st = ("buffer_store_dwordx4 v[%d:%d], v12, s[%d:%d], s%d offen offset:%d sc1" % (O, O + 3, S_Z, S_Z + 3, T0, T * 1024), "z")
        return [[(i, None)] for i in e1], [[(i, None)] for i in e] + [[st]]
    NA = int(os.environ.get("CNA", "5"))
    NB = int(os.environ.get("CNB", "14"))
    NH = int(os.environ.get("CNH", "6"))
    NWE = int(os.environ.get("CNWE", "12"))
    PCS = [int(x) for x in os.environ.get("CPC", "14,17,20,24,28,32,37,43,50,58").split(",")]
    LAG = int(os.environ.get("CLAG", "3"))
    assert 2 <= NH and NB <= PCS[0] and NWE <= PCS[0]
    P0, P1, P2 = B.setup()
    G = lambda L: [T_(g) for g in glue(L)]
    XL = [g for t in range(8) for g in B.ldx(t)]
    if rts: a("s_memrealtime s[86:87]")
    for i in reads(0): a(i)
    for i in reads(1): a(i)
    CST = rts and os.environ.get("CST")
    vm = [("w", t) for t in range(B.NW0 + B.NWS) for _ in range(4)] + ([None] * 8 if QE == 2 else [])
    nv0 = len(vm)
    def evH():
        a("s_waitcnt vmcnt(%d)" % (len(vm) - nv0))
        a("s_barrier")
        if CST: a("s_memrealtime s[98:99]")
    base = spread(G(P0), 0, 2) + spread(G(P1), 2, NA) + spread(G(P2), NA, NB)
    base += [(mpos[NH], T_(B.flag_store(0, "CV_HF", 159))), (mpos[NB], T_(CE0[0]))]
    for T in range(3):
        e1, e2 = cep(T, False)
        base += spread(e1 + e2, 16 * T + 18, 16 * T + 30)
    e1, e2 = cep(3, False)
    base += spread(e1, 62, 65) if False else []
    fast = []
    events = {NH: evH}
    PR = [157, 158, 3, 2]
    PR = [157, 158, 3, 159]
    def mk(j):
        def ev():
            if j >= LAG:
                a("s_waitcnt vmcnt(%d)" % yt(vm, ("poll", j - LAG)))
                if CST and j == LAG: a("s_memrealtime s[88:89]")
                for i in B.mupd(PR[(j - LAG) % 4]): a(i)
                a("s_and_b32 s50, s%d, 3" % B.sMASK)
                a("s_cmp_eq_u32 s50, 3")
                a("s_cbranch_scc1 CV_F%d" % j)
                fast.append((j, list(vm)))
            if j + LAG < len(PCS): emit(vm, (B.poll(PR[j % 4]), ("poll", j)))
        return ev
    for j, n in enumerate(PCS): events[n] = mk(j)
    seg2(vm, 0, NS, base, events)
    vms = [vm]
    keep = a.lines; a.lines = []
    for j, v in fast:
        a.label("CV_F%d" % j)
        a("s_mov_b32 s%d, 2" % B.sISS)
        if rts and not os.environ.get("GCLK"): a("s_memrealtime s[90:91]")
        n0 = PCS[j]
        seg2(v, n0, NS, base + spread(XL, n0, NS))
        a("s_branch CV_CK")
        vms.append(v)
    fastl = a.lines; a.lines = keep
    a.label("CV_CK")
    if CST: a("s_memrealtime s[96:97]")
    a("s_barrier")
    def emit_all(it):
        i, tag = it
        a(i)
        if i.startswith("buffer_"):
            for v in vms: v.append(tag)
    emit_all((B.POLL, "pa"))
    DW = [(i, None) for t in range(B.NW0, min(6, B.NW0 + B.NWS)) for i in B.dump(t)]
    e1, e2 = cep(3, True)
    ep = [i for g in e1 + e2 for i in g]
    for it in place(ep, [(1 + 3 * n, [x]) for n, x in enumerate(DW)]): emit_all(it)
    a("s_cmp_eq_u32 s%d, 2" % B.sISS)
    a("s_cbranch_scc1 CV_B")
    a("s_waitcnt vmcnt(1)")
    for i in B.MUPD: a(i)
    a("s_and_b32 s50, s%d, 3" % B.sMASK)
    a("s_cmp_eq_u32 s50, 3")
    a("s_cbranch_scc0 CV_SP")
    a.label("CV_SOK")
    if rts and not os.environ.get("GCLK"): a("s_memrealtime s[90:91]")
    for g in XL:
        for it in g: emit(vm, it)
    a("s_branch CV_B")
    B.spin(a, "CV_SP", 3, "CV_SOK")
    a.lines += fastl
    a.label("CV_B")
    return vms
```

```python
from asmlib import *
from layout import G_PITCH, Z_OFF, Z_BYTES, GO, GATE, POIS, QE

import os
ROT = int(os.environ.get('ROT', '5'))
PD = int(os.environ.get('PD', '6'))
DS0 = int(os.environ.get('DS0', '1'))
DSP = int(os.environ.get('DSP', '4'))
H1_OFF = 0
H1_BYTES = 2048 * 3584 * 2

def gen_gemm1(a, name="g1_kernel", end_label="G1_END", stamps=False, dbg="", fuse=False, rts=False):
    PST = os.environ.get("PST", "") != ""
    def rt(r):
        if rts and not (PST and r in (90,)): a("s_memrealtime s[%d:%d]" % (r, r + 1))
    def prt(r):
        if rts and PST: a("s_memrealtime s[%d:%d]" % (r, r + 1))
    def stamp(i):
        if stamps:
            a("s_memtime s[%d:%d]" % (60 + 2 * i, 61 + 2 * i))
    stamp(0)
    S_X, S_WG, S_WU, S_H = 4, 8, 12, 16
    sKX, sKW, sCNT = 20, 21, 22
    sM0 = 32
    sW = 40
    sT = 41
    vXoff = 2
    vWoff = 10
    vXa = 14
    vWa = 18
    vT = 26
    F = [64, 128]

    a("s_load_dwordx2 s[24:25], s[0:1], 0")
    a("s_load_dwordx2 s[26:27], s[0:1], 56")
    a("s_load_dwordx2 s[28:29], s[0:1], 64")
    a("s_load_dwordx2 s[30:31], s[0:1], 104")
    if fuse: code_touch(a, 76, 45, 0, "g1_kernel", end_label="G1_PREP")
    a("s_and_b32 s41, s2, 7")
    a("s_lshr_b32 s42, s2, 3")
    if fuse: a("s_sub_u32 s42, s42, 4")
    a("s_and_b32 s43, s41, 1")
    a("s_lshl_b32 s43, s43, 2")
    a("s_and_b32 s44, s42, 3")
    a("s_add_u32 s43, s43, s44")
    a("s_lshr_b32 s44, s41, 1")
    a("s_mul_i32 s44, s44, 7")
    a("s_lshr_b32 s45, s42, 2")
    a("s_add_u32 s44, s44, s45")
    if "Z" in dbg:
        a("s_mov_b32 s43, 0")
        a("s_mov_b32 s44, 0")
    if "Y" in dbg:
        a("s_and_b32 s43, s43, 1")
        a("s_and_b32 s44, s44, 1")
    a("s_lshl_b32 s43, s43, 8")
    a("s_lshl_b32 s44, s44, 7")
    a("v_lshrrev_b32 v1, 6, v0")
    a("v_and_b32 v0, 63, v0")
    a("s_nop 0")
    a("v_readfirstlane_b32 s%d, v1" % sW)
    LATE = os.environ.get("LATE", "1") == "1"
    def srds():
        a("s_waitcnt lgkmcnt(0)")
        prt(86)
        srd(a, S_X, 24, 2048 * 1024 * 2)
        srd(a, S_WG, 26, 1024 * 3584 * 2)
        srd(a, S_WU, 28, 1024 * 3584 * 2)
        if not LATE: srd(a, S_H, 30, H1_BYTES)
    if not LATE: srds()
    a("s_lshl_b32 s45, s%d, 13" % sW)
    a("s_lshl_b32 s46, s%d, 12" % sW)
    for b in range(2):
        a("s_add_u32 s%d, s45, 0x%x" % (sM0 + 4 * b + 0, (1 - b) * 65536))
        a("s_add_u32 s%d, s45, 0x%x" % (sM0 + 4 * b + 1, (1 - b) * 65536 + 4096))
        a("s_add_u32 s%d, s46, 0x%x" % (sM0 + 4 * b + 2, (1 - b) * 65536 + 32768))
        a("s_add_u32 s%d, s46, 0x%x" % (sM0 + 4 * b + 3, (1 - b) * 65536 + 49152))
    t0, t1, t2, t3 = vT, vT + 1, vT + 2, vT + 3
    a("v_lshrrev_b32 v%d, 3, v0" % t0)
    a("s_lshl_b32 s45, s%d, 6" % sW)
    a("s_add_u32 s45, s45, s43")
    a("v_add_u32 v%d, s45, v%d" % (t0, t0))
    a("v_lshlrev_b32 v%d, 11, v%d" % (t0, t0))
    a("v_and_b32 v%d, 7, v0" % t1)
    a("v_lshrrev_b32 v%d, 4, v0" % t2)
    a("v_xor_b32 v%d, v%d, v%d" % (t1, t1, t2))
    a("v_lshlrev_b32 v%d, 4, v%d" % (t1, t1))
    a("v_add_u32 v%d, v%d, v%d" % (t0, t0, t1))
    a("v_xor_b32 v%d, 64, v%d" % (t1, t0))
    for j in range(8):
        a("v_add_u32 v%d, 0x%x, v%d" % (vXoff + j, j * 16384 - (j & 3) * 1024, t0 if j % 2 == 0 else t1))
    a("s_lshl_b32 s45, s%d, 4" % sW)
    a("v_add_u32 v%d, s45, v%d" % (t0, t2))
    a("s_movk_i32 s46, 7168")
    a("v_mul_lo_u32 v%d, v%d, s46" % (t0, t0))
    a("s_lshl_b32 s45, s44, 1")
    a("v_add_u32 v%d, s45, v%d" % (t0, t0))
    a("v_and_b32 v%d, 15, v0" % t1)
    a("v_lshlrev_b32 v%d, 1, v%d" % (t3, t2))
    a("v_xor_b32 v%d, v%d, v%d" % (t1, t1, t3))
    a("v_lshlrev_b32 v%d, 4, v%d" % (t1, t1))
    a("v_add_u32 v%d, v%d, v%d" % (t0, t0, t1))
    a("v_xor_b32 v%d, 0x80, v%d" % (t1, t0))
    for j in range(4):
        a("v_add_u32 v%d, 0x%x, v%d" % (vWoff + j, j * 4 * 7168 - j * 1024, t0 if j < 2 else t1))
    def touch_setup():
        a("s_lshr_b32 s45, s42, 2")
        a("s_mul_i32 s45, s45, 40")
        TX = int(os.environ.get("TX", "0"))
        if TX:
            a("s_cmp_eq_u32 s%d, 3" % sW)
            a("s_cselect_b32 s47, 20, 0")
            a("s_add_u32 s45, s45, s47")
            a("v_min_u32 v%d, 19, v0" % t0)
            a("v_add_u32 v%d, s45, v%d" % (t0, t0))
        else:
            a("v_add_u32 v%d, s45, v0" % t0)
        a("v_min_u32 v%d, 255, v%d" % (t0, t0))
        a("v_add_u32 v%d, s43, v%d" % (t0, t0))
        a("v_lshlrev_b32 v%d, 11, v%d" % (t0, t0))
        a("v_lshrrev_b32 v%d, 1, v0" % t1)
        a("v_and_b32 v%d, 15, v%d" % (t1, t1))
        a("v_lshlrev_b32 v%d, 2, v%d" % (t1, t1))
        a("s_and_b32 s45, s42, 3")
        a("v_add_u32 v%d, s45, v%d" % (t1, t1))
        a("v_mul_lo_u32 v%d, v%d, s46" % (t1, t1))
        a("v_and_b32 v%d, 1, v0" % t3)
        a("v_lshlrev_b32 v%d, 7, v%d" % (t3, t3))
        a("v_add_u32 v%d, v%d, v%d" % (t1, t1, t3))
        a("s_lshl_b32 s45, s44, 1")
        a("v_add_u32 v%d, s45, v%d" % (t1, t1))
        a("s_cmp_eq_u32 s%d, 1" % sW)
        a("s_cselect_b32 s52, s26, s24")
        a("s_cselect_b32 s53, s27, s25")
        a("s_cmp_eq_u32 s%d, 2" % sW)
        a("s_cselect_b32 s52, s28, s52")
        a("s_cselect_b32 s53, s29, s53")
        a("s_add_u32 s45, s%d, -1" % sW)
        a("s_mov_b32 s54, 0x%x" % (2048 * 1024 * 2))
        a("s_movk_i32 s57, 128")
        a("s_cmp_lt_u32 s45, 2")
        a("s_cselect_b32 s54, 0x%x, s54" % (1024 * 3584 * 2))
        a("s_mov_b32 s55, 0x00020000")
        a("s_cselect_b32 s57, 0x%x, s57" % (64 * 7168))
        a("s_cselect_b64 vcc, -1, 0")
        a("s_nop 1")
        a("v_cndmask_b32 v41, v%d, v%d, vcc" % (t0, t1))
        a("s_lshl_b32 s56, s57, 1")
    if "P" in dbg and not LATE: touch_setup()
    if "K" in dbg:
        a("s_mul_i32 s23, s42, %d" % ROT)
        a("s_and_b32 s23, s23, 15")
        a("s_lshl_b32 s%d, s23, 7" % sKX)
        a("s_mul_i32 s%d, s23, 0x%x" % (sKW, 64 * 7168))
    else:
        a("s_mov_b32 s%d, 0" % sKX)
        a("s_mov_b32 s%d, 0" % sKW)

    def dma(b):
        g = []
        for half in range(2):
            if "W" in dbg: break
            for jj in range(4):
                j = half * 4 + jj
                ins = []
                if jj == 0:
                    ins.append("s_mov_b32 m0, s%d" % (sM0 + 4 * b + half))
                    ins.append("s_nop 0")
                ins.append("buffer_load_dwordx4 v%d, s[%d:%d], s%d offen offset:%d lds" % (vXoff + j, S_X, S_X + 3, sKX, jj * 1024))
                g.append(ins)
        for gu in range(2):
            if "X" in dbg: break
            S = S_WG if gu == 0 else S_WU
            for j in range(4):
                ins = []
                if j == 0:
                    ins.append("s_mov_b32 m0, s%d" % (sM0 + 4 * b + 2 + gu))
                    ins.append("s_nop 0")
                ins.append("buffer_load_dwordx4 v%d, s[%d:%d], s%d offen offset:%d lds" % (vWoff + j, S, S + 3, sKW, j * 1024))
                g.append(ins)
        if "K" in dbg:
            g[-1].append("s_add_u32 s23, s23, 1")
            g[-1].append("s_and_b32 s23, s23, 15")
            g[-1].append("s_lshl_b32 s%d, s23, 7" % sKX)
            g[-1].append("s_mul_i32 s%d, s23, 0x%x" % (sKW, 64 * 7168))
        else:
            g[-1].append("s_add_u32 s%d, s%d, 128" % (sKX, sKX))
            g[-1].append("s_add_u32 s%d, s%d, 0x%x" % (sKW, sKW, 64 * 7168))
        return g

    import prep4, conv2
    dprep = fuse and conv2.TARGET == 16
    if dprep:
        prep4.prep4_issue(a, 60, 62, 100, 30, 64, 64, sW)
    ET = int(os.environ.get("ET", "0"))
    if ET:
        a("s_lshl_b32 s45, s%d, 6" % sW)
        a("s_add_u32 s45, s45, s43")
        a("v_add_u32 v43, s45, v0")
        a("v_lshlrev_b32 v43, 11, v43")
        a("s_lshr_b32 s45, s%d, 1" % sW)
        a("s_lshl_b32 s45, s45, 5")
        a("v_lshrrev_b32 v44, 1, v0")
        a("v_add_u32 v44, s45, v44")
        a("v_mul_lo_u32 v44, v44, s46")
        a("v_and_b32 v47, 1, v0")
        a("v_lshlrev_b32 v47, 7, v47")
        a("s_lshl_b32 s45, s44, 1")
        a("v_add3_u32 v44, v44, v47, s45")
        a("s_mov_b32 s54, 0x%x" % (1024 * 3584 * 2))
        a("s_mov_b32 s55, 0x00020000")
        a("s_mov_b32 s57, 0x%x" % (64 * 7168))
        a("s_bitcmp1_b32 s%d, 0" % sW)
    TW = os.environ.get("TW", "")
    if TW:
        a("s_add_u32 s57, s42, s%d" % sW if TW == "2" else "s_mov_b32 s57, s%d" % sW)
        a("s_and_b32 s57, s57, 3")
        a("s_mov_b32 s54, 0x%x" % (2048 * 1024 * 2))
        a("s_mov_b32 s55, 0x00020000")
        a("s_lshl_b32 s56, s43, 11")
    if LATE: srds()
    if TW:
        a("s_cmp_eq_u32 s57, 1")
        a("s_cselect_b32 s52, s26, s24")
        a("s_cselect_b32 s53, s27, s25")
        a("s_cselect_b32 s56, 0, s56")
        a("s_cmp_eq_u32 s57, 2")
        a("s_cselect_b32 s52, s28, s52")
        a("s_cselect_b32 s53, s29, s53")
        a("s_cselect_b32 s56, 0, s56")
        a("s_mov_b64 exec, 1")
        a("buffer_load_dword v46, off, s[52:55], s56 ; pad")
        a("s_mov_b64 exec, -1")
    if ET:
        a("s_cselect_b32 s52, s28, s26")
        a("s_cselect_b32 s53, s29, s27")
        a("buffer_load_dword v46, v43, s[%d:%d], 0 offen ; pad" % (S_X, S_X + 3))
        a("buffer_load_dword v46, v44, s[52:55], 0 offen ; pad")
        if ET >= 2:
            a("buffer_load_dword v46, v43, s[%d:%d], 0 offen offset:128 ; pad" % (S_X, S_X + 3))
            a("buffer_load_dword v46, v44, s[52:55], s57 offen ; pad")
    prt(96)
    for g in dma(0):
        for i in g: a(i)
    if os.environ.get("PST") == "2": prt(96)
    PEEL = os.environ.get("PEEL", "1") == "1"
    def touch():
        return ["buffer_load_dword v42, v41, s[52:55], s56 offen", "s_add_u32 s56, s56, s57"]
    def dma1():
        if os.environ.get("PB", "0") == "1": a("s_barrier")
        for g in dma(1):
            for i in g: a(i)
        prt(90)
    def touches():
        for _ in range(PD - 2):
            for i in touch(): a(i)
    if not PEEL: dma1()
    if LATE:
        srd(a, S_H, 30, H1_BYTES)
        if "P" in dbg: touch_setup()
    if not PEEL: touches()

    NCT = 0
    a("s_lshr_b32 s45, s%d, 1" % sW)
    a("s_and_b32 s46, s%d, 1" % sW)
    a("v_and_b32 v%d, 15, v0" % t0)
    a("s_lshl_b32 s47, s45, 7")
    a("v_add_u32 v%d, s47, v%d" % (t0, t0))
    a("v_lshlrev_b32 v%d, 7, v%d" % (t0, t0))
    a("v_lshrrev_b32 v%d, 1, v0" % t1)
    a("v_and_b32 v%d, 7, v%d" % (t1, t1))
    a("v_xor_b32 v%d, v%d, v%d" % (t1, t1, t2))
    a("v_lshlrev_b32 v%d, 4, v%d" % (t1, t1))
    a("v_add_u32 v%d, v%d, v%d" % (vXa + 2, t0, t1))
    a("v_xor_b32 v%d, 64, v%d" % (vXa + 3, vXa + 2))
    a("v_add_u32 v%d, 0x10000, v%d" % (vXa + 0, vXa + 2))
    a("v_add_u32 v%d, 0x10000, v%d" % (vXa + 1, vXa + 3))
    a("v_lshrrev_b32 v%d, 2, v0" % t0)
    a("v_and_b32 v%d, 3, v%d" % (t0, t0))
    a("v_lshlrev_b32 v%d, 3, v%d" % (t1, t2))
    a("v_add_u32 v%d, v%d, v%d" % (t1, t1, t0))
    a("v_lshlrev_b32 v%d, 8, v%d" % (t1, t1))
    a("v_and_b32 v%d, 3, v0" % t3)
    a("v_lshlrev_b32 v%d, 3, v%d" % (t3, t3))
    a("v_add_u32 v%d, v%d, v%d" % (t1, t1, t3))
    a("v_add_u32 v%d, 0x8000, v%d" % (t1, t1))
    a("v_and_b32 v%d, 1, v%d" % (t3, t2))
    a("v_lshlrev_b32 v%d, 2, v%d" % (t3, t3))
    a("v_or_b32 v%d, v%d, v%d" % (t0, t0, t3))
    a("s_lshl_b32 s47, s46, 2")
    for t in range(4):
        a("s_add_u32 s48, s47, %d" % t)
        a("v_xor_b32 v%d, s48, v%d" % (t3, t0))
        a("v_lshlrev_b32 v%d, 5, v%d" % (t3, t3))
        a("v_add_u32 v%d, v%d, v%d" % (vWa + 4 + t, t1, t3))
        a("v_add_u32 v%d, 0x10000, v%d" % (vWa + t, vWa + 4 + t))
    if fuse and not dprep:
        conv2.conv_ptrs(a)
    from layout import XB_OFF, XB_BYTES
    PSET = [["s_lshl_b32 s56, s2, 2"], ["s_add_u32 s56, s56, s%d" % sW], ["s_lshl_b32 s56, s56, 13"],
            ["s_add_u32 s52, s%d, 0x%x" % (conv2.P_WS, XB_OFF), "s_addc_u32 s53, s%d, 0" % (conv2.P_WS + 1)], ["s_mov_b32 s54, 0x%x" % XB_BYTES], ["s_mov_b32 s55, 0x00020000"],
            ["s_add_u32 s57, s56, 4096"], ["v_lshlrev_b32 v52, 4, v0"]]
    PSET += [["v_mov_b32 v%d, -1" % (48 + i)] for i in range(4)]
    PSL = [["buffer_store_dwordx4 v[48:51], v52, s[52:55], s%d offen offset:%d sc1" % (56 + (k >> 2), (k & 3) * 1024)] for k in range(8)]
    PPOS = int(os.environ.get("PPOS", "14")); PSP = int(os.environ.get("PSP", "6"))
    if PEEL:
        dma1()
        touches()
    for i in range(0 if PEEL else 256):
        a("v_accvgpr_write_b32 a%d, 0" % i)

    WA, WB = [0, 4, 1, 5], [2, 6, 3, 7]
    def XF(i, kh): return 64 + 8 * i + 4 * kh
    def WF(wt, kh): return 128 + 8 * wt + 4 * kh
    def rdx(b, i):
        return [["ds_read_b128 v[%d:%d], v%d offset:%d" % (XF(i, kh), XF(i, kh) + 3, vXa + 2 * b + kh, i * 2048)] for kh in range(2)]
    def rdw(b, ws):
        w = []
        for wt in ws:
            gu, t = wt >> 2, wt & 3
            for kh in range(2):
                for h in range(2):
                    d = WF(wt, kh) + 2 * h
                    w.append(["ds_read_b64_tr_b16 v[%d:%d], v%d offset:%d" % (d, d + 1, vWa + 4 * b + t, gu * 16384 + kh * 8192 + h * 1024)])
        return w
    def reads1(b):
        return rdx(b, 4) + rdx(b, 5) + rdx(b, 6) + rdx(b, 7) + rdw(b, WB)
    def reads2(b):
        w = rdw(b, WA)
        return w[:4] + rdx(b, 0) + w[4:6] + rdx(b, 1) + w[6:8] + rdx(b, 2) + w[8:10] + rdx(b, 3) + w[10:]
    def mfmas(half, cz=False):
        m = []
        ws = WA if half == 0 else WB
        k = 0
        for i in range(8):
            for wt in (ws if i % 2 == 0 else ws[::-1]):
                c = (wt * 8 + i) * 4
                for kk in (k, k ^ 1):
                    m.append("v_mfma_f32_16x16x32_bf16 a[%d:%d], v[%d:%d], v[%d:%d], %s" % (
                        c, c + 3, WF(wt, kk), WF(wt, kk) + 3, XF(i, kk), XF(i, kk) + 3, "0" if cz and kk == k else "a[%d:%d]" % (c, c + 3)))
                k ^= 1
        return m

    stamp(1)
    if fuse and not dprep and os.environ.get("TLB"):
        a("s_waitcnt lgkmcnt(0)")
        a("s_lshl_b32 s80, s2, 2")
        a("s_add_u32 s80, s80, s%d" % sW)
        a("s_lshl_b32 s80, s80, 12")
        a("v_mov_b32 v45, 0")
        a("s_mov_b32 s79, 0x00020000")
        for P, nb, so in ((conv2.P_HK, 1024 * 2048 * 2, "s80"), (conv2.P_GW, 2048, "0"), (conv2.P_D, 2048, "0"), (conv2.P_DBG, 256, "0")):
            a("s_mov_b32 s76, s%d" % P)
            a("s_mov_b32 s77, s%d" % (P + 1))
            a("s_mov_b32 s78, 0x%x" % nb)
            a("buffer_load_dword v46, v45, s[76:79], %s offen%s" % (so, " sc1" if P == conv2.P_DBG else ""))
            NCT += 1
        a("s_add_u32 s76, s30, 0x%x" % Z_OFF)
        a("s_addc_u32 s77, s31, 0")
        a("s_mov_b32 s78, 0x%x" % Z_BYTES)
        a("buffer_load_dword v46, v45, s[76:79], s80 offen")
        NCT += 1
    if dprep:
        a("s_waitcnt vmcnt(%d)" % (32 + PD - 2))
        rt(96)
        prep4.prep4_compute(a, 64, 64, "A")
        conv2.conv_ptrs(a)
        rt(86)
    if os.environ.get("PST") == "2": prt(86)
    a("s_waitcnt vmcnt(%d)" % ((8 if ("X" in dbg or "W" in dbg) else 16) + (PD - 2 if "P" in dbg else 0) + (8 if dprep else 0) + NCT))
    prt(94)
    a("s_barrier")
    stamp(2)
    if rts and not dprep:
        rt(98)
        if os.environ.get("GCLK"): a("s_memtime s[90:91]")
    for g in reads2(0):
        for i in g: a(i)

    LST = os.environ.get("LST", "") != ""
    if LST:
        a("s_lshl_b32 s90, s%d, 8" % sW)
        a("s_add_u32 s90, s90, 150016")
        a("v_mov_b32 v54, s90")
        a("s_memtime s[90:91]")
    def lst():
        if LST:
            a("v_mov_b32 v53, s90")
            a("ds_write_b32 v54, v53")
            a("v_add_u32 v54, 4, v54")
            a("s_memtime s[90:91]")
    def stage(b, do_dma, do_next, first=False, preB=None, vmB=None, extraA=None, extraB=None, tailB=None, postW=None, plB=None, plA=None, vmA=None, cz=False):
        a("s_waitcnt lgkmcnt(0)" if vmA is None else "s_waitcnt vmcnt(%d) lgkmcnt(0)" % vmA)
        lst()
        pa = [(2 * n, g) for n, g in enumerate(reads1(b))]
        pa.append((31, ["s_waitcnt lgkmcnt(8)"]))
        if extraA: pa += [(1 + 4 * n, g) for n, g in enumerate(extraA)]
        if plA: pa += plA
        for i in place(mfmas(0, cz), pa): a(i)
        a("s_waitcnt lgkmcnt(0)")
        lst()
        if preB: preB()
        if do_next:
            if "V" in dbg:
                pass
            elif vmB is not None:
                a("s_waitcnt vmcnt(%d)" % vmB)
            elif first == 1:
                a("s_waitcnt vmcnt(%d)" % (PD - 2 + 8))
            elif "P" in dbg:
                a("s_waitcnt vmcnt(%d)" % (1 if "2" not in dbg else 18))
            else:
                a("s_waitcnt vmcnt(%d)" % (0 if "2" not in dbg else (8 if ("X" in dbg or "W" in dbg) else 16)))
            if postW: postW()
            if LST:
                a("s_waitcnt lgkmcnt(0)")
                lst()
            if "B" not in dbg: a("s_barrier")
            if LST:
                a("s_waitcnt lgkmcnt(0)")
                lst()
            if first == 2:
                conv2.flag_srd(a)
                a("s_cmp_lg_u32 s%d, 0" % sW)
                a("s_cbranch_scc1 G1_P0")
                conv2.signal(a)
                a.label("G1_P0")
        pl = []
        if do_next and "R" not in dbg:
            for n, g in enumerate(reads2(b ^ 1)): pl.append((2 * n, g))
        if do_dma and "D" not in dbg:
            dl = dma(b)
            if "P" in dbg: dl[-1] = dl[-1] + touch()
            if tailB: dl[-1] = dl[-1] + tailB
            for n, g in enumerate(dl): pl.append((DS0 + DSP * n, g))
        if extraB: pl += [(1 + 4 * n, g) for n, g in enumerate(extraB)]
        if plB: pl += plB
        for i in place(mfmas(1, cz), pl): a(i)

    def epilogue():
        vS = 2
        a("s_lshr_b32 s47, s43, 7")
        a("s_add_u32 s47, s47, s45")
        a("s_mul_i32 s47, s47, 112")
        a("s_lshr_b32 s48, s44, 5")
        a("s_add_u32 s47, s47, s48")
        a("s_lshl_b32 s48, s46, 1")
        a("s_add_u32 s47, s47, s48")
        a("s_lshl_b32 s47, s47, 13")
        a("v_and_b32 v%d, 15, v0" % t0)
        a("v_lshlrev_b32 v%d, 4, v%d" % (t0, t0))
        a("v_lshrrev_b32 v%d, 1, v%d" % (t1, t2))
        a("v_lshlrev_b32 v%d, 8, v%d" % (t1, t1))
        a("v_add_u32 v%d, v%d, v%d" % (t0, t0, t1))
        a("v_and_b32 v%d, 1, v%d" % (t1, t2))
        a("v_lshlrev_b32 v%d, 10, v%d" % (t1, t1))
        a("v_add_u32 v%d, v%d, v%d" % (t0, t0, t1))
        a("v_add_u32 v%d, s47, v%d" % (vS, t0))
        a("s_mov_b32 s56, 0")
        a("s_movk_i32 s57, 4096")
        a("s_movk_i32 s58, 8192")
        a("s_movk_i32 s59, 12288")
        import math
        C0 = -2.0 * math.sqrt(2.0 / math.pi) * math.log2(math.e)
        C1 = C0 * 0.044715
        import struct
        def f2u(x): return struct.unpack("<I", struct.pack("<f", x))[0]
        a("s_mov_b32 s50, 0x%x" % f2u(C0))
        a("s_mov_b32 s51, 0x%x" % f2u(C1))
        a("v_mov_b32 v3, s50")
        groups = []
        cnt = 0
        SC = os.environ.get("H1SC", " sc1")
        for ip, t in GO:
            if True:
                G = 212; U = 220; T = 228; P = 236 + 4 * (cnt % 4)
                cnt += 1
                i = 2 * ip
                cg = (t * 8 + i) * 4
                cu = ((4 + t) * 8 + i) * 4
                e = []
                for r in range(8): e.append("v_accvgpr_read_b32 v%d, a%d" % (G + r, cg + r))
                for r in range(8): e.append("v_mul_f32 v%d, v%d, v%d" % (T + r, G + r, G + r))
                for r in range(8): e.append("v_fma_f32 v%d, v%d, s51, v3" % (T + r, T + r))
                for r in range(8): e.append("v_mul_f32 v%d, v%d, v%d" % (T + r, T + r, G + r))
                for r in range(8):
                    e.append("v_exp_f32 v%d, v%d" % (T + r, T + r))
                    e.append("v_accvgpr_read_b32 v%d, a%d" % (U + r, cu + r))
                for r in range(8): e.append("v_add_f32 v%d, 1.0, v%d" % (T + r, T + r))
                for r in range(8):
                    e.append("v_rcp_f32 v%d, v%d" % (T + r, T + r))
                    e.append("v_mul_f32 v%d, v%d, v%d" % (U + r, U + r, G + r))
                for r in range(8): e.append("v_mul_f32 v%d, v%d, v%d" % (U + r, U + r, T + r))
                for k in range(4): e.append("v_cvt_pk_bf16_f32 v%d, v%d, v%d" % (P + k, U + 2 * k, U + 2 * k + 1))
                e.append("s_nop 1")
                e.append("v_permlane16_swap_b32 v%d, v%d" % (P, P + 2))
                e.append("v_permlane16_swap_b32 v%d, v%d" % (P + 1, P + 3))
                e.append("s_nop 0")
                e.append("buffer_store_dwordx4 v[%d:%d], v%d, s[%d:%d], s%d offen offset:%d%s" % (P, P + 3, vS, S_H, S_H + 3, 56 + (i >> 2) + 2 * (t >> 1), (i & 3) * 1024 + (t & 1) * 512, SC))
                groups.append(e)
        NSC = int(os.environ.get("NSC", "3"))
        if fuse and NSC < 16:
            a("s_mov_b32 s20, s51")
            a("s_mov_b32 s21, s51")
            a("s_mov_b32 s22, 1.0")
            a("s_mov_b32 s23, 1.0")
            a("v_mov_b32 v254, s50")
            a("v_mov_b32 v255, s50")
            gl = GO[NSC:]
            G = 212; U = 220
            TS = [136, 144, 152]; PS = [176, 184, 192]; OS = [236, 240, 244, 248]
            def pr(x): return "v[%d:%d]" % (x, x + 1)
            def rd(k):
                ip, t = gl[k]; i = 2 * ip
                cg = (t * 8 + i) * 4; cu = ((4 + t) * 8 + i) * 4
                return ["v_accvgpr_read_b32 v%d, a%d" % (G + r, cg + r) for r in range(8)] + ["v_accvgpr_read_b32 v%d, a%d" % (U + r, cu + r) for r in range(8)]
            def pk1(k):
                T = TS[k % 3]; Q = PS[k % 3]
                e = ["v_pk_mul_f32 %s, %s, %s" % (pr(T + r), pr(G + r), pr(G + r)) for r in range(0, 8, 2)]
                e += ["v_pk_fma_f32 %s, %s, s[20:21], v[254:255]" % (pr(T + r), pr(T + r)) for r in range(0, 8, 2)]
                e += ["v_pk_mul_f32 %s, %s, %s" % (pr(Q + r), pr(U + r), pr(G + r)) for r in range(0, 8, 2)]
                e += ["v_pk_mul_f32 %s, %s, %s" % (pr(T + r), pr(T + r), pr(G + r)) for r in range(0, 8, 2)]
                return e
            def ex(k): return ["v_exp_f32 v%d, v%d" % (TS[k % 3] + r, TS[k % 3] + r) for r in range(8)]
            def pk2(k): return ["v_pk_add_f32 %s, %s, s[22:23]" % (pr(TS[k % 3] + r), pr(TS[k % 3] + r)) for r in range(0, 8, 2)]
            def rc(k): return ["v_rcp_f32 v%d, v%d" % (TS[k % 3] + r, TS[k % 3] + r) for r in range(8)]
            def pk3(k): return ["v_pk_mul_f32 %s, %s, %s" % (pr(PS[k % 3] + r), pr(PS[k % 3] + r), pr(TS[k % 3] + r)) for r in range(0, 8, 2)]
            def st(k):
                ip, t = gl[k]; i = 2 * ip
                Q = PS[k % 3]; P = OS[k % 4]
                return (["v_cvt_pk_bf16_f32 v%d, v%d, v%d" % (P + j, Q + 2 * j, Q + 2 * j + 1) for j in range(4)],
                        ["v_permlane16_swap_b32 v%d, v%d" % (P, P + 2), "v_permlane16_swap_b32 v%d, v%d" % (P + 1, P + 3)],
                        ["buffer_store_dwordx4 v[%d:%d], v%d, s[%d:%d], s%d offen offset:%d%s" % (P, P + 3, vS, S_H, S_H + 3, 56 + (i >> 2) + 2 * (t >> 1), (i & 3) * 1024 + (t & 1) * 512, SC)])
            n = len(gl)
            stream = []
            for k in range(-1, n + 2):
                N = []
                c = p = b = []
                if 0 <= k - 2 < n: c, p, b = st(k - 2)
                r_ = rd(k + 1) if k + 1 < n else []
                e_ = ex(k) if 0 <= k < n else []
                q_ = rc(k - 1) if 0 <= k - 1 < n else []
                N += c
                tr = e_ + q_
                mix_ = []
                for j in range(max(len(tr), len(r_))):
                    if j < len(tr): mix_.append(tr[j])
                    if j < len(r_): mix_.append(r_[j])
                h = min(len(mix_), 6)
                N += mix_[:h]
                if p:
                    if h < 2: N.append("s_nop 1")
                    N += p
                N += mix_[h:h + 4]
                if b:
                    if len(mix_) < h + 1: N.append("s_nop 0")
                    N += b
                N += mix_[h + 4:]
                Pk = []
                if 0 <= k - 1 < n: Pk += pk3(k - 1)
                if 0 <= k < n: Pk += pk2(k)
                if k + 1 < n: Pk += pk1(k + 1)
                if Pk: N.append("s_nop 0")
                stream += N + Pk
            groups = groups[:NSC] + [stream]
        return groups

    a("s_mov_b32 s%d, 0" % sCNT)
    if dprep:
        stage(0, True, True, first=1)
        stage(1, True, True, first=2)
        a("s_mov_b32 s%d, 1" % sCNT)
        rt(98)
    if PEEL:
        stage(0, True, True, cz=True, vmB=PD - 2)
        a("s_branch G1_L1")
    a.label("G1_LOOP")
    assert PEEL
    stage(0, True, True)
    a.label("G1_L1")
    stage(1, True, True)
    a("s_add_u32 s%d, s%d, 1" % (sCNT, sCNT))
    a("s_cmp_lt_u32 s%d, %d" % (sCNT, 6 if fuse else 7))
    a("s_cbranch_scc1 G1_LOOP")
    if fuse:
        if not dprep: conv2.flag_srd(a)
        a("s_mov_b32 s84, 0")
        pi, _ = conv2.capture(a, conv2.poll_issue, a, 202)
        pi = ["s_cmp_lg_u32 s%d, 0" % sW, "s_cbranch_scc1 G1_P1"] + pi + ["G1_P1:"]
        def spread(groups, lo, hi):
            tot = sum(len(g) for g in groups); r = []; c = 0
            for g in groups:
                r.append((lo + (c * (hi - lo)) // max(tot, 1), g)); c += len(g)
            return r
        GC = conv2.gate_compute() if GATE == "g" else []
        GSPL = [int(x) for x in os.environ.get("GSPL", "50,60,30").split(",")]
        GP = []
        for n_ in GSPL:
            k = 0; c = 0
            while c < n_ and k < len(GC): c += len(GC[k]); k += 1
            GP.append(GC[:k]); GC = GC[k:]
        GP.append(GC)
        if GATE == "g":
            gl_ = conv2.gate_loads()
            glg = []
            for i in gl_:
                if glg and not glg[-1][-1].startswith("buffer_"): glg[-1].append(i)
                else: glg.append([i])
            stage(0, True, True, tailB=conv2.touch_h(), extraB=[pi], plA=[(3 + 10 * n, g) for n, g in enumerate(glg)], vmB=7)
        else:
            stage(0, True, True, tailB=conv2.touch_h(), extraB=[pi])
        def post1():
            conv2.poll_check(a, 202, 84)
        import gemm2f
        sw_ = gemm2f.setup_w([47, 48, 58, 59, 62, 63], [43, 44, 45, 46])
        stage(1, True, True, vmB=2, postW=post1, plA=[(1 + (62 * n) // len(sw_), [i]) for n, i in enumerate(sw_)] + spread(GP[0], 2, 64),
              plB=spread(GP[1], 2, 64), vmA=18 if GATE == "g" else None)
        ces, DE = conv2.capture(a, conv2.conv_early, a)
        def chk2():
            a("s_cmp_lg_u32 s%d, 0" % sW)
            a("s_cbranch_scc1 G1_P4")
            a("s_cmp_lg_u32 s84, 0")
            a("s_cbranch_scc1 G1_P4")
            a("s_movk_i32 s49, 0x4000")
            a.label("G1_P3")
            conv2.poll_issue(a, 202)
            a("s_waitcnt vmcnt(0)")
            conv2.poll_check(a, 202, 84)
            a("s_cmp_lg_u32 s84, 0")
            a("s_cbranch_scc1 G1_P4")
            a("s_sub_u32 s49, s49, 1")
            a("s_cmp_eq_u32 s49, 0")
            a("s_cbranch_scc1 G1_P4")
            a("s_sleep 16")
            a("s_branch G1_P3")
            a.label("G1_P4")
        QT = int(os.environ.get("QT", "1")) and QE == 2
        if QT:
            GP[2] = GP[2] + [[i] for i in gemm2f.setup_q(55, 56)] + [["buffer_load_dword v56, v55, s[32:35], 0 offen"], ["s_nop 0"], ["s_nop 0"], ["buffer_load_dword v56, v55, s[32:35], s39 offen"]]
        stage(0, False, True, preB=chk2, extraB=DE[:12], extraA=[ces[i:i + 2] for i in range(0, len(ces), 2)], vmB=(9 if POIS == "g" else 1) + (2 if QT else 0),
              plA=([(n, g) for n, g in enumerate(PSET)] + [(PPOS + PSP * n, g) for n, g in enumerate(PSL)] if POIS == "g" else []) + spread(GP[2], 2, 64),
              plB=spread(GP[3], 2, 62))
        a("s_waitcnt lgkmcnt(0)")
        lst()
        es, groups = conv2.capture(a, epilogue)
        cs, _ = conv2.capture(a, conv2.conv_setup, a)
        EF = [i for g in groups for i in g]
        NE15 = int(os.environ.get("NE15", "388"))
        if len(groups) < 16: NE15 = min(NE15, sum(len(g) for g in groups[:-1]))
        E0 = int(os.environ.get("E15S", "24"))
        pl = [(n, g) for n, g in enumerate(reads1(1))]
        pl.append((31, ["s_waitcnt lgkmcnt(0)"]))
        pl += [(1 + 4 * n, g) for n, g in enumerate(DE[12:])]
        pl += spread([[i] for i in es], 0, 18)
        pl += spread([[i] for i in cs], 33, 62)
        pl.append((63, ["s_waitcnt lgkmcnt(0)"]))
        if QE == 2: pl += spread([[i] for i in gemm2f.setup_q()], 64, 110) if not QT else [(70, ["v_mov_b32 v24, v55"])]
        ef = spread([[i] for i in EF[:NE15]], E0, 128)
        import re
        seq = mfmas(0) + mfmas(1)
        lastw = {}
        for n, m in enumerate(seq): lastw[int(re.match(r"v_mfma\S+ a\[(\d+):", m).group(1))] = n
        for p_, g in ef:
            m = re.match(r"v_accvgpr_read_b32 v\d+, a(\d+)", g[0])
            if m: assert p_ >= lastw[int(m.group(1)) & ~3] + 3, (p_, g)
        pl += ef
        EF = EF[NE15:]
        for i in place(seq, pl): a(i)
        if LST:
            a("s_waitcnt lgkmcnt(0)")
            lst()
            a("s_waitcnt lgkmcnt(0)")
            a("s_lshl_b32 s90, s%d, 8" % sW)
            a("s_add_u32 s90, s90, 150016")
            a("v_lshlrev_b32 v44, 2, v0")
            a("v_add_u32 v43, s90, v44")
            a("s_waitcnt lgkmcnt(0)")
            a("ds_read_b32 v43, v43")
            a("s_add_u32 s92, s%d, 0x6000000" % conv2.P_WS)
            a("s_addc_u32 s93, s%d, 0" % (conv2.P_WS + 1))
            a("s_mov_b32 s94, 0x100000")
            a("s_mov_b32 s95, 0x00020000")
            a("s_lshl_b32 s90, s2, 2")
            a("s_add_u32 s90, s90, s%d" % sW)
            a("s_lshl_b32 s90, s90, 8")
            a("s_waitcnt lgkmcnt(0)")
            a("buffer_store_dword v43, v44, s[92:95], s90 offen")
            a("s_waitcnt vmcnt(0)")
        rt(88)
        if rts and os.environ.get("GCLK"): a("s_memtime s[94:95]")
        a("s_barrier")
        D = conv2.conv_issue(a)
    else:
        stage(0, False, True)
        stage(1, False, False)

    if fuse:
        return D, EF
    groups = epilogue()
    for e in groups:
        for i in e: a(i)

    if stamps:
        stamp(4)
        a("s_waitcnt vmcnt(0)")
        stamp(5)
        a("s_waitcnt lgkmcnt(0)")
        a("s_add_u32 s30, s30, 0x4000000")
        a("s_addc_u32 s31, s31, 0")
        srd(a, S_H, 30, 1 << 20)
        a("s_lshl_b32 s47, s2, 2")
        a("s_add_u32 s47, s47, s%d" % sW)
        a("s_lshl_b32 s47, s47, 5")
        for i in range(6):
            a("v_mov_b32 v%d, s%d" % (64 + i, 60 + 2 * i))
        a("v_mov_b32 v70, s47")
        a("v_cmp_eq_u32 vcc, 0, v0")
        a("s_and_saveexec_b64 s[48:49], vcc")
        a("buffer_store_dwordx4 v[64:67], v70, s[%d:%d], 0 offen" % (S_H, S_H + 3))
        a("buffer_store_dwordx2 v[68:69], v70, s[%d:%d], 0 offen offset:16" % (S_H, S_H + 3))
        a("s_mov_b64 exec, s[48:49]")
```

```python
from asmlib import *
from layout import *
import os

NST = 28
WR = 8
XR = 8
BLK = 4
D = int(os.environ.get("G2D", "6"))
NX0 = 8
NW0 = 2
NWS = int(os.environ.get("NWS", "4"))
def wreg(t): return 192 + 16 * (t - 2) if t < 6 else 128 + 16 * (t - 6)
def ph(r):
    q = r >> 2
    g = (q - 48) >> 2 if q >= 48 else (4 + ((q - 32) >> 2) if q >= 32 else 8 + (q >> 2))
    m = q & 3
    wt = GO[g][1] + 4 * (m >> 1); i = 2 * GO[g][0] + (m & 1)
    return (wt * 8 + i) * 4 + (r & 3)
def aq(r, n=4): return "a[%d:%d]" % (ph(r), ph(r) + n - 1)
QA, TGA = 128, 144
sTS, sTR = 80, 60
R1 = 98304
ZB = 65536
def slot(t): return ((t + 6) % WR) * 8192

P_OUT, P_DBG, P_WS, P_Q, P_WD = 68, 70, 72, 74, 100
S_H, S_W, S_Z, S_Q, S_O, S_GT, S_XB, S_FL, S_DB = 16, 24, 12, 4, 20, 8, 36, 32, 80
sW, sX, sMF, sNF = 40, 42, 44, 45
sWK, sWB, sWI, sLB = 28, 29, 30, 31
sXB, sXI = 43, 41
VW = [1, 29, 30, 31]
sISS, sMASK = 46, 47
sXL, sZS, sZM, MK, sSP, sBI = 54, 56, 57, 58, 59, 61
sMH, sKQ, sKH, sKB = 64, 65, 66, 67
sXS = 68
sK0, sK1, sK2 = 77, 84, 85
vPO, vPD = 4, 3
vQO, vGO, vZO, vOO = 24, 25, 26, 27
vDO, vDP, vZR = 28, 5, 6
vFO = 7

def L_ws(d, off, nb):
    return ["s_add_u32 s%d, s%d, 0x%x" % (d, P_WS, off), "s_addc_u32 s%d, s%d, 0" % (d + 1, P_WS + 1),
            "s_mov_b32 s%d, 0x%x" % (d + 2, nb), "s_mov_b32 s%d, 0x00020000" % (d + 3)]
def L_srd(d, base, nb):
    return ["s_mov_b32 s%d, s%d" % (d, base), "s_mov_b32 s%d, s%d" % (d + 1, base + 1),
            "s_mov_b32 s%d, 0x%x" % (d + 2, nb), "s_mov_b32 s%d, 0x00020000" % (d + 3)]

def own_flag_off(vd, s0, s1):
    return ["s_lshl_b32 s%d, s2, %d" % (s0, FSL), "s_add_u32 s%d, s%d, 0x%x" % (s1, s0, PF_REL), "v_mov_b32 v%d, s%d" % (vd, s1),
            "s_add_u32 s%d, s%d, 0x%x" % (s1, s0, ZF_REL), "v_writelane_b32 v%d, s%d, 1" % (vd, s1),
            "s_lshr_b32 s%d, s2, 3" % s1, "s_sub_u32 s%d, s%d, 4" % (s1, s1), "s_and_b32 s%d, s%d, 3" % (s0, s1),
            "s_and_b32 s3, s2, 7", "s_lshl_b32 s3, s3, 2", "s_add_u32 s%d, s%d, s3" % (s0, s0), "s_lshl_b32 s%d, s%d, 3" % (s0, s0),
            "s_lshr_b32 s%d, s%d, 2" % (s1, s1), "s_and_b32 s%d, s%d, 7" % (s1, s1), "s_add_u32 s%d, s%d, s%d" % (s0, s0, s1),
            "s_lshl_b32 s%d, s%d, %d" % (s0, s0, FSL), "v_writelane_b32 v%d, s%d, 0" % (vd, s0)]

def setup_w(T, V):
    A_ = []; a = A_.append
    x, j, kh, u, mh, n0 = T
    a("s_and_b32 s%d, s2, 7" % x)
    a("s_lshr_b32 s%d, s2, 3" % j)
    a("s_lshr_b32 s%d, s%d, 2" % (kh, x))
    a("s_and_b32 s%d, s%d, 2" % (n0, x))
    a("s_lshl_b32 s%d, s%d, 1" % (n0, n0))
    a("s_lshr_b32 s%d, s%d, 3" % (u, j))
    a("s_add_u32 s%d, s%d, s%d" % (n0, n0, u))
    a("s_add_u32 s%d, s%d, s%d" % (sWI, u, j))
    a("s_and_b32 s%d, s%d, 3" % (sWI, sWI))
    a("s_lshr_b32 s%d, s%d, 1" % (x, sW))
    a("s_mul_i32 s%d, s%d, 56" % (u, kh))
    a("s_mul_i32 s%d, s%d, 28" % (j, x))
    a("s_add_u32 s%d, s%d, s%d" % (u, u, j))
    a("s_lshl_b32 s%d, s%d, 16" % (sWB, u))
    a("s_lshl_b32 s%d, s%d, 16" % (u, sWI))
    a("s_add_u32 s%d, s%d, s%d" % (sWK, sWB, u))
    a("s_and_b32 s%d, s%d, 1" % (mh, sW))
    a("s_mul_i32 s%d, s%d, %d" % (sLB, x, R1))
    a("s_lshl_b32 s%d, s%d, 12" % (u, mh))
    a("s_add_u32 s%d, s%d, s%d" % (sLB, sLB, u))
    a("s_lshl_b32 s%d, s%d, 7" % (n0, n0))
    v8, v9, v10, v11 = V
    a("v_lshrrev_b32 v%d, 3, v0" % v8)
    a("s_lshl_b32 s%d, s%d, 4" % (u, mh))
    a("v_add_u32 v%d, s%d, v%d" % (v8, u, v8))
    a("v_lshlrev_b32 v%d, 11, v%d" % (v8, v8))
    a("s_lshl_b32 s%d, s%d, 6" % (u, kh))
    a("s_add_u32 s%d, s%d, s%d" % (u, u, n0))
    a("s_lshl_b32 s%d, s%d, 1" % (u, u))
    a("v_add_u32 v%d, s%d, v%d" % (v8, u, v8))
    a("v_and_b32 v%d, 7, v0" % v9)
    a("v_lshrrev_b32 v%d, 3, v0" % v10)
    a("v_and_b32 v%d, 2, v%d" % (v10, v10))
    a("v_xor_b32 v%d, v%d, v%d" % (v9, v9, v10))
    a("v_lshlrev_b32 v%d, 4, v%d" % (v9, v9))
    a("v_add_u32 v%d, v%d, v%d" % (VW[2], v8, v9))
    a("v_xor_b32 v%d, 64, v%d" % (v9, VW[2]))
    a("v_xor_b32 v%d, 0x80, v%d" % (VW[0], VW[2]))
    a("v_xor_b32 v%d, 0x80, v%d" % (v11, v9))
    a("v_add_u32 v%d, 0x%x, v%d" % (VW[1], 8 * 2048 - 1024, v11))
    a("v_add_u32 v%d, 0x%x, v%d" % (VW[3], 8 * 2048 - 1024, v9))
    A_ += L_srd(S_W, P_WD, 3584 * 1024 * 2)
    return A_

def setup_q(vQO=24, vt=25):
    A_ = []; a = A_.append
    a("s_and_b32 s36, s2, 1")
    a("s_lshl_b32 s36, s36, 3")
    a("s_lshr_b32 s37, s2, 3")
    a("s_and_b32 s38, s37, 7")
    a("s_add_u32 s36, s36, s38")
    a("s_lshl_b32 s36, s36, 7")
    a("s_and_b32 s38, s%d, 1" % sW)
    a("s_lshl_b32 s38, s38, 6")
    a("s_add_u32 s36, s36, s38")
    a("s_lshr_b32 s38, s%d, 1" % sW)
    a("s_lshl_b32 s38, s38, 5")
    a("s_add_u32 s36, s36, s38")
    a("s_and_b32 s38, s2, 2")
    a("s_lshl_b32 s38, s38, 1")
    a("s_lshr_b32 s37, s37, 3")
    a("s_add_u32 s37, s37, s38")
    a("s_lshl_b32 s37, s37, 8")
    a("s_and_b32 s38, s2, 4")
    a("s_lshl_b32 s38, s38, 5")
    a("s_add_u32 s37, s37, s38")
    a("v_and_b32 v%d, 15, v0" % vQO)
    a("v_add_u32 v%d, s36, v%d" % (vQO, vQO))
    a("v_lshlrev_b32 v%d, 11, v%d" % (vQO, vQO))
    a("v_lshrrev_b32 v%d, 4, v0" % vt)
    a("v_lshlrev_b32 v%d, 3, v%d" % (vt, vt))
    a("v_add3_u32 v%d, v%d, v%d, s37" % (vQO, vQO, vt))
    a("s_mov_b32 s39, 0x8000")
    A_ += L_srd(32, P_Q, 2048 * 1024 * 2)
    return A_
def ldq():
    assert NWS <= 4
    return [["buffer_load_dwordx2 %s, v%d, s[32:35], %s offen offset:%d" % (aq(QA + 2 * k, 2), vQO, "0" if k < 4 else "s39", (k & 3) * 32)] for k in range(8)]

def setup():
    A_ = []; a = A_.append
    A_ += L_ws(S_FL, FL_OFF, FL_BYTES)
    A_ += own_flag_off(vFO, 50, 51)
    P0 = A_
    A_ = []; a = A_.append
    a("s_and_b32 s46, s2, 7")
    a("s_lshr_b32 s47, s2, 3")
    a("s_lshr_b32 s%d, s46, 2" % sKH)
    a("s_and_b32 s48, s46, 1")
    a("s_lshl_b32 s48, s48, 3")
    a("s_and_b32 s51, s47, 7")
    a("s_add_u32 s48, s48, s51")
    a("s_and_b32 s49, s46, 2")
    a("s_lshl_b32 s49, s49, 1")
    a("s_lshr_b32 s50, s47, 3")
    a("s_add_u32 s49, s49, s50")
    a("v_lshlrev_b32 v2, 4, v0")
    a("v_lshrrev_b32 v3, 4, v0")
    a("s_and_b32 s%d, s%d, 1" % (sMH, sW))
    a("s_lshr_b32 s%d, s%d, 1" % (sKQ, sW))
    a("s_mul_i32 s52, s%d, 56" % sKH)
    a("s_mul_i32 s53, s%d, 28" % sKQ)
    a("s_add_u32 s52, s52, s53")
    a("s_mul_i32 s53, s48, 112")
    a("s_add_u32 s53, s53, s52")
    a("s_lshl_b32 s%d, s53, 13" % sXB)
    a("s_add_u32 s50, s50, s51")
    a("s_and_b32 s%d, s50, 3" % sXI)
    a("s_lshl_b32 s51, s%d, 13" % sXI)
    a("s_add_u32 s%d, s%d, s51" % (sX, sXB))
    a("s_mul_i32 s%d, s%d, %d" % (sKB, sKQ, R1))
    a("s_lshl_b32 s50, s%d, 12" % sMH)
    a("s_lshl_b32 s51, s%d, 11" % sKQ)
    a("s_add_u32 s51, s51, s50")
    a("v_add_u32 v16, s51, v2")
    a("v_xor_b32 v17, 0x800, v16")
    a("s_lshl_b32 s50, s%d, 1" % sKH)
    a("s_add_u32 s50, s50, s%d" % sKQ)
    a("s_lshl_b32 s50, s50, 3")
    a("s_lshr_b32 s51, s48, 1")
    a("s_add_u32 s50, s50, s51")
    a("s_lshl_b32 s50, s50, %d" % (FSL + 3))
    a("v_and_b32 v%d, 7, v0" % vPO)
    a("v_lshlrev_b32 v%d, %d, v%d" % (vPO, FSL, vPO))
    a("v_add_u32 v%d, s50, v%d" % (vPO, vPO))
    a("s_lshl_b32 s49, s49, 7")
    a("s_lshl_b32 s48, s48, 7")
    P1 = A_
    A_ = []; a = A_.append
    a("s_lshl_b32 s50, s%d, 6" % sMH)
    a("s_add_u32 s%d, s48, s50" % sMF)
    a("s_lshl_b32 s50, s%d, 5" % sKQ)
    a("s_add_u32 s%d, s%d, s50" % (sMF, sMF))
    a("s_lshl_b32 s50, s%d, 6" % sKH)
    a("s_add_u32 s%d, s49, s50" % sNF)
    A_ += L_srd(S_Q, P_Q, 2048 * 1024 * 2)
    A_ += L_srd(S_O, P_OUT, 2048 * 1024 * 2)
    a("v_and_b32 v9, 15, v0")
    a("v_add_u32 v9, s%d, v9" % sMF)
    a("v_lshlrev_b32 v%d, 2, v9" % vGO)
    a("v_lshlrev_b32 v%d, 11, v9" % vQO)
    a("v_lshlrev_b32 v10, 3, v3")
    a("v_add_u32 v%d, v%d, v10" % (vQO, vQO))
    a("s_lshl_b32 s50, s%d, 1" % sNF)
    a("v_add_u32 v%d, s50, v%d" % (vQO, vQO))
    a("s_mov_b32 s53, 0x8000")
    A_ += L_ws(S_XB, XB_OFF, XB_BYTES)
    a("s_lshl_b32 s50, s2, 2")
    a("s_add_u32 s50, s50, s%d" % sW)
    a("s_lshl_b32 s%d, s50, 13" % sXS)
    a("s_add_u32 s%d, s%d, 4096" % (sXS + 1, sXS))
    a("s_xor_b32 s%d, s%d, 0x%x" % (sXL, sXS, 4 << 15))
    a("s_add_u32 s%d, s%d, 4096" % (sXL + 1, sXL))
    if POIS == "t":
        a("v_and_b32 v11, 1, v0")
        a("v_lshlrev_b32 v11, 17, v11")
        a("v_xor_b32 v11, s%d, v11" % sXS)
        a("buffer_load_dwordx4 %s, v11, s[%d:%d], 0 offen sc1" % (aq(TGA), S_XB, S_XB + 3))
    NP2 = len(A_)
    A_ += L_ws(S_H, H1_OFF, H1_BYTES)
    A_ += L_ws(S_GT, GT_OFF, GT_BYTES)
    if GATE == 's':
        a("s_lshr_b32 s50, s%d, 6" % sNF)
        a("s_lshl_b32 s50, s50, %d" % (FSL + 4))
        a("s_add_u32 s50, s50, 0x%x" % ZF_REL)
        a("v_lshlrev_b32 v9, %d, v0" % FSL)
        a("v_add_u32 v9, s50, v9")
        a("s_lshr_b32 s50, s%d, 6" % sMF)
        a("s_lshl_b32 s50, s50, %d" % FSL)
        a("s_add_u32 s50, s50, 0x%x" % PF_REL)
        a("v_mov_b32 v8, s50")
        a("v_cmp_gt_u32 vcc, 16, v0")
        a("s_xor_b32 s50, s2, 4")
        a("s_lshl_b32 s50, s50, %d" % FSL)
        a("v_cndmask_b32 v9, v8, v9, vcc")
        a("s_add_u32 s50, s50, 0x%x" % ZF_REL)
        a("v_mov_b32 v8, s50")
        a("v_cmp_gt_u32 vcc, 32, v0")
        a("s_nop 1")
        a("v_cndmask_b32 v%d, v8, v9, vcc" % vDO)
    else:
        a("s_xor_b32 s50, s2, 4")
        a("s_lshl_b32 s50, s50, %d" % FSL)
        a("s_add_u32 s50, s50, 0x%x" % PF_REL)
        a("v_mov_b32 v%d, s50" % vDP)
        a("s_lshr_b32 s50, s%d, 6" % sNF)
        a("s_lshr_b32 s51, s48, 7")
        a("s_sub_u32 s51, s51, s50")
        a("s_lshl_b32 s50, s50, %d" % (FSL + 4))
        a("s_lshl_b32 s51, s51, %d" % (FSL + 4))
        a("s_add_u32 s50, s50, 0x%x" % ZF_REL)
        a("v_and_b32 v8, 1, v3")
        a("v_mul_lo_u32 v8, v8, s51")
        a("v_and_b32 v9, 15, v0")
        a("v_lshlrev_b32 v9, %d, v9" % FSL)
        a("v_add_u32 v8, v8, v9")
        a("v_add_u32 v%d, s50, v8" % vDO)
        if POIS in "gt":
            a("v_cmp_gt_u32 vcc, 32, v0")
            a("v_add_u32 v8, %d, v%d" % ((ZF_REL - PF_REL) & 0xffffffff, vDP))
            a("s_nop 0")
            a("v_cndmask_b32 v%d, v8, v%d, vcc" % (vDO, vDO))
    a("v_lshrrev_b32 v8, 2, v0")
    a("v_add_u32 v8, s%d, v8" % sNF)
    a("v_lshlrev_b32 v8, 12, v8")
    a("v_and_b32 v9, 3, v0")
    a("v_lshlrev_b32 v9, 4, v9")
    a("v_add_u32 v%d, v8, v9" % vZO)
    a("s_lshl_b32 s%d, s%d, 1" % (sZS, sMF))
    a("s_lshl_b32 s%d, s%d, 12" % (sZM, sW))
    a("s_add_u32 s%d, s%d, %d" % (sZM, sZM, ZB))
    a("v_lshrrev_b32 v8, 2, v0")
    a("v_and_b32 v8, 3, v8")
    a("v_lshlrev_b32 v9, 7, v8")
    a("v_lshrrev_b32 v10, 1, v3")
    a("v_lshlrev_b32 v10, 12, v10")
    a("v_add_u32 v9, v9, v10")
    a("v_and_b32 v11, 1, v3")
    a("v_lshlrev_b32 v10, 10, v11")
    a("v_add_u32 v9, v9, v10")
    a("v_and_b32 v10, 3, v0")
    a("v_lshlrev_b32 v10, 3, v10")
    a("v_add_u32 v9, v9, v10")
    a("v_add_u32 v9, s%d, v9" % sKB)
    a("v_lshrrev_b32 v10, 1, v8")
    a("v_lshlrev_b32 v11, 1, v11")
    a("v_or_b32 v10, v10, v11")
    for nt in range(4):
        a("v_xor_b32 v11, %d, v10" % nt)
        a("v_lshlrev_b32 v11, 5, v11")
        a("v_add_u32 v%d, v9, v11" % (20 + nt))
    a("v_lshlrev_b32 v9, 2, v3")
    a("v_add_u32 v9, v9, v8")
    a("v_lshlrev_b32 v9, 6, v9")
    a("v_and_b32 v10, 3, v0")
    a("v_lshlrev_b32 v10, 3, v10")
    a("v_add_u32 v9, v9, v10")
    a("v_add_u32 v%d, s%d, v9" % (vZR, sZM))
    a("v_and_b32 v9, 15, v0")
    a("v_and_b32 v10, 1, v3")
    a("v_lshlrev_b32 v10, 4, v10")
    a("v_add_u32 v9, v9, v10")
    a("v_add_u32 v9, s%d, v9" % sMF)
    a("v_lshlrev_b32 v9, 11, v9")
    a("v_lshrrev_b32 v10, 1, v3")
    a("v_lshlrev_b32 v10, 4, v10")
    a("v_add_u32 v9, v9, v10")
    a("s_lshl_b32 s50, s%d, 1" % sNF)
    a("v_add_u32 v%d, s50, v9" % vOO)
    a("v_add_u32 v18, s%d, v2" % sLB)
    a("s_sub_u32 s50, %d, s%d" % (R1, sKB))
    a("s_lshl_b32 s51, s%d, 12" % sMH)
    a("s_add_u32 s50, s50, s51")
    a("v_add_u32 v19, s50, v2")
    a("s_mov_b32 s%d, 0xffff0000" % MK)
    a("s_mov_b32 s%d, 0" % sISS)
    a("s_mov_b32 s%d, 0" % sMASK)
    a("s_mov_b32 s%d, 0x8000" % sSP)
    if QE == 1:
        assert NWS <= 4
        QL = ["buffer_load_dwordx2 %s, v%d, s[%d:%d], %s offen offset:%d" % (aq(QA + 2 * k, 2), vQO, S_Q, S_Q + 3, "0" if k < 4 else "s53", (k & 3) * 32) for k in range(8)]
        rest = A_[NP2:]; A_ = A_[:NP2]
        st = len(rest) // 9
        for n, i in enumerate(rest):
            if n % st == 0 and n and QL and not i.startswith("s_addc"): A_.append(QL.pop(0))
            A_.append(i)
        A_ += QL
    return P0, P1, A_

def adv(t, sreg, sbase, sidx, sh):
    r = [("s_add_u32 s%d, s%d, 1" % (sidx, sidx), None),
         ("s_and_b32 s%d, s%d, %d" % (sidx, sidx, BLK - 1), None)]
    if t % BLK == BLK - 1:
        r.append(("s_add_u32 s%d, s%d, 0x%x" % (sbase, sbase, BLK << sh), None))
    r.append(("s_lshl_b32 s%d, s%d, %d" % (sreg, sidx, sh), None))
    r.append(("s_add_u32 s%d, s%d, s%d" % (sreg, sreg, sbase), None))
    return r
XSC = os.environ.get("XSC", " sc1")
def ldx(t):
    g = []
    base = (t % XR) * 16
    for i in range(4):
        g.append([("buffer_load_dwordx4 %s, v%d, s[%d:%d], s%d offen offset:%d%s" % (aq(base + 4 * i), 16 + (i >> 1), S_H, S_H + 3, sX, (i & 1) * 1024, XSC), ("x", t))])
    g[-1].extend(adv(t, sX, sXB, sXI, 13))
    return g
def ldw(t):
    g = []
    for I in range(4 if t < NST - D else 2):
        ins = []
        if I == 0:
            if t == NST - D:
                ins += [("s_mov_b32 s%d, s%d" % (sK0, sWK), None), ("s_mov_b32 s%d, s%d" % (sK1, sWB), None), ("s_mov_b32 s%d, s%d" % (sK2, sWI), None)]
            ins.append(("s_add_u32 m0, s%d, %d" % (sLB, slot(t)), None))
            ins.append(("s_nop 0", None))
        if I == 2:
            ins.append(("s_add_u32 m0, s%d, %d" % (sLB, slot(t) + 2048), None))
            ins.append(("s_nop 0", None))
        ins.append(("buffer_load_dwordx4 v%d, s[%d:%d], s%d offen offset:%d lds" % (VW[I], S_W, S_W + 3, sWK, (I & 1) * 1024), ("w", t)))
        g.append(ins)
    g[-1].extend(adv(t, sWK, sWB, sWI, 16))
    return g
def ldws(t):
    g = []
    for I in range(4):
        r = wreg(t) + 4 * I
        g.append([("buffer_load_dwordx4 %s, v%d, s[%d:%d], s%d offen offset:%d" % (aq(r), VW[I], S_W, S_W + 3, sWK, (I & 1) * 1024), ("w", t))])
    g[-1].extend(adv(t, sWK, sWB, sWI, 16))
    return g
def dump(t):
    return ["ds_write_b128 v18, %s offset:%d" % (aq(wreg(t) + 4 * I), slot(t) + I * 1024) for I in range(4)]
def ldk(t):
    g = []
    for I in (2, 3):
        ins = []
        ins.append(("s_add_u32 m0, s%d, %d" % (sLB, slot(t) + 2048), None))
        ins.append(("s_nop 0", None))
        ins.append(("buffer_load_dwordx4 v%d, s[%d:%d], s%d offen offset:%d lds" % (VW[I], S_W, S_W + 3, sK0, (I & 1) * 1024), ("k", t)))
        g.append(ins)
    g[-1].extend(adv(t, sK0, sK1, sK2, 16))
    return g
def poll(r): return "buffer_load_dword v%d, v%d, s[%d:%d], 0 offen sc1" % (r, vPO, S_FL, S_FL + 3)
def mupd(r): return ["v_cmp_ne_u32 vcc, 0, v%d" % r, "s_nop 0", "s_or_b32 s%d, s%d, vcc_lo" % (sMASK, sMASK)]
POLL = "buffer_load_dword v%d, v%d, s[%d:%d], 0 offen sc1" % (vPD, vPO, S_FL, S_FL + 3)
MUPD = ["v_cmp_ne_u32 vcc, 0, v%d" % vPD, "s_nop 0", "s_or_b32 s%d, s%d, vcc_lo" % (sMASK, sMASK)]
def flag_store(k, lab, vd=10):
    return ["s_cmp_lg_u32 s%d, 0" % sW, "s_cbranch_scc1 %s" % lab, "v_mov_b32 v%d, 1" % vd, "s_mov_b64 exec, %d" % (1 << k),
            " buffer_store_dword v%d, v%d, s[%d:%d], 0 offen sc1" % (vd, vFO, S_FL, S_FL + 3), "s_mov_b64 exec, -1", "%s:" % lab]
def spin(a, name, mask, back):
    a.label(name)
    a(POLL)
    a("s_waitcnt vmcnt(0)")
    for i in MUPD: a(i)
    a("s_and_b32 s50, s%d, 0x%x" % (sMASK, mask))
    a("s_cmp_eq_u32 s50, 0x%x" % mask)
    a("s_cbranch_scc1 %s" % back)
    a("s_sub_u32 s%d, s%d, 1" % (sSP, sSP))
    a("s_cmp_lt_i32 s%d, 1" % sSP)
    a("s_cbranch_scc1 %s" % back)
    a("s_sleep 2")
    a("s_branch %s" % name)

def gen_main(a, vms, rts=False, dbg=""):
    def stamp(r):
        if rts: a("s_memrealtime s[%d:%d]" % (r, r + 1))
    def emit(ins, tag=None):
        if ins.endswith(":"): a.raw(ins)
        else: a(ins)
        if ins.startswith("buffer_"):
            for vm in vms: vm.append(tag)
    def younger_than(tag):
        return min(len(vm) - 1 - max(i for i, x in enumerate(vm) if x == tag) for vm in vms)
    OOL = []
    RMP = int(os.environ.get("G2RMP", "4"))
    nxt = {"w": NW0 + NWS, "x": NX0}
    def mix(t):
        g = []; n = 0
        while n < RMP:
            w, x = nxt["w"], nxt["x"]
            cw = w < NST and w <= t + WR
            cx = x < NST and x <= t + XR - 1
            if cw and (w <= x + 1 or not cx): g += ldw(w); nxt["w"] += 1
            elif cx:
                l = ldx(x)
                if x % BLK == 0:
                    b = x // BLK
                    l[0] = [("s_bitcmp1_b32 s%d, %d" % (sMASK, b), None), ("s_cbranch_scc0 G2_SP%d" % b, None), ("G2_OK%d:" % b, None)] + l[0]
                    OOL.append(("G2_SP%d" % b, 1 << b, "G2_OK%d" % b))
                g += l; nxt["x"] += 1
            else: break
            n += 1
        return g
    extras = []
    for I in range(4):
        g = []
        if I == 0: g += [("s_mov_b32 m0, s%d" % sZM, None), ("s_nop 0", None)]
        else: g += [("s_mov_b32 m0, s%d" % sZM, None), ("v_add_u32 v%d, 0x%x, v%d" % (vZO, 16 * 4096 - 1024, vZO), None)]
        g.append(("buffer_load_dwordx4 v%d, s[%d:%d], s%d offen offset:%d sc1 lds" % (vZO, S_Z, S_Z + 3, sZS, I * 1024), "e"))
        extras.append(g)
    QR = 96
    for sl in range(2):
        for nt in range(4):
            extras.append([("buffer_load_dwordx2 v[%d:%d], v%d, s[%d:%d], %s offen offset:%d" % (QR + (sl * 4 + nt) * 2, QR + (sl * 4 + nt) * 2 + 1, vQO, S_Q, S_Q + 3, "0" if sl == 0 else "s53", nt * 32), "e")])
    extras.append([("buffer_load_dword v%d, v%d, s[%d:%d], 0 offen sc1" % (QR + 16, vGO, S_GT, S_GT + 3), "e")])
    extras.append([("buffer_load_dword v%d, v%d, s[%d:%d], 0 offen offset:64 sc1" % (QR + 17, vGO, S_GT, S_GT + 3), "e")])
    ACC = 128
    F = [192, 224]

    def reads(t, lss=(0, 1)):
        fb = F[t & 1]
        w = []
        for ls in lss:
            for nt in range(4):
                for h in range(2):
                    d = fb + 4 * (ls * 4 + nt) + 2 * h
                    w.append("ds_read_b64_tr_b16 %s, v%d offset:%d" % (aq(d, 2), 20 + nt, slot(t) + ls * 2048 + h * 512))
        return w
    def cq(ls, rm, k): return ACC + ((ls * 2 + rm) * 8 + k) * 4
    def mfmas(t, lss=(0, 1)):
        fb = F[t & 1]
        xb = (t % XR) * 16
        m = []
        for ls in lss:
            for rm in (1, 0):
                for sl in range(2):
                    for nt in range(4):
                        c = cq(ls, rm, sl * 4 + nt)
                        n = ls * 4 + nt; i = rm * 2 + sl
                        m.append("v_mfma_f32_16x16x32_bf16 v[%d:%d], %s, %s, %s" % (
                            c, c + 3, aq(fb + 4 * n), aq(xb + 4 * i), "0" if t == 0 else "v[%d:%d]" % (c, c + 3)))
        return m
    def soff(base, k): return slot(base + (k >> 1)) + (k & 1) * 1024

    def add4(d, x, y):
        return ["v_pk_add_f32 v[%d:%d], v[%d:%d], v[%d:%d]" % (d + r, d + r + 1, x + r, x + r + 1, y + r, y + r + 1) for r in (0, 2)]
    def mul4s(d, x, pair, hi):
        return ["v_pk_mul_f32 v[%d:%d], v[%d:%d], v[%d:%d] op_sel:[0,%d] op_sel_hi:[1,%d]" % (d + r, d + r + 1, x + r, x + r + 1, pair, pair + 1, hi, hi) for r in (0, 2)]
    G_ = QR + 16; OG = QR + 18
    QP = 64
    def rnd4l(R, T):
        return ["v_cvt_pk_bf16_f32 v%d, v%d, v%d" % (T, R, R + 1), "v_cvt_pk_bf16_f32 v%d, v%d, v%d" % (T + 1, R + 2, R + 3),
                "v_lshlrev_b32 v%d, 16, v%d" % (R, T), "v_and_b32 v%d, s%d, v%d" % (R + 1, MK, T),
                "v_lshlrev_b32 v%d, 16, v%d" % (R + 2, T + 1), "v_and_b32 v%d, s%d, v%d" % (R + 3, MK, T + 1)]
    ZRD = ["ds_read_b64_tr_b16 v[%d:%d], v%d offset:%d" % (QP + 4 * k + 2, QP + 4 * k + 3, vZR, (k & 3) * 1024 + (k >> 2) * 32) for k in range(8)]
    PKK = int(os.environ.get("G2PKK", "3"))
    def precompute():
        r = []
        for sl in range(2):
            r.append("v_sub_f32 v%d, 1.0, v%d" % (OG + sl, G_ + sl))
            r.append("v_cvt_pk_bf16_f32 v%d, v%d, v%d" % (OG + sl, OG + sl, OG + sl))
            r.append("v_and_b32 v%d, s%d, v%d" % (OG + sl, MK, OG + sl))
        for k in range(8):
            sl = k >> 2
            Q = QP + 4 * k; Z = 124; T = 120
            qs = QR + 2 * k; zs = Q + 2
            if QE: r += ["v_accvgpr_read_b32 v%d, a%d" % (qs + i, ph(QA + 2 * k + i)) for i in range(2)]
            r += ["v_lshlrev_b32 v%d, 16, v%d" % (Z, zs), "v_and_b32 v%d, s%d, v%d" % (Z + 1, MK, zs),
                  "v_lshlrev_b32 v%d, 16, v%d" % (Z + 2, zs + 1), "v_and_b32 v%d, s%d, v%d" % (Z + 3, MK, zs + 1)]
            r += ["v_lshlrev_b32 v%d, 16, v%d" % (Q, qs), "v_and_b32 v%d, s%d, v%d" % (Q + 1, MK, qs),
                  "v_lshlrev_b32 v%d, 16, v%d" % (Q + 2, qs + 1), "v_and_b32 v%d, s%d, v%d" % (Q + 3, MK, qs + 1)]
            if k >= PKK:
                for i in (0, 2): r.append("v_pk_mul_f32 v[%d:%d], v[%d:%d], v[%d:%d]" % (Q + i, Q + i + 1, Q + i, Q + i + 1, Z + i, Z + i + 1))
                r += rnd4l(Q, T)
                r += mul4s(Q, Q, G_, sl)
                r += rnd4l(Q, T)
                continue
            for i in range(4): r.append("v_mul_f32 v%d, v%d, v%d" % (Q + i, Q + i, Z + i))
            r += rnd4l(Q, T)
            for i in range(4): r.append("v_mul_f32 v%d, v%d, v%d" % (Q + i, Q + i, G_ + sl))
            r += rnd4l(Q, T)
        return r
    PC = precompute()
    T0 = NST - D
    H = T0 + D // 2
    DQ = []
    ZCHK = [("ZCHK", None)]
    if QE:
        for t in range(T0, H): DQ += ldk(t)
        DQ += [ZCHK + extras[0]] + extras[1:4] + extras[12:]
        for t in range(H, NST): DQ += ldk(t)
    elif os.environ.get("DQO", "0") == "1":
        DQ += extras[4:12]
        for t in range(T0, H): DQ += ldk(t)
        DQ += [ZCHK + extras[0]] + extras[1:4] + extras[12:]
        for t in range(H, NST): DQ += ldk(t)
    else:
        for t in range(T0, H): DQ += ldk(t)
        DQ += [ZCHK + extras[0]] + extras[1:]
        for t in range(H, NST): DQ += ldk(t)
    DS = int(os.environ.get("G2DS", "20"))
    DN = int(os.environ.get("G2DN", "12"))
    DN2 = int(os.environ.get("G2DN2", "12"))
    PS0 = int(os.environ.get("G2PS0", "4")); PSIG = int(os.environ.get("G2PSIG", "19")); PCHK = int(os.environ.get("G2PCHK", str(NST - 2)))
    PSN = int(os.environ.get("G2PSN", "8"))
    ZP = int(os.environ.get("G2ZP", "12"))
    PLAST = int(os.environ.get("G2PLAST", "10"))
    RX = 32
    ZF = 40
    ZLD = "buffer_load_dword v%d, v%d, s[%d:%d], 0 offen sc1" % (ZF, vDO, S_FL, S_FL + 3)
    ZCK = ["v_cmp_eq_u32 vcc, 0, v%d" % ZF, "s_nop 1"]
    def sweep():
        return [("buffer_load_dwordx4 v[%d:%d], v2, s[%d:%d], s%d offen offset:%d sc1" % (RX + 4 * k, RX + 4 * k + 3, S_XB, S_XB + 3, sXL + (k >> 2), (k & 3) * 1024), "s") for k in range(8)]
    if POIS == "b":
        for i in range(4): a("v_mov_b32 v%d, -1" % (32 + i))
    if os.environ.get("XT") == "1":
        a("s_and_b32 s50, s%d, 0x7f" % sMASK)
        a("s_cmp_eq_u32 s50, 0x7f")
        a("s_cbranch_scc0 G2_XTS")
        a.label("G2_XTO")
        OOL.append(("G2_XTS", 0x7f, "G2_XTO"))
        a("s_lshr_b32 s50, s2, 6")
        a("s_lshl_b32 s50, s50, 1")
        a("s_add_u32 s50, s50, s%d" % sMH)
        a("s_mul_i32 s50, s50, 20480")
        a("s_add_u32 s50, s50, s%d" % sXB)
        a("v_lshlrev_b32 v41, 7, v0")
        for k in range(3):
            if k == 2: a("s_mov_b64 exec, 0xffffffff")
            emit("buffer_load_dword v42, v41, s[%d:%d], s50 offen sc1" % (S_H, S_H + 3), "xt")
            a("s_add_u32 s50, s50, 8192")
        a("s_mov_b64 exec, -1")
    for i in reads(0, (0, 1)): a(i)
    pend_poll = "pa"; zdone = False
    cur_n = [0]
    def emit2(ins, tag=None):
        if ins == "ZCHK":
            n = min(63, younger_than("zf"))
            a("s_waitcnt vmcnt(%d)" % n)
            a.label("G2_ZC")
            for i in ZCK: a(i)
            a("s_cbranch_vccnz G2_ZSP")
            a.label("G2_ZOK")
            return
        emit(ins, tag)
    for t in range(NST):
        n = younger_than(("x", t))
        if t + 1 < NST: n = min(n, younger_than(("w", t + 1)))
        assert n <= 63, n
        if t == PSIG and POIS == "b": n = min(n, younger_than("p"))
        LOG = os.environ.get("BLOG")
        if LOG: a("s_memtime s[86:87]")
        a("s_waitcnt vmcnt(%d) lgkmcnt(0)" % n)
        if LOG:
            a("v_writelane_b32 v44, s86, %d" % (2 * t))
            if t: a("v_writelane_b32 v44, s88, %d" % (2 * t - 1))
        a("s_barrier")
        if LOG: a("s_memtime s[88:89]")
        if t == 0 and not os.environ.get("GCLK"): stamp(94)
        if os.environ.get("BST"):
            if t == 4: stamp(98)
            if t == 12: stamp(88)
            if t == T0: stamp(86)
            if os.environ["BST"] == "2":
                if t == 4: a("s_memtime s[90:91]")
                if t == 12: a("s_memtime s[94:95]")
                if t == T0: a("s_memtime s[96:97]")
        lss = (0, 1) if t < T0 else (0,)
        nm = 16 * len(lss)
        pl = []
        def done(tag): return all(len(vm) - 1 - max(i for i, x in enumerate(vm) if x == tag) >= n for vm in vms)
        if pend_poll is not None and done(pend_poll):
            pl.append((0, [(i, None) for i in MUPD])); pend_poll = None
        if not zdone and done("z"):
            zdone = True
            pl.append((0, [(i, None) for i in flag_store(1, "G2_ZF")]))
        if pend_poll is None and t <= PLAST:
            pend_poll = ("pl", t)
            pl.append((0, [(POLL, pend_poll)]))
        if t + 1 < NST:
            for n_, g in enumerate(reads(t + 1, (0, 1) if t + 1 < T0 else (0,))): pl.append((n_ + (n_ >> 1), [(g, None)]))
        gl = mix(t)
        for w in range(6, NW0 + NWS):
            if max(0, w - WR) == t: gl = gl + [[(i, None)] for i in dump(w)]
        if POIS == "b":
            for k in range(8):
                if PS0 + (k * PSN) // 8 == t:
                    gl = gl + [[("buffer_store_dwordx4 v[32:35], v2, s[%d:%d], s%d offen offset:%d sc1" % (S_XB, S_XB + 3, sXS + (k >> 2), (k & 3) * 1024), "p")]]
            if t == PSIG:
                pl.append((0, [(i, None) for i in flag_store(2, "G2_SIG")]))
            if t == PCHK:
                gl = gl + [[("buffer_load_dword v39, v%d, s[%d:%d], 0 offen sc1" % (vDP, S_FL, S_FL + 3), "f")]]
        if POIS == "t" and t == 3:
            TX = []
            for op in ("rd", "v_lshrrev_b32 v%d, 24, v%d", "v_add_u32 v%d, 1, v%d", "v_and_b32 v%d, 0xff, v%d", "v_max_u32 v%d, 1, v%d", "l0", "l1", "sh"):
                for r in range(NTG):
                    if op == "rd": TX.append("v_accvgpr_read_b32 v%d, a%d" % (48 + r, ph(TGA + r)))
                    elif op == "l0": TX.append("v_readlane_b32 s%d, v%d, 0" % (sTS + r, 48 + r))
                    elif op == "l1": TX.append("v_readlane_b32 s%d, v%d, 1" % (sTR + r, 48 + r))
                    elif op == "sh": TX.append("s_lshl_b32 s%d, s%d, 24" % (sTR + r, sTR + r))
                    else: TX.append(op % (48 + r, 48 + r))
            for n_, i in enumerate(TX): pl.append(((n_ * 31) // len(TX), [(i, None)]))
        if t == ZP: gl = gl + [[(ZLD, "zf")]]
        if t >= DS:
            k = max(0, (DN if t < T0 else DN2) - len(gl)) if t < NST - 1 else len(DQ)
            for j_ in range(min(k, len(DQ))):
                tg = [x for _, x in DQ[j_] if isinstance(x, tuple) and x[0] == "k"]
                if tg and (tg[0][1] > t + WR or nxt["w"] <= T0): k = j_; break
            gl = gl + DQ[:k]; DQ = DQ[k:]
        for n_, g in enumerate(gl): pl.append(((n_ * nm) // max(8, len(gl)) + 1, g))
        if t == NST - 1:
            for k in range(8):
                c = cq(0, 1, k)
                pl.append((8 + k, [("ds_write_b128 v18, v[%d:%d] offset:%d" % (c, c + 3, soff(4, k)), None)]))
        for it in place([(m, None) for m in mfmas(t, lss)], pl): emit2(*it)
    assert not DQ and zdone and pend_poll is None

    if os.environ.get("BLOG"):
        a("s_add_u32 s92, s%d, 0x6000000" % P_WS)
        a("s_addc_u32 s93, s%d, 0" % (P_WS + 1))
        a("s_mov_b32 s94, 0x100000")
        a("s_mov_b32 s95, 0x00020000")
        a("s_lshl_b32 s90, s2, 2")
        a("s_add_u32 s90, s90, s%d" % sW)
        a("s_lshl_b32 s90, s90, 8")
        a("v_lshlrev_b32 v45, 2, v0")
        a(" buffer_store_dword v44, v45, s[92:95], s90 offen")
    a("s_waitcnt lgkmcnt(0)")
    a("s_barrier")
    for k in range(8):
        c = cq(0, 1, k)
        a("ds_read_b128 v[%d:%d], v19 offset:%d" % (c, c + 3, soff(4, k)))
    for k in range(8):
        a("s_waitcnt lgkmcnt(%d)" % (7 - k))
        c = cq(0, 0, k); d = cq(0, 1, k)
        for i in add4(c, c, d): a(i)
        if POIS == "t":
            for r in range(NTG): a("v_alignbit_b32 v%d, s%d, v%d, 8" % (c + r, sTS + r, c + r))
        else:
            for r in range(4): a("v_min_u32 v%d, -2, v%d" % (c + r, c + r))
        emit("buffer_store_dwordx4 v[%d:%d], v2, s[%d:%d], s%d offen offset:%d sc1" % (c, c + 3, S_XB, S_XB + 3, sXS + (k >> 2), (k & 3) * 1024), "st")
    def fchk():
        a("s_waitcnt vmcnt(%d)" % younger_than("f"))
        a.label("G2_FCHK")
        a("v_readfirstlane_b32 s50, v39")
        a("s_cmp_lg_u32 s50, 0")
        a("s_cbranch_scc1 G2_FOK")
        a("s_sub_u32 s%d, s%d, 1" % (sSP, sSP))
        a("s_cmp_lt_i32 s%d, 1" % sSP)
        a("s_cbranch_scc1 G2_FOK")
        a("s_sleep 4")
        a("buffer_load_dword v39, v%d, s[%d:%d], 0 offen sc1" % (vDP, S_FL, S_FL + 3))
        a("s_waitcnt vmcnt(0)")
        a("s_branch G2_FCHK")
        a.label("G2_FOK")
    SW = int(os.environ.get("G2SW", str(NST - 1)))
    NPC = int(os.environ.get("G2NPC", "2"))
    a("s_waitcnt vmcnt(%d)" % younger_than(("k", H - 1)))
    a("s_barrier")
    for i in reads(T0, (1,)): a(i)
    for t in range(T0, NST):
        if t == H - 1:
            a("s_waitcnt vmcnt(%d) lgkmcnt(0)" % younger_than(("k", NST - 1)))
            a("s_barrier")
        else:
            a("s_waitcnt lgkmcnt(0)")
        if t == SW and POIS == "b": fchk()
        pl = []
        if t + 1 < NST:
            for n, g in enumerate(reads(t + 1, (1,))): pl.append((n, [(g, None)]))
        if t == H - 1:
            for k, g in enumerate(ZRD): pl.append((8 + k, [(g, None)]))
        if t >= H:
            for k in range(16): pl.append((k, [(g, None) for g in PC[NPC * k:NPC * k + NPC]]))
            PC = PC[NPC * 16:]
        if t == SW:
            for k, g in enumerate(sweep()): pl.append((2 * k, [g]))
        if t == NST - 1:
            for k in range(8):
                c = cq(1, 1, k)
                pl.append((8 + k, [("ds_write_b128 v18, v[%d:%d] offset:%d" % (c, c + 3, soff(0, k)), None)]))
        for it in place([(m, None) for m in mfmas(t, (1,))], pl): emit(*it)
    if not os.environ.get("CST") and os.environ.get("BST") != "2": stamp(96)
    NP1 = int(os.environ.get("G2NP1", "40"))
    for i in PC[:NP1]: a(i)
    PC = PC[NP1:]
    a("s_waitcnt lgkmcnt(0)")
    a("s_barrier")
    for k in range(8):
        c = cq(1, 1, k)
        a("ds_read_b128 v[%d:%d], v19 offset:%d" % (c, c + 3, soff(0, k)))
    for i in PC: a(i)
    a("s_waitcnt lgkmcnt(0)")
    for k in range(8):
        c = cq(1, 0, k); d = cq(1, 1, k)
        for i in add4(c, c, d): a(i)
    a("s_mov_b32 s%d, 0x8000" % sSP)
    a("s_branch G2_CHK")
    for nm_, mask, back in OOL: spin(a, nm_, mask, back)
    a.label("G2_ZSP")
    a("s_sub_u32 s%d, s%d, 1" % (sSP, sSP))
    a("s_cmp_lt_i32 s%d, 1" % sSP)
    a("s_cbranch_scc1 G2_ZOK")
    a("s_sleep 2")
    a(ZLD)
    a("s_waitcnt vmcnt(0)")
    a("s_branch G2_ZC")
    a.label("G2_POLL")
    a("s_sub_u32 s%d, s%d, 1" % (sSP, sSP))
    a("s_cmp_lt_i32 s%d, 1" % sSP)
    a("s_cbranch_scc1 G2_FIN")
    for g in sweep(): a(g[0])
    a.label("G2_CHK")
    a("s_waitcnt vmcnt(0)")
    if POIS == "t":
        for k in range(8):
            for r in range(NTG):
                d = 120 + ((k * NTG + r) & 1)
                a("v_msad_u8 v%d, v%d, s%d, %s" % (d, RX + 4 * k + r, sTR + r, "0" if k * NTG + r < 2 else "v%d" % d))
        a("v_or_b32 v120, v120, v121")
        a("v_cmp_ne_u32 vcc, 0, v120")
    else:
        a("v_max3_u32 v120, v%d, v%d, v%d" % (RX, RX + 1, RX + 2))
        a("v_max3_u32 v121, v%d, v%d, v%d" % (RX + 3, RX + 4, RX + 5))
        for i in range(13):
            d = 120 + (i & 1)
            a("v_max3_u32 v%d, v%d, v%d, v%d" % (d, d, RX + 6 + 2 * i, RX + 7 + 2 * i))
        a("v_max_u32 v120, v120, v121")
        a("v_cmp_eq_u32 vcc, -1, v120")
    a("s_nop 1")
    a("s_cbranch_vccnz G2_POLL")
    a.label("G2_FIN")
    for nt in range(4):
        for sl in range(2):
            k = sl * 4 + nt
            B = cq(1, 0, k)
            T = 124; O = 96 + 4 * nt + 2 * sl
            if POIS == "t":
                for r in range(NTG): a("v_lshlrev_b32 v%d, 8, v%d" % (RX + 4 * k + r, RX + 4 * k + r))
            for i in add4(B, B, RX + 4 * k): a(i)
            for i in rnd4l(B, T): a(i)
            for i in mul4s(B, B, OG, sl): a(i)
            for i in rnd4l(B, T): a(i)
            for i in add4(B, B, QP + 4 * k): a(i)
            a("v_cvt_pk_bf16_f32 v%d, v%d, v%d" % (O, B, B + 1))
            a("v_cvt_pk_bf16_f32 v%d, v%d, v%d" % (O + 1, B + 2, B + 3))
        O = 96 + 4 * nt
        a("s_nop 1")
        a("v_permlane16_swap_b32 v%d, v%d" % (O, O + 2))
        a("v_permlane16_swap_b32 v%d, v%d" % (O + 1, O + 3))
        a("s_nop 0")
        a("buffer_store_dwordx4 v[%d:%d], v%d, s[%d:%d], 0 offen offset:%d" % (O, O + 3, vOO, S_O, S_O + 3, nt * 32))
```

```python
H1_OFF = 0
H1_BYTES = 2048 * 3584 * 2
G_OFF = 16 << 20
G_PITCH = 4224
G1_REL = 1024 * G_PITCH
G_BYTES = 1024 * G_PITCH
Z_OFF = 28 << 20
Z_BYTES = 1024 * 2048 * 2
GT_OFF = 33 << 20
GT_BYTES = 2048 * 4
XB_OFF = 36 << 20
XB_BYTES = 256 * 4 * 8192
FL_OFF = 35 << 20
import os
FSL = int(os.environ.get("FSL", "8"))
FL_BYTES = 768 << FSL
HF_REL, ZF_REL, PF_REL = 0, 256 << FSL, 512 << FSL
GO = [(ip, t) for th in range(2) for ip in range(4) for t in (2 * th, 2 * th + 1)]
GATE = os.environ.get("GATE", "g")
POIS = os.environ.get("POIS", "t")
NTG = int(os.environ.get("NTG", "2"))
QE = int(os.environ.get("QE", "2"))
```

```python
import sys, os
os.environ.setdefault("PD", "4")
from asmlib import *
from prep import *
import conv2
from gemm1 import *
import gemm2f
import prep6
ST = os.environ.get("STAMPS", "") != ""
KN = "gated_mix__ssm_conv_h3__geglu_ffn__prompt_kernel"
a = A()
hdr = open("gated_mix__ssm_conv_h3__geglu_ffn__prompt.s.ref").read().split("\n")
for l in hdr:
    if l.startswith("; Override") : break
    a.raw(l)
if os.environ.get("LIST"): a.raw("; @launch kernel=%s grid=(256,1,1) block=(256,1,1) lds=163840" % KN)
else: a.raw("; @launch grid=(256,1,1) block=(256,1,1) lds=163840")
a.raw('.amdgcn_target "amdgcn-amd-amdhsa--gfx950"')
a.raw(".text")
def rt_end():
    if ST:
        a("s_waitcnt vmcnt(0) lgkmcnt(0)")
        a("s_memrealtime s[20:21]")
        a("s_load_dwordx2 s[22:23], s[0:1], 104")
        a("s_waitcnt lgkmcnt(0)")
        a("s_add_u32 s24, s22, 0x5000000")
        a("s_addc_u32 s25, s23, 0")
        a("s_mov_b32 s26, 0x10000")
        a("s_mov_b32 s27, 0x00020000")
        a("s_mov_b64 exec, 1")
        for i, r in enumerate((92, 98, 88, 86, 90, 94, 96, 20)):
            a("v_mov_b32 v%d, s%d" % (4 + i, r))
        a("s_lshl_b32 s22, s2, 2")
        a("s_add_u32 s22, s22, s40")
        a("s_lshl_b32 s22, s22, 5")
        a("v_mov_b32 v12, s22")
        a("buffer_store_dwordx4 v[4:7], v12, s[24:27], 0 offen")
        a("buffer_store_dwordx4 v[8:11], v12, s[24:27], 0 offen offset:16")
kernel_header(a, KN)
a.label("g1_kernel")
a("s_cmp_ge_u32 s2, 256")
a("s_cbranch_scc1 G_END")
if os.environ.get("BADMAP"):
    a("s_lshr_b32 s3, s2, 3")
    a("s_add_u32 s3, s3, s2")
    a("s_and_b32 s3, s3, 7")
    a("s_and_b32 s2, s2, 0xf8")
    a("s_or_b32 s2, s2, s3")
if os.environ.get("ROTID", "1") == "1":
    a("s_add_u32 s2, s2, 32")
    a("s_and_b32 s2, s2, 0xff")
if ST: a("s_memrealtime s[92:93]")
a("s_cmp_lt_u32 s2, 32")
a("s_cbranch_scc1 G1_PREP")
D, E = gen_gemm1(a, dbg="P" + os.environ.get("G1DBG", ""), fuse=True, rts=ST)
conv2.conv_pre(a, D, E)
a.label("CV_COMMON")
ST2 = ST and not os.environ.get("PST")
vms = conv2.conv_fused(a, ST2)
a.label("g2_code")
gemm2f.gen_main(a, vms, rts=ST2)
rt_end()
a.label("G_END")
a("s_endpgm")
a.label("G1_PREP")
prep6.gen_prep6(a, 2, False)
a("v_lshrrev_b32 v1, 6, v0")
a("v_and_b32 v0, 63, v0")
a("s_nop 0")
a("v_readfirstlane_b32 s40, v1")
conv2.conv_ptrs(a)
a("s_waitcnt vmcnt(0) lgkmcnt(0)")
conv2.flag_srd(a)
if ST: a("s_memrealtime s[98:99]")
a("s_lshl_b32 s84, s40, 6")
a("v_add_u32 v252, s84, v0")
code_touch(a, 48, 252, 252, "CV_COMMON", n=2, end_label="G1_PREP")
a("s_barrier")
a("s_cmp_lg_u32 s40, 0")
a("s_cbranch_scc1 PREP_M1")
conv2.signal(a)
a.label("PREP_M1")
from layout import GATE, POIS
assert (GATE, POIS) in (("g", "b"), ("s", "g"), ("g", "g"), ("g", "t"))
if GATE == "s":
    conv2.gate_spare(a)
    a("s_waitcnt vmcnt(0)")
else:
    if POIS == "g":
        from layout import XB_OFF, XB_BYTES
        a("s_lshl_b32 s56, s2, 2")
        a("s_add_u32 s56, s56, s40")
        a("s_lshl_b32 s56, s56, 13")
        a("s_add_u32 s57, s56, 4096")
        ws_srd(a, 52, conv2.P_WS, XB_OFF, XB_BYTES)
        a("v_lshlrev_b32 v52, 4, v0")
        for i in range(4): a("v_mov_b32 v%d, -1" % (48 + i))
        for k in range(8): a("buffer_store_dwordx4 v[48:51], v52, s[52:55], s%d offen offset:%d sc1" % (56 + (k >> 2), (k & 3) * 1024))
    for i in conv2.wd_touch(True, True): a(i)
a("s_cmp_lg_u32 s40, 0")
a("s_cbranch_scc1 PREP_P4")
a("s_mov_b32 s85, 0x4000")
a.label("PREP_P3")
conv2.poll_issue(a, 210)
a("s_waitcnt vmcnt(0)")
conv2.poll_check(a, 210, 84)
a("s_cmp_lg_u32 s84, 0")
a("s_cbranch_scc1 PREP_P4")
a("s_sub_u32 s85, s85, 1")
a("s_cmp_eq_u32 s85, 0")
a("s_cbranch_scc1 PREP_P4")
a("s_sleep 16")
a("s_branch PREP_P3")
a.label("PREP_P4")
a("s_barrier")
if ST: a("s_memrealtime s[88:89]")
if GATE == "s":
    a("s_cmp_lg_u32 s40, 0")
    a("s_cbranch_scc1 PREP_P5")
    conv2.aux_flag(a)
    a.label("PREP_P5")
else:
    for i in conv2.gate_loads(): a(i)
for g in conv2.conv_early(a):
    for i in g: a(i)
conv2.conv_setup(a)
for i in gemm2f.setup_w([47, 48, 58, 59, 62, 63], [43, 44, 45, 46]): a(i)
from layout import QE
if QE == 2:
    for i in gemm2f.setup_q(): a(i)
D = conv2.conv_issue(a)
conv2.conv_pre(a, D, None, [i for g in conv2.gate_compute() for i in g] if GATE == 'g' else None)
for i in conv2.wd_touch(True): a(i)
a("s_branch CV_COMMON")
a.label("G1_END")
a.label("CODE_END")
a.raw('.section .rodata,"a"')
a.raw(kernel_desc(KN, 512, 102, 256))
import align
L = a.text().split("\n")
AL = os.environ.get("ALIGN", "0")
if AL != "0": L = align.align(L, AL)
align.report(L)
open(sys.argv[1], "w").write("\n".join(L))
```

```python
import sys, os
os.environ.setdefault("PD", "4")
from asmlib import *
from prep import *
import conv2
from gemm1 import *
import gemm2f
import prep6
ST = os.environ.get("STAMPS", "") != ""
KN = "gated_mix__ssm_conv_h3__geglu_ffn__prompt_kernel"
a = A()
hdr = open("gated_mix__ssm_conv_h3__geglu_ffn__prompt.s.ref").read().split("\n")
for l in hdr:
    if l.startswith("; Override") : break
    a.raw(l)
if os.environ.get("LIST"): a.raw("; @launch kernel=%s grid=(256,1,1) block=(256,1,1) lds=163840" % KN)
else: a.raw("; @launch grid=(256,1,1) block=(256,1,1) lds=163840")
a.raw('.amdgcn_target "amdgcn-amd-amdhsa--gfx950"')
a.raw(".text")
def rt_end():
    if ST:
        a("s_waitcnt vmcnt(0) lgkmcnt(0)")
        a("s_memrealtime s[20:21]")
        a("s_load_dwordx2 s[22:23], s[0:1], 104")
        a("s_waitcnt lgkmcnt(0)")
        a("s_add_u32 s24, s22, 0x5000000")
        a("s_addc_u32 s25, s23, 0")
        a("s_mov_b32 s26, 0x10000")
        a("s_mov_b32 s27, 0x00020000")
        a("s_mov_b64 exec, 1")
        for i, r in enumerate((92, 98, 88, 86, 90, 94, 96, 20)):
            a("v_mov_b32 v%d, s%d" % (4 + i, r))
        a("s_lshl_b32 s22, s2, 2")
        a("s_add_u32 s22, s22, s40")
        a("s_lshl_b32 s22, s22, 5")
        a("v_mov_b32 v12, s22")
        a("buffer_store_dwordx4 v[4:7], v12, s[24:27], 0 offen")
        a("buffer_store_dwordx4 v[8:11], v12, s[24:27], 0 offen offset:16")
        if os.environ.get("DST"):
            a("s_cmp_lg_u32 s22, %d" % (int(os.environ["DST"]) * 128))
            a("s_cbranch_scc1 G_END")
            for i in range(1, 8): a("v_sub_u32 v%d, v%d, v4" % (4 + i, 4 + i))
            a("s_load_dwordx2 s[24:25], s[0:1], 96")
            a("s_mov_b32 s26, 256")
            a("s_waitcnt lgkmcnt(0)")
            a("buffer_store_dwordx4 v[4:7], off, s[24:27], 0 offset:16")
            a("buffer_store_dwordx4 v[8:11], off, s[24:27], 0 offset:32")
kernel_header(a, KN)
a.label("g1_kernel")
a("s_cmp_ge_u32 s2, 256")
a("s_cbranch_scc1 G_END")
if os.environ.get("BADMAP"):
    a("s_lshr_b32 s3, s2, 3")
    a("s_add_u32 s3, s3, s2")
    a("s_and_b32 s3, s3, 7")
    a("s_and_b32 s2, s2, 0xf8")
    a("s_or_b32 s2, s2, s3")
if os.environ.get("ROTID", "1") == "1":
    a("s_add_u32 s2, s2, 32")
    a("s_and_b32 s2, s2, 0xff")
if ST: a("s_memrealtime s[92:93]")
a("s_cmp_lt_u32 s2, 32")
a("s_cbranch_scc1 G1_PREP")
D, E = gen_gemm1(a, dbg="P" + os.environ.get("G1DBG", ""), fuse=True, rts=ST)
conv2.conv_pre(a, D, E)
a.label("CV_COMMON")
ST2 = ST and not os.environ.get("PST")
vms = conv2.conv_fused(a, ST2)
a.label("g2_code")
gemm2f.gen_main(a, vms, rts=ST2)
rt_end()
a.label("G_END")
a("s_endpgm")
a.label("G1_PREP")
prep6.gen_prep6(a, 2, False)
a("v_lshrrev_b32 v1, 6, v0")
a("v_and_b32 v0, 63, v0")
a("s_nop 0")
a("v_readfirstlane_b32 s40, v1")
conv2.conv_ptrs(a)
a("s_waitcnt vmcnt(0) lgkmcnt(0)")
conv2.flag_srd(a)
if ST: a("s_memrealtime s[98:99]")
a("s_lshl_b32 s84, s40, 6")
a("v_add_u32 v252, s84, v0")
code_touch(a, 48, 252, 252, "CV_COMMON", n=2, end_label="G1_PREP")
a("s_barrier")
a("s_cmp_lg_u32 s40, 0")
a("s_cbranch_scc1 PREP_M1")
conv2.signal(a)
a.label("PREP_M1")
from layout import GATE, POIS
assert (GATE, POIS) in (("g", "b"), ("s", "g"), ("g", "g"), ("g", "t"))
if GATE == "s":
    conv2.gate_spare(a)
    a("s_waitcnt vmcnt(0)")
else:
    if POIS == "g":
        from layout import XB_OFF, XB_BYTES
        a("s_lshl_b32 s56, s2, 2")
        a("s_add_u32 s56, s56, s40")
        a("s_lshl_b32 s56, s56, 13")
        a("s_add_u32 s57, s56, 4096")
        ws_srd(a, 52, conv2.P_WS, XB_OFF, XB_BYTES)
        a("v_lshlrev_b32 v52, 4, v0")
        for i in range(4): a("v_mov_b32 v%d, -1" % (48 + i))
        for k in range(8): a("buffer_store_dwordx4 v[48:51], v52, s[52:55], s%d offen offset:%d sc1" % (56 + (k >> 2), (k & 3) * 1024))
    for i in conv2.wd_touch(True, True): a(i)
a("s_cmp_lg_u32 s40, 0")
a("s_cbranch_scc1 PREP_P4")
a("s_mov_b32 s85, 0x4000")
a.label("PREP_P3")
conv2.poll_issue(a, 210)
a("s_waitcnt vmcnt(0)")
conv2.poll_check(a, 210, 84)
a("s_cmp_lg_u32 s84, 0")
a("s_cbranch_scc1 PREP_P4")
a("s_sub_u32 s85, s85, 1")
a("s_cmp_eq_u32 s85, 0")
a("s_cbranch_scc1 PREP_P4")
a("s_sleep 16")
a("s_branch PREP_P3")
a.label("PREP_P4")
a("s_barrier")
if ST: a("s_memrealtime s[88:89]")
if GATE == "s":
    a("s_cmp_lg_u32 s40, 0")
    a("s_cbranch_scc1 PREP_P5")
    conv2.aux_flag(a)
    a.label("PREP_P5")
else:
    for i in conv2.gate_loads(): a(i)
for g in conv2.conv_early(a):
    for i in g: a(i)
conv2.conv_setup(a)
for i in gemm2f.setup_w([47, 48, 58, 59, 62, 63], [43, 44, 45, 46]): a(i)
from layout import QE
if QE == 2:
    for i in gemm2f.setup_q(): a(i)
D = conv2.conv_issue(a)
conv2.conv_pre(a, D, None, [i for g in conv2.gate_compute() for i in g] if GATE == 'g' else None)
for i in conv2.wd_touch(True): a(i)
a("s_branch CV_COMMON")
a.label("G1_END")
a.label("CODE_END")
a.raw('.section .rodata,"a"')
a.raw(kernel_desc(KN, 512, 102, 256))
import align
L = a.text().split("\n")
AL = os.environ.get("ALIGN", "0")
if AL != "0": L = align.align(L, AL)
align.report(L)
open(sys.argv[1], "w").write("\n".join(L))
```
